```python
import torch

def _softmax(x, axis=-1):
    return torch.softmax(x, dim=axis)
def _gelu(x):
    return torch.nn.functional.gelu(x, approximate="tanh")
def _silu(x):
    return torch.nn.functional.silu(x)
def _sigmoid(x):
    return torch.sigmoid(x)
def _layernorm(x, axis=-1, eps=1e-5):
    m = x.mean(dim=axis, keepdim=True)
    v = x.var(dim=axis, keepdim=True, unbiased=False)
    return (x - m) / torch.sqrt(v + eps)
def _scatter_add(tgt, idx, src, axis=0):
    return tgt.clone().index_add_(axis, idx, src)
def _segment_sum(src, seg, n):
    out = torch.zeros((n,) + src.shape[1:], dtype=src.dtype)
    return out.index_add_(0, seg, src)
def _pad(x, pw):
    flat = tuple(v for pair in reversed(pw) for v in pair)
    return torch.nn.functional.pad(x, flat)

kernel_name = 'standalone__detection_seg_dino__vision'

def setup_inputs():

    _w = (lambda a: (lambda t: t.to(torch.bfloat16) if t.is_floating_point() else t)(torch.as_tensor(a)))
    H = W = (384 // 2) * 2
    C = 384
    Nq = 16
    sc = C ** -0.5
    return {
        "q": _w((lambda *s: torch.randn(*s, dtype=torch.bfloat16) * 0.05)(1, Nq, C)),
        "f0": _w((lambda *s: torch.randn(*s, dtype=torch.bfloat16) * 0.8)(1, H, W, C)),
        "f1": _w((lambda *s: torch.randn(*s, dtype=torch.bfloat16) * 0.8)(1, H // 2, W // 2, C)),
        "wq": _w((lambda *s: torch.randn(*s, dtype=torch.bfloat16) * 1.6)(C, C) * sc),
        "wk": _w((lambda *s: torch.randn(*s, dtype=torch.bfloat16) * 1.6)(C, C) * sc),
        "wv": _w((lambda *s: torch.randn(*s, dtype=torch.bfloat16) * 0.8)(C, C) * sc),
        "wo": _w((lambda *s: torch.randn(*s, dtype=torch.bfloat16) * 0.8)(C, C) * sc),
    }

def reference(q, f0, f1, wq, wk, wv, wo):
    B, H, W, C = f0.shape
    f1u = (lambda x, n, axis: torch.repeat_interleave(x, n, dim=axis))((lambda x, n, axis: torch.repeat_interleave(x, n, dim=axis))(f1, 2, axis=1), 2, axis=2)
    fused = f0 + f1u
    feats = _layernorm(fused.reshape(B, H * W, C), axis=-1)
    qn = _layernorm(q, axis=-1)
    Q = torch.einsum("bnc,cd->bnd", qn, wq)
    K = torch.einsum("bmc,cd->bmd", feats, wk)
    V = torch.einsum("bmc,cd->bmd", feats, wv)
    scale = C ** -0.5
    logits = torch.einsum("bnd,bmd->bnm", Q, K) * scale
    attn = _softmax(logits, axis=-1)
    ctx = torch.einsum("bnm,bmd->bnd", attn, V)
    return q + torch.einsum("bnd,dc->bnc", ctx, wo)
```

```python
import re

class Asm:
    def __init__(self):
        self.lines = []
    def __call__(self, s=''):
        for l in s.split('\n'):
            self.lines.append(l)
    def nop(self, n):
        while n > 0:
            k = min(n, 16)
            self.lines.append(f'    s_nop {k-1}')
            n -= k
    def text(self):
        return '\n'.join(self.lines) + '\n'

def vr(base, n=1):
    return f'v{base}' if n == 1 else f'v[{base}:{base+n-1}]'
def ar(base, n=1):
    return f'a{base}' if n == 1 else f'a[{base}:{base+n-1}]'
def sr(base, n=1):
    return f's{base}' if n == 1 else f's[{base}:{base+n-1}]'

_REG = re.compile(r'^(-|abs\()?([vas])(?:(\d+)|\[(\d+):(\d+)\])\)?$')

def regs_of(tok):
    tok = tok.strip()
    if tok in ('vcc',): return {('s', 'vcc')}
    if tok == 'exec': return {('s', 'exec')}
    if tok == 'm0': return {('s', 'm0')}
    m = _REG.match(tok)
    if not m: return set()
    k = m.group(2)
    if m.group(3) is not None:
        return {(k, int(m.group(3)))}
    return {(k, x) for x in range(int(m.group(4)), int(m.group(5)) + 1)}

TRANS = ('v_exp_', 'v_log_', 'v_rcp_', 'v_rsq_', 'v_sqrt_', 'v_sin_', 'v_cos_')

class Ins:
    def __init__(self, line, idx):
        self.line = line; self.idx = idx
        s = line.split(';')[0].strip()
        self.op = s.split()[0]
        rest = s[len(self.op):].strip()
        ops = [o.strip() for o in rest.split(',')] if rest else []
        if ops:
            last = ops[-1].split()
            self.mods = ' '.join(last[1:])
            ops[-1] = last[0] if last else ''
        else:
            self.mods = ''
        self.ops = ops
        op = self.op
        self.is_mfma = op.startswith('v_mfma')
        self.is_valu = op.startswith('v_') and not self.is_mfma
        self.is_dot = op.startswith('v_dot')
        self.is_trans = op.startswith(TRANS)
        self.is_dpp = 'dpp' in op or 'row_' in self.mods or 'quad_perm' in self.mods
        self.is_perm = op.startswith('v_permlane')
        self.is_rl = op.startswith('v_readlane') or op.startswith('v_readfirstlane') or op.startswith('v_writelane')
        self.is_vmem = op.startswith(('global_', 'buffer_', 'flat_'))
        self.is_ds = op.startswith('ds_')
        self.is_salu = op.startswith('s_')
        self.dst = set(); self.src = set(); self.srcc = set(); self.srcab = set()
        R = [regs_of(o) for o in ops]
        if self.is_mfma:
            self.dst = R[0]; self.srcab = R[1] | R[2]; self.srcc = R[3]; self.src = self.srcab | self.srcc
            if '16x16x4_f32' in op: self.sgemm = True; self.passes = 8
            elif '32x32x2_f32' in op: self.sgemm = True; self.passes = 16
            elif '32x32' in op: self.sgemm = False; self.passes = 8
            else: self.sgemm = False; self.passes = 4
        elif self.is_valu:
            if op.startswith('v_cmp'):
                self.dst = R[0]; self.src = set().union(*R[1:]) if len(R) > 1 else set()
                if op.startswith('v_cmpx'): self.dst |= {('s', 'exec')}
            elif self.is_perm:
                self.dst = R[0] | R[1]; self.src = R[0] | R[1]
            elif op.startswith(('v_add_co', 'v_sub_co', 'v_addc_co', 'v_subb_co')):
                self.dst = R[0] | R[1]; self.src = set().union(*R[2:])
            else:
                self.dst = R[0]; self.src = set().union(*R[1:]) if len(R) > 1 else set()
                if op.startswith(('v_fmac', 'v_dot2c', 'v_writelane')) : self.src |= R[0]
                if op.startswith('v_cndmask') and len(ops) == 3: self.src |= {('s', 'vcc')}
                if self.is_dpp or 'sdwa' in op:
                    if 'row_mask' in self.mods and 'row_mask:0xf' not in self.mods: self.src |= R[0]
        elif self.is_ds:
            if op.startswith(('ds_read', 'ds_bpermute', 'ds_permute', 'ds_swizzle')):
                self.dst = R[0]; self.src = set().union(*R[1:])
            else:
                self.src = set().union(*R)
        elif self.is_vmem:
            if 'load' in op and 'lds' not in op and ' lds' not in (' ' + self.mods):
                self.dst = R[0]; self.src = set().union(*R[1:])
            elif 'atomic' in op and 'sc0' in self.mods:
                self.dst = R[0]; self.src = set().union(*R[1:])
            else:
                self.src = set().union(*R) if R else set()
            self.wide_store = ('store' in op) and ('x3' in op or 'x4' in op)
        elif self.is_salu:
            if op.startswith(('s_cmp', 's_cbranch', 's_branch', 's_waitcnt', 's_nop', 's_barrier', 's_endpgm', 's_sleep', 's_setprio', 's_bitcmp')):
                self.src = set().union(*R) if R else set()
            else:
                self.dst = R[0] if R else set(); self.src = set().union(*R[1:]) if len(R) > 1 else set()
                if 'saveexec' in op: self.dst |= {('s', 'exec')}
    def states(self):
        if self.op == 's_nop': return int(self.ops[0]) + 1
        return 1

def vg(rs):
    return {r for r in rs if r[0] in 'va'}
def sg(rs):
    return {r for r in rs if r[0] == 's'}

def required(p, c):
    need = 0
    pd = p.dst
    if p.is_mfma:
        D = pd
        tbl_xdl_valu = {2: 5, 4: 8, 8: 12, 16: 20}
        tbl_sg_valu = {2: 4, 4: 6, 8: 10, 16: 18}
        if c.is_mfma:
            if D & c.srcab:
                need = max(need, (tbl_sg_valu if p.sgemm else tbl_xdl_valu)[p.passes])
            if D & c.srcc:
                same = (D == c.srcc) and (p.passes == c.passes) and (p.sgemm == c.sgemm)
                if same:
                    need = max(need, 2 if p.passes == 2 else 0)
                else:
                    if p.sgemm:
                        need = max(need, {2: 2, 4: 4, 8: 8, 16: 16}[p.passes] if c.sgemm else 0)
                    else:
                        need = max(need, ({2: 3, 4: 6, 8: 10, 16: 18} if c.sgemm else {2: 4, 4: 6, 8: 10, 16: 18})[p.passes])
            if D & c.dst and not (D & c.srcc):
                need = max(need, (tbl_sg_valu if p.sgemm else tbl_xdl_valu)[p.passes])
        elif c.is_valu or c.is_vmem or c.is_ds:
            if D & (c.src | c.dst):
                need = max(need, (tbl_sg_valu if p.sgemm else tbl_xdl_valu)[p.passes])
        if c.is_valu and not p.sgemm and (p.srcc & c.dst):
            need = max(need, {2: 1, 4: 3, 8: 7, 16: 15}[p.passes])
    if p.is_valu:
        v = vg(pd); s = sg(pd)
        if c.is_mfma and (v & c.src): need = max(need, 2)
        if c.is_mfma and ('s', 'exec') in pd: need = max(need, 4)
        if c.is_valu:
            if c.is_dpp and (v & c.src): need = max(need, 2)
            if c.is_dpp and ('s', 'exec') in pd: need = max(need, 5)
            if c.is_perm and (v & c.src): need = max(need, 2)
            if c.is_rl and (v & c.src): need = max(need, 1)
            if p.is_trans and not c.is_trans and (v & c.src): need = max(need, 1)
            if s & c.src:
                need = max(need, 4 if c.is_rl else 2)
            if p.is_dot and (v & (c.src | c.dst)):
                if c.op == p.op:
                    srcC = regs_of(c.ops[3]) if len(c.ops) > 3 else c.dst
                    ab = set().union(*[regs_of(o) for o in c.ops[1:3]])
                    if v & ab: need = max(need, 3)
                else:
                    need = max(need, 3)
            if 'sdwa' in p.op and 'dst_sel:DWORD' not in p.mods and (v & c.src): need = max(need, 1)
        if p.is_dot and (c.is_vmem or c.is_ds) and (v & c.src): need = max(need, 3)
        if c.is_vmem and (s & c.src): need = max(need, 5)
    if p.is_vmem and getattr(p, 'wide_store', False):
        data = regs_of(p.ops[1]) if p.op.startswith('global') else regs_of(p.ops[0])
        if data & c.dst:
            need = max(need, 2 if c.is_valu else 1)
    if p.is_salu and ('s', 'm0') in pd and (c.is_vmem and 'lds' in (c.op + c.mods)):
        need = max(need, 1)
    return need

def check_hazards(text, maxlook=24):
    ins = []
    labels = []
    for n, l in enumerate(text.split('\n')):
        s = l.split(';')[0].strip()
        if not s or s.startswith('.') or s.endswith(':'):
            if s.endswith(':'): ins.append(None)
            continue
        ins.append(Ins(l, n + 1))
    ins2 = [x for x in ins if x is not None]
    probs = []
    for a, p in enumerate(ins2):
        if not (p.is_mfma or p.is_valu or p.is_vmem or p.is_salu): continue
        dist = 0
        for b in range(a + 1, min(a + 1 + maxlook, len(ins2))):
            c = ins2[b]
            if p.op in ('s_endpgm', 's_branch'): break
            r = required(p, c)
            if r > dist:
                probs.append(f'line {p.idx}: {p.line.strip()}  ->  line {c.idx}: {c.line.strip()}  needs {r} has {dist}')
            if c.op in ('s_endpgm', 's_branch'): break
            dist += c.states()
            if dist >= 20: break
    return probs
```

```python
import sys, struct, math
from asmlib import *

WS_Q    = 0x0000
WS_QK   = 0x4000
WS_ML   = 0x10000
WS_CTX  = 0x20000
WS_WVO  = 0x40000
WS_PART = 0x100000

def f2u(x): return struct.unpack('<I', struct.pack('<f', x))[0]
def lit(x): return f'0x{f2u(x):08x}'

SEL_LO = 0x00003F80
SEL_HI = 0x3F800000

def header(A, name):
    A('.text')
    A(f'.globl {name}')
    A('.p2align 8')
    A(f'.type {name},@function')
    A(f'{name}:')

def descriptor(name, vgpr, accum, sgpr=96):
    return f'''.p2align 6
.amdhsa_kernel {name}
  .amdhsa_next_free_vgpr {vgpr}
  .amdhsa_next_free_sgpr {sgpr}
  .amdhsa_accum_offset {accum}
  .amdhsa_group_segment_fixed_size 0
  .amdhsa_kernarg_size 80
  .amdhsa_user_sgpr_count 2
  .amdhsa_user_sgpr_kernarg_segment_ptr 1
  .amdhsa_system_sgpr_workgroup_id_x 1
  .amdhsa_float_denorm_mode_32 3
.end_amdhsa_kernel
'''

def xgroup_reduce(A, op, v, t):
    A(f'    v_mov_b32 v{t}, v{v}')
    A.nop(2)
    A(f'    v_permlane32_swap_b32 v{t}, v{v}')
    A(f'    {op} v{v}, v{v}, v{t}')
    A(f'    v_mov_b32 v{t}, v{v}')
    A.nop(2)
    A(f'    v_permlane16_swap_b32 v{t}, v{v}')
    A(f'    {op} v{v}, v{v}, v{t}')

def row_reduce(A, op, v):
    for rot in (8, 4, 2, 1):
        A.nop(2)
        A(f'    {op}_dpp v{v}, v{v}, v{v} row_ror:{rot} row_mask:0xf bank_mask:0xf')

def allreduce64(A, op, v, t):
    row_reduce(A, op, v)
    xgroup_reduce(A, op, v, t)

def slab_tr_reads(A, vaddr, dst, kind='v'):
    for s in range(12):
        for hf in range(2):
            r = dst + 4 * s + 2 * hf
            A(f'    ds_read_b64_tr_b16 {kind}[{r}:{r+1}], v{vaddr} offset:{s*1024 + hf*128}')

def k_head1():
    A = Asm(); name = 'head1_kernel'
    header(A, name)
    A('''    s_cmp_ge_u32 s2, 96
    s_cbranch_scc1 H1_END
    s_load_dwordx2 s[4:5], s[0:1], 0
    s_load_dwordx2 s[6:7], s[0:1], 24
    s_load_dwordx4 s[8:11], s[0:1], 40
    s_load_dwordx2 s[12:13], s[0:1], 72
    v_and_b32 v1, 63, v0
    v_lshrrev_b32 v2, 6, v0
    s_nop 0
    v_readfirstlane_b32 s14, v2
    s_waitcnt lgkmcnt(0)
    s_cmp_lt_u32 s2, 24
    s_cbranch_scc1 H1_QROLE
    s_sub_u32 s15, s2, 24
    s_mul_i32 s16, s15, 171
    s_lshr_b32 s16, s16, 9          ; et
    s_mul_i32 s17, s16, 3
    s_sub_u32 s17, s15, s17         ; sq
    s_mov_b32 s20, s10
    s_mov_b32 s21, s11
    s_branch H1_COMMON
H1_QROLE:
    s_mov_b32 s16, s2
    s_mov_b32 s17, 0
    s_mov_b32 s20, s6
    s_mov_b32 s21, s7
H1_COMMON:
    s_mul_i32 s18, s14, 96
    v_lshrrev_b32 v3, 1, v1
    v_add_u32 v3, s18, v3
    v_mul_u32_u24 v3, 768, v3
    v_and_b32 v4, 1, v1
    v_lshlrev_b32 v4, 4, v4
    s_lshl_b32 s19, s16, 5
    v_add3_u32 v3, v3, v4, s19
    v_add_u32 v4, 24576, v3
    v_add_u32 v5, 49152, v3
    global_load_dwordx4 v[16:19], v3, s[20:21]
    global_load_dwordx4 v[20:23], v4, s[20:21]
    global_load_dwordx4 v[24:27], v5, s[20:21]
    v_lshrrev_b32 v6, 4, v1         ; g
    v_and_b32 v7, 15, v1            ; i / n / rho
    s_cmp_lt_u32 s2, 24
    s_cbranch_scc1 H1_QLOAD
    s_lshl_b32 s22, s17, 2
    s_add_u32 s22, s22, s14
    s_lshl_b32 s23, s22, 2
    v_lshrrev_b32 v8, 2, v7
    v_add_u32 v8, s23, v8           ; u
    v_mul_u32_u24 v9, 43, v8
    v_lshrrev_b32 v9, 7, v9         ; t = u/3
    v_mul_u32_u24 v10, 3, v9
    v_sub_u32 v10, v8, v10          ; third
    v_lshlrev_b32 v10, 7, v10       ; third*128
    v_and_b32 v11, 3, v9
    v_lshlrev_b32 v11, 5, v11       ; 32*g''
    v_lshrrev_b32 v12, 2, v9
    v_lshlrev_b32 v12, 1, v12       ; 2*w'
    v_add3_u32 v10, v10, v11, v12
    v_lshrrev_b32 v11, 1, v7
    v_and_b32 v11, 1, v11
    v_lshlrev_b32 v11, 3, v11       ; 8*((rho>>1)&1)
    v_and_b32 v12, 1, v7
    v_add3_u32 v10, v10, v11, v12
    v_mul_u32_u24 v10, 768, v10
    v_lshlrev_b32 v11, 4, v6
    v_add_u32 v10, v10, v11
    v_add_u32 v11, 12288, v10''')
    for hf in range(2):
        for ks in range(12):
            r = 112 + hf * 48 + ks * 4
            A(f'    global_load_dwordx4 v[{r}:{r+3}], v{10+hf}, s[8:9] offset:{ks*64}')
    A('''    s_waitcnt vmcnt(24)
    s_branch H1_LDSW
H1_QLOAD:
    v_mul_u32_u24 v10, 768, v7
    v_lshlrev_b32 v11, 4, v6
    v_add_u32 v10, v10, v11''')
    for ks in range(12):
        r = 112 + ks * 4
        A(f'    global_load_dwordx4 v[{r}:{r+3}], v10, s[4:5] offset:{ks*64}')
    A('''    s_waitcnt vmcnt(12)
H1_LDSW:
    s_mul_i32 s18, s14, 3072
    v_lshlrev_b32 v3, 4, v1
    v_add_u32 v3, s18, v3
    ds_write_b128 v3, v[16:19]
    ds_write_b128 v3, v[20:23] offset:1024
    ds_write_b128 v3, v[24:27] offset:2048
    v_lshlrev_b32 v4, 8, v6
    v_lshrrev_b32 v5, 2, v1
    v_and_b32 v5, 3, v5
    v_lshlrev_b32 v5, 5, v5
    v_and_b32 v8, 3, v1
    v_lshlrev_b32 v8, 3, v8
    v_add3_u32 v4, v4, v5, v8
    s_waitcnt lgkmcnt(0)
    s_barrier''')
    slab_tr_reads(A, 4, 64)
    A('''    s_cmp_lt_u32 s2, 24
    s_cbranch_scc1 H1_QCOMP
    s_waitcnt vmcnt(0) lgkmcnt(0)''')
    for hf in range(2):
        for ks in range(12):
            r = 112 + hf * 48 + ks * 4
            c = '0' if ks == 0 else f'v[{208+4*hf}:{211+4*hf}]'
            A(f'    v_mfma_f32_16x16x32_bf16 v[{208+4*hf}:{211+4*hf}], v[{r}:{r+3}], v[{64+4*ks}:{67+4*ks}], {c}')
    A.nop(8)
    A('''    v_cvt_pk_bf16_f32 v16, v208, v209
    v_cvt_pk_bf16_f32 v17, v210, v211
    v_cvt_pk_bf16_f32 v18, v212, v213
    v_cvt_pk_bf16_f32 v19, v214, v215
    s_mul_i32 s24, s16, 12
    s_add_u32 s24, s24, s22
    s_lshl_b32 s24, s24, 10''')
    A(f'''    s_add_u32 s24, s24, {WS_WVO}
    v_lshlrev_b32 v3, 4, v1
    v_add_u32 v3, s24, v3
    global_store_dwordx4 v3, v[16:19], s[12:13]
    s_branch H1_END
H1_QCOMP:
    s_cmp_eq_u32 s14, 0
    s_cbranch_scc0 H1_END
    s_waitcnt vmcnt(0)''')
    X = 160
    for k in range(48):
        A(f'    v_lshlrev_b32 v{X+2*k}, 16, v{112+k}')
        A(f'    v_and_b32 v{X+2*k+1}, 0xffff0000, v{112+k}')
    A('    v_add_f32 v16, v160, v161')
    A('    v_add_f32 v17, v162, v163')
    for k in range(2, 48):
        A(f'    v_add_f32 v{16 + (k&1)}, v{16 + (k&1)}, v{X+2*k}')
        A(f'    v_add_f32 v{16 + ((k+1)&1)}, v{16 + ((k+1)&1)}, v{X+2*k+1}')
    A('    v_add_f32 v16, v16, v17')
    xgroup_reduce(A, 'v_add_f32', 16, 17)
    A(f'    v_mul_f32 v16, {lit(1/384)}, v16       ; mean')
    A('    v_mov_b32 v18, 0')
    A('    v_mov_b32 v19, 0')
    for k in range(96):
        A(f'    v_sub_f32 v{20+(k&1)}, v{X+k}, v16')
        A(f'    v_fmac_f32 v{18+(k&1)}, v{20+(k&1)}, v{20+(k&1)}')
    A('    v_add_f32 v18, v18, v19')
    xgroup_reduce(A, 'v_add_f32', 18, 17)
    A(f'''    v_mul_f32 v18, {lit(1/384)}, v18       ; var
    v_cvt_pk_bf16_f32 v19, v16, v18
    v_lshlrev_b32 v16, 16, v19      ; m_b
    v_and_b32 v18, 0xffff0000, v19  ; v_b
    v_add_f32 v18, {lit(1e-5)}, v18
    v_cvt_pk_bf16_f32 v18, v18, v18
    v_lshlrev_b32 v18, 16, v18
    v_sqrt_f32 v18, v18
    s_nop 0
    v_cvt_pk_bf16_f32 v18, v18, v18
    v_lshlrev_b32 v18, 16, v18
    v_rcp_f32 v18, v18
    s_nop 0''')
    for k in range(48):
        A(f'    v_sub_f32 v20, v{X+2*k}, v16')
        A(f'    v_sub_f32 v21, v{X+2*k+1}, v16')
        A(f'    v_cvt_pk_bf16_f32 v22, v20, v21')
        A(f'    v_lshlrev_b32 v20, 16, v22')
        A(f'    v_and_b32 v21, 0xffff0000, v22')
        A(f'    v_mul_f32 v20, v20, v18')
        A(f'    v_mul_f32 v21, v21, v18')
        A(f'    v_cvt_pk_bf16_f32 v{112+k}, v20, v21')
    A('    s_waitcnt lgkmcnt(0)')
    A.nop(2)
    for ks in range(12):
        c = '0' if ks == 0 else 'v[208:211]'
        A(f'    v_mfma_f32_16x16x32_bf16 v[208:211], v[{64+4*ks}:{67+4*ks}], v[{112+4*ks}:{115+4*ks}], {c}')
    A.nop(8)
    A(f'''    v_cvt_pk_bf16_f32 v16, v208, v209
    v_cvt_pk_bf16_f32 v17, v210, v211
    v_mul_u32_u24 v3, 768, v7
    v_lshlrev_b32 v4, 3, v6
    s_lshl_b32 s19, s16, 5
    s_add_u32 s19, s19, {WS_Q}
    v_add3_u32 v3, v3, v4, s19
    global_store_dwordx2 v3, v[16:17], s[12:13]
H1_END:
    s_endpgm''')
    return A.text(), descriptor(name, 256, 256)

def k_head2():
    A = Asm(); name = 'head2_kernel'
    header(A, name)
    scale = 384 ** -0.5 * math.log2(math.e)
    A(f'''    s_cmp_ge_u32 s2, 12
    s_cbranch_scc1 H2_END
    s_load_dwordx2 s[4:5], s[0:1], 32
    s_load_dwordx2 s[12:13], s[0:1], 72
    v_and_b32 v1, 63, v0
    v_lshrrev_b32 v6, 4, v1         ; g
    v_and_b32 v7, 15, v1            ; rho / n
    s_lshr_b32 s14, s2, 2
    s_lshl_b32 s14, s14, 7
    s_and_b32 s15, s2, 3
    s_lshl_b32 s15, s15, 1
    s_add_u32 s14, s14, s15
    v_lshrrev_b32 v8, 3, v7
    v_lshlrev_b32 v8, 2, v8         ; 4*(rho>>3)
    v_lshrrev_b32 v9, 2, v7
    v_and_b32 v9, 1, v9
    v_lshlrev_b32 v9, 1, v9         ; 2*((rho>>2)&1)
    v_lshrrev_b32 v10, 1, v7
    v_and_b32 v10, 1, v10
    v_add3_u32 v8, v8, v9, v10
    v_lshlrev_b32 v8, 3, v8
    v_and_b32 v9, 1, v7
    v_add3_u32 v8, v8, v9, s14      ; channel (a2=0)
    v_mul_u32_u24 v8, 768, v8
    v_lshlrev_b32 v9, 4, v6
    v_add_u32 v10, v8, v9
    v_add_u32 v11, 49152, v10
    v_mul_u32_u24 v12, 768, v7
    v_add_u32 v12, v12, v9
    v_add_u32 v12, {WS_Q}, v12
    s_waitcnt lgkmcnt(0)''')
    for ks in range(12):
        A(f'    global_load_dwordx4 v[{16+4*ks}:{19+4*ks}], v12, s[12:13] offset:{ks*64}')
    for a2 in range(2):
        for ks in range(12):
            r = 64 + a2 * 48 + ks * 4
            A(f'    global_load_dwordx4 v[{r}:{r+3}], v{10+a2}, s[4:5] offset:{ks*64}')
    A('    s_waitcnt vmcnt(0)')
    for a2 in range(2):
        for ks in range(12):
            r = 64 + a2 * 48 + ks * 4
            c = '0' if ks == 0 else f'v[{160+4*a2}:{163+4*a2}]'
            A(f'    v_mfma_f32_16x16x32_bf16 v[{160+4*a2}:{163+4*a2}], v[{r}:{r+3}], v[{16+4*ks}:{19+4*ks}], {c}')
    A.nop(8)
    for k in range(8):
        A(f'    v_mul_f32 v{160+k}, {lit(scale)}, v{160+k}')
    for k in range(4):
        A(f'    v_cvt_pk_bf16_f32 v{168+k}, v{160+2*k}, v{161+2*k}')
    A(f'''    s_lshl_b32 s14, s2, 10
    s_add_u32 s14, s14, {WS_QK}
    v_lshlrev_b32 v3, 4, v1
    v_add_u32 v3, s14, v3
    global_store_dwordx4 v3, v[168:171], s[12:13]
H2_END:
    s_endpgm''')
    return A.text(), descriptor(name, 176, 176)

RAW = [0 + 8, 68, 128]
V_XS   = 188
V_T    = 204
V_S, V_R, V_G, V_D = 224, 228, 232, 236
V_P    = 240
V_MREF, V_L, V_SQ, V_ONEF = 242, 243, 244, 245
V_F0OFF, V_F1OFF, V_LDSW, V_LDSR0, V_LDSR1 = 246, 247, 248, 249, 250
V_LANE, V_TMP = 251, 252
A_O, A_QK, A_X, A_ONES = 0, 96, 144, 192
S_F0, S_F1, S_WS = 4, 6, 8
S_B0, S_B1, S_BF = 10, 12, 14
S_WAVE, S_WG, S_IT, S_T = 16, 17, 18, 19
S_SELLO, S_SELHI, S_THR, S_C384, S_EPS = 20, 21, 22, 23, 24
S_MASK = 26
S_TMP = 34

def main_tile_bases(A, kexpr_sgpr):
    A(f'''    s_mul_hi_u32 s{S_TMP}, s{kexpr_sgpr}, 89478486   ; hp = T/48
    s_mul_i32 s{S_TMP+1}, s{S_TMP}, 48
    s_sub_u32 s{S_TMP+1}, s{kexpr_sgpr}, s{S_TMP+1}      ; tw
    s_mul_i32 s{S_TMP}, s{S_TMP}, 589824
    s_mul_i32 s{S_TMP+1}, s{S_TMP+1}, 6144
    s_add_u32 s{S_TMP}, s{S_TMP}, s{S_TMP+1}
    s_add_u32 s{S_B0}, s{S_F0}, s{S_TMP}
    s_addc_u32 s{S_B0+1}, s{S_F0+1}, 0
    s_add_u32 s{S_B1}, s{S_B0}, 294912
    s_addc_u32 s{S_B1+1}, s{S_B0+1}, 0
    s_mul_i32 s{S_TMP}, s{kexpr_sgpr}, 3072
    s_add_u32 s{S_BF}, s{S_F1}, s{S_TMP}
    s_addc_u32 s{S_BF+1}, s{S_F1+1}, 0''')

def main_issue_loads(A, u, nt=''):
    b = RAW[u]
    for third in range(3):
        r = b + 48 + 4 * third
        A(f'    global_load_dwordx4 v[{r}:{r+3}], v{V_F1OFF}, s[{S_BF}:{S_BF+1}] offset:{third*256}{nt}')
    for third in range(3):
        for j in range(4):
            dy, dx = j >> 1, j & 1
            r = b + 16 * third + 4 * j
            base = S_B1 if dy else S_B0
            A(f'    global_load_dwordx4 v[{r}:{r+3}], v{V_F0OFF}, s[{base}:{base+1}] offset:{dx*768+third*256}{nt}')

def fdst(u, third):
    return V_XS if third == 0 else RAW[u] + 16 * (third - 1)

def main_process(A, u, tag):
    b = RAW[u]
    T = V_T
    for third in range(3):
        o = fdst(u, third)
        for dd in range(4):
            f1 = b + 48 + 4 * third + dd
            A(f'    v_lshlrev_b32 v{T+8}, 16, v{f1}')
            A(f'    v_and_b32 v{T+9}, 0xffff0000, v{f1}')
            for j in range(4):
                A(f'    v_dot2_f32_bf16 v{T+j}, v{b+16*third+4*j+dd}, s{S_SELLO}, v{T+8}')
            for j in range(4):
                A(f'    v_dot2_f32_bf16 v{T+4+j}, v{b+16*third+4*j+dd}, s{S_SELHI}, v{T+9}')
            A(f'    v_cvt_pk_bf16_f32 v{o+4*dd}, v{T}, v{T+1}')
            A(f'    v_cvt_pk_bf16_f32 v{o+4*dd+1}, v{T+2}, v{T+3}')
            A(f'    v_cvt_pk_bf16_f32 v{o+4*dd+2}, v{T+4}, v{T+5}')
            A(f'    v_cvt_pk_bf16_f32 v{o+4*dd+3}, v{T+6}, v{T+7}')
            A(f'    ds_write_b128 v{V_LDSW}, v[{o+4*dd}:{o+4*dd+3}] offset:{(third*4+dd)*1024}')
    for bb in range(12):
        for a2 in range(2):
            r = A_X + 4 * bb + 2 * a2
            A(f'    ds_read_b64_tr_b16 a[{r}:{r+1}], v{V_LDSR0+a2} offset:{bb*1024}')
    A('    s_waitcnt lgkmcnt(0)')
    for bb in range(12):
        x = f'a[{A_X+4*bb}:{A_X+4*bb+3}]'
        cs = '0' if bb == 0 else f'v[{V_S}:{V_S+3}]'
        cr = '0' if bb == 0 else f'v[{V_R}:{V_R+3}]'
        cg = '0' if bb == 0 else f'v[{V_G}:{V_G+3}]'
        A(f'    v_mfma_f32_16x16x32_bf16 v[{V_G}:{V_G+3}], {x}, {x}, {cg}')
        A(f'    v_mfma_f32_16x16x32_bf16 v[{V_R}:{V_R+3}], {x}, a[{A_ONES}:{A_ONES+3}], {cr}')
        A(f'    v_mfma_f32_16x16x32_bf16 v[{V_S}:{V_S+3}], {x}, a[{A_QK+4*bb}:{A_QK+4*bb+3}], {cs}')
    A.nop(6)
    A(f'    v_cndmask_b32 v{T}, 0, v{V_G}, s[{S_MASK}:{S_MASK+1}]')
    for r in range(1, 4):
        A(f'    v_cndmask_b32 v{T}, v{T}, v{V_G+r}, s[{S_MASK+2*r}:{S_MASK+2*r+1}]')
    A.nop(2)
    A(f'    v_mfma_f32_16x16x4_f32 v[{V_D}:{V_D+3}], v{T}, v{V_ONEF}, 0')
    for r in range(4):
        A(f'    v_mul_f32 v{V_R+r}, s{S_C384}, v{V_R+r}')
    for r in range(4):
        A(f'    v_fma_f32 v{V_S+r}, -v{V_R+r}, v{V_SQ}, v{V_S+r}')
    A.nop(2)
    for r in range(4):
        A(f'    v_fma_f32 v{V_D+r}, v{V_D+r}, s{S_C384}, v{V_TMP}')
    for r in range(4):
        A(f'    v_fma_f32 v{V_D+r}, -v{V_R+r}, v{V_R+r}, v{V_D+r}')
    for r in range(4):
        A(f'    v_rsq_f32 v{V_D+r}, v{V_D+r}')
    A('    s_nop 0')
    for r in range(4):
        A(f'    v_fma_f32 v{T+r}, v{V_S+r}, v{V_D+r}, -v{V_MREF}')
    A(f'    v_max3_f32 v{T+4}, v{T}, v{T+1}, v{T+2}')
    A(f'    v_max_f32 v{T+4}, v{T+4}, v{T+3}')
    A(f'    v_cmp_lt_f32 vcc, s{S_THR}, v{T+4}')
    A(f'    s_cbranch_vccz M_FAST_{tag}')
    for r in range(4):
        A(f'    v_mul_f32 v{T+r}, v{V_S+r}, v{V_D+r}')
    A(f'    v_max3_f32 v{T+4}, v{T}, v{T+1}, v{T+2}')
    A(f'    v_max_f32 v{T+4}, v{T+4}, v{T+3}')
    xgroup_reduce(A, 'v_max_f32', T + 4, T + 5)
    A(f'    v_max_f32 v{T+4}, v{T+4}, v{V_MREF}')
    A(f'    v_sub_f32 v{T+5}, v{V_MREF}, v{T+4}')
    A(f'    v_exp_f32 v{T+5}, v{T+5}')
    A(f'    v_mov_b32 v{V_MREF}, v{T+4}')
    A(f'    v_mul_f32 v{V_L}, v{V_L}, v{T+5}')
    for k in range(0, 96, 4):
        for e in range(4):
            A(f'    v_accvgpr_read_b32 v{T+8+e}, a{A_O+k+e}')
        for e in range(4):
            A(f'    v_mul_f32 v{T+8+e}, v{T+8+e}, v{T+5}')
        for e in range(4):
            A(f'    v_accvgpr_write_b32 a{A_O+k+e}, v{T+8+e}')
    for r in range(4):
        A(f'    v_sub_f32 v{T+r}, v{T+r}, v{V_MREF}')
    A(f'M_FAST_{tag}:')
    for r in range(4):
        A(f'    v_exp_f32 v{T+r}, v{T+r}')
    A('    s_nop 0')
    A(f'    v_add_f32 v{T+4}, v{T}, v{T+1}')
    A(f'    v_add_f32 v{T+5}, v{T+2}, v{T+3}')
    for r in range(4):
        A(f'    v_mul_f32 v{T+r}, v{T+r}, v{V_D+r}')
    A(f'    v_add_f32 v{T+4}, v{T+4}, v{T+5}')
    A(f'    v_cvt_pk_bf16_f32 v{V_P}, v{T}, v{T+1}')
    A(f'    v_cvt_pk_bf16_f32 v{V_P+1}, v{T+2}, v{T+3}')
    A(f'    v_add_f32 v{V_L}, v{V_L}, v{T+4}')
    A.nop(1)
    for third in range(3):
        o = fdst(u, third)
        for e in range(8):
            ct = third * 8 + e
            f = o + 4 * (e >> 1) + 2 * (e & 1)
            A(f'    v_mfma_f32_16x16x16_bf16 a[{A_O+4*ct}:{A_O+4*ct+3}], v[{f}:{f+1}], v[{V_P}:{V_P+1}], a[{A_O+4*ct}:{A_O+4*ct+3}]')

def k_main(nt=''):
    A = Asm(); name = 'main_kernel'
    header(A, name)
    T = V_T
    A(f'''    s_cmp_ge_u32 s2, 256
    s_cbranch_scc1 M_END
    s_load_dwordx4 s[{S_F0}:{S_F0+3}], s[0:1], 8
    s_load_dwordx2 s[{S_WS}:{S_WS+1}], s[0:1], 72
    s_mov_b32 s{S_WG}, s2
    v_and_b32 v{V_LANE}, 63, v0
    v_lshrrev_b32 v1, 6, v0
    s_nop 0
    v_readfirstlane_b32 s{S_WAVE}, v1
    v_lshrrev_b32 v2, 4, v{V_LANE}        ; g
    v_and_b32 v3, 15, v{V_LANE}           ; i
    v_lshlrev_b32 v4, 4, v3               ; i*16
    v_mul_u32_u24 v5, 1536, v2
    v_add_u32 v{V_F0OFF}, v5, v4
    v_mul_u32_u24 v5, 768, v2
    v_add_u32 v{V_F1OFF}, v5, v4
    s_mul_i32 s{S_T}, s{S_WG}, 36
    s_add_u32 s{S_T}, s{S_T}, s{S_WAVE}
    s_waitcnt lgkmcnt(0)
    v_lshlrev_b32 v5, 4, v{V_LANE}
    v_add_u32 v5, {WS_QK}, v5''')
    for bb in range(12):
        pass
    A(f'    v_add_u32 v6, 4096, v5')
    A(f'    v_add_u32 v7, 8192, v5')
    for bb in range(12):
        A(f'    global_load_dwordx4 a[{A_QK+4*bb}:{A_QK+4*bb+3}], v{5 + bb//4}, s[{S_WS}:{S_WS+1}] offset:{(bb%4)*1024}')
    for u in range(3):
        main_tile_bases(A, S_T)
        main_issue_loads(A, u, nt)
        A(f'    s_add_u32 s{S_T}, s{S_T}, 4')
    A(f'''    s_mul_i32 s{S_TMP}, s{S_WAVE}, 12288
    v_lshlrev_b32 v5, 2, v2               ; 4g
    v_add_u32 v5, v5, v3
    v_and_b32 v5, 15, v5
    v_lshlrev_b32 v5, 4, v5
    v_lshlrev_b32 v6, 8, v2
    v_add3_u32 v{V_LDSW}, v5, v6, s{S_TMP}
    v_lshrrev_b32 v5, 2, v{V_LANE}
    v_and_b32 v5, 3, v5                   ; r
    v_and_b32 v6, 3, v{V_LANE}            ; c
    v_lshrrev_b32 v7, 1, v2               ; g'>>1
    v_add_u32 v7, v7, v6                  ; (g'>>1) + c
    v_lshlrev_b32 v7, 2, v7               ; 4*(...)
    v_and_b32 v1, 1, v2
    v_lshlrev_b32 v1, 1, v1               ; 2*(g'&1)
    v_add_u32 v7, v7, v1
    v_lshrrev_b32 v1, 1, v5               ; r>>1
    v_add_u32 v7, v7, v1
    v_and_b32 v1, 1, v5
    v_lshlrev_b32 v1, 3, v1               ; (r&1)*8
    v_lshlrev_b32 v6, 8, v6               ; c*256
    v_add3_u32 v6, v6, v1, s{S_TMP}
    v_and_b32 v1, 15, v7
    v_lshlrev_b32 v1, 4, v1
    v_add_u32 v{V_LDSR0}, v6, v1
    v_add_u32 v7, 8, v7
    v_and_b32 v1, 15, v7
    v_lshlrev_b32 v1, 4, v1
    v_add_u32 v{V_LDSR1}, v6, v1
    v_lshlrev_b32 v5, 2, v2''')
    for r in range(4):
        A(f'    v_add_u32 v6, {r}, v5')
        A(f'    v_cmp_eq_u32 s[{S_MASK+2*r}:{S_MASK+2*r+1}], v6, v3')
    A(f'''    s_mov_b32 s{S_SELLO}, 0x{SEL_LO:08x}
    s_mov_b32 s{S_SELHI}, 0x{SEL_HI:08x}
    s_mov_b32 s{S_THR}, {lit(8.0)}
    s_mov_b32 s{S_C384}, {lit(1/384)}
    v_mov_b32 v{V_TMP}, {lit(1e-5)}
    v_mov_b32 v{V_ONEF}, 1.0
    v_mov_b32 v{V_MREF}, 0xff800000
    v_mov_b32 v{V_L}, 0
    v_mov_b32 v1, 0x3f803f80''')
    for k in range(4):
        A(f'    v_accvgpr_write_b32 a{A_ONES+k}, v1')
    A('    v_mov_b32 v1, 0')
    for k in range(96):
        A(f'    v_accvgpr_write_b32 a{A_O+k}, v1')
    A('    s_waitcnt vmcnt(45)')
    for bb in range(12):
        c = '0' if bb == 0 else f'v[{V_S}:{V_S+3}]'
        A(f'    v_mfma_f32_16x16x32_bf16 v[{V_S}:{V_S+3}], a[{A_ONES}:{A_ONES+3}], a[{A_QK+4*bb}:{A_QK+4*bb+3}], {c}')
    A.nop(8)
    A(f'    v_mov_b32 v{V_SQ}, v{V_S}')
    A(f'    s_mov_b32 s{S_IT}, 0')
    A('M_LOOP:')
    for u in range(3):
        if u == 0:
            A('    s_waitcnt vmcnt(30)')
        else:
            A(f'    s_cmp_eq_u32 s{S_IT}, 2')
            A(f'    s_cbranch_scc1 M_W{u}')
            A('    s_waitcnt vmcnt(30)')
            A(f'M_W{u}:')
            A(f'    s_cmp_eq_u32 s{S_IT}, 2')
            A(f'    s_cbranch_scc0 M_X{u}')
            A(f'    s_waitcnt vmcnt({15 if u == 1 else 0})')
            A(f'M_X{u}:')
        main_process(A, u, u)
        A(f'    s_cmp_eq_u32 s{S_IT}, 2')
        A(f'    s_cbranch_scc1 M_NL{u}')
        main_tile_bases(A, S_T)
        main_issue_loads(A, u, nt)
        A(f'    s_add_u32 s{S_T}, s{S_T}, 4')
        A(f'M_NL{u}:')
    A(f'''    s_add_u32 s{S_IT}, s{S_IT}, 1
    s_cmp_lt_u32 s{S_IT}, 3
    s_cbranch_scc1 M_LOOP''')
    xgroup_reduce(A, 'v_add_f32', V_L, T)
    XB = 49152; ML = 147456
    A(f'''    s_mul_i32 s{S_TMP}, s{S_WAVE}, 24576
    s_add_u32 s{S_TMP}, s{S_TMP}, {XB}
    v_lshlrev_b32 v1, 4, v{V_LANE}
    v_add_u32 v2, s{S_TMP}, v1
    s_lshl_b32 s{S_TMP}, s{S_WAVE}, 9
    s_add_u32 s{S_TMP}, s{S_TMP}, {ML}
    v_lshlrev_b32 v3, 3, v{V_LANE}
    v_add_u32 v3, s{S_TMP}, v3
    v_mov_b32 v4, v{V_MREF}
    v_mov_b32 v5, v{V_L}
    ds_write_b64 v3, v[4:5]''')
    A.nop(4)
    for ct in range(24):
        A(f'    ds_write_b128 v2, a[{A_O+4*ct}:{A_O+4*ct+3}] offset:{ct*1024}')
    A(f'''    s_waitcnt lgkmcnt(0)
    s_barrier
    v_and_b32 v3, 15, v{V_LANE}
    v_lshlrev_b32 v3, 3, v3
    v_add_u32 v3, {ML}, v3''')
    for w in range(4):
        A(f'    ds_read_b64 v[{8+2*w}:{9+2*w}], v3 offset:{w*512}')
    A(f'''    s_lshl_b32 s{S_TMP}, s{S_WAVE}, 11
    s_add_u32 s{S_TMP}, s{S_TMP}, {XB}
    v_add_u32 v2, s{S_TMP}, v1''')
    for w in range(1, 4):
        A(f'    v_add_u32 v{2+w+15}, {w*24576}, v2')
    def src(w): return 2 if w == 0 else 17 + w
    for third in range(3):
        for e1 in range(2):
            for w in range(4):
                r = 32 + ((third * 2 + e1) * 4 + w) * 4
                A(f'    ds_read_b128 v[{r}:{r+3}], v{src(w)} offset:{(third*8+e1)*1024}')
    A('    s_waitcnt lgkmcnt(0)')
    A('''    v_max_f32 v16, v8, v10
    v_max3_f32 v16, v16, v12, v14      ; M''')
    for w in range(4):
        A(f'    v_sub_f32 v{8+2*w}, v{8+2*w}, v16')
    for w in range(4):
        A(f'    v_exp_f32 v{8+2*w}, v{8+2*w}')
    A('''    s_nop 0
    v_mul_f32 v17, v8, v9
    v_fmac_f32 v17, v10, v11
    v_fmac_f32 v17, v12, v13
    v_fmac_f32 v17, v14, v15           ; l''')
    for third in range(3):
        for e1 in range(2):
            base = 32 + (third * 2 + e1) * 16
            for r in range(4):
                A(f'    v_mul_f32 v{base+r}, v{base+r}, v8')
            for w in range(1, 4):
                for r in range(4):
                    A(f'    v_fmac_f32 v{base+r}, v{base+4*w+r}, v{8+2*w}')
    for third in range(3):
        b0 = 32 + (third * 2) * 16; b1 = b0 + 16
        for r in range(4):
            A(f'    v_cvt_pk_bf16_f32 v{132+4*third+r}, v{b0+r}, v{b1+r}')
    A(f'''    v_lshrrev_b32 v2, 4, v{V_LANE}
    v_and_b32 v3, 15, v{V_LANE}
    s_lshl_b32 s{S_TMP}, s{S_WAVE}, 2
    v_add_u32 v2, s{S_TMP}, v2
    v_mul_u32_u24 v2, 3, v2               ; u0
    v_mul_u32_u24 v3, 6, v3               ; n*6
    s_lshl_b32 s{S_TMP}, s{S_WG}, 7
    s_add_u32 s{S_TMP}, s{S_TMP}, {WS_PART}''')
    for third in range(3):
        A(f'''    v_add_u32 v4, {third}, v2
    v_lshrrev_b32 v5, 3, v4
    v_add_u32 v5, v5, v3
    v_lshlrev_b32 v5, 15, v5
    v_and_b32 v4, 7, v4
    v_lshlrev_b32 v4, 4, v4
    v_add3_u32 v4, v4, v5, s{S_TMP}
    global_store_dwordx4 v4, v[{132+4*third}:{135+4*third}], s[{S_WS}:{S_WS+1}]''')
    A(f'''    s_cmp_eq_u32 s{S_WAVE}, 0
    s_cbranch_scc0 M_END
    v_and_b32 v3, 15, v{V_LANE}
    v_lshlrev_b32 v3, 11, v3
    s_lshl_b32 s{S_TMP}, s{S_WG}, 3
    s_add_u32 s{S_TMP}, s{S_TMP}, {WS_ML}
    v_add_u32 v3, s{S_TMP}, v3
    v_mov_b32 v18, v16
    v_mov_b32 v19, v17
    v_cmp_gt_u32 vcc, 16, v{V_LANE}
    s_and_saveexec_b64 s[{S_TMP+2}:{S_TMP+3}], vcc
    s_cbranch_execz M_END
    global_store_dwordx2 v3, v[18:19], s[{S_WS}:{S_WS+1}]
M_END:
    s_endpgm''')
    return A.text(), descriptor(name, 512, 256)

def k_red():
    A = Asm(); name = 'red_kernel'
    header(A, name)
    A(f'''    s_cmp_ge_u32 s2, 96
    s_cbranch_scc1 R_END
    s_load_dwordx2 s[4:5], s[0:1], 72
    s_and_b32 s6, s2, 15            ; n
    s_lshr_b32 s7, s2, 4            ; chunk
    v_and_b32 v1, 63, v0
    v_lshrrev_b32 v2, 6, v0
    s_nop 0
    v_readfirstlane_b32 s8, v2      ; wave
    s_mul_i32 s9, s6, 6
    s_add_u32 s9, s9, s7
    s_lshl_b32 s9, s9, 15
    s_add_u32 s9, s9, {WS_PART}
    s_lshl_b32 s10, s8, 13
    s_add_u32 s9, s9, s10
    v_lshlrev_b32 v3, 4, v1
    v_add_u32 v3, s9, v3
    v_add_u32 v4, 4096, v3
    s_lshl_b32 s10, s6, 11
    s_add_u32 s10, s10, {WS_ML}
    v_lshlrev_b32 v5, 3, v1
    v_add_u32 v5, s10, v5           ; all 256: + x*512
    s_lshl_b32 s11, s8, 9
    s_add_u32 s11, s11, s10
    v_lshrrev_b32 v6, 3, v1
    v_lshlrev_b32 v6, 3, v6
    v_add_u32 v6, s11, v6           ; own: + k*64
    s_waitcnt lgkmcnt(0)''')
    for x in range(4):
        A(f'    global_load_dwordx2 v[{8+2*x}:{9+2*x}], v5, s[4:5] offset:{x*512}')
    for k in range(8):
        A(f'    global_load_dword v{16+k}, v6, s[4:5] offset:{k*64}')
    for k in range(8):
        A(f'    global_load_dwordx4 v[{32+4*k}:{35+4*k}], v{3 + k//4}, s[4:5] offset:{(k%4)*1024}')
    A('''    s_waitcnt vmcnt(8)
    v_max_f32 v24, v8, v10
    v_max3_f32 v24, v24, v12, v14''')
    allreduce64(A, 'v_max_f32', 24, 25)
    for x in range(4):
        A(f'    v_sub_f32 v{8+2*x}, v{8+2*x}, v24')
    for k in range(8):
        A(f'    v_sub_f32 v{16+k}, v{16+k}, v24')
    for x in range(4):
        A(f'    v_exp_f32 v{8+2*x}, v{8+2*x}')
    for k in range(8):
        A(f'    v_exp_f32 v{16+k}, v{16+k}')
    A('''    v_mul_f32 v26, v8, v9
    v_fmac_f32 v26, v10, v11
    v_fmac_f32 v26, v12, v13
    v_fmac_f32 v26, v14, v15''')
    allreduce64(A, 'v_add_f32', 26, 25)
    A('''    v_rcp_f32 v26, v26
    s_nop 0''')
    for k in range(8):
        A(f'    v_mul_f32 v{16+k}, v{16+k}, v26')
    for j in range(8):
        A(f'    v_mov_b32 v{64+j}, 0')
    A('    s_waitcnt vmcnt(0)')
    for k in range(8):
        for d in range(4):
            A(f'    v_lshlrev_b32 v28, 16, v{32+4*k+d}')
            A(f'    v_and_b32 v29, 0xffff0000, v{32+4*k+d}')
            A(f'    v_fmac_f32 v{64+2*d}, v28, v{16+k}')
            A(f'    v_fmac_f32 v{64+2*d+1}, v29, v{16+k}')
    A.nop(2)
    for j in range(8):
        A(f'    v_add_f32_dpp v{64+j}, v{64+j}, v{64+j} row_ror:8 row_mask:0xf bank_mask:0xf')
    for j in range(8):
        xgroup_reduce(A, 'v_add_f32', 64 + j, 72)
    A('''    v_lshlrev_b32 v3, 5, v1
    s_lshl_b32 s10, s8, 8
    v_add_u32 v3, s10, v3
    v_cmp_gt_u32 vcc, 8, v1
    s_and_saveexec_b64 s[12:13], vcc
    ds_write_b128 v3, v[64:67]
    ds_write_b128 v3, v[68:71] offset:16
    s_mov_b64 exec, s[12:13]
    s_waitcnt lgkmcnt(0)
    s_barrier
    s_cmp_eq_u32 s8, 0
    s_cbranch_scc0 R_END
    v_lshlrev_b32 v3, 2, v1
    ds_read_b32 v8, v3
    ds_read_b32 v9, v3 offset:256
    ds_read_b32 v10, v3 offset:512
    ds_read_b32 v11, v3 offset:768
    s_waitcnt lgkmcnt(0)
    v_add_f32 v8, v8, v9
    v_add_f32 v10, v10, v11
    v_add_f32 v8, v8, v10
    s_mul_i32 s10, s6, 1536
    s_lshl_b32 s11, s7, 8
    s_add_u32 s10, s10, s11''')
    A(f'''    s_add_u32 s10, s10, {WS_CTX}
    v_add_u32 v3, s10, v3
    global_store_dword v3, v8, s[4:5]
R_END:
    s_endpgm''')
    return A.text(), descriptor(name, 80, 80)

def k_fin():
    A = Asm(); name = 'fin_kernel'
    header(A, name)
    A(f'''    s_cmp_ge_u32 s2, 24
    s_cbranch_scc1 F_END
    s_load_dwordx2 s[4:5], s[0:1], 72
    s_load_dwordx2 s[6:7], s[0:1], 0
    s_load_dwordx2 s[8:9], s[0:1], 56
    v_and_b32 v1, 63, v0
    v_lshrrev_b32 v2, 4, v1         ; g
    v_and_b32 v3, 15, v1            ; n
    v_mul_u32_u24 v4, 1536, v3
    v_lshlrev_b32 v5, 5, v2
    v_add_u32 v4, v4, v5
    v_add_u32 v4, {WS_CTX}, v4
    s_mul_i32 s10, s2, 12288
    s_add_u32 s10, s10, {WS_WVO}
    v_lshlrev_b32 v5, 4, v1
    v_add_u32 v5, s10, v5
    v_add_u32 v6, 4096, v5
    v_add_u32 v7, 8192, v5
    v_mul_u32_u24 v8, 768, v3
    v_lshlrev_b32 v9, 3, v2
    s_lshl_b32 s10, s2, 5
    v_add3_u32 v8, v8, v9, s10
    s_waitcnt lgkmcnt(0)''')
    for s in range(12):
        A(f'    global_load_dwordx4 v[{64+8*s}:{67+8*s}], v4, s[4:5] offset:{s*128}')
        A(f'    global_load_dwordx4 v[{68+8*s}:{71+8*s}], v4, s[4:5] offset:{s*128+16}')
    for s in range(12):
        A(f'    global_load_dwordx4 v[{16+4*s}:{19+4*s}], v{5+s//4}, s[4:5] offset:{(s%4)*1024}')
    A('    global_load_dwordx2 v[10:11], v8, s[6:7]')
    A('    s_waitcnt vmcnt(13)')
    A('    v_add_f32 v12, v64, v65')
    A('    v_add_f32 v13, v66, v67')
    for k in range(4, 96, 2):
        A(f'    v_add_f32 v12, v12, v{64+k}')
        A(f'    v_add_f32 v13, v13, v{64+k+1}')
    A('    v_add_f32 v12, v12, v13')
    xgroup_reduce(A, 'v_add_f32', 12, 13)
    A(f'    v_mul_f32 v12, {lit(1/384)}, v12')
    for k in range(0, 96, 2):
        A(f'    v_sub_f32 v{64+k}, v{64+k}, v12')
        A(f'    v_sub_f32 v{64+k+1}, v{64+k+1}, v12')
        A(f'    v_cvt_pk_bf16_f32 v{160+k//2}, v{64+k}, v{64+k+1}')
    A('    s_waitcnt vmcnt(0)')
    A.nop(2)
    for s in range(12):
        c = '0' if s == 0 else 'v[208:211]'
        A(f'    v_mfma_f32_16x16x32_bf16 v[208:211], v[{16+4*s}:{19+4*s}], v[{160+4*s}:{163+4*s}], {c}')
    A('''    v_lshlrev_b32 v12, 16, v10
    v_and_b32 v13, 0xffff0000, v10
    v_lshlrev_b32 v14, 16, v11
    v_and_b32 v15, 0xffff0000, v11''')
    A.nop(4)
    A('''    v_add_f32 v12, v12, v208
    v_add_f32 v13, v13, v209
    v_add_f32 v14, v14, v210
    v_add_f32 v15, v15, v211
    v_cvt_pk_bf16_f32 v10, v12, v13
    v_cvt_pk_bf16_f32 v11, v14, v15
    global_store_dwordx2 v8, v[10:11], s[8:9]
F_END:
    s_endpgm''')
    return A.text(), descriptor(name, 216, 216)

def build(nt=''):
    ks = [('head1_kernel', 96, 256, 12288, k_head1()),
          ('head2_kernel', 12, 64, 0, k_head2()),
          ('main_kernel', 256, 256, 149504, k_main(nt)),
          ('red_kernel', 96, 256, 1024, k_red()),
          ('fin_kernel', 24, 64, 0, k_fin())]
    ref = open('standalone__detection_seg_dino__vision.s.ref').read().split('\n')
    top = [l for l in ref if l.startswith(';') and '@launch' not in l and 'Override launch' not in l and 'grid=ceil' not in l]
    top = top[:12]
    out = '\n'.join(top) + '\n'
    for name, g, b, lds, _ in ks:
        out += f'; @launch kernel={name} grid=({g},1,1) block=({b},1,1) lds={lds}\n'
    out += '.amdgcn_target "amdgcn-amd-amdhsa--gfx950"\n'
    for name, g, b, lds, (txt, desc) in ks:
        probs = check_hazards(txt)
        for p in probs: print('HAZARD', name, p, file=sys.stderr)
        out += txt
    out += '.section .rodata,"a"\n'
    for name, g, b, lds, (txt, desc) in ks:
        out += desc
    return out

if __name__ == '__main__':
    path = sys.argv[1] if len(sys.argv) > 1 else 'standalone__detection_seg_dino__vision.s'
    nt = ' nt' if (len(sys.argv) > 2 and sys.argv[2] == 'nt') else ''
    open(path, 'w').write(build(nt))
    print('wrote', path)
```

```python
import sys, struct, math
from asmlib import *

def f2u(x): return struct.unpack('<I', struct.pack('<f', x))[0]
def lit(x): return f'0x{f2u(x):08x}'
NAME = 'standalone__detection_seg_dino__vision_kernel'

class Opt:
    stamp = False
    nt = ' nt'
    attempt = 'A1'
    sched = 'B0 A3 B1 B2 A4 B3 B4 A5 B5 A6 B6 A7 B7 A8 B8'
O = Opt()

WS_EPOCH = 0x0
WS_QG    = 0x1000
WS_QKG   = 0x8000
WS_CTXN  = 0x10000
WS_CTX   = 0x18000
WS_ML    = 0x20000
WS_PART  = 0x100000
WS_STAMP = 0x800000
SEL_LO, SEL_HI = 0x00003F80, 0x3F800000

RAW = [8, 68]
V_T   = 128
V_STG = 152
V_O   = 160
V_S, V_R, V_G, V_D = 184, 188, 192, 196
V_P   = 200
V_MREF, V_L, V_SQ, V_ONEF, V_EPS = 202, 203, 204, 205, 206
V_F0OFF, V_F1OFF = 207, 208
V_LDSW, V_LDSR0, V_LDSR1, V_LDSF = 209, 210, 211, 212
V_PW, V_PR, V_MB, V_LANE = 213, 214, 215, 216
V_CW, V_CR0, V_CR1, V_CF = 217, 218, 219, 220
V_U = 221
V_GA = 222
V_L16 = 223
V_GB = 224
V_Q = 248
V_STAMP = 253
A_QK, A_X, A_F, A_P, A_ONES, A_W = 0, 48, 96, 144, 152, 156
NACC = 180
S_F0, S_F1, S_WS = 4, 6, 8
S_BSET = [10, 44]
S_WAVE, S_WG, S_T = 16, 17, 19
S_SELLO, S_SELHI, S_C384 = 20, 21, 23
S_MASK = 26
S_TMP = 34
S_TAG, S_EPOCH, S_ROLE, S_JOB = 50, 51, 52, 53
S_Q, S_OUT = 54, 58
S_SPIN = 60
S_EX = 62
S_WQ, S_WK, S_WV, S_WO = 64, 66, 68, 70
R_NONE, R_S1, R_S2, R_G1, R_G2, R_R = 0, 1, 2, 3, 4, 5
SPIN_MAX = 1 << 18
SLOT = 49152
L_QKL  = 3 * SLOT
L_PBUF = L_QKL + 12288
L_MBUF = L_PBUF + 2048
L_LBUF = L_MBUF + 64
LDS_BYTES = L_LBUF + 512
assert LDS_BYTES <= 163840
L_HEAD = 2 * SLOT
L_STAT = L_HEAD + 6144
L_RED_H = L_HEAD
L_TR   = SLOT
L_RED_T = SLOT + 4608
L_RB   = 0

class Gen(Asm):
    def __init__(self):
        super().__init__()
        self.vm = []
        self.uid = 0
        self.nstamp = 0
        self.labels = []
        self.done = set()
    def vmop(self, line, tag):
        self(line); self.vm.append(tag)
    def vmwait(self, tag):
        hits = [i for i, t in enumerate(self.vm) if t == tag]
        if not hits:
            assert tag in self.done, tag
            return
        idx = hits[-1]
        self.done.update(self.vm[:idx + 1])
        n = len(self.vm) - 1 - idx
        assert n <= 63, n
        self(f'    s_waitcnt vmcnt({n})')
        self.vm = self.vm[idx + 1:]
    def vmall(self):
        self('    s_waitcnt vmcnt(0)'); self.vm = []
    def label(self, base):
        self.uid += 1
        return f'{base}_{self.uid}'
    def stamp(self, name):
        if not O.stamp: return
        idx = len(self.labels)
        assert idx < 64
        self.labels.append(name)
        self('    s_memrealtime s[40:41]')
        self('    s_waitcnt lgkmcnt(0)')
        self(f'    v_writelane_b32 v{V_STAMP}, s40, {idx}')

def xgroup_reduce(A, op, v, t):
    A(f'    v_mov_b32 v{t}, v{v}')
    A.nop(2)
    A(f'    v_permlane32_swap_b32 v{t}, v{v}')
    A(f'    {op} v{v}, v{v}, v{t}')
    A(f'    v_mov_b32 v{t}, v{v}')
    A.nop(2)
    A(f'    v_permlane16_swap_b32 v{t}, v{v}')
    A(f'    {op} v{v}, v{v}, v{t}')

def multi_xgroup(A, op, vs, ts):
    for sw in ('32', '16'):
        for v, t in zip(vs, ts): A(f'    v_mov_b32 v{t}, v{v}')
        if len(vs) < 3: A.nop(3 - len(vs))
        for v, t in zip(vs, ts): A(f'    v_permlane{sw}_swap_b32 v{t}, v{v}')
        for v, t in zip(vs, ts): A(f'    {op} v{v}, v{v}, v{t}')

def multi_row(A, op, vs, rots=(8, 4, 2, 1)):
    for rot in rots:
        if len(vs) < 3: A.nop(3 - len(vs))
        for v in vs: A(f'    {op}_dpp v{v}, v{v}, v{v} row_ror:{rot} row_mask:0xf bank_mask:0xf')

def tile_bases(A, u):
    S_B0 = S_BSET[u]; S_B1 = S_B0 + 2; S_BF = S_B0 + 4
    A(f'''    s_mul_hi_u32 s{S_TMP}, s{S_T}, 89478486
    s_mul_i32 s{S_TMP+1}, s{S_TMP}, 48
    s_sub_u32 s{S_TMP+1}, s{S_T}, s{S_TMP+1}
    s_mul_i32 s{S_TMP}, s{S_TMP}, 589824
    s_mul_i32 s{S_TMP+1}, s{S_TMP+1}, 6144
    s_add_u32 s{S_TMP}, s{S_TMP}, s{S_TMP+1}
    s_add_u32 s{S_B0}, s{S_F0}, s{S_TMP}
    s_addc_u32 s{S_B0+1}, s{S_F0+1}, 0
    s_add_u32 s{S_B1}, s{S_B0}, 294912
    s_addc_u32 s{S_B1+1}, s{S_B0+1}, 0
    s_mul_i32 s{S_TMP}, s{S_T}, 3072
    s_add_u32 s{S_BF}, s{S_F1}, s{S_TMP}
    s_addc_u32 s{S_BF+1}, s{S_F1+1}, 0
    s_add_u32 s{S_T}, s{S_T}, 4''')

def issue_item(A, j):
    if j > 26: return
    tile, third = divmod(j, 3); u = tile & 1
    if third == 0: tile_bases(A, u)
    S_B0 = S_BSET[u]; S_B1 = S_B0 + 2; S_BF = S_B0 + 4
    b = RAW[u]
    r = b + 48 + 4 * third
    A.vmop(f'    global_load_dwordx4 v[{r}:{r+3}], v{V_F1OFF}, s[{S_BF}:{S_BF+1}] offset:{third*256}{O.nt}', f'item{j}')
    for jj in range(4):
        dy, dx = jj >> 1, jj & 1
        r = b + 16 * third + 4 * jj
        base = S_B1 if dy else S_B0
        A.vmop(f'    global_load_dwordx4 v[{r}:{r+3}], v{V_F0OFF}, s[{base}:{base+1}] offset:{dx*768+third*256}{O.nt}', f'item{j}')

class Stream:
    nxt = 0
def issue_next(A, n=1):
    for _ in range(n):
        issue_item(A, Stream.nxt); Stream.nxt += 1

def stage_A(A, k, hooks=None):
    hooks = hooks or {}
    u = k & 1; b = RAW[u]; T = V_T
    A(f'    v_add_u32 v{V_CW}, {(k % 3) * SLOT}, v{V_LDSW}')
    units = [(third, dd) for third in range(3) for dd in range(4)]
    def tset(i): return T + 10 * (i & 1)
    def U(i):
        third, dd = units[i]; t = tset(i); f1 = b + 48 + 4 * third + dd
        return [f'    v_lshlrev_b32 v{t+8}, 16, v{f1}', f'    v_and_b32 v{t+9}, 0xffff0000, v{f1}']
    def D(i):
        third, dd = units[i]; t = tset(i)
        return ([f'    v_dot2_f32_bf16 v{t+j}, v{b+16*third+4*j+dd}, s{S_SELLO}, v{t+8}' for j in range(4)] +
                [f'    v_dot2_f32_bf16 v{t+4+j}, v{b+16*third+4*j+dd}, s{S_SELHI}, v{t+9}' for j in range(4)])
    def C(i):
        t = tset(i); o = V_STG + 4 * (i & 1)
        return [f'    v_cvt_pk_bf16_f32 v{o+kk}, v{t+2*kk}, v{t+2*kk+1}' for kk in range(4)]
    def W(i):
        third, dd = units[i]; o = V_STG + 4 * (i & 1)
        return f'    ds_write_b128 v{V_CW}, v[{o}:{o+3}] offset:{(third*4+dd)*1024}'
    A.vmwait(f'item{3*k}')
    for l in U(0) + D(0): A(l)
    for i in range(1, 12):
        if i % 4 == 0: A.vmwait(f'item{3*k + i//4}')
        for l in U(i): A(l)
        d = D(i); c = C(i - 1)
        for kk in range(4):
            A(d[kk]); A(c[kk])
        A(W(i - 1))
        for kk in range(4, 8): A(d[kk])
        if i % 4 == 3:
            issue_next(A)
            if (i // 4) in hooks: hooks[i // 4]()
    A.nop(1)
    for l in C(11): A(l)
    A(W(11))
    A.stamp(f'A{k}')

def stage_B(A, k):
    T = V_T; so = (k % 3) * SLOT
    A(f'    v_add_u32 v{V_CR0}, {so}, v{V_LDSR0}')
    A(f'    v_add_u32 v{V_CR1}, {so}, v{V_LDSR1}')
    A(f'    v_add_u32 v{V_CF}, {so}, v{V_LDSF}')
    for bb in range(12):
        for a2 in range(2):
            r = A_X + 4 * bb + 2 * a2
            A(f'    ds_read_b64_tr_b16 a[{r}:{r+1}], v{V_CR0+a2} offset:{bb*1024}')
    for bb in range(12):
        if bb % 3 == 0:
            A(f'    s_waitcnt lgkmcnt({min(15, 24 - 2*(bb+3))})')
        x = f'a[{A_X+4*bb}:{A_X+4*bb+3}]'
        cs = '0' if bb == 0 else f'v[{V_S}:{V_S+3}]'
        cr = '0' if bb == 0 else f'v[{V_R}:{V_R+3}]'
        cg = '0' if bb == 0 else f'v[{V_G}:{V_G+3}]'
        A(f'    v_mfma_f32_16x16x32_bf16 v[{V_G}:{V_G+3}], {x}, {x}, {cg}')
        A(f'    v_mfma_f32_16x16x32_bf16 v[{V_R}:{V_R+3}], {x}, a[{A_ONES}:{A_ONES+3}], {cr}')
        A(f'    v_mfma_f32_16x16x32_bf16 v[{V_S}:{V_S+3}], {x}, a[{A_QK+4*bb}:{A_QK+4*bb+3}], {cs}')
    A.nop(6)
    A(f'    v_cndmask_b32 v{T}, 0, v{V_G}, s[{S_MASK}:{S_MASK+1}]')
    for r in range(1, 4):
        A(f'    v_cndmask_b32 v{T}, v{T}, v{V_G+r}, s[{S_MASK+2*r}:{S_MASK+2*r+1}]')
    A(f'    v_mul_f32 v{V_R}, s{S_C384}, v{V_R}')
    A(f'    v_mul_f32 v{V_R+1}, s{S_C384}, v{V_R+1}')
    A(f'    v_mfma_f32_16x16x4_f32 v[{V_D}:{V_D+3}], v{T}, v{V_ONEF}, 0')
    A(f'    v_mul_f32 v{V_R+2}, s{S_C384}, v{V_R+2}')
    A(f'    v_mul_f32 v{V_R+3}, s{S_C384}, v{V_R+3}')
    for r in range(4):
        A(f'    v_fma_f32 v{V_S+r}, -v{V_R+r}, v{V_SQ}, v{V_S+r}')
    for r in range(4):
        A(f'    v_fma_f32 v{T+r}, -v{V_R+r}, v{V_R+r}, v{V_EPS}')
    for r in range(4):
        A(f'    v_fma_f32 v{V_D+r}, v{V_D+r}, s{S_C384}, v{T+r}')
    for r in range(4):
        A(f'    v_rsq_f32 v{V_D+r}, v{V_D+r}')
    A('    s_nop 0')
    for r in range(4):
        A(f'    v_mul_f32 v{V_S+r}, v{V_S+r}, v{V_D+r}')
    A(f'    v_max3_f32 v{T}, v{V_S}, v{V_S+1}, v{V_S+2}')
    A(f'    v_max_f32 v{T}, v{T}, v{V_S+3}')
    A(f'    ds_max_f32 v{V_MB}, v{T}')
    A('    s_waitcnt lgkmcnt(0)')
    A('    s_barrier')
    A(f'    ds_read_b32 v{T+1}, v{V_MB}')
    for wp in range(4):
        for third in range(3):
            r = A_F + (wp * 3 + third) * 4
            A(f'    ds_read_b128 a[{r}:{r+3}], v{V_CF} offset:{wp*12288 + third*4096}')
    A('    s_waitcnt lgkmcnt(12)')
    A(f'    v_sub_f32 v{T+2}, v{V_MREF}, v{T+1}')
    for r in range(4):
        A(f'    v_sub_f32 v{V_S+r}, v{V_S+r}, v{T+1}')
    A(f'    v_exp_f32 v{T+2}, v{T+2}')
    for r in range(4):
        A(f'    v_exp_f32 v{V_S+r}, v{V_S+r}')
    A(f'    v_mov_b32 v{V_MREF}, v{T+1}')
    for r in range(4):
        A(f'    v_mul_f32 v{T+4+r}, v{V_S+r}, v{V_D+r}')
    A(f'    v_add_f32 v{V_S}, v{V_S}, v{V_S+1}')
    A(f'    v_cvt_pk_bf16_f32 v{V_P}, v{T+4}, v{T+5}')
    A(f'    v_cvt_pk_bf16_f32 v{V_P+1}, v{T+6}, v{T+7}')
    A(f'    v_add_f32 v{V_S+2}, v{V_S+2}, v{V_S+3}')
    A(f'    ds_write_b64 v{V_PW}, v[{V_P}:{V_P+1}]')
    A(f'    v_add_f32 v{V_S}, v{V_S}, v{V_S+2}')
    A(f'    v_fma_f32 v{V_L}, v{V_L}, v{T+2}, v{V_S}')
    A(f'    v_mul_f32 v{V_U}, v{V_U}, v{T+2}')
    A(f'    v_lshlrev_b32 v{T+4}, 16, v{V_P}')
    A(f'    v_and_b32 v{T+5}, 0xffff0000, v{V_P}')
    A(f'    v_lshlrev_b32 v{T+6}, 16, v{V_P+1}')
    A(f'    v_and_b32 v{T+7}, 0xffff0000, v{V_P+1}')
    for r in range(4):
        A(f'    v_fmac_f32 v{V_U}, v{T+4+r}, v{V_R+r}')
    for kk in range(0, 24, 2):
        A(f'    v_pk_mul_f32 v[{V_O+kk}:{V_O+kk+1}], v[{V_O+kk}:{V_O+kk+1}], v[{T+2}:{T+3}] op_sel_hi:[1,0]')
    A('    s_waitcnt lgkmcnt(0)')
    A('    s_barrier')
    for wp in range(4):
        A(f'    ds_read_b64 a[{A_P+2*wp}:{A_P+2*wp+1}], v{V_PR} offset:{wp*512}')
    for wp in range(4):
        A(f'    s_waitcnt lgkmcnt({3-wp})')
        for third in range(3):
            for e1 in range(2):
                f = A_F + (wp * 3 + third) * 4 + 2 * e1
                o = V_O + (third * 2 + e1) * 4
                A(f'    v_mfma_f32_16x16x16_bf16 v[{o}:{o+3}], a[{f}:{f+1}], a[{A_P+2*wp}:{A_P+2*wp+1}], v[{o}:{o+3}]')
    A.stamp(f'B{k}')

def gather_addr(A, ws_off):
    A(f'    s_mul_i32 s{S_TMP}, s{S_WAVE}, 6144')
    A(f'    s_add_u32 s{S_TMP}, s{S_TMP}, {ws_off + 2048}')
    A(f'    v_add_u32 v{V_GA}, s{S_TMP}, v{V_L16}')

def gather_issue(A, track=None):
    for kk in range(3):
        for h in range(2):
            r = V_GB + 8 * kk + 4 * h
            line = f'    global_load_dwordx4 v[{r}:{r+3}], v{V_GA}, s[{S_WS}:{S_WS+1}] offset:{kk*2048 + h*1024 - 2048} sc1'
            if track: A.vmop(line, track)
            else: A(line)

def gather_check(A):
    T = V_T
    for kk in range(3):
        A(f'    v_xor_b32 v{T+2*kk}, s{S_TAG}, v{V_GB+8*kk}')
        A(f'    v_xor_b32 v{T+2*kk+1}, s{S_TAG}, v{V_GB+8*kk+6}')
    A(f'    v_or3_b32 v{T}, v{T}, v{T+1}, v{T+2}')
    A(f'    v_or3_b32 v{T+3}, v{T+3}, v{T+4}, v{T+5}')
    A(f'    v_or_b32 v{T}, v{T}, v{T+3}')
    A(f'    v_cmp_ne_u32 vcc, 0, v{T}')

def spin_guard(A, lbl_retry):
    A(f'    s_add_u32 s{S_SPIN}, s{S_SPIN}, 1')
    A(f'    s_cmp_lt_u32 s{S_SPIN}, {SPIN_MAX}')
    A(f'    s_cbranch_scc0 K_END')
    A(f'    s_sleep 1')

def gather_loop(A):
    l = A.label('GL'); d = A.label('GD')
    A(f'{l}:')
    gather_issue(A)
    A('    s_waitcnt vmcnt(0)')
    gather_check(A)
    A(f'    s_cbranch_vccz {d}')
    spin_guard(A, l)
    A(f'    s_branch {l}')
    A(f'{d}:')

def publish8(A, dreg, ws_off_sgpr):
    A(f'    v_mov_b32 v{dreg}, s{S_TAG}')
    A(f'    v_mov_b32 v{dreg+1}, 0')
    A(f'    v_mov_b32 v{dreg+6}, s{S_TAG}')
    A(f'    v_mov_b32 v{dreg+7}, 0')
    A(f'    v_add_u32 v1, s{ws_off_sgpr}, v{V_L16}')
    A(f'    global_store_dwordx4 v1, v[{dreg}:{dreg+3}], s[{S_WS}:{S_WS+1}] sc1')
    A(f'    global_store_dwordx4 v1, v[{dreg+4}:{dreg+7}], s[{S_WS}:{S_WS+1}] offset:1024 sc1')

def slab_addr(A, perm):
    A(f'''    v_lshrrev_b32 v1, 2, v{V_LANE}
    s_mul_i32 s{S_TMP}, s{S_WAVE}, 96
    v_add_u32 v1, s{S_TMP}, v1            ; p (x = 0)
    v_and_b32 v{V_T}, 3, v{V_LANE}
    v_lshlrev_b32 v{V_T}, 4, v{V_T}
    s_lshl_b32 s{S_TMP}, s{S_JOB}, 6
    v_add_u32 v{V_T}, s{S_TMP}, v{V_T}''')
    for x in range(6):
        d = 2 + x
        if not perm:
            A(f'    v_add_u32 v{d}, {16*x}, v1')
        else:
            t = V_T + 1
            A(f'''    v_add_u32 v{t}, {16*x}, v1            ; p
    v_mul_u32_u24 v{t+1}, 10923, v{t}
    v_lshrrev_b32 v{t+1}, 16, v{t+1}      ; gi = p/6
    v_mul_u32_u24 v{t+2}, 6, v{t+1}
    v_sub_u32 v{t+2}, v{t}, v{t+2}        ; y
    v_lshrrev_b32 v{t+3}, 1, v{t+2}
    v_lshlrev_b32 v{t+3}, 7, v{t+3}       ; third*128
    v_and_b32 v{t+2}, 1, v{t+2}           ; e1
    v_add_u32 v{t+3}, v{t+3}, v{t+2}
    v_and_b32 v{t+2}, 3, v{t+1}
    v_lshlrev_b32 v{t+2}, 3, v{t+2}       ; 8*r4
    v_add_u32 v{t+3}, v{t+3}, v{t+2}
    v_bfe_u32 v{t+2}, v{t+1}, 2, 2
    v_lshlrev_b32 v{t+2}, 5, v{t+2}       ; 32*g'
    v_add_u32 v{t+3}, v{t+3}, v{t+2}
    v_lshrrev_b32 v{t+2}, 4, v{t+1}
    v_lshlrev_b32 v{t+2}, 1, v{t+2}       ; 2*w'
    v_add_u32 v{d}, v{t+3}, v{t+2}''')
        A(f'    v_mul_u32_u24 v{d}, 768, v{d}')
        A(f'    v_add_u32 v{d}, v{d}, v{V_T}')

def slab_loads(A, sptr, dst, track=None):
    for x in range(6):
        line = f'    global_load_dwordx4 v[{dst+4*x}:{dst+4*x+3}], v{2+x}, s[{sptr}:{sptr+1}]'
        if track: A.vmop(line, track)
        else: A(line)

def slab_to_operands(A, src, lds_base):
    A(f'''    s_mul_i32 s{S_TMP}, s{S_WAVE}, 12288
    s_add_u32 s{S_TMP}, s{S_TMP}, {lds_base}
    v_add_u32 v1, s{S_TMP}, v{V_L16}''')
    for x in range(6):
        A(f'    ds_write_b128 v1, v[{src+4*x}:{src+4*x+3}] offset:{x*1024}')
    A(f'''    v_lshrrev_b32 v2, 4, v{V_LANE}
    v_lshlrev_b32 v2, 9, v2               ; g*512
    v_bfe_u32 v3, v{V_LANE}, 2, 2
    v_lshlrev_b32 v3, 6, v3               ; r*64
    v_and_b32 v4, 3, v{V_LANE}
    v_lshlrev_b32 v4, 4, v4               ; c*16
    v_add3_u32 v2, v2, v3, v4
    v_add_u32 v2, s{S_TMP}, v2''')
    for kk in range(3):
        for tb in range(2):
            for hf in range(2):
                r = A_W + (kk * 2 + tb) * 4 + 2 * hf
                A(f'    ds_read_b64_tr_b16 a[{r}:{r+1}], v2 offset:{kk*2048 + hf*256 + tb*8}')

def gemm6(A, bregs):
    for kk in range(3):
        for tb in range(2):
            d = V_S if tb == 0 else V_R
            c = '0' if kk == 0 else f'v[{d}:{d+3}]'
            w = A_W + (kk * 2 + tb) * 4
            A(f'    v_mfma_f32_16x16x32_bf16 v[{d}:{d+3}], a[{w}:{w+3}], {bregs(kk)}, {c}')

def cross_wave_sum(A, red):
    skip = A.label('XW'); w0 = A.label('XW0')
    A.nop(8)
    A(f'''    s_cmp_eq_u32 s{S_WAVE}, 0
    s_cbranch_scc1 {w0}
    s_sub_u32 s{S_TMP}, s{S_WAVE}, 1
    s_lshl_b32 s{S_TMP}, s{S_TMP}, 11
    s_add_u32 s{S_TMP}, s{S_TMP}, {red}
    v_add_u32 v1, s{S_TMP}, v{V_L16}
    ds_write_b128 v1, v[{V_S}:{V_S+3}]
    ds_write_b128 v1, v[{V_R}:{V_R+3}] offset:1024
    s_waitcnt lgkmcnt(0)
{w0}:
    s_barrier
    s_cmp_eq_u32 s{S_WAVE}, 0
    s_cbranch_scc0 {skip}
    v_add_u32 v1, {red}, v{V_L16}''')
    T = V_T
    for w in range(3):
        A(f'    ds_read_b128 v[{T+8*w}:{T+8*w+3}], v1 offset:{w*2048}')
        A(f'    ds_read_b128 v[{T+8*w+4}:{T+8*w+7}], v1 offset:{w*2048+1024}')
    for w in range(3):
        A(f'    s_waitcnt lgkmcnt({4 - 2*w})')
        for r in range(4):
            A(f'    v_add_f32 v{V_S+r}, v{V_S+r}, v{T+8*w+r}')
        for r in range(4):
            A(f'    v_add_f32 v{V_R+r}, v{V_R+r}, v{T+8*w+4+r}')
    return skip

def pack_D(A, dreg):
    A(f'    v_cvt_pk_bf16_f32 v{dreg+2}, v{V_S}, v{V_S+1}')
    A(f'    v_cvt_pk_bf16_f32 v{dreg+3}, v{V_S+2}, v{V_S+3}')
    A(f'    v_cvt_pk_bf16_f32 v{dreg+4}, v{V_R}, v{V_R+1}')
    A(f'    v_cvt_pk_bf16_f32 v{dreg+5}, v{V_R+2}, v{V_R+3}')

def role_S1_loads(A):
    A(f"""    v_lshrrev_b32 v1, 4, v{V_LANE}
    v_lshlrev_b32 v1, 4, v1               ; g*16
    v_and_b32 v2, 15, v{V_LANE}
    v_mul_u32_u24 v2, 768, v2
    s_mul_i32 s{S_TMP}, s{S_WAVE}, 192
    v_add3_u32 v1, v1, v2, s{S_TMP}""")
    for kk in range(3):
        A(f'    global_load_dwordx4 v[{V_GB+4*kk}:{V_GB+4*kk+3}], v1, s[{S_Q}:{S_Q+1}] offset:{kk*64}')
    slab_addr_regs(A, False)
    slab_loads(A, S_WQ, V_O)

def slab_addr_regs(A, perm):
    slab_addr(A, perm)

def role_S1_work(A):
    T = V_T; Qr = V_GB
    A('    s_waitcnt vmcnt(20)')
    slab_to_operands(A, V_O, L_HEAD)
    for kk in range(3):
        q = f'v[{Qr+4*kk}:{Qr+4*kk+3}]'
        A(f'    v_mfma_f32_16x16x32_bf16 v[{V_G}:{V_G+3}], {q}, {q}, ' + ('0' if kk == 0 else f'v[{V_G}:{V_G+3}]'))
        A(f'    v_mfma_f32_16x16x32_bf16 v[{V_R}:{V_R+3}], a[{A_ONES}:{A_ONES+3}], {q}, ' + ('0' if kk == 0 else f'v[{V_R}:{V_R+3}]'))
    A.nop(7)
    A(f'    v_cndmask_b32 v{T}, 0, v{V_G}, s[{S_MASK}:{S_MASK+1}]')
    for r in range(1, 4):
        A(f'    v_cndmask_b32 v{T}, v{T}, v{V_G+r}, s[{S_MASK+2*r}:{S_MASK+2*r+1}]')
    A.nop(2)
    A(f'    v_mfma_f32_16x16x4_f32 v[{V_D}:{V_D+3}], v{V_ONEF}, v{T}, 0')
    A(f"""    s_lshl_b32 s{S_TMP}, s{S_WAVE}, 9
    s_add_u32 s{S_TMP}, s{S_TMP}, {L_STAT}
    v_lshlrev_b32 v1, 3, v{V_LANE}
    v_add_u32 v1, s{S_TMP}, v1
    v_and_b32 v2, 15, v{V_LANE}
    v_lshlrev_b32 v2, 3, v2
    v_add_u32 v2, {L_STAT}, v2
    v_mov_b32 v{T+2}, v{V_R}""")
    A.nop(3)
    A(f'    v_mov_b32 v{T+3}, v{V_D}')
    A(f'    ds_write_b64 v1, v[{T+2}:{T+3}]')
    A('    s_waitcnt lgkmcnt(0)')
    A('    s_barrier')
    for w in range(4):
        A(f'    ds_read_b64 v[{T+4+2*w}:{T+5+2*w}], v2 offset:{w*512}')
    A('    s_waitcnt lgkmcnt(0)')
    A(f"""    v_add_f32 v{T+4}, v{T+4}, v{T+6}
    v_add_f32 v{T+5}, v{T+5}, v{T+7}
    v_add_f32 v{T+8}, v{T+8}, v{T+10}
    v_add_f32 v{T+9}, v{T+9}, v{T+11}
    v_add_f32 v{T+4}, v{T+4}, v{T+8}
    v_add_f32 v{T+5}, v{T+5}, v{T+9}
    v_mul_f32 v{T+4}, s{S_C384}, v{T+4}          ; mean
    v_mul_f32 v{T+5}, s{S_C384}, v{T+5}          ; E[x^2]
    v_fma_f32 v{T+5}, -v{T+4}, v{T+4}, v{T+5}    ; var
    v_max_f32 v{T+5}, 0, v{T+5}
    v_cvt_pk_bf16_f32 v{T+6}, v{T+4}, v{T+5}
    v_lshlrev_b32 v{T+4}, 16, v{T+6}
    v_and_b32 v{T+5}, 0xffff0000, v{T+6}
    v_add_f32 v{T+5}, v{V_EPS}, v{T+5}
    v_cvt_pk_bf16_f32 v{T+5}, v{T+5}, v{T+5}
    v_lshlrev_b32 v{T+5}, 16, v{T+5}
    v_sqrt_f32 v{T+5}, v{T+5}
    s_nop 0
    v_cvt_pk_bf16_f32 v{T+5}, v{T+5}, v{T+5}
    v_lshlrev_b32 v{T+5}, 16, v{T+5}
    v_rcp_f32 v{T+5}, v{T+5}""")
    for k in range(0, 12, 2):
        a, b = T + 8, T + 12
        A(f'    v_lshlrev_b32 v{a}, 16, v{Qr+k}')
        A(f'    v_and_b32 v{a+1}, 0xffff0000, v{Qr+k}')
        A(f'    v_lshlrev_b32 v{b}, 16, v{Qr+k+1}')
        A(f'    v_and_b32 v{b+1}, 0xffff0000, v{Qr+k+1}')
        for x in (a, a + 1, b, b + 1): A(f'    v_sub_f32 v{x}, v{x}, v{T+4}')
        A(f'    v_cvt_pk_bf16_f32 v{a+2}, v{a}, v{a+1}')
        A(f'    v_cvt_pk_bf16_f32 v{b+2}, v{b}, v{b+1}')
        A(f'    v_lshlrev_b32 v{a}, 16, v{a+2}')
        A(f'    v_and_b32 v{a+1}, 0xffff0000, v{a+2}')
        A(f'    v_lshlrev_b32 v{b}, 16, v{b+2}')
        A(f'    v_and_b32 v{b+1}, 0xffff0000, v{b+2}')
        for x in (a, a + 1, b, b + 1): A(f'    v_mul_f32 v{x}, v{x}, v{T+5}')
        A(f'    v_cvt_pk_bf16_f32 v{Qr+k}, v{a}, v{a+1}')
        A(f'    v_cvt_pk_bf16_f32 v{Qr+k+1}, v{b}, v{b+1}')
    A.nop(2)
    gemm6(A, lambda kk: f'v[{Qr+4*kk}:{Qr+4*kk+3}]')
    skip = cross_wave_sum(A, L_RED_H)
    pack_D(A, V_O)
    A(f'    s_lshl_b32 s{S_TMP}, s{S_JOB}, 11')
    A(f'    s_add_u32 s{S_TMP}, s{S_TMP}, {WS_QG}')
    publish8(A, V_O, S_TMP)
    A(f'{skip}:')

def role_S2_loads(A):
    A(f"""    s_lshr_b32 s{S_TMP}, s{S_JOB}, 2
    s_lshl_b32 s{S_TMP}, s{S_TMP}, 7
    s_and_b32 s{S_TMP+1}, s{S_JOB}, 3
    s_lshl_b32 s{S_TMP+1}, s{S_TMP+1}, 1
    s_add_u32 s{S_TMP}, s{S_TMP}, s{S_TMP+1}
    v_and_b32 v7, 15, v{V_LANE}                   ; rho
    v_lshrrev_b32 v2, 3, v7
    v_lshlrev_b32 v2, 2, v2
    v_bfe_u32 v3, v7, 2, 1
    v_lshlrev_b32 v3, 1, v3
    v_bfe_u32 v4, v7, 1, 1
    v_add3_u32 v2, v2, v3, v4
    v_lshlrev_b32 v2, 3, v2
    v_and_b32 v3, 1, v7
    v_add3_u32 v2, v2, v3, s{S_TMP}               ; channel (a2 = 0)
    v_mul_u32_u24 v2, 768, v2
    v_lshrrev_b32 v3, 4, v{V_LANE}
    v_lshlrev_b32 v3, 4, v3
    s_mul_i32 s{S_TMP}, s{S_WAVE}, 192
    v_add3_u32 v2, v2, v3, s{S_TMP}
    v_add_u32 v3, 49152, v2""")
    for kk in range(3):
        for a2 in range(2):
            r = A_W + (kk * 2 + a2) * 4
            A(f'    global_load_dwordx4 a[{r}:{r+3}], v{2+a2}, s[{S_WK}:{S_WK+1}] offset:{kk*64}')

def role_S2_work(A):
    scale = 384 ** -0.5 * math.log2(math.e)
    gather_addr(A, WS_QG)
    gather_loop(A)
    gemm6(A, lambda kk: f'v[{V_GB+8*kk+2}:{V_GB+8*kk+5}]')
    skip = cross_wave_sum(A, L_RED_H)
    for r in range(4):
        A(f'    v_mul_f32 v{V_S+r}, {lit(scale)}, v{V_S+r}')
    for r in range(4):
        A(f'    v_mul_f32 v{V_R+r}, {lit(scale)}, v{V_R+r}')
    pack_D(A, V_O)
    A(f'    s_lshl_b32 s{S_TMP}, s{S_JOB}, 11')
    A(f'    s_add_u32 s{S_TMP}, s{S_TMP}, {WS_QKG}')
    publish8(A, V_O, S_TMP)
    A(f'{skip}:')

def get_qk(A):
    ok = A.label('QK_OK'); lp = A.label('QK_LP')
    A.vmwait('qk')
    gather_check(A)
    A(f'    s_cbranch_vccz {ok}')
    gather_loop(A)
    A(f'{ok}:')
    A(f"""    s_mul_i32 s{S_TMP}, s{S_WAVE}, 3072
    s_add_u32 s{S_TMP}, s{S_TMP}, {L_QKL}
    v_add_u32 v1, s{S_TMP}, v{V_L16}""")
    for kk in range(3):
        A(f'    ds_write_b128 v1, v[{V_GB+8*kk+2}:{V_GB+8*kk+5}] offset:{kk*1024}')
    A(f'    v_add_u32 v1, {L_QKL}, v{V_L16}')
    A('    s_waitcnt lgkmcnt(0)')
    A('    s_barrier')
    for bb in range(12):
        A(f'    ds_read_b128 a[{A_QK+4*bb}:{A_QK+4*bb+3}], v1 offset:{bb*1024}')
    for bb in range(12):
        if bb % 4 == 0: A(f'    s_waitcnt lgkmcnt({8 - bb})')
        c = '0' if bb == 0 else f'v[{V_S}:{V_S+3}]'
        A(f'    v_mfma_f32_16x16x32_bf16 v[{V_S}:{V_S+3}], a[{A_ONES}:{A_ONES+3}], a[{A_QK+4*bb}:{A_QK+4*bb+3}], {c}')
    A.nop(8)
    A(f'    v_mov_b32 v{V_SQ}, v{V_S}')
    A.stamp('Qk')

def role_G_loads(A):
    g1 = A.label('GL1'); done = A.label('GLD')
    A(f'    s_cmp_eq_u32 s{S_ROLE}, {R_G1}')
    A(f'    s_cbranch_scc1 {g1}')
    A(f'    s_cmp_eq_u32 s{S_ROLE}, {R_G2}')
    A(f'    s_cbranch_scc0 {done}')
    slab_addr(A, False)
    slab_loads(A, S_WO, RAW[1])
    A(f"""    v_and_b32 v1, 15, v{V_LANE}
    v_mul_u32_u24 v1, 768, v1
    v_lshrrev_b32 v2, 4, v{V_LANE}
    v_lshlrev_b32 v2, 4, v2
    s_lshl_b32 s{S_TMP}, s{S_JOB}, 6
    v_add3_u32 v{V_Q+4}, v1, v2, s{S_TMP}
    global_load_dwordx4 v[{V_Q}:{V_Q+3}], v{V_Q+4}, s[{S_Q}:{S_Q+1}]
    s_branch {done}
{g1}:""")
    slab_addr(A, True)
    slab_loads(A, S_WV, RAW[1])
    A(f'{done}:')

def epilogue(A):
    T = V_T
    multi_xgroup(A, 'v_add_f32', [V_L, V_U], [T, T + 1])
    A(f"""    v_and_b32 v3, 15, v{V_LANE}           ; n
    v_lshlrev_b32 v5, 4, v3
    s_lshl_b32 s{S_TMP}, s{S_WAVE}, 2
    s_add_u32 s{S_TMP}, s{S_TMP}, {L_LBUF}
    v_add_u32 v6, s{S_TMP}, v5
    ds_write_b32 v6, v{V_L}
    ds_write_b32 v6, v{V_U} offset:256""")
    for r in range(4):
        for third in range(3):
            b0 = V_O + third * 8; b1 = b0 + 4
            A(f'    v_cvt_pk_bf16_f32 v{8+4*r+third}, v{b0+r}, v{b1+r}')
        A(f'    v_mov_b32 v{8+4*r+3}, s{S_TAG}')
    A(f"""    s_mul_i32 s{S_TMP}, s{S_WAVE}, 12288
    s_add_u32 s{S_TMP}, s{S_TMP}, {L_TR}
    v_mul_u32_u24 v1, 272, v3
    v_lshrrev_b32 v2, 4, v{V_LANE}        ; g'
    v_lshlrev_b32 v4, 6, v2               ; (g'>>1)*128 + (g'&1)*64 == g'*64
    v_add3_u32 v1, v1, v4, s{S_TMP}""")
    for r in range(4):
        A(f'    ds_write_b128 v1, v[{8+4*r}:{11+4*r}] offset:{r*16}')
    A(f"""    v_mul_u32_u24 v1, 272, v2
    v_add3_u32 v1, v1, v5, s{S_TMP}""")
    for x in range(4):
        A(f'    ds_read_b128 v[{24+4*x}:{27+4*x}], v1 offset:{x*1088}')
    A(f"""    v_lshlrev_b32 v1, 18, v2              ; (l>>4)*8*32768
    v_bfe_u32 v4, v{V_LANE}, 3, 1
    v_lshlrev_b32 v4, 15, v4
    v_and_b32 v7, 7, v{V_LANE}
    v_lshlrev_b32 v7, 4, v7
    v_add3_u32 v1, v1, v4, v7
    s_lshl_b32 s{S_TMP}, s{S_WAVE}, 16
    s_lshl_b32 s{S_TMP+1}, s{S_WG}, 7
    s_add_u32 s{S_TMP}, s{S_TMP}, s{S_TMP+1}
    s_add_u32 s{S_TMP}, s{S_TMP}, {WS_PART}
    v_add_u32 v1, s{S_TMP}, v1
    v_add_u32 v2, 0x100000, v1
    v_add_u32 v4, 0x200000, v1
    v_add_u32 v7, 0x300000, v1""")
    for x, a in enumerate((1, 2, 4, 7)):
        A(f'    s_waitcnt lgkmcnt({3-x})')
        A(f'    global_store_dwordx4 v{a}, v[{24+4*x}:{27+4*x}], s[{S_WS}:{S_WS+1}] sc1')
    A('    s_barrier')
    skip = A.label('EP')
    A(f"""    s_cmp_eq_u32 s{S_WAVE}, 0
    s_cbranch_scc0 {skip}
    v_add_u32 v5, {L_LBUF}, v5
    ds_read_b128 v[40:43], v5
    ds_read_b128 v[44:47], v5 offset:256
    v_lshlrev_b32 v3, 12, v3
    s_lshl_b32 s{S_TMP}, s{S_WG}, 4
    s_add_u32 s{S_TMP}, s{S_TMP}, {WS_ML}
    v_add_u32 v3, s{S_TMP}, v3
    v_mov_b32 v48, v{V_MREF}
    v_mov_b32 v51, s{S_TAG}
    s_waitcnt lgkmcnt(0)
    v_add_f32 v40, v40, v41
    v_add_f32 v42, v42, v43
    v_add_f32 v44, v44, v45
    v_add_f32 v46, v46, v47
    v_add_f32 v49, v40, v42
    v_add_f32 v50, v44, v46
    v_cmp_gt_u32 vcc, 16, v{V_LANE}
    s_and_saveexec_b64 s[{S_EX}:{S_EX+1}], vcc
    global_store_dwordx4 v3, v[48:51], s[{S_WS}:{S_WS+1}] sc1
    s_mov_b64 exec, s[{S_EX}:{S_EX+1}]
{skip}:""")
    A.stamp('pub')

def role_R(A):
    T = V_T
    lp = A.label('RL'); ok = A.label('RO'); lp2 = A.label('RD'); ok2 = A.label('RO2'); fin = A.label('RF')
    A(f"""    s_and_b32 s{S_TMP}, s{S_JOB}, 15          ; n
    s_lshr_b32 s{S_TMP+1}, s{S_JOB}, 4        ; chunk
    s_lshl_b32 s{S_TMP+2}, s{S_TMP}, 12
    s_lshl_b32 s{S_TMP+3}, s{S_WAVE}, 10
    s_add_u32 s{S_TMP+2}, s{S_TMP+2}, s{S_TMP+3}
    s_add_u32 s{S_TMP+2}, s{S_TMP+2}, {WS_ML}
    v_add_u32 v1, s{S_TMP+2}, v{V_L16}
    s_lshl_b32 s{S_TMP+2}, s{S_TMP}, 3
    s_add_u32 s{S_TMP+2}, s{S_TMP+2}, s{S_TMP+1}
    s_lshl_b32 s{S_TMP+2}, s{S_TMP+2}, 15
    s_lshl_b32 s{S_TMP+3}, s{S_WAVE}, 13
    s_add_u32 s{S_TMP+2}, s{S_TMP+2}, s{S_TMP+3}
    s_add_u32 s{S_TMP+2}, s{S_TMP+2}, {WS_PART + 4096}
    v_add_u32 v2, s{S_TMP+2}, v{V_L16}
{lp}:
    global_load_dwordx4 v[8:11], v1, s[{S_WS}:{S_WS+1}] sc1
    s_waitcnt vmcnt(0)
    v_cmp_ne_u32 vcc, s{S_TAG}, v11
    s_cbranch_vccz {ok}""")
    spin_guard(A, lp)
    A(f'    s_branch {lp}')
    A(f'{ok}:')
    A.stamp('R_ml')
    def data_loads():
        for k in range(8):
            A(f'    global_load_dwordx4 v[{16+4*k}:{19+4*k}], v2, s[{S_WS}:{S_WS+1}] offset:{k*1024-4096} sc1')
    data_loads()
    A(f'    v_mov_b32 v12, v8')
    multi_row(A, 'v_max_f32', [12])
    xgroup_reduce(A, 'v_max_f32', 12, 13)
    A(f"""    v_sub_f32 v8, v8, v12
    v_exp_f32 v8, v8
    v_lshrrev_b32 v3, 3, v{V_LANE}
    v_lshlrev_b32 v3, 2, v3               ; ii*4
    v_mul_f32 v9, v9, v8
    v_mul_f32 v10, v10, v8""")
    for k in range(8):
        A(f'    v_add_u32 v4, {32*k}, v3')
        A(f'    ds_bpermute_b32 v{48+k}, v4, v8')
    multi_row(A, 'v_add_f32', [9, 10])
    multi_xgroup(A, 'v_add_f32', [9, 10], [13, 14])
    for j in range(6): A(f'    v_mov_b32 v{56+j}, 0')
    A(f'{lp2}:')
    A('    s_waitcnt vmcnt(0)')
    for k in range(0, 8, 2):
        A(f'    v_xor_b32 v{64+k}, s{S_TAG}, v{19+4*k}')
        A(f'    v_xor_b32 v{65+k}, s{S_TAG}, v{23+4*k}')
    A(f"""    v_or3_b32 v64, v64, v65, v66
    v_or3_b32 v67, v67, v68, v69
    v_or3_b32 v64, v64, v70, v71
    v_or_b32 v64, v64, v67
    v_cmp_ne_u32 vcc, 0, v64
    s_cbranch_vccz {ok2}""")
    spin_guard(A, lp2)
    data_loads()
    A(f'    s_branch {lp2}')
    A(f'{ok2}:')
    A('    s_waitcnt lgkmcnt(0)')
    for k in range(8):
        for t in range(3):
            A(f'    v_lshlrev_b32 v64, 16, v{16+4*k+t}')
            A(f'    v_and_b32 v65, 0xffff0000, v{16+4*k+t}')
            A(f'    v_fmac_f32 v{56+2*t}, v64, v{48+k}')
            A(f'    v_fmac_f32 v{57+2*t}, v65, v{48+k}')
    acc = list(range(56, 62))
    multi_row(A, 'v_add_f32', acc, rots=(8,))
    multi_xgroup(A, 'v_add_f32', acc, list(range(64, 70)))
    A(f"""    s_lshl_b32 s{S_TMP+2}, s{S_WAVE}, 8
    s_add_u32 s{S_TMP+2}, s{S_TMP+2}, {L_RB}
    v_mul_u32_u24 v3, 24, v{V_LANE}
    v_add_u32 v3, s{S_TMP+2}, v3
    v_mov_b32 v4, s{S_TMP+2}
    v_mov_b32 v13, v9
    v_mov_b32 v14, v10
    v_mov_b32 v15, 0
    v_cmp_gt_u32 vcc, 8, v{V_LANE}
    s_and_saveexec_b64 s[{S_EX}:{S_EX+1}], vcc
    ds_write_b64 v3, v[56:57]
    ds_write_b64 v3, v[58:59] offset:8
    ds_write_b64 v3, v[60:61] offset:16
    ds_write_b128 v4, v[12:15] offset:192
    s_mov_b64 exec, s[{S_EX}:{S_EX+1}]
    s_waitcnt lgkmcnt(0)
    s_barrier
    s_cmp_eq_u32 s{S_WAVE}, 0
    s_cbranch_scc0 {fin}
    v_min_u32 v3, 11, v{V_LANE}
    v_lshlrev_b32 v3, 4, v3
    v_add_u32 v3, {L_RB}, v3
    v_mov_b32 v4, {L_RB}""")
    for w in range(4):
        A(f'    ds_read_b128 v[{16+4*w}:{19+4*w}], v4 offset:{w*256+192}')
    for w in range(4):
        A(f'    ds_read_b128 v[{32+4*w}:{35+4*w}], v3 offset:{w*256}')
    A(f"""    s_waitcnt lgkmcnt(4)
    v_max_f32 v12, v16, v20
    v_max3_f32 v12, v12, v24, v28""")
    for w in range(4): A(f'    v_sub_f32 v{16+4*w}, v{16+4*w}, v12')
    for w in range(4): A(f'    v_exp_f32 v{16+4*w}, v{16+4*w}')
    A(f"""    s_nop 0
    v_mul_f32 v13, v16, v17
    v_mul_f32 v14, v16, v18""")
    for w in range(1, 4):
        A(f'    v_fmac_f32 v13, v{16+4*w}, v{17+4*w}')
        A(f'    v_fmac_f32 v14, v{16+4*w}, v{18+4*w}')
    A(f"""    v_rcp_f32 v13, v13
    s_waitcnt lgkmcnt(0)""")
    for j in range(4): A(f'    v_mul_f32 v{8+j}, v{32+j}, v16')
    for w in range(1, 4):
        for j in range(4): A(f'    v_fmac_f32 v{8+j}, v{32+4*w+j}, v{16+4*w}')
    for j in range(4): A(f'    v_sub_f32 v{8+j}, v{8+j}, v14')
    for j in range(4): A(f'    v_mul_f32 v{8+j}, v{8+j}, v13')
    A(f"""    v_cvt_pk_bf16_f32 v12, v8, v9
    v_cvt_pk_bf16_f32 v13, v10, v11
    v_mov_b32 v14, s{S_TAG}
    v_and_b32 v3, 1, v{V_LANE}                ; h
    v_cmp_eq_u32 vcc, 1, v3
    v_lshlrev_b32 v3, 10, v3
    v_lshrrev_b32 v4, 1, v{V_LANE}            ; x
    s_mul_i32 s{S_TMP+2}, s{S_TMP+1}, 6
    v_add_u32 v4, s{S_TMP+2}, v4              ; v = chunk*6 + x
    v_cndmask_b32 v16, v14, v12, vcc
    v_cndmask_b32 v17, 0, v13, vcc            ; h ? Db : 0
    v_cndmask_b32 v18, v12, v14, vcc
    v_cndmask_b32 v19, v13, 0, vcc            ; h ? 0 : Db
    v_lshrrev_b32 v5, 2, v4
    v_lshlrev_b32 v5, 11, v5                  ; s*2048
    v_and_b32 v4, 3, v4
    v_lshlrev_b32 v4, 8, v4                   ; g*256
    v_add3_u32 v3, v3, v4, v5
    s_lshl_b32 s{S_TMP+2}, s{S_TMP}, 4
    s_add_u32 s{S_TMP+2}, s{S_TMP+2}, {WS_CTXN}
    v_add_u32 v3, s{S_TMP+2}, v3
    v_cmp_gt_u32 vcc, 12, v{V_LANE}
    s_and_saveexec_b64 s[{S_EX}:{S_EX+1}], vcc
    global_store_dwordx4 v3, v[16:19], s[{S_WS}:{S_WS+1}] sc1
    s_mov_b64 exec, s[{S_EX}:{S_EX+1}]
{fin}:""")
    A.stamp('R_done')

def role_G(A):
    g2 = A.label('G2'); fin = A.label('GF')
    A('    s_waitcnt vmcnt(0)')
    slab_to_operands(A, RAW[1], 0)
    A(f'    s_cmp_eq_u32 s{S_ROLE}, {R_G2}')
    A(f'    s_cbranch_scc1 {g2}')
    gather_addr(A, WS_CTXN)
    lj = A.label('GJ')
    A(f'    s_branch {lj}')
    A(f'{g2}:')
    gather_addr(A, WS_CTX)
    A(f'{lj}:')
    gather_loop(A)
    A('    s_waitcnt lgkmcnt(0)')
    A.stamp('G_in')
    gemm6(A, lambda kk: f'v[{V_GB+8*kk+2}:{V_GB+8*kk+5}]')
    skip = cross_wave_sum(A, L_RED_T)
    out2 = A.label('GO')
    A(f'    s_cmp_eq_u32 s{S_ROLE}, {R_G2}')
    A(f'    s_cbranch_scc1 {out2}')
    pack_D(A, 8)
    A(f'    s_lshl_b32 s{S_TMP}, s{S_JOB}, 11')
    A(f'    s_add_u32 s{S_TMP}, s{S_TMP}, {WS_CTX}')
    publish8(A, 8, S_TMP)
    A(f'    s_branch {skip}')
    A(f'{out2}:')
    for k in range(4):
        d = V_S if k < 2 else V_R
        j = 2 * (k & 1)
        A(f'    v_lshlrev_b32 v8, 16, v{V_Q+k}')
        A(f'    v_and_b32 v9, 0xffff0000, v{V_Q+k}')
        A(f'    v_add_f32 v8, v8, v{d+j}')
        A(f'    v_add_f32 v9, v9, v{d+j+1}')
        A(f'    v_cvt_pk_bf16_f32 v{12+k}, v8, v9')
    A(f'    global_store_dwordx4 v{V_Q+4}, v[12:15], s[{S_OUT}:{S_OUT+1}]')
    e = A.label('GE')
    A(f"""    s_cmp_eq_u32 s{S_JOB}, 0
    s_cbranch_scc0 {skip}
    s_add_u32 s{S_TMP}, s{S_EPOCH}, 1
    v_mov_b32 v8, s{S_TMP}
    v_mov_b32 v9, {WS_EPOCH}
    v_cmp_eq_u32 vcc, 0, v{V_LANE}
    s_and_saveexec_b64 s[{S_EX}:{S_EX+1}], vcc
    global_store_dword v9, v8, s[{S_WS}:{S_WS+1}]
    s_mov_b64 exec, s[{S_EX}:{S_EX+1}]""")
    A(f'{skip}:')
    A.stamp('G_done')

def build_kernel():
    A = Gen(); T = V_T
    Stream.nxt = 0
    A('.text')
    A(f'.globl {NAME}')
    A('.p2align 8')
    A(f'.type {NAME},@function')
    A(f'{NAME}:')
    A(f"""    s_cmp_ge_u32 s2, 256
    s_cbranch_scc1 K_END
    s_load_dwordx4 s[{S_F0}:{S_F0+3}], s[0:1], 8
    s_load_dwordx2 s[{S_WS}:{S_WS+1}], s[0:1], 72
    s_load_dwordx2 s[{S_Q}:{S_Q+1}], s[0:1], 0
    s_load_dwordx8 s[{S_WQ}:{S_WQ+7}], s[0:1], 24
    s_load_dwordx2 s[{S_OUT}:{S_OUT+1}], s[0:1], 56
    s_mov_b32 s{S_WG}, s2
    s_mov_b32 s{S_SPIN}, 0
    v_and_b32 v{V_LANE}, 63, v0
    v_lshrrev_b32 v1, 6, v0
    v_lshlrev_b32 v{V_L16}, 4, v{V_LANE}
    v_readfirstlane_b32 s{S_WAVE}, v1
    v_lshrrev_b32 v2, 4, v{V_LANE}        ; g
    v_and_b32 v3, 15, v{V_LANE}           ; i
    v_lshlrev_b32 v4, 4, v3
    v_mul_u32_u24 v5, 1536, v2
    v_add_u32 v{V_F0OFF}, v5, v4
    v_mul_u32_u24 v5, 768, v2
    v_add_u32 v{V_F1OFF}, v5, v4
    s_mul_i32 s{S_T}, s{S_WG}, 36
    s_add_u32 s{S_T}, s{S_T}, s{S_WAVE}
    s_mov_b32 s{S_ROLE}, {R_NONE}
    s_mov_b32 s{S_JOB}, 0
    s_cmp_ge_u32 s2, 128
    s_cbranch_scc0 ROLE_LOW
    s_mov_b32 s{S_ROLE}, {R_R}
    s_sub_u32 s{S_JOB}, s2, 128
    s_branch ROLE_DONE
ROLE_LOW:
    s_cmp_ge_u32 s2, 48
    s_cbranch_scc1 ROLE_DONE
    s_lshr_b32 s{S_TMP}, s2, 3            ; hi
    s_and_b32 s{S_TMP+1}, s2, 3
    s_cmp_ge_u32 s{S_TMP}, 3
    s_cselect_b32 s{S_TMP+2}, 1, 0
    s_mul_i32 s{S_TMP+3}, s{S_TMP+2}, 3
    s_sub_u32 s{S_TMP}, s{S_TMP}, s{S_TMP+3}
    s_lshl_b32 s{S_TMP}, s{S_TMP}, 2
    s_add_u32 s{S_JOB}, s{S_TMP}, s{S_TMP+1}
    s_bitcmp1_b32 s2, 2
    s_cselect_b32 s{S_TMP}, {R_G1}, {R_S1}
    s_add_u32 s{S_ROLE}, s{S_TMP}, s{S_TMP+2}
ROLE_DONE:
    s_waitcnt lgkmcnt(0)
    s_load_dword s{S_EPOCH}, s[{S_WS}:{S_WS+1}], {WS_EPOCH}""")
    if O.stamp: A(f'    v_mov_b32 v{V_STAMP}, 0')
    A.stamp('entry')
    l1 = A.label('P1'); l2 = A.label('P2')
    A(f'    s_cmp_eq_u32 s{S_ROLE}, {R_S1}')
    A(f'    s_cbranch_scc0 {l1}')
    role_S1_loads(A)
    A(f'    s_branch {l2}')
    A(f'{l1}:')
    A(f'    s_cmp_eq_u32 s{S_ROLE}, {R_S2}')
    A(f'    s_cbranch_scc0 {l2}')
    role_S2_loads(A)
    A(f'{l2}:')
    issue_next(A, 4)
    A.stamp('issued')
    A(f"""    v_lshrrev_b32 v2, 4, v{V_LANE}
    v_and_b32 v3, 15, v{V_LANE}
    s_mul_i32 s{S_TMP}, s{S_WAVE}, 12288
    v_lshlrev_b32 v5, 2, v2
    v_add_u32 v5, v5, v3
    v_and_b32 v5, 15, v5
    v_lshlrev_b32 v5, 4, v5
    v_lshlrev_b32 v6, 8, v2
    v_add_u32 v5, v5, v6
    v_add_u32 v{V_LDSW}, s{S_TMP}, v5
    s_lshl_b32 s{S_TMP+1}, s{S_WAVE}, 10
    v_add_u32 v{V_LDSF}, s{S_TMP+1}, v5
    v_lshrrev_b32 v5, 2, v{V_LANE}
    v_and_b32 v5, 3, v5
    v_and_b32 v6, 3, v{V_LANE}
    v_lshrrev_b32 v7, 1, v2
    v_add_u32 v7, v7, v6
    v_lshlrev_b32 v7, 2, v7
    v_and_b32 v1, 1, v2
    v_lshlrev_b32 v1, 1, v1
    v_add_u32 v7, v7, v1
    v_lshrrev_b32 v1, 1, v5
    v_add_u32 v7, v7, v1
    v_and_b32 v1, 1, v5
    v_lshlrev_b32 v1, 3, v1
    v_lshlrev_b32 v6, 8, v6
    v_add3_u32 v6, v6, v1, s{S_TMP}
    v_and_b32 v1, 15, v7
    v_lshlrev_b32 v1, 4, v1
    v_add_u32 v{V_LDSR0}, v6, v1
    v_add_u32 v7, 8, v7
    v_and_b32 v1, 15, v7
    v_lshlrev_b32 v1, 4, v1
    v_add_u32 v{V_LDSR1}, v6, v1
    v_lshlrev_b32 v5, 3, v{V_LANE}
    v_add_u32 v{V_PR}, {L_PBUF}, v5
    s_lshl_b32 s{S_TMP}, s{S_WAVE}, 9
    v_add_u32 v{V_PW}, s{S_TMP}, v{V_PR}
    v_lshlrev_b32 v5, 2, v3
    v_add_u32 v{V_MB}, {L_MBUF}, v5
    v_mov_b32 v{V_MREF}, 0xff800000
    ds_write_b32 v{V_MB}, v{V_MREF}
    v_lshlrev_b32 v5, 2, v2""")
    for r in range(4):
        A(f'    v_add_u32 v6, {r}, v5')
        A(f'    v_cmp_eq_u32 s[{S_MASK+2*r}:{S_MASK+2*r+1}], v6, v3')
    A(f"""    s_mov_b32 s{S_SELLO}, 0x{SEL_LO:08x}
    s_mov_b32 s{S_SELHI}, 0x{SEL_HI:08x}
    s_mov_b32 s{S_C384}, {lit(1/384)}
    v_mov_b32 v{V_EPS}, {lit(1e-5)}
    v_mov_b32 v{V_ONEF}, 1.0
    v_mov_b32 v{V_L}, 0
    v_mov_b32 v{V_U}, 0
    v_mov_b32 v{V_Q+4}, 0
    v_mov_b32 v1, 0x3f803f80""")
    for k in range(4):
        A(f'    v_accvgpr_write_b32 a{A_ONES+k}, v1')
    A(f"""    s_waitcnt lgkmcnt(0)
    s_mul_i32 s{S_TAG}, s{S_EPOCH}, 0x9E3779B1
    s_add_u32 s{S_TAG}, s{S_TAG}, 0x7F4A7C15""")
    l1 = A.label('H1'); l2 = A.label('H2')
    A(f'    s_cmp_eq_u32 s{S_ROLE}, {R_S1}')
    A(f'    s_cbranch_scc0 {l1}')
    role_S1_work(A)
    A(f'    s_branch {l2}')
    A(f'{l1}:')
    A(f'    s_cmp_eq_u32 s{S_ROLE}, {R_S2}')
    A(f'    s_cbranch_scc0 {l2}')
    role_S2_work(A)
    A(f'{l2}:')
    A.stamp('head')
    A.nop(2)
    for k in range(24):
        A(f'    v_mov_b32 v{V_O+k}, 0')
    gather_addr(A, WS_QKG)
    attempt = lambda: gather_issue(A, 'qk')
    stage_A(A, 0)
    stage_A(A, 1)
    if O.attempt == 'A1': attempt()
    stage_A(A, 2, {0: attempt} if O.attempt == 'A2a' else None)
    issue_next(A, 2)
    get_qk(A)
    for st in O.sched.split():
        k = int(st[1])
        if st[0] == 'A':
            stage_A(A, k)
            if k == 8: role_G_loads(A)
        else:
            stage_B(A, k)
    epilogue(A)
    lr = A.label('TR'); lg = A.label('TG')
    A(f'    s_cmp_eq_u32 s{S_ROLE}, {R_R}')
    A(f'    s_cbranch_scc0 {lr}')
    role_R(A)
    A('    s_branch K_FIN')
    A(f'{lr}:')
    A(f'    s_cmp_eq_u32 s{S_ROLE}, {R_G1}')
    A(f'    s_cbranch_scc1 {lg}')
    A(f'    s_cmp_eq_u32 s{S_ROLE}, {R_G2}')
    A(f'    s_cbranch_scc0 K_FIN')
    A(f'{lg}:')
    role_G(A)
    A('K_FIN:')
    if O.stamp:
        A('    s_waitcnt vmcnt(0)')
        A.stamp('end')
        A(f"""    s_lshl_b32 s42, s{S_WG}, 2
    s_add_u32 s42, s42, s{S_WAVE}
    s_lshl_b32 s42, s42, 8
    s_add_u32 s42, s42, {WS_STAMP}
    v_lshlrev_b32 v4, 2, v{V_LANE}
    v_add_u32 v4, s42, v4
    global_store_dword v4, v{V_STAMP}, s[{S_WS}:{S_WS+1}]""")
    A('K_END:')
    A('    s_endpgm')
    assert Stream.nxt >= 27
    return A

def build():
    A = build_kernel()
    txt = A.text()
    for p in check_hazards(txt): print('HAZARD', p, file=sys.stderr)
    ref = open('standalone__detection_seg_dino__vision.s.ref').read().split('\n')
    top = [l for l in ref if l.startswith(';') and '@launch' not in l and 'Override launch' not in l and 'grid=ceil' not in l][:12]
    out = '\n'.join(top) + '\n'
    out += f'; @launch grid=(256,1,1) block=(256,1,1) lds={LDS_BYTES}\n'
    out += '.amdgcn_target "amdgcn-amd-amdhsa--gfx950"\n' + txt
    out += f""".section .rodata,"a"
.p2align 6
.amdhsa_kernel {NAME}
  .amdhsa_next_free_vgpr {256 + NACC}
  .amdhsa_next_free_sgpr 96
  .amdhsa_accum_offset 256
  .amdhsa_group_segment_fixed_size 0
  .amdhsa_kernarg_size 80
  .amdhsa_user_sgpr_count 2
  .amdhsa_user_sgpr_kernarg_segment_ptr 1
  .amdhsa_system_sgpr_workgroup_id_x 1
  .amdhsa_float_denorm_mode_32 3
.end_amdhsa_kernel
"""
    return out, A.labels

if __name__ == '__main__':
    path = sys.argv[1]
    for o in (sys.argv[2].split(',') if len(sys.argv) > 2 else []):
        if o == 'stamp': O.stamp = True
        elif o == 'plain': O.nt = ''
        elif o.startswith('att='): O.attempt = o[4:]
        elif o.startswith('sched='): O.sched = o[6:].replace('-', ' ')
    out, labels = build()
    open(path, 'w').write(out)
    if O.stamp: open(path + '.labels', 'w').write(','.join(labels))
    print('wrote', path, len(out), 'bytes;', out.count('\n'), 'lines')
```

```python
import sys, struct, math
from asmlib import *

def f2u(x): return struct.unpack('<I', struct.pack('<f', x))[0]
def lit(x): return f'0x{f2u(x):08x}'
NAME = 'standalone__detection_seg_dino__vision_kernel'

class Opt:
    stamp = False
    nt = ' nt'
    extra = 0
    fine = -1
    defer = True
    s2att = 1
    qa = 2
    qb = 1
    spread = True
    l0 = 2
    raise_at = 'none'
    attempt = 'A2'
    sched = 'B0 A3 B1 B2 A4 B3 B4 A5 B5 A6 B6 A7 B7 A8 B8'
O = Opt()

WS_EPOCH = 0x0
WS_QG    = 0x1000
WS_QKG   = 0x8000
WS_CTXN  = 0x10000
WS_CTX   = 0x18000
WS_ML    = 0x20000
WS_PART  = 0x100000
WS_STAMP = 0x800000
SEL_LO, SEL_HI = 0x00003F80, 0x3F800000

RAW = [8, 68]
V_T   = 128
V_STG = 152
V_O   = 160
V_S, V_R, V_G, V_D = 184, 188, 192, 196
V_P   = 200
V_MREF, V_L, V_SQ, V_ONEF, V_EPS = 202, 203, 204, 205, 206
V_F0OFF, V_F1OFF = 207, 208
V_LDSW, V_LDSR0, V_LDSR1, V_LDSF = 209, 210, 211, 212
V_PW, V_PR, V_MB, V_LANE = 213, 214, 215, 216
V_CW, V_CR0, V_CR1, V_CF = 217, 218, 219, 220
V_U = 221
V_CF2 = 254
V_GA = 222
V_L16 = 223
V_GB = 224
V_Q = 248
V_STAMP = 253
A_QK, A_X, A_F, A_P, A_ONES, A_W = 0, 48, 96, 144, 152, 156
NACC = 180
S_F0, S_F1, S_WS = 4, 6, 8
S_BSET = [10, 44]
S_WAVE, S_WG, S_T = 16, 17, 19
S_SELLO, S_SELHI, S_C384 = 20, 21, 23
S_MASK = 26
S_TMP = 34
S_TAG, S_EPOCH, S_ROLE, S_JOB = 50, 51, 52, 53
S_Q, S_OUT = 54, 58
S_SPIN = 60
S_EX = 62
S_WQ, S_WK, S_WV, S_WO = 64, 66, 68, 70
R_NONE, R_S1, R_S2, R_G1, R_G2, R_R = 0, 1, 2, 3, 4, 5
SPIN_MAX = 1 << 18
SLOT = 49152
L_QKL  = 3 * SLOT
L_PBUF = L_QKL + 12288
L_MBUF = L_PBUF + 2048
L_LBUF = L_MBUF + 64
LDS_BYTES = L_LBUF + 512
assert LDS_BYTES <= 163840
L_HEAD = 2 * SLOT
L_STAT = L_HEAD + 6144
L_RED_H = L_HEAD
L_TR   = SLOT
L_RED_T = SLOT + 4608
L_RB   = 0

class Gen(Asm):
    def __init__(self):
        super().__init__()
        self.vm = []
        self.uid = 0
        self.nstamp = 0
        self.labels = []
        self.done = set()
    def vmop(self, line, tag):
        self(line); self.vm.append(tag)
    def vmwait(self, tag):
        hits = [i for i, t in enumerate(self.vm) if t == tag]
        if not hits:
            assert tag in self.done, tag
            return
        idx = hits[-1]
        self.done.update(self.vm[:idx + 1])
        n = len(self.vm) - 1 - idx
        assert n <= 63, n
        self(f'    s_waitcnt vmcnt({n})')
        self.vm = self.vm[idx + 1:]
    def vmall(self):
        self('    s_waitcnt vmcnt(0)'); self.vm = []
    def label(self, base):
        self.uid += 1
        return f'{base}_{self.uid}'
    def stamp(self, name):
        if not O.stamp: return
        idx = len(self.labels)
        assert idx < 64
        self.labels.append(name)
        self('    s_memrealtime s[40:41]')
        self('    s_waitcnt lgkmcnt(0)')
        self(f'    v_writelane_b32 v{V_STAMP}, s40, {idx}')

def xgroup_reduce(A, op, v, t):
    A(f'    v_mov_b32 v{t}, v{v}')
    A.nop(2)
    A(f'    v_permlane32_swap_b32 v{t}, v{v}')
    A(f'    {op} v{v}, v{v}, v{t}')
    A(f'    v_mov_b32 v{t}, v{v}')
    A.nop(2)
    A(f'    v_permlane16_swap_b32 v{t}, v{v}')
    A(f'    {op} v{v}, v{v}, v{t}')

def multi_xgroup(A, op, vs, ts):
    for sw in ('32', '16'):
        for v, t in zip(vs, ts): A(f'    v_mov_b32 v{t}, v{v}')
        if len(vs) < 3: A.nop(3 - len(vs))
        for v, t in zip(vs, ts): A(f'    v_permlane{sw}_swap_b32 v{t}, v{v}')
        for v, t in zip(vs, ts): A(f'    {op} v{v}, v{v}, v{t}')

def multi_row(A, op, vs, rots=(8, 4, 2, 1)):
    for rot in rots:
        if len(vs) < 3: A.nop(3 - len(vs))
        for v in vs: A(f'    {op}_dpp v{v}, v{v}, v{v} row_ror:{rot} row_mask:0xf bank_mask:0xf')

def tile_bases(A, u):
    S_B0 = S_BSET[u]; S_B1 = S_B0 + 2; S_BF = S_B0 + 4
    A(f'''    s_mul_hi_u32 s{S_TMP}, s{S_T}, 89478486
    s_mul_i32 s{S_TMP+1}, s{S_TMP}, 48
    s_sub_u32 s{S_TMP+1}, s{S_T}, s{S_TMP+1}
    s_mul_i32 s{S_TMP}, s{S_TMP}, 589824
    s_mul_i32 s{S_TMP+1}, s{S_TMP+1}, 6144
    s_add_u32 s{S_TMP}, s{S_TMP}, s{S_TMP+1}
    s_add_u32 s{S_B0}, s{S_F0}, s{S_TMP}
    s_addc_u32 s{S_B0+1}, s{S_F0+1}, 0
    s_add_u32 s{S_B1}, s{S_B0}, 294912
    s_addc_u32 s{S_B1+1}, s{S_B0+1}, 0
    s_mul_i32 s{S_TMP}, s{S_T}, 3072
    s_add_u32 s{S_BF}, s{S_F1}, s{S_TMP}
    s_addc_u32 s{S_BF+1}, s{S_F1+1}, 0
    s_add_u32 s{S_T}, s{S_T}, 4''')

def issue_item(A, j):
    if j > 26: return
    tile, third = divmod(j, 3); u = tile & 1
    if third == 0 and j > 0: tile_bases(A, u)
    S_B0 = S_BSET[u]; S_B1 = S_B0 + 2; S_BF = S_B0 + 4
    b = RAW[u]
    r = b + 48 + 4 * third
    A.vmop(f'    global_load_dwordx4 v[{r}:{r+3}], v{V_F1OFF}, s[{S_BF}:{S_BF+1}] offset:{third*256}{O.nt}', f'item{j}')
    for jj in range(4):
        dy, dx = jj >> 1, jj & 1
        r = b + 16 * third + 4 * jj
        base = S_B1 if dy else S_B0
        A.vmop(f'    global_load_dwordx4 v[{r}:{r+3}], v{V_F0OFF}, s[{base}:{base+1}] offset:{dx*768+third*256}{O.nt}', f'item{j}')

class Stream:
    nxt = 0
    done = 0
    pend = []
def enqueue(A, n=1):
    for _ in range(n):
        if Stream.nxt <= 26 and Stream.nxt < Stream.done + 6:
            Stream.pend += item_steps(A)
def pop(n=1):
    for _ in range(n):
        if Stream.pend: Stream.pend.pop(0)()
def flush_pend():
    pop(len(Stream.pend))
def issue_next(A, n=1):
    for _ in range(n):
        issue_item(A, Stream.nxt); Stream.nxt += 1

def item_steps(A):
    j = Stream.nxt; Stream.nxt += 1
    if j > 26: return []
    tile, third = divmod(j, 3); u = tile & 1
    S_B0 = S_BSET[u]; S_B1 = S_B0 + 2; S_BF = S_B0 + 4
    b = RAW[u]
    steps = []
    def first():
        if third == 0: tile_bases(A, u)
        r = b + 48 + 4 * third
        A.vmop(f'    global_load_dwordx4 v[{r}:{r+3}], v{V_F1OFF}, s[{S_BF}:{S_BF+1}] offset:{third*256}{O.nt}', f'item{j}')
    steps.append(first)
    for jj in range(4):
        def f(jj=jj):
            dy, dx = jj >> 1, jj & 1
            r = b + 16 * third + 4 * jj
            base = S_B1 if dy else S_B0
            A.vmop(f'    global_load_dwordx4 v[{r}:{r+3}], v{V_F0OFF}, s[{base}:{base+1}] offset:{dx*768+third*256}{O.nt}', f'item{j}')
        steps.append(f)
    return steps

def stage_A(A, k, hooks=None, quota=3, stamp=True):
    hooks = hooks or {}
    u = k & 1; b = RAW[u]; T = V_T
    A(f'    v_add_u32 v{V_CW}, {(k % 3) * SLOT}, v{V_LDSW}')
    if PV.pending: A('    s_waitcnt lgkmcnt(0)')
    units = [(third, dd) for third in range(3) for dd in range(4)]
    def tset(i): return T + 10 * (i & 1)
    def U(i):
        third, dd = units[i]; t = tset(i); f1 = b + 48 + 4 * third + dd
        return [f'    v_lshlrev_b32 v{t+8}, 16, v{f1}', f'    v_and_b32 v{t+9}, 0xffff0000, v{f1}']
    def D(i):
        third, dd = units[i]; t = tset(i)
        return ([f'    v_dot2_f32_bf16 v{t+j}, v{b+16*third+4*j+dd}, s{S_SELLO}, v{t+8}' for j in range(4)] +
                [f'    v_dot2_f32_bf16 v{t+4+j}, v{b+16*third+4*j+dd}, s{S_SELHI}, v{t+9}' for j in range(4)])
    def C(i):
        t = tset(i); o = V_STG + 4 * (i & 1)
        return [f'    v_cvt_pk_bf16_f32 v{o+kk}, v{t+2*kk}, v{t+2*kk+1}' for kk in range(4)]
    def W(i):
        third, dd = units[i]; o = V_STG + 4 * (i & 1)
        return f'    ds_write_b128 v{V_CW}, v[{o}:{o+3}] offset:{(third*4+dd)*1024}'
    enq = {0: 1, 4: 1, 8: 1} if quota == 3 else ({0: 1, 6: 1} if quota == 2 else ({0: 1} if quota == 1 else {}))
    def ensure(j):
        while any(True for _ in Stream.pend) and f'item{j}' not in A.done and A.vm.count(f'item{j}') < 5: pop()
        while Stream.nxt <= j: Stream.pend += item_steps(A); flush_pend()
    ensure(3 * k); A.vmwait(f'item{3*k}')
    enqueue(A, enq.get(0, 0))
    u0 = U(0); d0 = D(0)
    for l in u0 + d0[:4]: A(l)
    pop()
    for l in d0[4:]: A(l)
    for i in range(1, 12):
        if i % 4 == 0:
            Stream.done = 3 * k + i // 4
            ensure(3 * k + i // 4); A.vmwait(f'item{3*k + i//4}')
        enqueue(A, enq.get(i, 0))
        for l in U(i): A(l)
        if quota == 3 and i % 4 in (0, 2): pop()
        d = D(i); c = C(i - 1)
        for kk in range(4):
            A(d[kk]); A(c[kk])
        pv_pop(A, 2)
        A(W(i - 1))
        pop()
        for kk in range(4, 8): A(d[kk])
        if i % 4 == 3 and (i // 4) in hooks: hooks[i // 4]()
    Stream.done = 3 * k + 3
    flush_pend()
    A.nop(1)
    for l in C(11): A(l)
    pv_flush(A)
    A(W(11))
    if stamp: A.stamp(f'A{k}')

class PV:
    pending = []
def pv_steps():
    out = []
    for wp in range(4):
        for third in range(3):
            for e1 in range(2):
                f = A_F + (wp * 3 + third) * 4 + 2 * e1
                o = V_O + (third * 2 + e1) * 4
                out.append(f'    v_mfma_f32_16x16x16_bf16 v[{o}:{o+3}], a[{f}:{f+1}], a[{A_P+2*wp}:{A_P+2*wp+1}], v[{o}:{o+3}]')
    return out
def pv_pop(A, n=1):
    for _ in range(n):
        if PV.pending: A(PV.pending.pop(0))
def pv_flush(A):
    pv_pop(A, len(PV.pending))

def stage_B(A, k, quota=1, defer=True, strict=True):
    T = V_T; so = (k % 3) * SLOT
    enqueue(A, quota)
    A(f'    v_add_u32 v{V_CR0}, {so}, v{V_LDSR0}')
    A(f'    v_add_u32 v{V_CR1}, {so}, v{V_LDSR1}')
    A(f'    v_add_u32 v{V_CF}, {so}, v{V_LDSF}')
    if PV.pending: A('    s_waitcnt lgkmcnt(0)')
    n = 0
    for bb in range(12):
        for a2 in range(2):
            r = A_X + 4 * bb + 2 * a2
            A(f'    ds_read_b64_tr_b16 a[{r}:{r+1}], v{V_CR0+a2} offset:{bb*1024}')
            n += 1
            pv_pop(A)
    pv_flush(A)
    fine = (O.fine == k)
    if fine: A.stamp('b_tr')
    def X(bb): return f'a[{A_X+4*bb}:{A_X+4*bb+3}]'
    def G(bb): A(f'    v_mfma_f32_16x16x32_bf16 v[{V_G}:{V_G+3}], {X(bb)}, {X(bb)}, ' + ('0' if bb == 0 else f'v[{V_G}:{V_G+3}]'))
    def R(bb): A(f'    v_mfma_f32_16x16x32_bf16 v[{V_R}:{V_R+3}], {X(bb)}, a[{A_ONES}:{A_ONES+3}], ' + ('0' if bb == 0 else f'v[{V_R}:{V_R+3}]'))
    def S(bb): A(f'    v_mfma_f32_16x16x32_bf16 v[{V_S}:{V_S+3}], {X(bb)}, a[{A_QK+4*bb}:{A_QK+4*bb+3}], ' + ('0' if bb == 0 else f'v[{V_S}:{V_S+3}]'))
    for bb in range(12):
        if bb % 3 == 0:
            A(f'    s_waitcnt lgkmcnt({min(15, 24 - 2*(bb+3))})')
        G(bb)
        if bb % 2 == 1 and bb < 11: pop()
    flush_pend()
    if fine: A.stamp('b_G')
    for bb in range(8): R(bb)
    for r in range(4):
        src0 = '0' if r == 0 else f'v{T}'
        A(f'    v_cndmask_b32 v{T}, {src0}, v{V_G+r}, s[{S_MASK+2*r}:{S_MASK+2*r+1}]')
        R(8 + r)
    S(0)
    A(f'    v_mfma_f32_16x16x4_f32 v[{V_D}:{V_D+3}], v{T}, v{V_ONEF}, 0')
    for bb in range(1, 7): S(bb)
    for r in range(4):
        A(f'    v_mul_f32 v{V_R+r}, s{S_C384}, v{V_R+r}')
        S(7 + r)
    for r in range(4):
        A(f'    v_fma_f32 v{T+r}, -v{V_R+r}, v{V_R+r}, v{V_EPS}')
        if r == 1: S(11)
    for r in range(4):
        A(f'    v_fma_f32 v{V_D+r}, v{V_D+r}, s{S_C384}, v{T+r}')
    for r in range(4):
        A(f'    v_rsq_f32 v{V_D+r}, v{V_D+r}')
    for r in range(4):
        A(f'    v_fma_f32 v{V_S+r}, -v{V_R+r}, v{V_SQ}, v{V_S+r}')
    for r in range(4):
        A(f'    v_mul_f32 v{V_S+r}, v{V_S+r}, v{V_D+r}')
    A(f'    v_max3_f32 v{T}, v{V_S}, v{V_S+1}, v{V_S+2}')
    A(f'    v_max_f32 v{T}, v{T}, v{V_S+3}')
    if fine: A.stamp('b_z')
    A(f'    ds_max_f32 v{V_MB}, v{T}')
    A('    s_waitcnt lgkmcnt(0)')
    if fine: A.stamp('b_pre1')
    A('    s_barrier')
    if fine: A.stamp('b_post1')
    A(f'    ds_read_b32 v{T+1}, v{V_MB}')
    A('    s_waitcnt lgkmcnt(0)')
    if fine: A.stamp('b_m(+F)')
    A(f'    v_sub_f32 v{T+2}, v{V_MREF}, v{T+1}')
    for r in range(4):
        A(f'    v_sub_f32 v{V_S+r}, v{V_S+r}, v{T+1}')
    A(f'    v_exp_f32 v{T+2}, v{T+2}')
    for r in range(4):
        A(f'    v_exp_f32 v{V_S+r}, v{V_S+r}')
    A(f'    v_mov_b32 v{V_MREF}, v{T+1}')
    for r in range(4):
        A(f'    v_mul_f32 v{T+4+r}, v{V_S+r}, v{V_D+r}')
    A(f'    v_add_f32 v{V_S}, v{V_S}, v{V_S+1}')
    A(f'    v_cvt_pk_bf16_f32 v{V_P}, v{T+4}, v{T+5}')
    A(f'    v_cvt_pk_bf16_f32 v{V_P+1}, v{T+6}, v{T+7}')
    A(f'    v_add_f32 v{V_S+2}, v{V_S+2}, v{V_S+3}')
    A(f'    ds_write_b64 v{V_PW}, v[{V_P}:{V_P+1}]')
    for wp in range(4):
        for third in range(3):
            r = A_F + (wp * 3 + third) * 4
            A(f'    ds_read_b128 a[{r}:{r+3}], v{V_CF} offset:{wp*12288 + third*4096}')
    A(f'    v_add_f32 v{V_S}, v{V_S}, v{V_S+2}')
    A(f'    v_fma_f32 v{V_L}, v{V_L}, v{T+2}, v{V_S}')
    A(f'    v_mul_f32 v{V_U}, v{V_U}, v{T+2}')
    A(f'    v_lshlrev_b32 v{T+4}, 16, v{V_P}')
    A(f'    v_and_b32 v{T+5}, 0xffff0000, v{V_P}')
    A(f'    v_lshlrev_b32 v{T+6}, 16, v{V_P+1}')
    A(f'    v_and_b32 v{T+7}, 0xffff0000, v{V_P+1}')
    for r in range(4):
        A(f'    v_fmac_f32 v{V_U}, v{T+4+r}, v{V_R+r}')
    for kk in range(0, 24, 2):
        A(f'    v_pk_mul_f32 v[{V_O+kk}:{V_O+kk+1}], v[{V_O+kk}:{V_O+kk+1}], v[{T+2}:{T+3}] op_sel_hi:[1,0]')
    if fine: A.stamp('b_P')
    A(f'    s_waitcnt lgkmcnt({0 if strict else 12})')
    A('    s_barrier')
    if fine: A.stamp('b_post2')
    for wp in range(4):
        A(f'    ds_read_b64 a[{A_P+2*wp}:{A_P+2*wp+1}], v{V_PR} offset:{wp*512}')
    PV.pending = pv_steps()
    if not defer:
        A('    s_waitcnt lgkmcnt(0)')
        pv_flush(A)
    A.stamp(f'B{k}')

def gather_addr(A, ws_off):
    A(f'    s_mul_i32 s{S_TMP}, s{S_WAVE}, 6144')
    A(f'    s_add_u32 s{S_TMP}, s{S_TMP}, {ws_off + 2048}')
    A(f'    v_add_u32 v{V_GA}, s{S_TMP}, v{V_L16}')

def gather_issue(A, track=None):
    for kk in range(3):
        for h in range(2):
            r = V_GB + 8 * kk + 4 * h
            line = f'    global_load_dwordx4 v[{r}:{r+3}], v{V_GA}, s[{S_WS}:{S_WS+1}] offset:{kk*2048 + h*1024 - 2048} sc1'
            if track: A.vmop(line, track)
            else: A(line)

def gather_check(A):
    T = V_T
    for kk in range(3):
        A(f'    v_xor_b32 v{T+2*kk}, s{S_TAG}, v{V_GB+8*kk}')
        A(f'    v_xor_b32 v{T+2*kk+1}, s{S_TAG}, v{V_GB+8*kk+6}')
    A(f'    v_or3_b32 v{T}, v{T}, v{T+1}, v{T+2}')
    A(f'    v_or3_b32 v{T+3}, v{T+3}, v{T+4}, v{T+5}')
    A(f'    v_or_b32 v{T}, v{T}, v{T+3}')
    A(f'    v_cmp_ne_u32 vcc, 0, v{T}')

def spin_guard(A, lbl_retry):
    A(f'    s_add_u32 s{S_SPIN}, s{S_SPIN}, 1')
    A(f'    s_cmp_lt_u32 s{S_SPIN}, {SPIN_MAX}')
    A(f'    s_cbranch_scc0 K_END')
    A(f'    s_sleep 1')

def gather_loop(A):
    l = A.label('GL'); d = A.label('GD')
    A(f'{l}:')
    gather_issue(A)
    A('    s_waitcnt vmcnt(0)')
    gather_check(A)
    A(f'    s_cbranch_vccz {d}')
    spin_guard(A, l)
    A(f'    s_branch {l}')
    A(f'{d}:')

def publish8(A, dreg, ws_off_sgpr):
    A(f'    v_mov_b32 v{dreg}, s{S_TAG}')
    A(f'    v_mov_b32 v{dreg+1}, 0')
    A(f'    v_mov_b32 v{dreg+6}, s{S_TAG}')
    A(f'    v_mov_b32 v{dreg+7}, 0')
    A(f'    v_add_u32 v1, s{ws_off_sgpr}, v{V_L16}')
    A(f'    global_store_dwordx4 v1, v[{dreg}:{dreg+3}], s[{S_WS}:{S_WS+1}] sc1')
    A(f'    global_store_dwordx4 v1, v[{dreg+4}:{dreg+7}], s[{S_WS}:{S_WS+1}] offset:1024 sc1')

def slab_addr(A, perm):
    A(f'''    v_lshrrev_b32 v1, 2, v{V_LANE}
    s_mul_i32 s{S_TMP}, s{S_WAVE}, 96
    v_add_u32 v1, s{S_TMP}, v1            ; p (x = 0)
    v_and_b32 v{V_T}, 3, v{V_LANE}
    v_lshlrev_b32 v{V_T}, 4, v{V_T}
    s_lshl_b32 s{S_TMP}, s{S_JOB}, 6
    v_add_u32 v{V_T}, s{S_TMP}, v{V_T}''')
    for x in range(6):
        d = 2 + x
        if not perm:
            A(f'    v_add_u32 v{d}, {16*x}, v1')
        else:
            t = V_T + 1; kk = x >> 1
            A(f"""    v_lshrrev_b32 v{t}, 2, v{V_LANE}
    v_add_u32 v{t}, {16*(x&1)}, v{t}          ; p & 31
    v_bfe_u32 v{t+1}, v{t}, 1, 2              ; dw
    v_cmp_eq_u32 vcc, 3, v{t+1}
    v_lshlrev_b32 v{t+1}, 7, v{t+1}
    v_add_u32 v{t+1}, {32*kk}, v{t+1}
    v_mov_b32 v{t+2}, {kk*128 + 96}
    v_cndmask_b32 v{t+1}, v{t+1}, v{t+2}, vcc
    v_lshrrev_b32 v{t+2}, 3, v{t}
    v_lshlrev_b32 v{t+2}, 3, v{t+2}           ; 8g
    v_and_b32 v{t}, 1, v{t}
    v_add3_u32 v{t+1}, v{t+1}, v{t+2}, v{t}
    s_lshl_b32 s{S_TMP+1}, s{S_WAVE}, 1
    v_add_u32 v{d}, s{S_TMP+1}, v{t+1}""")
        A(f'    v_mul_u32_u24 v{d}, 768, v{d}')
        A(f'    v_add_u32 v{d}, v{d}, v{V_T}')

def slab_loads(A, sptr, dst, track=None):
    for x in range(6):
        line = f'    global_load_dwordx4 v[{dst+4*x}:{dst+4*x+3}], v{2+x}, s[{sptr}:{sptr+1}]'
        if track: A.vmop(line, track)
        else: A(line)

def slab_to_operands(A, src, lds_base):
    A(f'''    s_mul_i32 s{S_TMP}, s{S_WAVE}, 12288
    s_add_u32 s{S_TMP}, s{S_TMP}, {lds_base}
    v_add_u32 v1, s{S_TMP}, v{V_L16}''')
    for x in range(6):
        A(f'    ds_write_b128 v1, v[{src+4*x}:{src+4*x+3}] offset:{x*1024}')
    A(f'''    v_lshrrev_b32 v2, 4, v{V_LANE}
    v_lshlrev_b32 v2, 9, v2               ; g*512
    v_bfe_u32 v3, v{V_LANE}, 2, 2
    v_lshlrev_b32 v3, 6, v3               ; r*64
    v_and_b32 v4, 3, v{V_LANE}
    v_lshlrev_b32 v4, 4, v4               ; c*16
    v_add3_u32 v2, v2, v3, v4
    v_add_u32 v2, s{S_TMP}, v2''')
    for kk in range(3):
        for tb in range(2):
            for hf in range(2):
                r = A_W + (kk * 2 + tb) * 4 + 2 * hf
                A(f'    ds_read_b64_tr_b16 a[{r}:{r+1}], v2 offset:{kk*2048 + hf*256 + tb*8}')

def gemm6(A, bregs):
    for kk in range(3):
        for tb in range(2):
            d = V_S if tb == 0 else V_R
            c = '0' if kk == 0 else f'v[{d}:{d+3}]'
            w = A_W + (kk * 2 + tb) * 4
            A(f'    v_mfma_f32_16x16x32_bf16 v[{d}:{d+3}], a[{w}:{w+3}], {bregs(kk)}, {c}')

def cross_wave_sum(A, red):
    skip = A.label('XW'); w0 = A.label('XW0')
    A.nop(8)
    A(f'''    s_cmp_eq_u32 s{S_WAVE}, 0
    s_cbranch_scc1 {w0}
    s_sub_u32 s{S_TMP}, s{S_WAVE}, 1
    s_lshl_b32 s{S_TMP}, s{S_TMP}, 11
    s_add_u32 s{S_TMP}, s{S_TMP}, {red}
    v_add_u32 v1, s{S_TMP}, v{V_L16}
    ds_write_b128 v1, v[{V_S}:{V_S+3}]
    ds_write_b128 v1, v[{V_R}:{V_R+3}] offset:1024
    s_waitcnt lgkmcnt(0)
{w0}:
    s_barrier
    s_cmp_eq_u32 s{S_WAVE}, 0
    s_cbranch_scc0 {skip}
    v_add_u32 v1, {red}, v{V_L16}''')
    T = V_T
    for w in range(3):
        A(f'    ds_read_b128 v[{T+8*w}:{T+8*w+3}], v1 offset:{w*2048}')
        A(f'    ds_read_b128 v[{T+8*w+4}:{T+8*w+7}], v1 offset:{w*2048+1024}')
    for w in range(3):
        A(f'    s_waitcnt lgkmcnt({4 - 2*w})')
        for r in range(4):
            A(f'    v_add_f32 v{V_S+r}, v{V_S+r}, v{T+8*w+r}')
        for r in range(4):
            A(f'    v_add_f32 v{V_R+r}, v{V_R+r}, v{T+8*w+4+r}')
    return skip

def pack_D(A, dreg):
    A(f'    v_cvt_pk_bf16_f32 v{dreg+2}, v{V_S}, v{V_S+1}')
    A(f'    v_cvt_pk_bf16_f32 v{dreg+3}, v{V_S+2}, v{V_S+3}')
    A(f'    v_cvt_pk_bf16_f32 v{dreg+4}, v{V_R}, v{V_R+1}')
    A(f'    v_cvt_pk_bf16_f32 v{dreg+5}, v{V_R+2}, v{V_R+3}')

def lin12_addr(A, nload, rowfn, dst=2):
    for x in range(nload):
        d = dst + x; t = V_T
        A(f"""    v_add_u32 v{t}, {64*x}, v{V_LANE}
    v_mul_u32_u24 v{t+1}, 43691, v{t}
    v_lshrrev_b32 v{t+1}, 19, v{t+1}      ; row
    v_mul_u32_u24 v{t+2}, 12, v{t+1}
    v_sub_u32 v{t+2}, v{t}, v{t+2}
    v_lshlrev_b32 v{t+2}, 4, v{t+2}       ; piece*16""")
        rowfn(t + 1)
        A(f"""    v_mul_u32_u24 v{t+1}, 768, v{t+1}
    v_add3_u32 v{d}, v{t+1}, v{t+2}, s{S_TMP+2}""")

def lin12_to_operands(A, src, nload, lds_off, dsts):
    A(f"""    s_mul_i32 s{S_TMP}, s{S_WAVE}, 12288
    s_add_u32 s{S_TMP}, s{S_TMP}, {L_HEAD + lds_off}
    v_add_u32 v1, s{S_TMP}, v{V_L16}""")
    for x in range(nload):
        A(f'    ds_write_b128 v1, v[{src+4*x}:{src+4*x+3}] offset:{x*1024}')
    A(f"""    v_and_b32 v2, 15, v{V_LANE}
    v_mul_u32_u24 v2, 192, v2
    v_lshrrev_b32 v3, 4, v{V_LANE}
    v_lshlrev_b32 v3, 4, v3
    v_add3_u32 v2, v2, v3, s{S_TMP}""")
    for (reg, rowblk, kk) in dsts:
        A(f'    ds_read_b128 {reg}, v2 offset:{rowblk*16*192 + kk*64}')

def role_S1_loads(A):
    A(f'    s_mul_i32 s{S_TMP+2}, s{S_WAVE}, 192')
    lin12_addr(A, 3, lambda r: None)
    for x in range(3):
        A(f'    global_load_dwordx4 v[{V_GB+12+4*x}:{V_GB+15+4*x}], v{2+x}, s[{S_Q}:{S_Q+1}]')
    slab_addr_regs(A, False)
    slab_loads(A, S_WQ, V_O)

def slab_addr_regs(A, perm):
    slab_addr(A, perm)

def role_S1_work(A):
    T = V_T; Qr = V_GB
    A('    s_waitcnt vmcnt(0)')
    A.stamp('s1_data')
    vm_save = list(A.vm); nxt = Stream.nxt; Stream.nxt = 0
    issue_next(A, O.l0)
    A.vm = vm_save; Stream.nxt = nxt
    lin12_to_operands(A, V_GB + 12, 3, 6144 + 2048, [(f'v[{Qr+4*kk}:{Qr+4*kk+3}]', 0, kk) for kk in range(3)])
    slab_to_operands(A, V_O, L_HEAD)
    A('    s_waitcnt lgkmcnt(12)')
    for kk in range(3):
        q = f'v[{Qr+4*kk}:{Qr+4*kk+3}]'
        A(f'    v_mfma_f32_16x16x32_bf16 v[{V_G}:{V_G+3}], {q}, {q}, ' + ('0' if kk == 0 else f'v[{V_G}:{V_G+3}]'))
        A(f'    v_mfma_f32_16x16x32_bf16 v[{V_R}:{V_R+3}], a[{A_ONES}:{A_ONES+3}], {q}, ' + ('0' if kk == 0 else f'v[{V_R}:{V_R+3}]'))
    A.nop(7)
    A(f'    v_cndmask_b32 v{T}, 0, v{V_G}, s[{S_MASK}:{S_MASK+1}]')
    for r in range(1, 4):
        A(f'    v_cndmask_b32 v{T}, v{T}, v{V_G+r}, s[{S_MASK+2*r}:{S_MASK+2*r+1}]')
    A.nop(2)
    A(f'    v_mfma_f32_16x16x4_f32 v[{V_D}:{V_D+3}], v{V_ONEF}, v{T}, 0')
    A(f"""    s_lshl_b32 s{S_TMP}, s{S_WAVE}, 9
    s_add_u32 s{S_TMP}, s{S_TMP}, {L_STAT}
    v_lshlrev_b32 v1, 3, v{V_LANE}
    v_add_u32 v1, s{S_TMP}, v1
    v_and_b32 v2, 15, v{V_LANE}
    v_lshlrev_b32 v2, 3, v2
    v_add_u32 v2, {L_STAT}, v2
    v_mov_b32 v{T+2}, v{V_R}""")
    A.nop(3)
    A(f'    v_mov_b32 v{T+3}, v{V_D}')
    A(f'    ds_write_b64 v1, v[{T+2}:{T+3}]')
    A('    s_waitcnt lgkmcnt(0)')
    A.stamp('s1_stat')
    A('    s_barrier')
    for w in range(4):
        A(f'    ds_read_b64 v[{T+4+2*w}:{T+5+2*w}], v2 offset:{w*512}')
    A('    s_waitcnt lgkmcnt(0)')
    A(f"""    v_add_f32 v{T+4}, v{T+4}, v{T+6}
    v_add_f32 v{T+5}, v{T+5}, v{T+7}
    v_add_f32 v{T+8}, v{T+8}, v{T+10}
    v_add_f32 v{T+9}, v{T+9}, v{T+11}
    v_add_f32 v{T+4}, v{T+4}, v{T+8}
    v_add_f32 v{T+5}, v{T+5}, v{T+9}
    v_mul_f32 v{T+4}, s{S_C384}, v{T+4}          ; mean
    v_mul_f32 v{T+5}, s{S_C384}, v{T+5}          ; E[x^2]
    v_fma_f32 v{T+5}, -v{T+4}, v{T+4}, v{T+5}    ; var
    v_max_f32 v{T+5}, 0, v{T+5}
    v_cvt_pk_bf16_f32 v{T+6}, v{T+4}, v{T+5}
    v_lshlrev_b32 v{T+4}, 16, v{T+6}
    v_and_b32 v{T+5}, 0xffff0000, v{T+6}
    v_add_f32 v{T+5}, v{V_EPS}, v{T+5}
    v_cvt_pk_bf16_f32 v{T+5}, v{T+5}, v{T+5}
    v_lshlrev_b32 v{T+5}, 16, v{T+5}
    v_sqrt_f32 v{T+5}, v{T+5}
    s_nop 0
    v_cvt_pk_bf16_f32 v{T+5}, v{T+5}, v{T+5}
    v_lshlrev_b32 v{T+5}, 16, v{T+5}
    v_rcp_f32 v{T+5}, v{T+5}""")
    for k in range(0, 12, 2):
        a, b = T + 8, T + 12
        A(f'    v_lshlrev_b32 v{a}, 16, v{Qr+k}')
        A(f'    v_and_b32 v{a+1}, 0xffff0000, v{Qr+k}')
        A(f'    v_lshlrev_b32 v{b}, 16, v{Qr+k+1}')
        A(f'    v_and_b32 v{b+1}, 0xffff0000, v{Qr+k+1}')
        for x in (a, a + 1, b, b + 1): A(f'    v_sub_f32 v{x}, v{x}, v{T+4}')
        A(f'    v_cvt_pk_bf16_f32 v{a+2}, v{a}, v{a+1}')
        A(f'    v_cvt_pk_bf16_f32 v{b+2}, v{b}, v{b+1}')
        A(f'    v_lshlrev_b32 v{a}, 16, v{a+2}')
        A(f'    v_and_b32 v{a+1}, 0xffff0000, v{a+2}')
        A(f'    v_lshlrev_b32 v{b}, 16, v{b+2}')
        A(f'    v_and_b32 v{b+1}, 0xffff0000, v{b+2}')
        for x in (a, a + 1, b, b + 1): A(f'    v_mul_f32 v{x}, v{x}, v{T+5}')
        A(f'    v_cvt_pk_bf16_f32 v{Qr+k}, v{a}, v{a+1}')
        A(f'    v_cvt_pk_bf16_f32 v{Qr+k+1}, v{b}, v{b+1}')
    A.stamp('s1_norm')
    A.nop(2)
    gemm6(A, lambda kk: f'v[{Qr+4*kk}:{Qr+4*kk+3}]')
    skip = cross_wave_sum(A, L_RED_H)
    A.stamp('s1_red')
    pack_D(A, V_O)
    A(f'    s_lshl_b32 s{S_TMP}, s{S_JOB}, 11')
    A(f'    s_add_u32 s{S_TMP}, s{S_TMP}, {WS_QG}')
    publish8(A, V_O, S_TMP)
    A(f'{skip}:')

def role_S2_addr(A):
    A(f"""    s_lshr_b32 s{S_TMP}, s{S_JOB}, 2
    s_lshl_b32 s{S_TMP}, s{S_TMP}, 7
    s_and_b32 s{S_TMP+1}, s{S_JOB}, 3
    s_lshl_b32 s{S_TMP+1}, s{S_TMP+1}, 1
    s_add_u32 s{S_TMP+3}, s{S_TMP}, s{S_TMP+1}
    s_mul_i32 s{S_TMP+2}, s{S_WAVE}, 192""")
    def rowfn(r):
        t = V_T + 3
        A(f"""    v_bfe_u32 v{t}, v{r}, 3, 1
    v_lshlrev_b32 v{t}, 2, v{t}
    v_bfe_u32 v{t+1}, v{r}, 4, 1
    v_lshlrev_b32 v{t+1}, 3, v{t+1}
    v_add_u32 v{t}, v{t}, v{t+1}
    v_bfe_u32 v{t+1}, v{r}, 2, 1
    v_lshlrev_b32 v{t+1}, 1, v{t+1}
    v_bfe_u32 v{t+2}, v{r}, 1, 1
    v_add3_u32 v{t}, v{t}, v{t+1}, v{t+2}
    v_lshlrev_b32 v{t}, 3, v{t}
    v_and_b32 v{r}, 1, v{r}
    v_add3_u32 v{r}, v{r}, v{t}, s{S_TMP+3}""")
    lin12_addr(A, 6, rowfn, V_GB)

def role_S2_loads(A):
    for x in range(6):
        A.vmop(f'    global_load_dwordx4 v[{V_O+4*x}:{V_O+4*x+3}], v{V_GB+x}, s[{S_WK}:{S_WK+1}]', 'wk')

def role_S2_stage(A):
    A.vmwait('wk')
    lin12_to_operands(A, V_O, 6, 0, [(f'a[{A_W+(kk*2+a2)*4}:{A_W+(kk*2+a2)*4+3}]', a2, kk) for kk in range(3) for a2 in range(2)])

def role_S2_work(A):
    scale = 384 ** -0.5 * math.log2(math.e)
    ok = A.label('S2OK')
    A.stamp('s2_beg')
    role_S2_stage(A)
    A.vmwait('q')
    gather_check(A)
    A(f'    s_cbranch_vccz {ok}')
    gather_loop(A)
    A(f'{ok}:')
    A('    s_waitcnt lgkmcnt(0)')
    A.stamp('s2_q')
    gemm6(A, lambda kk: f'v[{V_GB+8*kk+2}:{V_GB+8*kk+5}]')
    skip = cross_wave_sum(A, L_HEAD + 6144)
    A.stamp('s2_red')
    for r in range(4):
        A(f'    v_mul_f32 v{V_S+r}, {lit(scale)}, v{V_S+r}')
    for r in range(4):
        A(f'    v_mul_f32 v{V_R+r}, {lit(scale)}, v{V_R+r}')
    pack_D(A, V_O)
    A(f'    s_lshl_b32 s{S_TMP}, s{S_JOB}, 11')
    A(f'    s_add_u32 s{S_TMP}, s{S_TMP}, {WS_QKG}')
    publish8(A, V_O, S_TMP)
    A(f'{skip}:')

def get_qk(A):
    ok = A.label('QK_OK'); lp = A.label('QK_LP')
    A.vmwait('qk')
    gather_check(A)
    A(f'    s_cbranch_vccz {ok}')
    gather_loop(A)
    A(f'{ok}:')
    A(f"""    s_mul_i32 s{S_TMP}, s{S_WAVE}, 3072
    s_add_u32 s{S_TMP}, s{S_TMP}, {L_QKL}
    v_add_u32 v1, s{S_TMP}, v{V_L16}""")
    for kk in range(3):
        A(f'    ds_write_b128 v1, v[{V_GB+8*kk+2}:{V_GB+8*kk+5}] offset:{kk*1024}')
    A(f'    v_add_u32 v1, {L_QKL}, v{V_L16}')
    A('    s_waitcnt lgkmcnt(0)')
    A('    s_barrier')
    for bb in range(12):
        A(f'    ds_read_b128 a[{A_QK+4*bb}:{A_QK+4*bb+3}], v1 offset:{bb*1024}')
    for bb in range(12):
        if bb % 4 == 0: A(f'    s_waitcnt lgkmcnt({8 - bb})')
        c = '0' if bb == 0 else f'v[{V_S}:{V_S+3}]'
        A(f'    v_mfma_f32_16x16x32_bf16 v[{V_S}:{V_S+3}], a[{A_ONES}:{A_ONES+3}], a[{A_QK+4*bb}:{A_QK+4*bb+3}], {c}')
    A.nop(8)
    A(f'    v_mov_b32 v{V_SQ}, v{V_S}')
    A.stamp('Qk')

def role_G_loads(A):
    g1 = A.label('GL1'); done = A.label('GLD')
    A(f'    s_cmp_eq_u32 s{S_ROLE}, {R_G1}')
    A(f'    s_cbranch_scc1 {g1}')
    A(f'    s_cmp_eq_u32 s{S_ROLE}, {R_G2}')
    A(f'    s_cbranch_scc0 {done}')
    slab_addr(A, False)
    slab_loads(A, S_WO, RAW[1])
    A(f"""    v_and_b32 v1, 15, v{V_LANE}
    v_mul_u32_u24 v1, 768, v1
    v_lshrrev_b32 v2, 4, v{V_LANE}
    v_lshlrev_b32 v2, 4, v2
    s_lshl_b32 s{S_TMP}, s{S_JOB}, 6
    v_add3_u32 v{V_Q+4}, v1, v2, s{S_TMP}
    global_load_dwordx4 v[{V_Q}:{V_Q+3}], v{V_Q+4}, s[{S_Q}:{S_Q+1}]
    s_branch {done}
{g1}:""")
    slab_addr(A, True)
    slab_loads(A, S_WV, RAW[1])
    A(f'{done}:')

def epilogue(A):
    T = V_T
    multi_xgroup(A, 'v_add_f32', [V_L, V_U], [T, T + 1])
    A(f"""    v_and_b32 v3, 15, v{V_LANE}           ; n
    v_lshlrev_b32 v5, 4, v3
    s_lshl_b32 s{S_TMP}, s{S_WAVE}, 2
    s_add_u32 s{S_TMP}, s{S_TMP}, {L_LBUF}
    v_add_u32 v6, s{S_TMP}, v5
    ds_write_b32 v6, v{V_L}
    ds_write_b32 v6, v{V_U} offset:256""")
    for r in range(4):
        for third in range(3):
            b0 = V_O + third * 8; b1 = b0 + 4
            A(f'    v_cvt_pk_bf16_f32 v{8+4*r+third}, v{b0+r}, v{b1+r}')
        A(f'    v_mov_b32 v{8+4*r+3}, s{S_TAG}')
    A(f"""    s_mul_i32 s{S_TMP}, s{S_WAVE}, 12288
    s_add_u32 s{S_TMP}, s{S_TMP}, {L_TR}
    v_mul_u32_u24 v1, 272, v3
    v_lshrrev_b32 v2, 4, v{V_LANE}        ; g'
    v_lshlrev_b32 v4, 6, v2               ; (g'>>1)*128 + (g'&1)*64 == g'*64
    v_add3_u32 v1, v1, v4, s{S_TMP}""")
    for r in range(4):
        A(f'    ds_write_b128 v1, v[{8+4*r}:{11+4*r}] offset:{r*16}')
    A(f"""    v_mul_u32_u24 v1, 272, v2
    v_add3_u32 v1, v1, v5, s{S_TMP}""")
    for x in range(4):
        A(f'    ds_read_b128 v[{24+4*x}:{27+4*x}], v1 offset:{x*1088}')
    A(f"""    v_lshlrev_b32 v1, 18, v2              ; (l>>4)*8*32768
    v_bfe_u32 v4, v{V_LANE}, 3, 1
    v_lshlrev_b32 v4, 15, v4
    v_and_b32 v7, 7, v{V_LANE}
    v_lshlrev_b32 v7, 4, v7
    v_add3_u32 v1, v1, v4, v7
    s_lshl_b32 s{S_TMP}, s{S_WAVE}, 16
    s_lshl_b32 s{S_TMP+1}, s{S_WG}, 7
    s_add_u32 s{S_TMP}, s{S_TMP}, s{S_TMP+1}
    s_add_u32 s{S_TMP}, s{S_TMP}, {WS_PART}
    v_add_u32 v1, s{S_TMP}, v1
    v_add_u32 v2, 0x100000, v1
    v_add_u32 v4, 0x200000, v1
    v_add_u32 v7, 0x300000, v1""")
    for x, a in enumerate((1, 2, 4, 7)):
        A(f'    s_waitcnt lgkmcnt({3-x})')
        A(f'    global_store_dwordx4 v{a}, v[{24+4*x}:{27+4*x}], s[{S_WS}:{S_WS+1}] sc1')
    A('    s_barrier')
    skip = A.label('EP')
    A(f"""    s_cmp_eq_u32 s{S_WAVE}, 0
    s_cbranch_scc0 {skip}
    v_add_u32 v5, {L_LBUF}, v5
    ds_read_b128 v[40:43], v5
    ds_read_b128 v[44:47], v5 offset:256
    v_lshlrev_b32 v3, 4, v3
    s_lshl_b32 s{S_TMP}, s{S_WG}, 8
    s_add_u32 s{S_TMP}, s{S_TMP}, {WS_ML}
    v_add_u32 v3, s{S_TMP}, v3
    v_mov_b32 v48, v{V_MREF}
    v_mov_b32 v51, s{S_TAG}
    s_waitcnt lgkmcnt(0)
    v_add_f32 v40, v40, v41
    v_add_f32 v42, v42, v43
    v_add_f32 v44, v44, v45
    v_add_f32 v46, v46, v47
    v_add_f32 v49, v40, v42
    v_add_f32 v50, v44, v46
    v_cmp_gt_u32 vcc, 16, v{V_LANE}
    s_and_saveexec_b64 s[{S_EX}:{S_EX+1}], vcc
    global_store_dwordx4 v3, v[48:51], s[{S_WS}:{S_WS+1}] sc1
    s_mov_b64 exec, s[{S_EX}:{S_EX+1}]
{skip}:""")
    A.stamp('pub')

def role_R(A):
    T = V_T
    lp = A.label('RL'); ok = A.label('RO'); lp2 = A.label('RD'); ok2 = A.label('RO2'); fin = A.label('RF')
    A(f"""    s_and_b32 s{S_TMP}, s{S_JOB}, 15          ; n
    s_lshr_b32 s{S_TMP+1}, s{S_JOB}, 4        ; chunk
    s_lshl_b32 s{S_TMP+2}, s{S_TMP}, 4
    s_lshl_b32 s{S_TMP+3}, s{S_WAVE}, 14
    s_add_u32 s{S_TMP+2}, s{S_TMP+2}, s{S_TMP+3}
    s_add_u32 s{S_TMP+2}, s{S_TMP+2}, {WS_ML}
    v_lshlrev_b32 v1, 8, v{V_LANE}
    v_add_u32 v1, s{S_TMP+2}, v1
    s_lshl_b32 s{S_TMP+2}, s{S_TMP}, 3
    s_add_u32 s{S_TMP+2}, s{S_TMP+2}, s{S_TMP+1}
    s_lshl_b32 s{S_TMP+2}, s{S_TMP+2}, 15
    s_lshl_b32 s{S_TMP+3}, s{S_WAVE}, 13
    s_add_u32 s{S_TMP+2}, s{S_TMP+2}, s{S_TMP+3}
    s_add_u32 s{S_TMP+2}, s{S_TMP+2}, {WS_PART + 4096}
    v_add_u32 v2, s{S_TMP+2}, v{V_L16}
{lp}:
    global_load_dwordx4 v[8:11], v1, s[{S_WS}:{S_WS+1}] sc1
    s_waitcnt vmcnt(0)
    v_cmp_ne_u32 vcc, s{S_TAG}, v11
    s_cbranch_vccz {ok}""")
    spin_guard(A, lp)
    A(f'    s_branch {lp}')
    A(f'{ok}:')
    A.stamp('R_ml')
    def data_loads():
        for k in range(8):
            A(f'    global_load_dwordx4 v[{16+4*k}:{19+4*k}], v2, s[{S_WS}:{S_WS+1}] offset:{k*1024-4096} sc1')
    data_loads()
    A(f'    v_mov_b32 v12, v8')
    multi_row(A, 'v_max_f32', [12])
    xgroup_reduce(A, 'v_max_f32', 12, 13)
    A(f"""    v_sub_f32 v8, v8, v12
    v_exp_f32 v8, v8
    v_lshrrev_b32 v3, 3, v{V_LANE}
    v_lshlrev_b32 v3, 2, v3               ; ii*4
    v_mul_f32 v9, v9, v8
    v_mul_f32 v10, v10, v8""")
    for k in range(8):
        A(f'    v_add_u32 v4, {32*k}, v3')
        A(f'    ds_bpermute_b32 v{48+k}, v4, v8')
    multi_row(A, 'v_add_f32', [9, 10])
    multi_xgroup(A, 'v_add_f32', [9, 10], [13, 14])
    for j in range(6): A(f'    v_mov_b32 v{56+j}, 0')
    A(f'{lp2}:')
    A('    s_waitcnt vmcnt(0)')
    for k in range(0, 8, 2):
        A(f'    v_xor_b32 v{64+k}, s{S_TAG}, v{19+4*k}')
        A(f'    v_xor_b32 v{65+k}, s{S_TAG}, v{23+4*k}')
    A(f"""    v_or3_b32 v64, v64, v65, v66
    v_or3_b32 v67, v67, v68, v69
    v_or3_b32 v64, v64, v70, v71
    v_or_b32 v64, v64, v67
    v_cmp_ne_u32 vcc, 0, v64
    s_cbranch_vccz {ok2}""")
    spin_guard(A, lp2)
    data_loads()
    A(f'    s_branch {lp2}')
    A(f'{ok2}:')
    A('    s_waitcnt lgkmcnt(0)')
    for k in range(8):
        for t in range(3):
            A(f'    v_lshlrev_b32 v64, 16, v{16+4*k+t}')
            A(f'    v_and_b32 v65, 0xffff0000, v{16+4*k+t}')
            A(f'    v_fmac_f32 v{56+2*t}, v64, v{48+k}')
            A(f'    v_fmac_f32 v{57+2*t}, v65, v{48+k}')
    acc = list(range(56, 62))
    multi_row(A, 'v_add_f32', acc, rots=(8,))
    multi_xgroup(A, 'v_add_f32', acc, list(range(64, 70)))
    A(f"""    s_lshl_b32 s{S_TMP+2}, s{S_WAVE}, 8
    s_add_u32 s{S_TMP+2}, s{S_TMP+2}, {L_RB}
    v_mul_u32_u24 v3, 24, v{V_LANE}
    v_add_u32 v3, s{S_TMP+2}, v3
    v_mov_b32 v4, s{S_TMP+2}
    v_mov_b32 v13, v9
    v_mov_b32 v14, v10
    v_mov_b32 v15, 0
    v_cmp_gt_u32 vcc, 8, v{V_LANE}
    s_and_saveexec_b64 s[{S_EX}:{S_EX+1}], vcc
    ds_write_b64 v3, v[56:57]
    ds_write_b64 v3, v[58:59] offset:8
    ds_write_b64 v3, v[60:61] offset:16
    ds_write_b128 v4, v[12:15] offset:192
    s_mov_b64 exec, s[{S_EX}:{S_EX+1}]
    s_waitcnt lgkmcnt(0)
    s_barrier
    s_cmp_eq_u32 s{S_WAVE}, 0
    s_cbranch_scc0 {fin}
    v_min_u32 v3, 7, v{V_LANE}
    v_mul_u32_u24 v3, 24, v3
    v_add_u32 v3, {L_RB}, v3
    v_mov_b32 v4, {L_RB}""")
    for w in range(4):
        A(f'    ds_read_b128 v[{16+4*w}:{19+4*w}], v4 offset:{w*256+192}')
    for w in range(4):
        for j in range(3):
            A(f'    ds_read_b64 v[{32+6*w+2*j}:{33+6*w+2*j}], v3 offset:{w*256+8*j}')
    A(f"""    s_waitcnt lgkmcnt(12)
    v_max_f32 v12, v16, v20
    v_max3_f32 v12, v12, v24, v28""")
    for w in range(4): A(f'    v_sub_f32 v{16+4*w}, v{16+4*w}, v12')
    for w in range(4): A(f'    v_exp_f32 v{16+4*w}, v{16+4*w}')
    A(f"""    s_nop 0
    v_mul_f32 v13, v16, v17
    v_mul_f32 v14, v16, v18""")
    for w in range(1, 4):
        A(f'    v_fmac_f32 v13, v{16+4*w}, v{17+4*w}')
        A(f'    v_fmac_f32 v14, v{16+4*w}, v{18+4*w}')
    A(f"""    v_rcp_f32 v13, v13
    s_waitcnt lgkmcnt(0)""")
    for j in range(6): A(f'    v_mul_f32 v{56+j}, v{32+j}, v16')
    for w in range(1, 4):
        for j in range(6): A(f'    v_fmac_f32 v{56+j}, v{32+6*w+j}, v{16+4*w}')
    for j in range(6): A(f'    v_sub_f32 v{56+j}, v{56+j}, v14')
    for j in range(6): A(f'    v_mul_f32 v{56+j}, v{56+j}, v13')
    A(f"""    v_cvt_pk_bf16_f32 v8, v56, v57
    v_cvt_pk_bf16_f32 v9, v58, v59
    v_cvt_pk_bf16_f32 v10, v60, v61
    v_mov_b32 v11, s{S_TAG}
    s_lshl_b32 s{S_TMP+2}, s{S_TMP+1}, 4
    s_add_u32 s{S_TMP+2}, s{S_TMP+2}, s{S_TMP}
    s_lshl_b32 s{S_TMP+2}, s{S_TMP+2}, 7
    s_add_u32 s{S_TMP+2}, s{S_TMP+2}, {WS_CTXN}
    v_add_u32 v3, s{S_TMP+2}, v{V_L16}
    v_cmp_gt_u32 vcc, 8, v{V_LANE}
    s_and_saveexec_b64 s[{S_EX}:{S_EX+1}], vcc
    global_store_dwordx4 v3, v[8:11], s[{S_WS}:{S_WS+1}] sc1
    s_mov_b64 exec, s[{S_EX}:{S_EX+1}]
{fin}:""")
    A.stamp('R_done')

def gather4_loop(A):
    l = A.label('G4L'); d = A.label('G4D'); T = V_T
    A(f"""    s_lshl_b32 s{S_TMP}, s{S_WAVE}, 12
    s_add_u32 s{S_TMP}, s{S_TMP}, {WS_CTXN}
    v_and_b32 v1, 15, v{V_LANE}
    v_lshlrev_b32 v1, 7, v1
    v_lshrrev_b32 v2, 4, v{V_LANE}
    v_lshlrev_b32 v2, 4, v2
    v_add3_u32 v{V_GA}, v1, v2, s{S_TMP}""")
    A(f'{l}:')
    for x in range(4):
        A(f'    global_load_dwordx4 v[{V_GB+4*x}:{V_GB+4*x+3}], v{V_GA}, s[{S_WS}:{S_WS+1}] offset:{(x>>1)*2048 + (x&1)*64} sc1')
    A('    s_waitcnt vmcnt(0)')
    for x in range(4): A(f'    v_xor_b32 v{T+x}, s{S_TAG}, v{V_GB+4*x+3}')
    A(f'    v_or3_b32 v{T}, v{T}, v{T+1}, v{T+2}')
    A(f'    v_or_b32 v{T}, v{T}, v{T+3}')
    A(f'    v_cmp_ne_u32 vcc, 0, v{T}')
    A(f'    s_cbranch_vccz {d}')
    spin_guard(A, l)
    A(f'    s_branch {l}')
    A(f'{d}:')
    for j in range(3): A(f'    v_mov_b32 v{V_GB+4*j+3}, v{V_GB+12+j}')

def role_G(A):
    g2 = A.label('G2'); lj = A.label('GJ')
    role_G_loads(A)
    A('    s_waitcnt vmcnt(0)')
    slab_to_operands(A, RAW[1], 0)
    A(f'    s_cmp_eq_u32 s{S_ROLE}, {R_G2}')
    A(f'    s_cbranch_scc1 {g2}')
    gather4_loop(A)
    A('    s_waitcnt lgkmcnt(0)')
    A.stamp('G1_in')
    gemm6(A, lambda kk: f'v[{V_GB+4*kk}:{V_GB+4*kk+3}]')
    A(f'    s_branch {lj}')
    A(f'{g2}:')
    gather_addr(A, WS_CTX)
    gather_loop(A)
    A('    s_waitcnt lgkmcnt(0)')
    A.stamp('G2_in')
    gemm6(A, lambda kk: f'v[{V_GB+8*kk+2}:{V_GB+8*kk+5}]')
    A(f'{lj}:')
    skip = cross_wave_sum(A, L_RED_T)
    out2 = A.label('GO')
    A(f'    s_cmp_eq_u32 s{S_ROLE}, {R_G2}')
    A(f'    s_cbranch_scc1 {out2}')
    pack_D(A, 8)
    A(f'    s_lshl_b32 s{S_TMP}, s{S_JOB}, 11')
    A(f'    s_add_u32 s{S_TMP}, s{S_TMP}, {WS_CTX}')
    publish8(A, 8, S_TMP)
    A(f'    s_branch {skip}')
    A(f'{out2}:')
    for k in range(4):
        d = V_S if k < 2 else V_R
        j = 2 * (k & 1)
        A(f'    v_lshlrev_b32 v8, 16, v{V_Q+k}')
        A(f'    v_and_b32 v9, 0xffff0000, v{V_Q+k}')
        A(f'    v_add_f32 v8, v8, v{d+j}')
        A(f'    v_add_f32 v9, v9, v{d+j+1}')
        A(f'    v_cvt_pk_bf16_f32 v{12+k}, v8, v9')
    A(f'    global_store_dwordx4 v{V_Q+4}, v[12:15], s[{S_OUT}:{S_OUT+1}]')
    e = A.label('GE')
    A(f"""    s_cmp_eq_u32 s{S_JOB}, 0
    s_cbranch_scc0 {skip}
    s_add_u32 s{S_TMP}, s{S_EPOCH}, 1
    v_mov_b32 v8, s{S_TMP}
    v_mov_b32 v9, {WS_EPOCH}
    v_cmp_eq_u32 vcc, 0, v{V_LANE}
    s_and_saveexec_b64 s[{S_EX}:{S_EX+1}], vcc
    global_store_dword v9, v8, s[{S_WS}:{S_WS+1}]
    s_mov_b64 exec, s[{S_EX}:{S_EX+1}]""")
    A(f'{skip}:')
    A.stamp('G_done')

def build_kernel():
    A = Gen(); T = V_T
    Stream.nxt = 0; Stream.done = 0; Stream.pend = []; PV.pending = []
    A('.text')
    A(f'.globl {NAME}')
    A('.p2align 8')
    A(f'.type {NAME},@function')
    A(f'{NAME}:')
    A(f"""    s_cmp_ge_u32 s2, 256
    s_cbranch_scc1 K_END
    s_load_dwordx4 s[{S_F0}:{S_F0+3}], s[0:1], 8
    s_load_dwordx2 s[{S_WS}:{S_WS+1}], s[0:1], 72
    s_load_dwordx2 s[{S_Q}:{S_Q+1}], s[0:1], 0
    s_load_dwordx8 s[{S_WQ}:{S_WQ+7}], s[0:1], 24
    s_load_dwordx2 s[{S_OUT}:{S_OUT+1}], s[0:1], 56
    s_mov_b32 s{S_WG}, s2
    s_mov_b32 s{S_SPIN}, 0
    v_and_b32 v{V_LANE}, 63, v0
    v_lshrrev_b32 v1, 6, v0
    v_lshlrev_b32 v{V_L16}, 4, v{V_LANE}
    v_readfirstlane_b32 s{S_WAVE}, v1
    v_lshrrev_b32 v2, 4, v{V_LANE}        ; g
    v_and_b32 v3, 15, v{V_LANE}           ; i
    v_lshlrev_b32 v4, 4, v3
    v_mul_u32_u24 v5, 1536, v2
    v_add_u32 v{V_F0OFF}, v5, v4
    v_mul_u32_u24 v5, 768, v2
    v_add_u32 v{V_F1OFF}, v5, v4
    s_mul_i32 s{S_T}, s{S_WG}, 36
    s_add_u32 s{S_T}, s{S_T}, s{S_WAVE}
    s_mov_b32 s{S_ROLE}, {R_NONE}
    s_mov_b32 s{S_JOB}, 0
    s_cmp_ge_u32 s2, 128
    s_cbranch_scc0 ROLE_LOW
    s_mov_b32 s{S_ROLE}, {R_R}
    s_sub_u32 s{S_JOB}, s2, 128
    s_branch ROLE_DONE
ROLE_LOW:
    s_cmp_ge_u32 s2, 48
    s_cbranch_scc1 ROLE_DONE
    s_lshr_b32 s{S_TMP}, s2, 3            ; hi
    s_and_b32 s{S_TMP+1}, s2, 3
    s_cmp_ge_u32 s{S_TMP}, 3
    s_cselect_b32 s{S_TMP+2}, 1, 0
    s_mul_i32 s{S_TMP+3}, s{S_TMP+2}, 3
    s_sub_u32 s{S_TMP}, s{S_TMP}, s{S_TMP+3}
    s_lshl_b32 s{S_TMP}, s{S_TMP}, 2
    s_add_u32 s{S_JOB}, s{S_TMP}, s{S_TMP+1}
    s_bitcmp1_b32 s2, 2
    s_cselect_b32 s{S_TMP}, {R_G1}, {R_S1}
    s_add_u32 s{S_ROLE}, s{S_TMP}, s{S_TMP+2}
ROLE_DONE:
    s_waitcnt lgkmcnt(0)
    s_load_dword s{S_EPOCH}, s[{S_WS}:{S_WS+1}], {WS_EPOCH}""")
    if O.stamp: A(f'    v_mov_b32 v{V_STAMP}, 0')
    A.stamp('entry')
    l2 = A.label('P2')
    A(f'    s_cmp_eq_u32 s{S_ROLE}, {R_S1}')
    A(f'    s_cbranch_scc0 {l2}')
    role_S1_loads(A)
    A(f'{l2}:')
    tile_bases(A, 0)
    hold = A.label('PH')
    A(f'    s_cmp_eq_u32 s{S_ROLE}, {R_S1}')
    A(f'    s_cbranch_scc1 {hold}')
    issue_next(A, O.l0)
    A(f'{hold}:')
    A.stamp('issued')
    A(f"""    v_lshrrev_b32 v2, 4, v{V_LANE}
    v_and_b32 v3, 15, v{V_LANE}
    s_mul_i32 s{S_TMP}, s{S_WAVE}, 12288
    v_lshlrev_b32 v5, 2, v2
    v_add_u32 v5, v5, v3
    v_and_b32 v5, 15, v5
    v_lshlrev_b32 v5, 4, v5
    v_lshlrev_b32 v6, 8, v2
    v_add_u32 v5, v5, v6
    v_add_u32 v{V_LDSW}, s{S_TMP}, v5
    s_lshl_b32 s{S_TMP+1}, s{S_WAVE}, 10
    v_add_u32 v{V_LDSF}, s{S_TMP+1}, v5
    v_lshrrev_b32 v5, 2, v{V_LANE}
    v_and_b32 v5, 3, v5
    v_and_b32 v6, 3, v{V_LANE}
    v_lshrrev_b32 v7, 1, v2
    v_add_u32 v7, v7, v6
    v_lshlrev_b32 v7, 2, v7
    v_and_b32 v1, 1, v2
    v_lshlrev_b32 v1, 1, v1
    v_add_u32 v7, v7, v1
    v_lshrrev_b32 v1, 1, v5
    v_add_u32 v7, v7, v1
    v_and_b32 v1, 1, v5
    v_lshlrev_b32 v1, 3, v1
    v_lshlrev_b32 v6, 8, v6
    v_add3_u32 v6, v6, v1, s{S_TMP}
    v_and_b32 v1, 15, v7
    v_lshlrev_b32 v1, 4, v1
    v_add_u32 v{V_LDSR0}, v6, v1
    v_add_u32 v7, 8, v7
    v_and_b32 v1, 15, v7
    v_lshlrev_b32 v1, 4, v1
    v_add_u32 v{V_LDSR1}, v6, v1
    v_lshlrev_b32 v5, 3, v{V_LANE}
    v_add_u32 v{V_PR}, {L_PBUF}, v5
    s_lshl_b32 s{S_TMP}, s{S_WAVE}, 9
    v_add_u32 v{V_PW}, s{S_TMP}, v{V_PR}
    v_lshlrev_b32 v5, 2, v3
    v_add_u32 v{V_MB}, {L_MBUF}, v5
    v_mov_b32 v{V_MREF}, 0xff800000
    ds_write_b32 v{V_MB}, v{V_MREF}
    v_lshlrev_b32 v5, 2, v2""")
    for r in range(4):
        A(f'    v_add_u32 v6, {r}, v5')
        A(f'    v_cmp_eq_u32 s[{S_MASK+2*r}:{S_MASK+2*r+1}], v6, v3')
    A(f"""    s_mov_b32 s{S_SELLO}, 0x{SEL_LO:08x}
    s_mov_b32 s{S_SELHI}, 0x{SEL_HI:08x}
    s_mov_b32 s{S_C384}, {lit(1/384)}
    v_mov_b32 v{V_EPS}, {lit(1e-5)}
    v_mov_b32 v{V_ONEF}, 1.0
    v_mov_b32 v{V_L}, 0
    v_mov_b32 v{V_U}, 0
    v_mov_b32 v{V_Q+4}, 0
    v_mov_b32 v{V_GB}, 0
    v_mov_b32 v{V_GB+1}, 0
    v_mov_b32 v{V_GB+2}, 0
    v_mov_b32 v{V_GB+3}, 0
    v_mov_b32 v{V_GB+4}, 0
    v_mov_b32 v{V_GB+5}, 0
    v_mov_b32 v1, 0x3f803f80""")
    for k in range(4):
        A(f'    v_accvgpr_write_b32 a{A_ONES+k}, v1')
    A(f"""    s_waitcnt lgkmcnt(0)
    s_mul_i32 s{S_TAG}, s{S_EPOCH}, 0x9E3779B1
    s_add_u32 s{S_TAG}, s{S_TAG}, 0x7F4A7C15""")
    l1 = A.label('H1'); l2 = A.label('H2')
    A(f'    s_cmp_eq_u32 s{S_ROLE}, {R_S1}')
    A(f'    s_cbranch_scc0 {l1}')
    role_S1_work(A)
    A(f'    s_branch {l2}')
    A(f'{l1}:')
    A(f'    s_cmp_eq_u32 s{S_ROLE}, {R_S2}')
    A(f'    s_cbranch_scc0 {l2}')
    role_S2_addr(A)
    A(f'{l2}:')
    A.stamp('head')
    stage_A(A, 0)
    snap = (list(A.vm), set(A.done), Stream.nxt, Stream.done, list(Stream.pend))
    common = A.label('A1C'); join = A.label('A1J')
    A(f'    s_cmp_eq_u32 s{S_ROLE}, {R_S2}')
    A(f'    s_cbranch_scc0 {common}')
    role_S2_loads(A)
    gather_addr(A, WS_QG)
    nl = len(A.labels)
    stage_A(A, 1, {O.s2att: lambda: gather_issue(A, 'q')}, stamp=False)
    role_S2_work(A)
    A(f'    s_branch {join}')
    A(f'{common}:')
    A.vm, A.done, Stream.nxt, Stream.done, Stream.pend = list(snap[0]), set(snap[1]), snap[2], snap[3], list(snap[4])
    stage_A(A, 1, stamp=False)
    A(f'{join}:')
    A.stamp('A1')
    gather_addr(A, WS_QKG)
    attempt = lambda: gather_issue(A, 'qk')
    raise_l = lambda: (enqueue(A), flush_pend())
    if O.raise_at == 'A1': raise_l()
    if O.attempt == 'A1': attempt()
    hooks = {}
    if O.attempt == 'A2a': hooks[0] = attempt
    if O.attempt == 'A2b': hooks[1] = attempt
    stage_A(A, 2, hooks)
    if O.attempt == 'A2': attempt()
    if O.raise_at == 'A2': raise_l()
    enqueue(A, O.extra); flush_pend()
    A.nop(2)
    for k in range(24):
        A(f'    v_mov_b32 v{V_O+k}, 0')
    get_qk(A)
    sched = O.sched.split()
    for i, st in enumerate(sched):
        k = int(st[1])
        if st[0] == 'A':
            stage_A(A, k, quota=O.qa)
        else:
            nxtB = next((j for j in range(i + 1, len(sched)) if sched[j][0] == 'B'), len(sched))
            strict = any(x[0] == 'A' and int(x[1]) % 3 == k % 3 for x in sched[i + 1:nxtB]) or k == 8
            stage_B(A, k, quota=O.qb, defer=(O.defer and k != 8), strict=strict)
    epilogue(A)
    lr = A.label('TR'); lg = A.label('TG')
    A(f'    s_cmp_eq_u32 s{S_ROLE}, {R_R}')
    A(f'    s_cbranch_scc0 {lr}')
    role_R(A)
    A('    s_branch K_FIN')
    A(f'{lr}:')
    A(f'    s_cmp_eq_u32 s{S_ROLE}, {R_G1}')
    A(f'    s_cbranch_scc1 {lg}')
    A(f'    s_cmp_eq_u32 s{S_ROLE}, {R_G2}')
    A(f'    s_cbranch_scc0 K_FIN')
    A(f'{lg}:')
    role_G(A)
    A('K_FIN:')
    if O.stamp:
        A('    s_waitcnt vmcnt(0)')
        A.stamp('end')
        A(f"""    s_lshl_b32 s42, s{S_WG}, 2
    s_add_u32 s42, s42, s{S_WAVE}
    s_lshl_b32 s42, s42, 8
    s_add_u32 s42, s42, {WS_STAMP}
    v_lshlrev_b32 v4, 2, v{V_LANE}
    v_add_u32 v4, s42, v4
    global_store_dword v4, v{V_STAMP}, s[{S_WS}:{S_WS+1}]""")
    A('K_END:')
    A('    s_endpgm')
    assert Stream.nxt >= 27
    return A

def build():
    A = build_kernel()
    txt = A.text()
    for p in check_hazards(txt): print('HAZARD', p, file=sys.stderr)
    ref = open('standalone__detection_seg_dino__vision.s.ref').read().split('\n')
    top = [l for l in ref if l.startswith(';') and '@launch' not in l and 'Override launch' not in l and 'grid=ceil' not in l][:12]
    out = '\n'.join(top) + '\n'
    out += f'; @launch grid=(256,1,1) block=(256,1,1) lds={LDS_BYTES}\n'
    out += '.amdgcn_target "amdgcn-amd-amdhsa--gfx950"\n' + txt
    out += f""".section .rodata,"a"
.p2align 6
.amdhsa_kernel {NAME}
  .amdhsa_next_free_vgpr {256 + NACC}
  .amdhsa_next_free_sgpr 96
  .amdhsa_accum_offset 256
  .amdhsa_group_segment_fixed_size 0
  .amdhsa_kernarg_size 80
  .amdhsa_user_sgpr_count 2
  .amdhsa_user_sgpr_kernarg_segment_ptr 1
  .amdhsa_system_sgpr_workgroup_id_x 1
  .amdhsa_float_denorm_mode_32 3
.end_amdhsa_kernel
"""
    return out, A.labels

if __name__ == '__main__':
    path = sys.argv[1]
    for o in (sys.argv[2].split(',') if len(sys.argv) > 2 else []):
        if o == 'stamp': O.stamp = True
        elif o == 'plain': O.nt = ''
        elif o == 'nodefer': O.defer = False
        elif o.startswith('fine='): O.fine = int(o[5:])
        elif o.startswith('qa='): O.qa = int(o[3:])
        elif o.startswith('s2att='): O.s2att = int(o[6:])
        elif o.startswith('qb='): O.qb = int(o[3:])
        elif o.startswith('att='): O.attempt = o[4:]
        elif o.startswith('extra='): O.extra = int(o[6:])
        elif o.startswith('l0='): O.l0 = int(o[3:])
        elif o.startswith('raise='): O.raise_at = o[6:]
        elif o.startswith('sched='): O.sched = o[6:].replace('-', ' ')
    out, labels = build()
    open(path, 'w').write(out)
    if O.stamp: open(path + '.labels', 'w').write(','.join(labels))
    print('wrote', path, len(out), 'bytes;', out.count('\n'), 'lines')
```

```python
import sys, struct, math
from asmlib import *

def f2u(x): return struct.unpack('<I', struct.pack('<f', x))[0]
def lit(x): return f'0x{f2u(x):08x}'
NAME = 'standalone__detection_seg_dino__vision_kernel'

class Opt:
    stamp = False
    nt = ' nt'
    extra = 0
    cpf = False
    touch = False
    wsoff = 0
    fine = -1
    defer = True
    s2att = 1
    qa = 2
    qb = 1
    spread = True
    l0 = 2
    raise_at = 'none'
    attempt = 'A2'
    sched = 'B0 A3 B1 B2 A4 B3 B4 A5 B5 A6 B6 A7 B7 A8 B8'
O = Opt()

WS_EPOCH = 0x0
WS_QG    = 0x1000
WS_QKG   = 0x8000
WS_CTXN  = 0x10000
WS_CTX   = 0x18000
WS_ML    = 0x20000
WS_PART  = 0x100000
WS_STAMP = 0x800000
SEL_LO, SEL_HI = 0x00003F80, 0x3F800000

RAW = [8, 68]
V_T   = 128
V_STG = 152
V_O   = 160
V_S, V_R, V_G, V_D = 184, 188, 192, 196
V_P   = 200
V_MREF, V_L, V_SQ, V_ONEF, V_EPS = 202, 203, 204, 205, 206
V_F0OFF, V_F1OFF = 207, 208
V_LDSW, V_LDSR0, V_LDSR1, V_LDSF = 209, 210, 211, 212
V_PW, V_PR, V_MB, V_LANE = 213, 214, 215, 216
V_CW, V_CR0, V_CR1, V_CF = 217, 218, 219, 220
V_U = 221
V_CF2 = 254
V_GA = 222
V_L16 = 223
V_GB = 224
V_Q = 248
V_STAMP = 253
A_QK, A_X, A_F, A_P, A_ONES, A_W = 0, 48, 96, 144, 152, 156
NACC = 180
S_F0, S_F1, S_WS = 4, 6, 8
S_BSET = [10, 44]
S_WAVE, S_WG, S_T = 16, 17, 19
S_SELLO, S_SELHI, S_C384 = 20, 21, 23
S_MASK = 26
S_TMP = 34
S_TAG, S_EPOCH, S_ROLE, S_JOB = 50, 51, 52, 53
S_Q, S_OUT = 54, 58
S_SPIN = 60
S_EX = 62
S_WQ, S_WK, S_WV, S_WO = 64, 66, 68, 70
R_NONE, R_S1, R_S2, R_G1, R_G2, R_R = 0, 1, 2, 3, 4, 5
SPIN_MAX = 1 << 18
SLOT = 49152
L_QKL  = 3 * SLOT
L_PBUF = L_QKL + 12288
L_MBUF = L_PBUF + 2048
L_LBUF = L_MBUF + 64
LDS_BYTES = L_LBUF + 512
assert LDS_BYTES <= 163840
L_HEAD = 2 * SLOT
L_STAT = L_HEAD + 6144
L_RED_H = L_HEAD
L_TR   = SLOT
L_RED_T = SLOT + 4608
L_RB   = 0

class Gen(Asm):
    def __init__(self):
        super().__init__()
        self.vm = []
        self.uid = 0
        self.nstamp = 0
        self.labels = []
        self.done = set()
    def vmop(self, line, tag):
        self(line); self.vm.append(tag)
    def vmwait(self, tag):
        hits = [i for i, t in enumerate(self.vm) if t == tag]
        if not hits:
            assert tag in self.done, tag
            return
        idx = hits[-1]
        self.done.update(self.vm[:idx + 1])
        n = len(self.vm) - 1 - idx
        assert n <= 63, n
        self(f'    s_waitcnt vmcnt({n})')
        self.vm = self.vm[idx + 1:]
    def vmall(self):
        self('    s_waitcnt vmcnt(0)'); self.vm = []
    def label(self, base):
        self.uid += 1
        return f'{base}_{self.uid}'
    def stamp(self, name):
        if not O.stamp: return
        idx = len(self.labels)
        assert idx < 64
        self.labels.append(name)
        self('    s_memrealtime s[40:41]')
        self('    s_waitcnt lgkmcnt(0)')
        self(f'    v_writelane_b32 v{V_STAMP}, s40, {idx}')

def xgroup_reduce(A, op, v, t):
    A(f'    v_mov_b32 v{t}, v{v}')
    A.nop(2)
    A(f'    v_permlane32_swap_b32 v{t}, v{v}')
    A(f'    {op} v{v}, v{v}, v{t}')
    A(f'    v_mov_b32 v{t}, v{v}')
    A.nop(2)
    A(f'    v_permlane16_swap_b32 v{t}, v{v}')
    A(f'    {op} v{v}, v{v}, v{t}')

def multi_xgroup(A, op, vs, ts):
    for sw in ('32', '16'):
        for v, t in zip(vs, ts): A(f'    v_mov_b32 v{t}, v{v}')
        if len(vs) < 3: A.nop(3 - len(vs))
        for v, t in zip(vs, ts): A(f'    v_permlane{sw}_swap_b32 v{t}, v{v}')
        for v, t in zip(vs, ts): A(f'    {op} v{v}, v{v}, v{t}')

def multi_row(A, op, vs, rots=(8, 4, 2, 1)):
    for rot in rots:
        if len(vs) < 3: A.nop(3 - len(vs))
        for v in vs: A(f'    {op}_dpp v{v}, v{v}, v{v} row_ror:{rot} row_mask:0xf bank_mask:0xf')

def tile_bases(A, u):
    S_B0 = S_BSET[u]; S_B1 = S_B0 + 2; S_BF = S_B0 + 4
    A(f'''    s_mul_hi_u32 s{S_TMP}, s{S_T}, 89478486
    s_mul_i32 s{S_TMP+1}, s{S_TMP}, 48
    s_sub_u32 s{S_TMP+1}, s{S_T}, s{S_TMP+1}
    s_mul_i32 s{S_TMP}, s{S_TMP}, 589824
    s_mul_i32 s{S_TMP+1}, s{S_TMP+1}, 6144
    s_add_u32 s{S_TMP}, s{S_TMP}, s{S_TMP+1}
    s_add_u32 s{S_B0}, s{S_F0}, s{S_TMP}
    s_addc_u32 s{S_B0+1}, s{S_F0+1}, 0
    s_add_u32 s{S_B1}, s{S_B0}, 294912
    s_addc_u32 s{S_B1+1}, s{S_B0+1}, 0
    s_mul_i32 s{S_TMP}, s{S_T}, 3072
    s_add_u32 s{S_BF}, s{S_F1}, s{S_TMP}
    s_addc_u32 s{S_BF+1}, s{S_F1+1}, 0
    s_add_u32 s{S_T}, s{S_T}, 4''')

def issue_item(A, j):
    if j > 26: return
    tile, third = divmod(j, 3); u = tile & 1
    if third == 0 and j > 0: tile_bases(A, u)
    S_B0 = S_BSET[u]; S_B1 = S_B0 + 2; S_BF = S_B0 + 4
    b = RAW[u]
    r = b + 48 + 4 * third
    A.vmop(f'    global_load_dwordx4 v[{r}:{r+3}], v{V_F1OFF}, s[{S_BF}:{S_BF+1}] offset:{third*256}{O.nt}', f'item{j}')
    for jj in range(4):
        dy, dx = jj >> 1, jj & 1
        r = b + 16 * third + 4 * jj
        base = S_B1 if dy else S_B0
        A.vmop(f'    global_load_dwordx4 v[{r}:{r+3}], v{V_F0OFF}, s[{base}:{base+1}] offset:{dx*768+third*256}{O.nt}', f'item{j}')

class Stream:
    nxt = 0
    done = 0
    pend = []
def enqueue(A, n=1):
    for _ in range(n):
        if Stream.nxt <= 26 and Stream.nxt < Stream.done + 6:
            Stream.pend += item_steps(A)
def pop(n=1):
    for _ in range(n):
        if Stream.pend: Stream.pend.pop(0)()
def flush_pend():
    pop(len(Stream.pend))
def issue_next(A, n=1):
    for _ in range(n):
        issue_item(A, Stream.nxt); Stream.nxt += 1

def item_steps(A):
    j = Stream.nxt; Stream.nxt += 1
    if j > 26: return []
    tile, third = divmod(j, 3); u = tile & 1
    S_B0 = S_BSET[u]; S_B1 = S_B0 + 2; S_BF = S_B0 + 4
    b = RAW[u]
    steps = []
    def first():
        if third == 0: tile_bases(A, u)
        r = b + 48 + 4 * third
        A.vmop(f'    global_load_dwordx4 v[{r}:{r+3}], v{V_F1OFF}, s[{S_BF}:{S_BF+1}] offset:{third*256}{O.nt}', f'item{j}')
    steps.append(first)
    for jj in range(4):
        def f(jj=jj):
            dy, dx = jj >> 1, jj & 1
            r = b + 16 * third + 4 * jj
            base = S_B1 if dy else S_B0
            A.vmop(f'    global_load_dwordx4 v[{r}:{r+3}], v{V_F0OFF}, s[{base}:{base+1}] offset:{dx*768+third*256}{O.nt}', f'item{j}')
        steps.append(f)
    return steps

def stage_A(A, k, hooks=None, quota=3, stamp=True):
    hooks = hooks or {}
    u = k & 1; b = RAW[u]; T = V_T
    A(f'    v_add_u32 v{V_CW}, {(k % 3) * SLOT}, v{V_LDSW}')
    if PV.pending: A('    s_waitcnt lgkmcnt(0)')
    units = [(third, dd) for third in range(3) for dd in range(4)]
    def tset(i): return T + 10 * (i & 1)
    def U(i):
        third, dd = units[i]; t = tset(i); f1 = b + 48 + 4 * third + dd
        return [f'    v_lshlrev_b32 v{t+8}, 16, v{f1}', f'    v_and_b32 v{t+9}, 0xffff0000, v{f1}']
    def D(i):
        third, dd = units[i]; t = tset(i)
        return ([f'    v_dot2_f32_bf16 v{t+j}, v{b+16*third+4*j+dd}, s{S_SELLO}, v{t+8}' for j in range(4)] +
                [f'    v_dot2_f32_bf16 v{t+4+j}, v{b+16*third+4*j+dd}, s{S_SELHI}, v{t+9}' for j in range(4)])
    def C(i):
        t = tset(i); o = V_STG + 4 * (i & 1)
        return [f'    v_cvt_pk_bf16_f32 v{o+kk}, v{t+2*kk}, v{t+2*kk+1}' for kk in range(4)]
    def W(i):
        third, dd = units[i]; o = V_STG + 4 * (i & 1)
        return f'    ds_write_b128 v{V_CW}, v[{o}:{o+3}] offset:{(third*4+dd)*1024}'
    enq = {0: 1, 4: 1, 8: 1} if quota == 3 else ({0: 1, 6: 1} if quota == 2 else ({0: 1} if quota == 1 else {}))
    def ensure(j):
        while any(True for _ in Stream.pend) and f'item{j}' not in A.done and A.vm.count(f'item{j}') < 5: pop()
        while Stream.nxt <= j: Stream.pend += item_steps(A); flush_pend()
    ensure(3 * k); A.vmwait(f'item{3*k}')
    enqueue(A, enq.get(0, 0))
    u0 = U(0); d0 = D(0)
    for l in u0 + d0[:4]: A(l)
    pop()
    for l in d0[4:]: A(l)
    for i in range(1, 12):
        if i % 4 == 0:
            Stream.done = 3 * k + i // 4
            ensure(3 * k + i // 4); A.vmwait(f'item{3*k + i//4}')
        enqueue(A, enq.get(i, 0))
        for l in U(i): A(l)
        if quota == 3 and i % 4 in (0, 2): pop()
        d = D(i); c = C(i - 1)
        for kk in range(4):
            A(d[kk]); A(c[kk])
        pv_pop(A, 2)
        A(W(i - 1))
        pop()
        for kk in range(4, 8): A(d[kk])
        if i % 4 == 3 and (i // 4) in hooks: hooks[i // 4]()
    Stream.done = 3 * k + 3
    flush_pend()
    A.nop(1)
    for l in C(11): A(l)
    pv_flush(A)
    A(W(11))
    if stamp: A.stamp(f'A{k}')

class PV:
    pending = []
def pv_steps():
    out = []
    for wp in range(4):
        for third in range(3):
            for e1 in range(2):
                f = A_F + (wp * 3 + third) * 4 + 2 * e1
                o = V_O + (third * 2 + e1) * 4
                out.append(f'    v_mfma_f32_16x16x16_bf16 v[{o}:{o+3}], a[{f}:{f+1}], a[{A_P+2*wp}:{A_P+2*wp+1}], v[{o}:{o+3}]')
    return out
def pv_pop(A, n=1):
    for _ in range(n):
        if PV.pending: A(PV.pending.pop(0))
def pv_flush(A):
    pv_pop(A, len(PV.pending))

def stage_B(A, k, quota=1, defer=True, strict=True):
    T = V_T; so = (k % 3) * SLOT
    enqueue(A, quota)
    A(f'    v_add_u32 v{V_CR0}, {so}, v{V_LDSR0}')
    A(f'    v_add_u32 v{V_CR1}, {so}, v{V_LDSR1}')
    A(f'    v_add_u32 v{V_CF}, {so}, v{V_LDSF}')
    if PV.pending: A('    s_waitcnt lgkmcnt(0)')
    n = 0
    for bb in range(12):
        for a2 in range(2):
            r = A_X + 4 * bb + 2 * a2
            A(f'    ds_read_b64_tr_b16 a[{r}:{r+1}], v{V_CR0+a2} offset:{bb*1024}')
            n += 1
            pv_pop(A)
    pv_flush(A)
    fine = (O.fine == k)
    if fine: A.stamp('b_tr')
    def X(bb): return f'a[{A_X+4*bb}:{A_X+4*bb+3}]'
    def G(bb): A(f'    v_mfma_f32_16x16x32_bf16 v[{V_G}:{V_G+3}], {X(bb)}, {X(bb)}, ' + ('0' if bb == 0 else f'v[{V_G}:{V_G+3}]'))
    def R(bb): A(f'    v_mfma_f32_16x16x32_bf16 v[{V_R}:{V_R+3}], {X(bb)}, a[{A_ONES}:{A_ONES+3}], ' + ('0' if bb == 0 else f'v[{V_R}:{V_R+3}]'))
    def S(bb): A(f'    v_mfma_f32_16x16x32_bf16 v[{V_S}:{V_S+3}], {X(bb)}, a[{A_QK+4*bb}:{A_QK+4*bb+3}], ' + ('0' if bb == 0 else f'v[{V_S}:{V_S+3}]'))
    for bb in range(12):
        if bb % 3 == 0:
            A(f'    s_waitcnt lgkmcnt({min(15, 24 - 2*(bb+3))})')
        G(bb)
        if bb % 2 == 1 and bb < 11: pop()
    flush_pend()
    if fine: A.stamp('b_G')
    for bb in range(8): R(bb)
    for r in range(4):
        src0 = '0' if r == 0 else f'v{T}'
        A(f'    v_cndmask_b32 v{T}, {src0}, v{V_G+r}, s[{S_MASK+2*r}:{S_MASK+2*r+1}]')
        R(8 + r)
    S(0)
    A(f'    v_mfma_f32_16x16x4_f32 v[{V_D}:{V_D+3}], v{T}, v{V_ONEF}, 0')
    for bb in range(1, 7): S(bb)
    for r in range(4):
        A(f'    v_mul_f32 v{V_R+r}, s{S_C384}, v{V_R+r}')
        S(7 + r)
    for r in range(4):
        A(f'    v_fma_f32 v{T+r}, -v{V_R+r}, v{V_R+r}, v{V_EPS}')
        if r == 1: S(11)
    for r in range(4):
        A(f'    v_fma_f32 v{V_D+r}, v{V_D+r}, s{S_C384}, v{T+r}')
    for r in range(4):
        A(f'    v_rsq_f32 v{V_D+r}, v{V_D+r}')
    for r in range(4):
        A(f'    v_fma_f32 v{V_S+r}, -v{V_R+r}, v{V_SQ}, v{V_S+r}')
    for r in range(4):
        A(f'    v_mul_f32 v{V_S+r}, v{V_S+r}, v{V_D+r}')
    A(f'    v_max3_f32 v{T}, v{V_S}, v{V_S+1}, v{V_S+2}')
    A(f'    v_max_f32 v{T}, v{T}, v{V_S+3}')
    if fine: A.stamp('b_z')
    A(f'    ds_max_f32 v{V_MB}, v{T}')
    A('    s_waitcnt lgkmcnt(0)')
    if fine: A.stamp('b_pre1')
    A('    s_barrier')
    if fine: A.stamp('b_post1')
    A(f'    ds_read_b32 v{T+1}, v{V_MB}')
    A('    s_waitcnt lgkmcnt(0)')
    if fine: A.stamp('b_m(+F)')
    A(f'    v_sub_f32 v{T+2}, v{V_MREF}, v{T+1}')
    for r in range(4):
        A(f'    v_sub_f32 v{V_S+r}, v{V_S+r}, v{T+1}')
    A(f'    v_exp_f32 v{T+2}, v{T+2}')
    for r in range(4):
        A(f'    v_exp_f32 v{V_S+r}, v{V_S+r}')
    A(f'    v_mov_b32 v{V_MREF}, v{T+1}')
    for r in range(4):
        A(f'    v_mul_f32 v{T+4+r}, v{V_S+r}, v{V_D+r}')
    A(f'    v_add_f32 v{V_S}, v{V_S}, v{V_S+1}')
    A(f'    v_cvt_pk_bf16_f32 v{V_P}, v{T+4}, v{T+5}')
    A(f'    v_cvt_pk_bf16_f32 v{V_P+1}, v{T+6}, v{T+7}')
    A(f'    v_add_f32 v{V_S+2}, v{V_S+2}, v{V_S+3}')
    A(f'    ds_write_b64 v{V_PW}, v[{V_P}:{V_P+1}]')
    for wp in range(4):
        for third in range(3):
            r = A_F + (wp * 3 + third) * 4
            A(f'    ds_read_b128 a[{r}:{r+3}], v{V_CF} offset:{wp*12288 + third*4096}')
    A(f'    v_add_f32 v{V_S}, v{V_S}, v{V_S+2}')
    A(f'    v_fma_f32 v{V_L}, v{V_L}, v{T+2}, v{V_S}')
    A(f'    v_mul_f32 v{V_U}, v{V_U}, v{T+2}')
    A(f'    v_lshlrev_b32 v{T+4}, 16, v{V_P}')
    A(f'    v_and_b32 v{T+5}, 0xffff0000, v{V_P}')
    A(f'    v_lshlrev_b32 v{T+6}, 16, v{V_P+1}')
    A(f'    v_and_b32 v{T+7}, 0xffff0000, v{V_P+1}')
    for r in range(4):
        A(f'    v_fmac_f32 v{V_U}, v{T+4+r}, v{V_R+r}')
    for kk in range(0, 24, 2):
        A(f'    v_pk_mul_f32 v[{V_O+kk}:{V_O+kk+1}], v[{V_O+kk}:{V_O+kk+1}], v[{T+2}:{T+3}] op_sel_hi:[1,0]')
    if fine: A.stamp('b_P')
    A(f'    s_waitcnt lgkmcnt({0 if strict else 12})')
    A('    s_barrier')
    if fine: A.stamp('b_post2')
    for wp in range(4):
        A(f'    ds_read_b64 a[{A_P+2*wp}:{A_P+2*wp+1}], v{V_PR} offset:{wp*512}')
    PV.pending = pv_steps()
    if not defer:
        A('    s_waitcnt lgkmcnt(0)')
        pv_flush(A)
    A.stamp(f'B{k}')

def gather_addr(A, ws_off):
    A(f'    s_mul_i32 s{S_TMP}, s{S_WAVE}, 6144')
    A(f'    s_add_u32 s{S_TMP}, s{S_TMP}, {ws_off + 2048}')
    A(f'    v_add_u32 v{V_GA}, s{S_TMP}, v{V_L16}')

def gather_issue(A, track=None):
    for kk in range(3):
        for h in range(2):
            r = V_GB + 8 * kk + 4 * h
            line = f'    global_load_dwordx4 v[{r}:{r+3}], v{V_GA}, s[{S_WS}:{S_WS+1}] offset:{kk*2048 + h*1024 - 2048} sc1'
            if track: A.vmop(line, track)
            else: A(line)

def gather_check(A):
    T = V_T
    for kk in range(3):
        A(f'    v_xor_b32 v{T+2*kk}, s{S_TAG}, v{V_GB+8*kk}')
        A(f'    v_xor_b32 v{T+2*kk+1}, s{S_TAG}, v{V_GB+8*kk+6}')
    A(f'    v_or3_b32 v{T}, v{T}, v{T+1}, v{T+2}')
    A(f'    v_or3_b32 v{T+3}, v{T+3}, v{T+4}, v{T+5}')
    A(f'    v_or_b32 v{T}, v{T}, v{T+3}')
    A(f'    v_cmp_ne_u32 vcc, 0, v{T}')

def spin_guard(A, lbl_retry):
    A(f'    s_add_u32 s{S_SPIN}, s{S_SPIN}, 1')
    A(f'    s_cmp_lt_u32 s{S_SPIN}, {SPIN_MAX}')
    A(f'    s_cbranch_scc0 K_END')
    A(f'    s_sleep 1')

def gather_loop(A):
    l = A.label('GL'); d = A.label('GD')
    A(f'{l}:')
    gather_issue(A)
    A('    s_waitcnt vmcnt(0)')
    gather_check(A)
    A(f'    s_cbranch_vccz {d}')
    spin_guard(A, l)
    A(f'    s_branch {l}')
    A(f'{d}:')

def publish8(A, dreg, ws_off_sgpr):
    A(f'    v_mov_b32 v{dreg}, s{S_TAG}')
    A(f'    v_mov_b32 v{dreg+1}, 0')
    A(f'    v_mov_b32 v{dreg+6}, s{S_TAG}')
    A(f'    v_mov_b32 v{dreg+7}, 0')
    A(f'    v_add_u32 v1, s{ws_off_sgpr}, v{V_L16}')
    A(f'    global_store_dwordx4 v1, v[{dreg}:{dreg+3}], s[{S_WS}:{S_WS+1}] sc1')
    A(f'    global_store_dwordx4 v1, v[{dreg+4}:{dreg+7}], s[{S_WS}:{S_WS+1}] offset:1024 sc1')

def slab_addr(A, perm):
    A(f'''    v_lshrrev_b32 v1, 2, v{V_LANE}
    s_mul_i32 s{S_TMP}, s{S_WAVE}, 96
    v_add_u32 v1, s{S_TMP}, v1            ; p (x = 0)
    v_and_b32 v{V_T}, 3, v{V_LANE}
    v_lshlrev_b32 v{V_T}, 4, v{V_T}
    s_lshl_b32 s{S_TMP}, s{S_JOB}, 6
    v_add_u32 v{V_T}, s{S_TMP}, v{V_T}''')
    for x in range(6):
        d = 2 + x
        if not perm:
            A(f'    v_add_u32 v{d}, {16*x}, v1')
        else:
            t = V_T + 1; kk = x >> 1
            A(f"""    v_lshrrev_b32 v{t}, 2, v{V_LANE}
    v_add_u32 v{t}, {16*(x&1)}, v{t}          ; p & 31
    v_bfe_u32 v{t+1}, v{t}, 1, 2              ; dw
    v_cmp_eq_u32 vcc, 3, v{t+1}
    v_lshlrev_b32 v{t+1}, 7, v{t+1}
    v_add_u32 v{t+1}, {32*kk}, v{t+1}
    v_mov_b32 v{t+2}, {kk*128 + 96}
    v_cndmask_b32 v{t+1}, v{t+1}, v{t+2}, vcc
    v_lshrrev_b32 v{t+2}, 3, v{t}
    v_lshlrev_b32 v{t+2}, 3, v{t+2}           ; 8g
    v_and_b32 v{t}, 1, v{t}
    v_add3_u32 v{t+1}, v{t+1}, v{t+2}, v{t}
    s_lshl_b32 s{S_TMP+1}, s{S_WAVE}, 1
    v_add_u32 v{d}, s{S_TMP+1}, v{t+1}""")
        A(f'    v_mul_u32_u24 v{d}, 768, v{d}')
        A(f'    v_add_u32 v{d}, v{d}, v{V_T}')

def slab_loads(A, sptr, dst, track=None):
    for x in range(6):
        line = f'    global_load_dwordx4 v[{dst+4*x}:{dst+4*x+3}], v{2+x}, s[{sptr}:{sptr+1}]'
        if track: A.vmop(line, track)
        else: A(line)

def slab_to_operands(A, src, lds_base):
    A(f'''    s_mul_i32 s{S_TMP}, s{S_WAVE}, 12288
    s_add_u32 s{S_TMP}, s{S_TMP}, {lds_base}
    v_add_u32 v1, s{S_TMP}, v{V_L16}''')
    for x in range(6):
        A(f'    ds_write_b128 v1, v[{src+4*x}:{src+4*x+3}] offset:{x*1024}')
    A(f'''    v_lshrrev_b32 v2, 4, v{V_LANE}
    v_lshlrev_b32 v2, 9, v2               ; g*512
    v_bfe_u32 v3, v{V_LANE}, 2, 2
    v_lshlrev_b32 v3, 6, v3               ; r*64
    v_and_b32 v4, 3, v{V_LANE}
    v_lshlrev_b32 v4, 4, v4               ; c*16
    v_add3_u32 v2, v2, v3, v4
    v_add_u32 v2, s{S_TMP}, v2''')
    for kk in range(3):
        for tb in range(2):
            for hf in range(2):
                r = A_W + (kk * 2 + tb) * 4 + 2 * hf
                A(f'    ds_read_b64_tr_b16 a[{r}:{r+1}], v2 offset:{kk*2048 + hf*256 + tb*8}')

def gemm6(A, bregs):
    for kk in range(3):
        for tb in range(2):
            d = V_S if tb == 0 else V_R
            c = '0' if kk == 0 else f'v[{d}:{d+3}]'
            w = A_W + (kk * 2 + tb) * 4
            A(f'    v_mfma_f32_16x16x32_bf16 v[{d}:{d+3}], a[{w}:{w+3}], {bregs(kk)}, {c}')

def cross_wave_sum(A, red):
    skip = A.label('XW'); w0 = A.label('XW0')
    A.nop(8)
    A(f'''    s_cmp_eq_u32 s{S_WAVE}, 0
    s_cbranch_scc1 {w0}
    s_sub_u32 s{S_TMP}, s{S_WAVE}, 1
    s_lshl_b32 s{S_TMP}, s{S_TMP}, 11
    s_add_u32 s{S_TMP}, s{S_TMP}, {red}
    v_add_u32 v1, s{S_TMP}, v{V_L16}
    ds_write_b128 v1, v[{V_S}:{V_S+3}]
    ds_write_b128 v1, v[{V_R}:{V_R+3}] offset:1024
    s_waitcnt lgkmcnt(0)
{w0}:
    s_barrier
    s_cmp_eq_u32 s{S_WAVE}, 0
    s_cbranch_scc0 {skip}
    v_add_u32 v1, {red}, v{V_L16}''')
    T = V_T
    for w in range(3):
        A(f'    ds_read_b128 v[{T+8*w}:{T+8*w+3}], v1 offset:{w*2048}')
        A(f'    ds_read_b128 v[{T+8*w+4}:{T+8*w+7}], v1 offset:{w*2048+1024}')
    for w in range(3):
        A(f'    s_waitcnt lgkmcnt({4 - 2*w})')
        for r in range(4):
            A(f'    v_add_f32 v{V_S+r}, v{V_S+r}, v{T+8*w+r}')
        for r in range(4):
            A(f'    v_add_f32 v{V_R+r}, v{V_R+r}, v{T+8*w+4+r}')
    return skip

def pack_D(A, dreg):
    A(f'    v_cvt_pk_bf16_f32 v{dreg+2}, v{V_S}, v{V_S+1}')
    A(f'    v_cvt_pk_bf16_f32 v{dreg+3}, v{V_S+2}, v{V_S+3}')
    A(f'    v_cvt_pk_bf16_f32 v{dreg+4}, v{V_R}, v{V_R+1}')
    A(f'    v_cvt_pk_bf16_f32 v{dreg+5}, v{V_R+2}, v{V_R+3}')

def lin12_addr(A, nload, rowfn, dst=2):
    for x in range(nload):
        d = dst + x; t = V_T
        A(f"""    v_add_u32 v{t}, {64*x}, v{V_LANE}
    v_mul_u32_u24 v{t+1}, 43691, v{t}
    v_lshrrev_b32 v{t+1}, 19, v{t+1}      ; row
    v_mul_u32_u24 v{t+2}, 12, v{t+1}
    v_sub_u32 v{t+2}, v{t}, v{t+2}
    v_lshlrev_b32 v{t+2}, 4, v{t+2}       ; piece*16""")
        rowfn(t + 1)
        A(f"""    v_mul_u32_u24 v{t+1}, 768, v{t+1}
    v_add3_u32 v{d}, v{t+1}, v{t+2}, s{S_TMP+2}""")

def lin12_to_operands(A, src, nload, lds_off, dsts):
    A(f"""    s_mul_i32 s{S_TMP}, s{S_WAVE}, 12288
    s_add_u32 s{S_TMP}, s{S_TMP}, {L_HEAD + lds_off}
    v_add_u32 v1, s{S_TMP}, v{V_L16}""")
    for x in range(nload):
        A(f'    ds_write_b128 v1, v[{src+4*x}:{src+4*x+3}] offset:{x*1024}')
    A(f"""    v_and_b32 v2, 15, v{V_LANE}
    v_mul_u32_u24 v2, 192, v2
    v_lshrrev_b32 v3, 4, v{V_LANE}
    v_lshlrev_b32 v3, 4, v3
    v_add3_u32 v2, v2, v3, s{S_TMP}""")
    for (reg, rowblk, kk) in dsts:
        A(f'    ds_read_b128 {reg}, v2 offset:{rowblk*16*192 + kk*64}')

def role_S1_loads(A):
    A(f'    s_mul_i32 s{S_TMP+2}, s{S_WAVE}, 192')
    lin12_addr(A, 3, lambda r: None)
    for x in range(3):
        A(f'    global_load_dwordx4 v[{V_GB+12+4*x}:{V_GB+15+4*x}], v{2+x}, s[{S_Q}:{S_Q+1}]')
    slab_addr_regs(A, False)
    slab_loads(A, S_WQ, V_O)

def slab_addr_regs(A, perm):
    slab_addr(A, perm)

def role_S1_work(A):
    T = V_T; Qr = V_GB
    A('    s_waitcnt vmcnt(0)')
    A.stamp('s1_data')
    vm_save = list(A.vm); nxt = Stream.nxt; Stream.nxt = 0
    issue_next(A, O.l0)
    A.vm = vm_save; Stream.nxt = nxt
    lin12_to_operands(A, V_GB + 12, 3, 6144 + 2048, [(f'v[{Qr+4*kk}:{Qr+4*kk+3}]', 0, kk) for kk in range(3)])
    slab_to_operands(A, V_O, L_HEAD)
    A('    s_waitcnt lgkmcnt(12)')
    for kk in range(3):
        q = f'v[{Qr+4*kk}:{Qr+4*kk+3}]'
        A(f'    v_mfma_f32_16x16x32_bf16 v[{V_G}:{V_G+3}], {q}, {q}, ' + ('0' if kk == 0 else f'v[{V_G}:{V_G+3}]'))
        A(f'    v_mfma_f32_16x16x32_bf16 v[{V_R}:{V_R+3}], a[{A_ONES}:{A_ONES+3}], {q}, ' + ('0' if kk == 0 else f'v[{V_R}:{V_R+3}]'))
    A.nop(7)
    A(f'    v_cndmask_b32 v{T}, 0, v{V_G}, s[{S_MASK}:{S_MASK+1}]')
    for r in range(1, 4):
        A(f'    v_cndmask_b32 v{T}, v{T}, v{V_G+r}, s[{S_MASK+2*r}:{S_MASK+2*r+1}]')
    A.nop(2)
    A(f'    v_mfma_f32_16x16x4_f32 v[{V_D}:{V_D+3}], v{V_ONEF}, v{T}, 0')
    A(f"""    s_lshl_b32 s{S_TMP}, s{S_WAVE}, 9
    s_add_u32 s{S_TMP}, s{S_TMP}, {L_STAT}
    v_lshlrev_b32 v1, 3, v{V_LANE}
    v_add_u32 v1, s{S_TMP}, v1
    v_and_b32 v2, 15, v{V_LANE}
    v_lshlrev_b32 v2, 3, v2
    v_add_u32 v2, {L_STAT}, v2
    v_mov_b32 v{T+2}, v{V_R}""")
    A.nop(3)
    A(f'    v_mov_b32 v{T+3}, v{V_D}')
    A(f'    ds_write_b64 v1, v[{T+2}:{T+3}]')
    A('    s_waitcnt lgkmcnt(0)')
    A.stamp('s1_stat')
    A('    s_barrier')
    for w in range(4):
        A(f'    ds_read_b64 v[{T+4+2*w}:{T+5+2*w}], v2 offset:{w*512}')
    A('    s_waitcnt lgkmcnt(0)')
    A(f"""    v_add_f32 v{T+4}, v{T+4}, v{T+6}
    v_add_f32 v{T+5}, v{T+5}, v{T+7}
    v_add_f32 v{T+8}, v{T+8}, v{T+10}
    v_add_f32 v{T+9}, v{T+9}, v{T+11}
    v_add_f32 v{T+4}, v{T+4}, v{T+8}
    v_add_f32 v{T+5}, v{T+5}, v{T+9}
    v_mul_f32 v{T+4}, s{S_C384}, v{T+4}          ; mean
    v_mul_f32 v{T+5}, s{S_C384}, v{T+5}          ; E[x^2]
    v_fma_f32 v{T+5}, -v{T+4}, v{T+4}, v{T+5}    ; var
    v_max_f32 v{T+5}, 0, v{T+5}
    v_cvt_pk_bf16_f32 v{T+6}, v{T+4}, v{T+5}
    v_lshlrev_b32 v{T+4}, 16, v{T+6}
    v_and_b32 v{T+5}, 0xffff0000, v{T+6}
    v_add_f32 v{T+5}, v{V_EPS}, v{T+5}
    v_cvt_pk_bf16_f32 v{T+5}, v{T+5}, v{T+5}
    v_lshlrev_b32 v{T+5}, 16, v{T+5}
    v_sqrt_f32 v{T+5}, v{T+5}
    s_nop 0
    v_cvt_pk_bf16_f32 v{T+5}, v{T+5}, v{T+5}
    v_lshlrev_b32 v{T+5}, 16, v{T+5}
    v_rcp_f32 v{T+5}, v{T+5}""")
    for k in range(0, 12, 2):
        a, b = T + 8, T + 12
        A(f'    v_lshlrev_b32 v{a}, 16, v{Qr+k}')
        A(f'    v_and_b32 v{a+1}, 0xffff0000, v{Qr+k}')
        A(f'    v_lshlrev_b32 v{b}, 16, v{Qr+k+1}')
        A(f'    v_and_b32 v{b+1}, 0xffff0000, v{Qr+k+1}')
        for x in (a, a + 1, b, b + 1): A(f'    v_sub_f32 v{x}, v{x}, v{T+4}')
        A(f'    v_cvt_pk_bf16_f32 v{a+2}, v{a}, v{a+1}')
        A(f'    v_cvt_pk_bf16_f32 v{b+2}, v{b}, v{b+1}')
        A(f'    v_lshlrev_b32 v{a}, 16, v{a+2}')
        A(f'    v_and_b32 v{a+1}, 0xffff0000, v{a+2}')
        A(f'    v_lshlrev_b32 v{b}, 16, v{b+2}')
        A(f'    v_and_b32 v{b+1}, 0xffff0000, v{b+2}')
        for x in (a, a + 1, b, b + 1): A(f'    v_mul_f32 v{x}, v{x}, v{T+5}')
        A(f'    v_cvt_pk_bf16_f32 v{Qr+k}, v{a}, v{a+1}')
        A(f'    v_cvt_pk_bf16_f32 v{Qr+k+1}, v{b}, v{b+1}')
    A.stamp('s1_norm')
    A.nop(2)
    gemm6(A, lambda kk: f'v[{Qr+4*kk}:{Qr+4*kk+3}]')
    skip = cross_wave_sum(A, L_RED_H)
    A.stamp('s1_red')
    pack_D(A, V_O)
    A(f'    s_lshl_b32 s{S_TMP}, s{S_JOB}, 11')
    A(f'    s_add_u32 s{S_TMP}, s{S_TMP}, {WS_QG}')
    publish8(A, V_O, S_TMP)
    A(f'{skip}:')

def role_S2_addr(A):
    A(f"""    s_lshr_b32 s{S_TMP}, s{S_JOB}, 2
    s_lshl_b32 s{S_TMP}, s{S_TMP}, 7
    s_and_b32 s{S_TMP+1}, s{S_JOB}, 3
    s_lshl_b32 s{S_TMP+1}, s{S_TMP+1}, 1
    s_add_u32 s{S_TMP+3}, s{S_TMP}, s{S_TMP+1}
    s_mul_i32 s{S_TMP+2}, s{S_WAVE}, 192""")
    def rowfn(r):
        t = V_T + 3
        A(f"""    v_bfe_u32 v{t}, v{r}, 3, 1
    v_lshlrev_b32 v{t}, 2, v{t}
    v_bfe_u32 v{t+1}, v{r}, 4, 1
    v_lshlrev_b32 v{t+1}, 3, v{t+1}
    v_add_u32 v{t}, v{t}, v{t+1}
    v_bfe_u32 v{t+1}, v{r}, 2, 1
    v_lshlrev_b32 v{t+1}, 1, v{t+1}
    v_bfe_u32 v{t+2}, v{r}, 1, 1
    v_add3_u32 v{t}, v{t}, v{t+1}, v{t+2}
    v_lshlrev_b32 v{t}, 3, v{t}
    v_and_b32 v{r}, 1, v{r}
    v_add3_u32 v{r}, v{r}, v{t}, s{S_TMP+3}""")
    lin12_addr(A, 6, rowfn, V_GB)

def role_S2_loads(A):
    for x in range(6):
        A.vmop(f'    global_load_dwordx4 v[{V_O+4*x}:{V_O+4*x+3}], v{V_GB+x}, s[{S_WK}:{S_WK+1}]', 'wk')

def role_S2_stage(A):
    A.vmwait('wk')
    lin12_to_operands(A, V_O, 6, 0, [(f'a[{A_W+(kk*2+a2)*4}:{A_W+(kk*2+a2)*4+3}]', a2, kk) for kk in range(3) for a2 in range(2)])

def role_S2_work(A):
    scale = 384 ** -0.5 * math.log2(math.e)
    ok = A.label('S2OK')
    A.stamp('s2_beg')
    role_S2_stage(A)
    A.vmwait('q')
    gather_check(A)
    A(f'    s_cbranch_vccz {ok}')
    gather_loop(A)
    A(f'{ok}:')
    A('    s_waitcnt lgkmcnt(0)')
    A.stamp('s2_q')
    gemm6(A, lambda kk: f'v[{V_GB+8*kk+2}:{V_GB+8*kk+5}]')
    skip = cross_wave_sum(A, L_HEAD + 6144)
    A.stamp('s2_red')
    for r in range(4):
        A(f'    v_mul_f32 v{V_S+r}, {lit(scale)}, v{V_S+r}')
    for r in range(4):
        A(f'    v_mul_f32 v{V_R+r}, {lit(scale)}, v{V_R+r}')
    pack_D(A, V_O)
    A(f'    s_lshl_b32 s{S_TMP}, s{S_JOB}, 11')
    A(f'    s_add_u32 s{S_TMP}, s{S_TMP}, {WS_QKG}')
    publish8(A, V_O, S_TMP)
    A(f'{skip}:')

def get_qk(A):
    ok = A.label('QK_OK'); lp = A.label('QK_LP')
    A.vmwait('qk')
    gather_check(A)
    A(f'    s_cbranch_vccz {ok}')
    gather_loop(A)
    A(f'{ok}:')
    A(f"""    s_mul_i32 s{S_TMP}, s{S_WAVE}, 3072
    s_add_u32 s{S_TMP}, s{S_TMP}, {L_QKL}
    v_add_u32 v1, s{S_TMP}, v{V_L16}""")
    for kk in range(3):
        A(f'    ds_write_b128 v1, v[{V_GB+8*kk+2}:{V_GB+8*kk+5}] offset:{kk*1024}')
    A(f'    v_add_u32 v1, {L_QKL}, v{V_L16}')
    A('    s_waitcnt lgkmcnt(0)')
    A('    s_barrier')
    for bb in range(12):
        A(f'    ds_read_b128 a[{A_QK+4*bb}:{A_QK+4*bb+3}], v1 offset:{bb*1024}')
    for bb in range(12):
        if bb % 4 == 0: A(f'    s_waitcnt lgkmcnt({8 - bb})')
        c = '0' if bb == 0 else f'v[{V_S}:{V_S+3}]'
        A(f'    v_mfma_f32_16x16x32_bf16 v[{V_S}:{V_S+3}], a[{A_ONES}:{A_ONES+3}], a[{A_QK+4*bb}:{A_QK+4*bb+3}], {c}')
    A.nop(8)
    A(f'    v_mov_b32 v{V_SQ}, v{V_S}')
    A.stamp('Qk')

def role_G_loads(A):
    g1 = A.label('GL1'); done = A.label('GLD')
    A(f'    s_cmp_eq_u32 s{S_ROLE}, {R_G1}')
    A(f'    s_cbranch_scc1 {g1}')
    A(f'    s_cmp_eq_u32 s{S_ROLE}, {R_G2}')
    A(f'    s_cbranch_scc0 {done}')
    slab_addr(A, False)
    slab_loads(A, S_WO, RAW[1])
    A(f"""    v_and_b32 v1, 15, v{V_LANE}
    v_mul_u32_u24 v1, 768, v1
    v_lshrrev_b32 v2, 4, v{V_LANE}
    v_lshlrev_b32 v2, 4, v2
    s_lshl_b32 s{S_TMP}, s{S_JOB}, 6
    v_add3_u32 v{V_Q+4}, v1, v2, s{S_TMP}
    global_load_dwordx4 v[{V_Q}:{V_Q+3}], v{V_Q+4}, s[{S_Q}:{S_Q+1}]
    s_branch {done}
{g1}:""")
    slab_addr(A, True)
    slab_loads(A, S_WV, RAW[1])
    A(f'{done}:')

def epilogue(A):
    T = V_T
    multi_xgroup(A, 'v_add_f32', [V_L, V_U], [T, T + 1])
    A(f"""    v_and_b32 v3, 15, v{V_LANE}           ; n
    v_lshlrev_b32 v5, 4, v3
    s_lshl_b32 s{S_TMP}, s{S_WAVE}, 2
    s_add_u32 s{S_TMP}, s{S_TMP}, {L_LBUF}
    v_add_u32 v6, s{S_TMP}, v5
    ds_write_b32 v6, v{V_L}
    ds_write_b32 v6, v{V_U} offset:256""")
    for r in range(4):
        for third in range(3):
            b0 = V_O + third * 8; b1 = b0 + 4
            A(f'    v_cvt_pk_bf16_f32 v{8+4*r+third}, v{b0+r}, v{b1+r}')
        A(f'    v_mov_b32 v{8+4*r+3}, s{S_TAG}')
    A(f"""    s_mul_i32 s{S_TMP}, s{S_WAVE}, 12288
    s_add_u32 s{S_TMP}, s{S_TMP}, {L_TR}
    v_mul_u32_u24 v1, 272, v3
    v_lshrrev_b32 v2, 4, v{V_LANE}        ; g'
    v_lshlrev_b32 v4, 6, v2               ; (g'>>1)*128 + (g'&1)*64 == g'*64
    v_add3_u32 v1, v1, v4, s{S_TMP}""")
    for r in range(4):
        A(f'    ds_write_b128 v1, v[{8+4*r}:{11+4*r}] offset:{r*16}')
    A(f"""    v_mul_u32_u24 v1, 272, v2
    v_add3_u32 v1, v1, v5, s{S_TMP}""")
    for x in range(4):
        A(f'    ds_read_b128 v[{24+4*x}:{27+4*x}], v1 offset:{x*1088}')
    A(f"""    v_lshlrev_b32 v1, 18, v2              ; (l>>4)*8*32768
    v_bfe_u32 v4, v{V_LANE}, 3, 1
    v_lshlrev_b32 v4, 15, v4
    v_and_b32 v7, 7, v{V_LANE}
    v_lshlrev_b32 v7, 4, v7
    v_add3_u32 v1, v1, v4, v7
    s_lshl_b32 s{S_TMP}, s{S_WAVE}, 16
    s_lshl_b32 s{S_TMP+1}, s{S_WG}, 7
    s_add_u32 s{S_TMP}, s{S_TMP}, s{S_TMP+1}
    s_add_u32 s{S_TMP}, s{S_TMP}, {WS_PART}
    v_add_u32 v1, s{S_TMP}, v1
    v_add_u32 v2, 0x100000, v1
    v_add_u32 v4, 0x200000, v1
    v_add_u32 v7, 0x300000, v1""")
    for x, a in enumerate((1, 2, 4, 7)):
        A(f'    s_waitcnt lgkmcnt({3-x})')
        A(f'    global_store_dwordx4 v{a}, v[{24+4*x}:{27+4*x}], s[{S_WS}:{S_WS+1}] sc1')
    A('    s_barrier')
    skip = A.label('EP')
    A(f"""    s_cmp_eq_u32 s{S_WAVE}, 0
    s_cbranch_scc0 {skip}
    v_add_u32 v5, {L_LBUF}, v5
    ds_read_b128 v[40:43], v5
    ds_read_b128 v[44:47], v5 offset:256
    v_lshlrev_b32 v3, 4, v3
    s_lshl_b32 s{S_TMP}, s{S_WG}, 8
    s_add_u32 s{S_TMP}, s{S_TMP}, {WS_ML}
    v_add_u32 v3, s{S_TMP}, v3
    v_mov_b32 v48, v{V_MREF}
    v_mov_b32 v51, s{S_TAG}
    s_waitcnt lgkmcnt(0)
    v_add_f32 v40, v40, v41
    v_add_f32 v42, v42, v43
    v_add_f32 v44, v44, v45
    v_add_f32 v46, v46, v47
    v_add_f32 v49, v40, v42
    v_add_f32 v50, v44, v46
    v_cmp_gt_u32 vcc, 16, v{V_LANE}
    s_and_saveexec_b64 s[{S_EX}:{S_EX+1}], vcc
    global_store_dwordx4 v3, v[48:51], s[{S_WS}:{S_WS+1}] sc1
    s_mov_b64 exec, s[{S_EX}:{S_EX+1}]
{skip}:""")
    A.stamp('pub')

def role_R(A):
    T = V_T
    lp = A.label('RL'); ok = A.label('RO'); lp2 = A.label('RD'); ok2 = A.label('RO2'); fin = A.label('RF')
    A(f"""    s_and_b32 s{S_TMP}, s{S_JOB}, 15          ; n
    s_lshr_b32 s{S_TMP+1}, s{S_JOB}, 4        ; chunk
    s_lshl_b32 s{S_TMP+2}, s{S_TMP}, 4
    s_lshl_b32 s{S_TMP+3}, s{S_WAVE}, 14
    s_add_u32 s{S_TMP+2}, s{S_TMP+2}, s{S_TMP+3}
    s_add_u32 s{S_TMP+2}, s{S_TMP+2}, {WS_ML}
    v_lshlrev_b32 v1, 8, v{V_LANE}
    v_add_u32 v1, s{S_TMP+2}, v1
    s_lshl_b32 s{S_TMP+2}, s{S_TMP}, 3
    s_add_u32 s{S_TMP+2}, s{S_TMP+2}, s{S_TMP+1}
    s_lshl_b32 s{S_TMP+2}, s{S_TMP+2}, 15
    s_lshl_b32 s{S_TMP+3}, s{S_WAVE}, 13
    s_add_u32 s{S_TMP+2}, s{S_TMP+2}, s{S_TMP+3}
    s_add_u32 s{S_TMP+2}, s{S_TMP+2}, {WS_PART + 4096}
    v_add_u32 v2, s{S_TMP+2}, v{V_L16}
{lp}:
    global_load_dwordx4 v[8:11], v1, s[{S_WS}:{S_WS+1}] sc1
    s_waitcnt vmcnt(0)
    v_cmp_ne_u32 vcc, s{S_TAG}, v11
    s_cbranch_vccz {ok}""")
    spin_guard(A, lp)
    A(f'    s_branch {lp}')
    A(f'{ok}:')
    A.stamp('R_ml')
    def data_loads():
        for k in range(8):
            A(f'    global_load_dwordx4 v[{16+4*k}:{19+4*k}], v2, s[{S_WS}:{S_WS+1}] offset:{k*1024-4096} sc1')
    data_loads()
    A(f'    v_mov_b32 v12, v8')
    multi_row(A, 'v_max_f32', [12])
    xgroup_reduce(A, 'v_max_f32', 12, 13)
    A(f"""    v_sub_f32 v8, v8, v12
    v_exp_f32 v8, v8
    v_lshrrev_b32 v3, 3, v{V_LANE}
    v_lshlrev_b32 v3, 2, v3               ; ii*4
    v_mul_f32 v9, v9, v8
    v_mul_f32 v10, v10, v8""")
    for k in range(8):
        A(f'    v_add_u32 v4, {32*k}, v3')
        A(f'    ds_bpermute_b32 v{48+k}, v4, v8')
    multi_row(A, 'v_add_f32', [9, 10])
    multi_xgroup(A, 'v_add_f32', [9, 10], [13, 14])
    for j in range(6): A(f'    v_mov_b32 v{56+j}, 0')
    A(f'{lp2}:')
    A('    s_waitcnt vmcnt(0)')
    for k in range(0, 8, 2):
        A(f'    v_xor_b32 v{64+k}, s{S_TAG}, v{19+4*k}')
        A(f'    v_xor_b32 v{65+k}, s{S_TAG}, v{23+4*k}')
    A(f"""    v_or3_b32 v64, v64, v65, v66
    v_or3_b32 v67, v67, v68, v69
    v_or3_b32 v64, v64, v70, v71
    v_or_b32 v64, v64, v67
    v_cmp_ne_u32 vcc, 0, v64
    s_cbranch_vccz {ok2}""")
    spin_guard(A, lp2)
    data_loads()
    A(f'    s_branch {lp2}')
    A(f'{ok2}:')
    A('    s_waitcnt lgkmcnt(0)')
    for k in range(8):
        for t in range(3):
            A(f'    v_lshlrev_b32 v64, 16, v{16+4*k+t}')
            A(f'    v_and_b32 v65, 0xffff0000, v{16+4*k+t}')
            A(f'    v_fmac_f32 v{56+2*t}, v64, v{48+k}')
            A(f'    v_fmac_f32 v{57+2*t}, v65, v{48+k}')
    acc = list(range(56, 62))
    multi_row(A, 'v_add_f32', acc, rots=(8,))
    multi_xgroup(A, 'v_add_f32', acc, list(range(64, 70)))
    A(f"""    s_lshl_b32 s{S_TMP+2}, s{S_WAVE}, 8
    s_add_u32 s{S_TMP+2}, s{S_TMP+2}, {L_RB}
    v_mul_u32_u24 v3, 24, v{V_LANE}
    v_add_u32 v3, s{S_TMP+2}, v3
    v_mov_b32 v4, s{S_TMP+2}
    v_mov_b32 v13, v9
    v_mov_b32 v14, v10
    v_mov_b32 v15, 0
    v_cmp_gt_u32 vcc, 8, v{V_LANE}
    s_and_saveexec_b64 s[{S_EX}:{S_EX+1}], vcc
    ds_write_b64 v3, v[56:57]
    ds_write_b64 v3, v[58:59] offset:8
    ds_write_b64 v3, v[60:61] offset:16
    ds_write_b128 v4, v[12:15] offset:192
    s_mov_b64 exec, s[{S_EX}:{S_EX+1}]
    s_waitcnt lgkmcnt(0)
    s_barrier
    s_cmp_eq_u32 s{S_WAVE}, 0
    s_cbranch_scc0 {fin}
    v_min_u32 v3, 7, v{V_LANE}
    v_mul_u32_u24 v3, 24, v3
    v_add_u32 v3, {L_RB}, v3
    v_mov_b32 v4, {L_RB}""")
    for w in range(4):
        A(f'    ds_read_b128 v[{16+4*w}:{19+4*w}], v4 offset:{w*256+192}')
    for w in range(4):
        for j in range(3):
            A(f'    ds_read_b64 v[{32+6*w+2*j}:{33+6*w+2*j}], v3 offset:{w*256+8*j}')
    A(f"""    s_waitcnt lgkmcnt(12)
    v_max_f32 v12, v16, v20
    v_max3_f32 v12, v12, v24, v28""")
    for w in range(4): A(f'    v_sub_f32 v{16+4*w}, v{16+4*w}, v12')
    for w in range(4): A(f'    v_exp_f32 v{16+4*w}, v{16+4*w}')
    A(f"""    s_nop 0
    v_mul_f32 v13, v16, v17
    v_mul_f32 v14, v16, v18""")
    for w in range(1, 4):
        A(f'    v_fmac_f32 v13, v{16+4*w}, v{17+4*w}')
        A(f'    v_fmac_f32 v14, v{16+4*w}, v{18+4*w}')
    A(f"""    v_rcp_f32 v13, v13
    s_waitcnt lgkmcnt(0)""")
    for j in range(6): A(f'    v_mul_f32 v{56+j}, v{32+j}, v16')
    for w in range(1, 4):
        for j in range(6): A(f'    v_fmac_f32 v{56+j}, v{32+6*w+j}, v{16+4*w}')
    for j in range(6): A(f'    v_sub_f32 v{56+j}, v{56+j}, v14')
    for j in range(6): A(f'    v_mul_f32 v{56+j}, v{56+j}, v13')
    A(f"""    v_cvt_pk_bf16_f32 v8, v56, v57
    v_cvt_pk_bf16_f32 v9, v58, v59
    v_cvt_pk_bf16_f32 v10, v60, v61
    v_mov_b32 v11, s{S_TAG}
    s_lshl_b32 s{S_TMP+2}, s{S_TMP+1}, 4
    s_add_u32 s{S_TMP+2}, s{S_TMP+2}, s{S_TMP}
    s_lshl_b32 s{S_TMP+2}, s{S_TMP+2}, 7
    s_add_u32 s{S_TMP+2}, s{S_TMP+2}, {WS_CTXN}
    v_add_u32 v3, s{S_TMP+2}, v{V_L16}
    v_cmp_gt_u32 vcc, 8, v{V_LANE}
    s_and_saveexec_b64 s[{S_EX}:{S_EX+1}], vcc
    global_store_dwordx4 v3, v[8:11], s[{S_WS}:{S_WS+1}] sc1
    s_mov_b64 exec, s[{S_EX}:{S_EX+1}]
{fin}:""")
    A.stamp('R_done')

def gather4_loop(A):
    l = A.label('G4L'); d = A.label('G4D'); T = V_T
    A(f"""    s_lshl_b32 s{S_TMP}, s{S_WAVE}, 12
    s_add_u32 s{S_TMP}, s{S_TMP}, {WS_CTXN}
    v_and_b32 v1, 15, v{V_LANE}
    v_lshlrev_b32 v1, 7, v1
    v_lshrrev_b32 v2, 4, v{V_LANE}
    v_lshlrev_b32 v2, 4, v2
    v_add3_u32 v{V_GA}, v1, v2, s{S_TMP}""")
    A(f'{l}:')
    for x in range(4):
        A(f'    global_load_dwordx4 v[{V_GB+4*x}:{V_GB+4*x+3}], v{V_GA}, s[{S_WS}:{S_WS+1}] offset:{(x>>1)*2048 + (x&1)*64} sc1')
    A('    s_waitcnt vmcnt(0)')
    for x in range(4): A(f'    v_xor_b32 v{T+x}, s{S_TAG}, v{V_GB+4*x+3}')
    A(f'    v_or3_b32 v{T}, v{T}, v{T+1}, v{T+2}')
    A(f'    v_or_b32 v{T}, v{T}, v{T+3}')
    A(f'    v_cmp_ne_u32 vcc, 0, v{T}')
    A(f'    s_cbranch_vccz {d}')
    spin_guard(A, l)
    A(f'    s_branch {l}')
    A(f'{d}:')
    for j in range(3): A(f'    v_mov_b32 v{V_GB+4*j+3}, v{V_GB+12+j}')

def role_G(A):
    g2 = A.label('G2'); lj = A.label('GJ')
    role_G_loads(A)
    A('    s_waitcnt vmcnt(0)')
    slab_to_operands(A, RAW[1], 0)
    A(f'    s_cmp_eq_u32 s{S_ROLE}, {R_G2}')
    A(f'    s_cbranch_scc1 {g2}')
    gather4_loop(A)
    A('    s_waitcnt lgkmcnt(0)')
    A.stamp('G1_in')
    gemm6(A, lambda kk: f'v[{V_GB+4*kk}:{V_GB+4*kk+3}]')
    A(f'    s_branch {lj}')
    A(f'{g2}:')
    gather_addr(A, WS_CTX)
    gather_loop(A)
    A('    s_waitcnt lgkmcnt(0)')
    A.stamp('G2_in')
    gemm6(A, lambda kk: f'v[{V_GB+8*kk+2}:{V_GB+8*kk+5}]')
    A(f'{lj}:')
    skip = cross_wave_sum(A, L_RED_T)
    out2 = A.label('GO')
    A(f'    s_cmp_eq_u32 s{S_ROLE}, {R_G2}')
    A(f'    s_cbranch_scc1 {out2}')
    pack_D(A, 8)
    A(f'    s_lshl_b32 s{S_TMP}, s{S_JOB}, 11')
    A(f'    s_add_u32 s{S_TMP}, s{S_TMP}, {WS_CTX}')
    publish8(A, 8, S_TMP)
    A(f'    s_branch {skip}')
    A(f'{out2}:')
    for k in range(4):
        d = V_S if k < 2 else V_R
        j = 2 * (k & 1)
        A(f'    v_lshlrev_b32 v8, 16, v{V_Q+k}')
        A(f'    v_and_b32 v9, 0xffff0000, v{V_Q+k}')
        A(f'    v_add_f32 v8, v8, v{d+j}')
        A(f'    v_add_f32 v9, v9, v{d+j+1}')
        A(f'    v_cvt_pk_bf16_f32 v{12+k}, v8, v9')
    A(f'    global_store_dwordx4 v{V_Q+4}, v[12:15], s[{S_OUT}:{S_OUT+1}]')
    e = A.label('GE')
    A(f"""    s_cmp_eq_u32 s{S_JOB}, 0
    s_cbranch_scc0 {skip}
    s_add_u32 s{S_TMP}, s{S_EPOCH}, 1
    v_mov_b32 v8, s{S_TMP}
    v_mov_b32 v9, {WS_EPOCH}
    v_cmp_eq_u32 vcc, 0, v{V_LANE}
    s_and_saveexec_b64 s[{S_EX}:{S_EX+1}], vcc
    global_store_dword v9, v8, s[{S_WS}:{S_WS+1}]
    s_mov_b64 exec, s[{S_EX}:{S_EX+1}]""")
    A(f'{skip}:')
    A.stamp('G_done')

def build_kernel():
    A = Gen(); T = V_T
    Stream.nxt = 0; Stream.done = 0; Stream.pend = []; PV.pending = []
    A('.text')
    A(f'.globl {NAME}')
    A('.p2align 8')
    A(f'.type {NAME},@function')
    A(f'{NAME}:')
    A(f"""    s_cmp_ge_u32 s2, 256
    s_cbranch_scc1 K_END
    s_load_dwordx4 s[{S_F0}:{S_F0+3}], s[0:1], 8
    s_load_dwordx2 s[{S_WS}:{S_WS+1}], s[0:1], 72
    s_load_dwordx2 s[{S_Q}:{S_Q+1}], s[0:1], 0
    s_load_dwordx8 s[{S_WQ}:{S_WQ+7}], s[0:1], 24
    s_load_dwordx2 s[{S_OUT}:{S_OUT+1}], s[0:1], 56
    s_mov_b32 s{S_WG}, s2
    s_mov_b32 s{S_SPIN}, 0
    v_and_b32 v{V_LANE}, 63, v0
    v_lshrrev_b32 v1, 6, v0
    v_lshlrev_b32 v{V_L16}, 4, v{V_LANE}
    v_readfirstlane_b32 s{S_WAVE}, v1
    v_lshrrev_b32 v2, 4, v{V_LANE}        ; g
    v_and_b32 v3, 15, v{V_LANE}           ; i
    v_lshlrev_b32 v4, 4, v3
    v_mul_u32_u24 v5, 1536, v2
    v_add_u32 v{V_F0OFF}, v5, v4
    v_mul_u32_u24 v5, 768, v2
    v_add_u32 v{V_F1OFF}, v5, v4
    s_mul_i32 s{S_T}, s{S_WG}, 36
    s_add_u32 s{S_T}, s{S_T}, s{S_WAVE}
    s_mov_b32 s{S_ROLE}, {R_NONE}
    s_mov_b32 s{S_JOB}, 0
    s_cmp_ge_u32 s2, 128
    s_cbranch_scc0 ROLE_LOW
    s_mov_b32 s{S_ROLE}, {R_R}
    s_sub_u32 s{S_JOB}, s2, 128
    s_branch ROLE_DONE
ROLE_LOW:
    s_cmp_ge_u32 s2, 48
    s_cbranch_scc1 ROLE_DONE
    s_lshr_b32 s{S_TMP}, s2, 3            ; hi
    s_and_b32 s{S_TMP+1}, s2, 3
    s_cmp_ge_u32 s{S_TMP}, 3
    s_cselect_b32 s{S_TMP+2}, 1, 0
    s_mul_i32 s{S_TMP+3}, s{S_TMP+2}, 3
    s_sub_u32 s{S_TMP}, s{S_TMP}, s{S_TMP+3}
    s_lshl_b32 s{S_TMP}, s{S_TMP}, 2
    s_add_u32 s{S_JOB}, s{S_TMP}, s{S_TMP+1}
    s_bitcmp1_b32 s2, 2
    s_cselect_b32 s{S_TMP}, {R_G1}, {R_S1}
    s_add_u32 s{S_ROLE}, s{S_TMP}, s{S_TMP+2}
ROLE_DONE:
    s_waitcnt lgkmcnt(0)
    s_load_dword s{S_EPOCH}, s[{S_WS}:{S_WS+1}], {WS_EPOCH}""")
    if O.stamp: A(f'    v_mov_b32 v{V_STAMP}, 0')
    A.stamp('entry')
    l2 = A.label('P2')
    A(f'    s_cmp_eq_u32 s{S_ROLE}, {R_S1}')
    A(f'    s_cbranch_scc0 {l2}')
    role_S1_loads(A)
    A(f'{l2}:')
    tile_bases(A, 0)
    hold = A.label('PH')
    A(f'    s_cmp_eq_u32 s{S_ROLE}, {R_S1}')
    A(f'    s_cbranch_scc1 {hold}')
    issue_next(A, O.l0)
    A(f'{hold}:')
    if O.cpf:
        lc = A.label('CPF')
        A(f'''    s_sub_u32 s{S_TMP}, s{S_WG}, 64
    s_cmp_lt_u32 s{S_TMP}, 64
    s_cbranch_scc0 {lc}
    s_cmp_eq_u32 s{S_WAVE}, 3
    s_cbranch_scc0 {lc}
    s_getpc_b64 s[72:73]
CPF_PC:
    s_lshr_b32 s{S_TMP}, s{S_TMP}, 3
    s_mul_i32 s{S_TMP}, s{S_TMP}, (((K_END - CPF_PC) / 128 + 8) / 8) * 128
    v_lshlrev_b32 v1, 7, v{V_LANE}
    v_add_u32 v1, s{S_TMP}, v1
    v_cmp_gt_u32 vcc, (((K_END - CPF_PC) / 128 + 8) / 8), v{V_LANE}
    v_min_u32 v1, (K_END - CPF_PC), v1
    s_and_saveexec_b64 s[{S_EX}:{S_EX+1}], vcc
    global_load_dword v255, v1, s[72:73]
    s_mov_b64 exec, s[{S_EX}:{S_EX+1}]
{lc}:''')
    if O.touch:
        lt = A.label('TCH')
        A(f'''    s_cmp_eq_u32 s{S_WAVE}, 2
    s_cbranch_scc0 {lt}
    v_mov_b32 v1, 0
    s_mov_b64 s[{S_EX}:{S_EX+1}], exec
    s_mov_b64 exec, 1
    global_load_dword v255, v1, s[{S_WS}:{S_WS+1}] offset:2048
    v_mov_b32 v2, {WS_PART}
    v_mov_b32 v3, {WS_PART + 0x200000}
    v_mov_b32 v4, {WS_PART + 0x3ff000}
    global_load_dword v255, v2, s[{S_WS}:{S_WS+1}]
    global_load_dword v255, v3, s[{S_WS}:{S_WS+1}]
    global_load_dword v255, v4, s[{S_WS}:{S_WS+1}]
    global_load_dword v255, v1, s[{S_WK}:{S_WK+1}]
    global_load_dword v255, v1, s[{S_WV}:{S_WV+1}]
    global_load_dword v255, v1, s[{S_WO}:{S_WO+1}]
    global_load_dword v255, v1, s[{S_OUT}:{S_OUT+1}]
    s_mov_b64 exec, s[{S_EX}:{S_EX+1}]
{lt}:''')
    A.stamp('issued')
    A(f"""    v_lshrrev_b32 v2, 4, v{V_LANE}
    v_and_b32 v3, 15, v{V_LANE}
    s_mul_i32 s{S_TMP}, s{S_WAVE}, 12288
    v_lshlrev_b32 v5, 2, v2
    v_add_u32 v5, v5, v3
    v_and_b32 v5, 15, v5
    v_lshlrev_b32 v5, 4, v5
    v_lshlrev_b32 v6, 8, v2
    v_add_u32 v5, v5, v6
    v_add_u32 v{V_LDSW}, s{S_TMP}, v5
    s_lshl_b32 s{S_TMP+1}, s{S_WAVE}, 10
    v_add_u32 v{V_LDSF}, s{S_TMP+1}, v5
    v_lshrrev_b32 v5, 2, v{V_LANE}
    v_and_b32 v5, 3, v5
    v_and_b32 v6, 3, v{V_LANE}
    v_lshrrev_b32 v7, 1, v2
    v_add_u32 v7, v7, v6
    v_lshlrev_b32 v7, 2, v7
    v_and_b32 v1, 1, v2
    v_lshlrev_b32 v1, 1, v1
    v_add_u32 v7, v7, v1
    v_lshrrev_b32 v1, 1, v5
    v_add_u32 v7, v7, v1
    v_and_b32 v1, 1, v5
    v_lshlrev_b32 v1, 3, v1
    v_lshlrev_b32 v6, 8, v6
    v_add3_u32 v6, v6, v1, s{S_TMP}
    v_and_b32 v1, 15, v7
    v_lshlrev_b32 v1, 4, v1
    v_add_u32 v{V_LDSR0}, v6, v1
    v_add_u32 v7, 8, v7
    v_and_b32 v1, 15, v7
    v_lshlrev_b32 v1, 4, v1
    v_add_u32 v{V_LDSR1}, v6, v1
    v_lshlrev_b32 v5, 3, v{V_LANE}
    v_add_u32 v{V_PR}, {L_PBUF}, v5
    s_lshl_b32 s{S_TMP}, s{S_WAVE}, 9
    v_add_u32 v{V_PW}, s{S_TMP}, v{V_PR}
    v_lshlrev_b32 v5, 2, v3
    v_add_u32 v{V_MB}, {L_MBUF}, v5
    v_mov_b32 v{V_MREF}, 0xff800000
    ds_write_b32 v{V_MB}, v{V_MREF}
    v_lshlrev_b32 v5, 2, v2""")
    for r in range(4):
        A(f'    v_add_u32 v6, {r}, v5')
        A(f'    v_cmp_eq_u32 s[{S_MASK+2*r}:{S_MASK+2*r+1}], v6, v3')
    A(f"""    s_mov_b32 s{S_SELLO}, 0x{SEL_LO:08x}
    s_mov_b32 s{S_SELHI}, 0x{SEL_HI:08x}
    s_mov_b32 s{S_C384}, {lit(1/384)}
    v_mov_b32 v{V_EPS}, {lit(1e-5)}
    v_mov_b32 v{V_ONEF}, 1.0
    v_mov_b32 v{V_L}, 0
    v_mov_b32 v{V_U}, 0
    v_mov_b32 v{V_Q+4}, 0
    v_mov_b32 v{V_GB}, 0
    v_mov_b32 v{V_GB+1}, 0
    v_mov_b32 v{V_GB+2}, 0
    v_mov_b32 v{V_GB+3}, 0
    v_mov_b32 v{V_GB+4}, 0
    v_mov_b32 v{V_GB+5}, 0
    v_mov_b32 v1, 0x3f803f80""")
    for k in range(4):
        A(f'    v_accvgpr_write_b32 a{A_ONES+k}, v1')
    A(f"""    s_waitcnt lgkmcnt(0)
    s_mul_i32 s{S_TAG}, s{S_EPOCH}, 0x9E3779B1
    s_add_u32 s{S_TAG}, s{S_TAG}, 0x7F4A7C15""")
    l1 = A.label('H1'); l2 = A.label('H2')
    A(f'    s_cmp_eq_u32 s{S_ROLE}, {R_S1}')
    A(f'    s_cbranch_scc0 {l1}')
    role_S1_work(A)
    A(f'    s_branch {l2}')
    A(f'{l1}:')
    A(f'    s_cmp_eq_u32 s{S_ROLE}, {R_S2}')
    A(f'    s_cbranch_scc0 {l2}')
    role_S2_addr(A)
    A(f'{l2}:')
    A.stamp('head')
    stage_A(A, 0)
    snap = (list(A.vm), set(A.done), Stream.nxt, Stream.done, list(Stream.pend))
    common = A.label('A1C'); join = A.label('A1J')
    A(f'    s_cmp_eq_u32 s{S_ROLE}, {R_S2}')
    A(f'    s_cbranch_scc0 {common}')
    role_S2_loads(A)
    gather_addr(A, WS_QG)
    nl = len(A.labels)
    stage_A(A, 1, {O.s2att: lambda: gather_issue(A, 'q')}, stamp=False)
    role_S2_work(A)
    A(f'    s_branch {join}')
    A(f'{common}:')
    A.vm, A.done, Stream.nxt, Stream.done, Stream.pend = list(snap[0]), set(snap[1]), snap[2], snap[3], list(snap[4])
    stage_A(A, 1, stamp=False)
    A(f'{join}:')
    A.stamp('A1')
    gather_addr(A, WS_QKG)
    attempt = lambda: gather_issue(A, 'qk')
    raise_l = lambda: (enqueue(A), flush_pend())
    if O.raise_at == 'A1': raise_l()
    if O.attempt == 'A1': attempt()
    hooks = {}
    if O.attempt == 'A2a': hooks[0] = attempt
    if O.attempt == 'A2b': hooks[1] = attempt
    stage_A(A, 2, hooks)
    if O.attempt == 'A2': attempt()
    if O.raise_at == 'A2': raise_l()
    enqueue(A, O.extra); flush_pend()
    A.nop(2)
    for k in range(24):
        A(f'    v_mov_b32 v{V_O+k}, 0')
    get_qk(A)
    sched = O.sched.split()
    for i, st in enumerate(sched):
        k = int(st[1])
        if st[0] == 'A':
            stage_A(A, k, quota=O.qa)
        else:
            nxtB = next((j for j in range(i + 1, len(sched)) if sched[j][0] == 'B'), len(sched))
            strict = any(x[0] == 'A' and int(x[1]) % 3 == k % 3 for x in sched[i + 1:nxtB]) or k == 8
            stage_B(A, k, quota=O.qb, defer=(O.defer and k != 8), strict=strict)
    epilogue(A)
    lr = A.label('TR'); lg = A.label('TG')
    A(f'    s_cmp_eq_u32 s{S_ROLE}, {R_R}')
    A(f'    s_cbranch_scc0 {lr}')
    role_R(A)
    A('    s_branch K_FIN')
    A(f'{lr}:')
    A(f'    s_cmp_eq_u32 s{S_ROLE}, {R_G1}')
    A(f'    s_cbranch_scc1 {lg}')
    A(f'    s_cmp_eq_u32 s{S_ROLE}, {R_G2}')
    A(f'    s_cbranch_scc0 K_FIN')
    A(f'{lg}:')
    role_G(A)
    A('K_FIN:')
    if O.stamp:
        A('    s_waitcnt vmcnt(0)')
        A.stamp('end')
        A(f"""    s_lshl_b32 s42, s{S_WG}, 2
    s_add_u32 s42, s42, s{S_WAVE}
    s_lshl_b32 s42, s42, 8
    s_add_u32 s42, s42, {WS_STAMP}
    v_lshlrev_b32 v4, 2, v{V_LANE}
    v_add_u32 v4, s42, v4
    global_store_dword v4, v{V_STAMP}, s[{S_WS}:{S_WS+1}]""")
    A('K_END:')
    A('    s_endpgm')
    assert Stream.nxt >= 27
    return A

def build():
    A = build_kernel()
    txt = A.text()
    for p in check_hazards(txt): print('HAZARD', p, file=sys.stderr)
    ref = open('standalone__detection_seg_dino__vision.s.ref').read().split('\n')
    top = [l for l in ref if l.startswith(';') and '@launch' not in l and 'Override launch' not in l and 'grid=ceil' not in l][:12]
    out = '\n'.join(top) + '\n'
    out += f'; @launch grid=(256,1,1) block=(256,1,1) lds={LDS_BYTES}\n'
    out += '.amdgcn_target "amdgcn-amd-amdhsa--gfx950"\n' + txt
    out += f""".section .rodata,"a"
.p2align 6
.amdhsa_kernel {NAME}
  .amdhsa_next_free_vgpr {256 + NACC}
  .amdhsa_next_free_sgpr 96
  .amdhsa_accum_offset 256
  .amdhsa_group_segment_fixed_size 0
  .amdhsa_kernarg_size 80
  .amdhsa_user_sgpr_count 2
  .amdhsa_user_sgpr_kernarg_segment_ptr 1
  .amdhsa_system_sgpr_workgroup_id_x 1
  .amdhsa_float_denorm_mode_32 3
.end_amdhsa_kernel
"""
    return out, A.labels

if __name__ == '__main__':
    path = sys.argv[1]
    for o in (sys.argv[2].split(',') if len(sys.argv) > 2 else []):
        if o == 'stamp': O.stamp = True
        elif o == 'plain': O.nt = ''
        elif o == 'nodefer': O.defer = False
        elif o == 'cpf': O.cpf = True
        elif o == 'touch': O.touch = True
        elif o.startswith('fine='): O.fine = int(o[5:])
        elif o.startswith('qa='): O.qa = int(o[3:])
        elif o.startswith('s2att='): O.s2att = int(o[6:])
        elif o.startswith('qb='): O.qb = int(o[3:])
        elif o.startswith('att='): O.attempt = o[4:]
        elif o.startswith('extra='): O.extra = int(o[6:])
        elif o.startswith('l0='): O.l0 = int(o[3:])
        elif o.startswith('raise='): O.raise_at = o[6:]
        elif o.startswith('sched='): O.sched = o[6:].replace('-', ' ')
    out, labels = build()
    open(path, 'w').write(out)
    if O.stamp: open(path + '.labels', 'w').write(','.join(labels))
    print('wrote', path, len(out), 'bytes;', out.count('\n'), 'lines')
```

```python
import sys, struct, math
from asmlib import *

def f2u(x): return struct.unpack('<I', struct.pack('<f', x))[0]
def lit(x): return f'0x{f2u(x):08x}'
NAME = 'standalone__detection_seg_dino__vision_kernel'

class Opt:
    stamp = False
    nt = ' nt'
    extra = 0
    hold = 0
    s2mode = 'spin0'
    s2drain = False
    cpf = True
    touch = False
    wsoff = 0
    fine = -1
    defer = True
    s2att = 1
    qa = 2
    qb = 1
    spread = True
    l0 = 2
    raise_at = 'A2'
    attempt = 'A2'
    sched = 'B0 A3 B1 B2 A4 B3 B4 A5 B5 A6 B6 A7 B7 A8 B8'
O = Opt()

WS_EPOCH = 0x0
WS_QG    = 0x1000
WS_QKG   = 0x8000
WS_CTXN  = 0x10000
WS_CTX   = 0x18000
WS_ML    = 0x20000
WS_PART  = 0x100000
WS_STAMP = 0x800000
SEL_LO, SEL_HI = 0x00003F80, 0x3F800000

RAW = [8, 68]
V_T   = 128
V_STG = 152
V_O   = 160
V_S, V_R, V_G, V_D = 184, 188, 192, 196
V_P   = 200
V_MREF, V_L, V_SQ, V_ONEF, V_EPS = 202, 203, 204, 205, 206
V_F0OFF, V_F1OFF = 207, 208
V_LDSW, V_LDSR0, V_LDSR1, V_LDSF = 209, 210, 211, 212
V_PW, V_PR, V_MB, V_LANE = 213, 214, 215, 216
V_CW, V_CR0, V_CR1, V_CF = 217, 218, 219, 220
V_U = 221
V_CF2 = 254
V_GA = 222
V_L16 = 223
V_GB = 224
V_Q = 248
V_STAMP = 253
A_QK, A_X, A_F, A_P, A_ONES, A_W = 0, 48, 96, 144, 152, 156
NACC = 180
S_F0, S_F1, S_WS = 4, 6, 8
S_BSET = [10, 44]
S_WAVE, S_WG, S_T = 16, 17, 19
S_SELLO, S_SELHI, S_C384 = 20, 21, 23
S_MASK = 26
S_TMP = 34
S_TAG, S_EPOCH, S_ROLE, S_JOB = 50, 51, 52, 53
S_Q, S_OUT = 54, 58
S_SPIN = 60
S_EX = 62
S_WQ, S_WK, S_WV, S_WO = 64, 66, 68, 70
R_NONE, R_S1, R_S2, R_G1, R_G2, R_R = 0, 1, 2, 3, 4, 5
SPIN_MAX = 1 << 18
SLOT = 49152
L_QKL  = 3 * SLOT
L_PBUF = L_QKL + 12288
L_MBUF = L_PBUF + 2048
L_LBUF = L_MBUF + 64
LDS_BYTES = L_LBUF + 512
assert LDS_BYTES <= 163840
L_HEAD = 2 * SLOT
L_STAT = L_HEAD + 6144
L_RED_H = L_HEAD
L_TR   = SLOT
L_RED_T = SLOT + 4608
L_RB   = 0

class Gen(Asm):
    def __init__(self):
        super().__init__()
        self.vm = []
        self.uid = 0
        self.nstamp = 0
        self.labels = []
        self.done = set()
    def vmop(self, line, tag):
        self(line); self.vm.append(tag)
    def vmwait(self, tag):
        hits = [i for i, t in enumerate(self.vm) if t == tag]
        if not hits:
            assert tag in self.done, tag
            return
        idx = hits[-1]
        self.done.update(self.vm[:idx + 1])
        n = len(self.vm) - 1 - idx
        assert n <= 63, n
        self(f'    s_waitcnt vmcnt({n})')
        self.vm = self.vm[idx + 1:]
    def vmall(self):
        self('    s_waitcnt vmcnt(0)'); self.vm = []
    def label(self, base):
        self.uid += 1
        return f'{base}_{self.uid}'
    def stamp(self, name):
        if not O.stamp: return
        idx = len(self.labels)
        assert idx < 64
        self.labels.append(name)
        self('    s_memrealtime s[40:41]')
        self('    s_waitcnt lgkmcnt(0)')
        self(f'    v_writelane_b32 v{V_STAMP}, s40, {idx}')

def xgroup_reduce(A, op, v, t):
    A(f'    v_mov_b32 v{t}, v{v}')
    A.nop(2)
    A(f'    v_permlane32_swap_b32 v{t}, v{v}')
    A(f'    {op} v{v}, v{v}, v{t}')
    A(f'    v_mov_b32 v{t}, v{v}')
    A.nop(2)
    A(f'    v_permlane16_swap_b32 v{t}, v{v}')
    A(f'    {op} v{v}, v{v}, v{t}')

def multi_xgroup(A, op, vs, ts):
    for sw in ('32', '16'):
        for v, t in zip(vs, ts): A(f'    v_mov_b32 v{t}, v{v}')
        if len(vs) < 3: A.nop(3 - len(vs))
        for v, t in zip(vs, ts): A(f'    v_permlane{sw}_swap_b32 v{t}, v{v}')
        for v, t in zip(vs, ts): A(f'    {op} v{v}, v{v}, v{t}')

def multi_row(A, op, vs, rots=(8, 4, 2, 1)):
    for rot in rots:
        if len(vs) < 3: A.nop(3 - len(vs))
        for v in vs: A(f'    {op}_dpp v{v}, v{v}, v{v} row_ror:{rot} row_mask:0xf bank_mask:0xf')

def tile_bases(A, u):
    S_B0 = S_BSET[u]; S_B1 = S_B0 + 2; S_BF = S_B0 + 4
    A(f'''    s_mul_hi_u32 s{S_TMP}, s{S_T}, 89478486
    s_mul_i32 s{S_TMP+1}, s{S_TMP}, 48
    s_sub_u32 s{S_TMP+1}, s{S_T}, s{S_TMP+1}
    s_mul_i32 s{S_TMP}, s{S_TMP}, 589824
    s_mul_i32 s{S_TMP+1}, s{S_TMP+1}, 6144
    s_add_u32 s{S_TMP}, s{S_TMP}, s{S_TMP+1}
    s_add_u32 s{S_B0}, s{S_F0}, s{S_TMP}
    s_addc_u32 s{S_B0+1}, s{S_F0+1}, 0
    s_add_u32 s{S_B1}, s{S_B0}, 294912
    s_addc_u32 s{S_B1+1}, s{S_B0+1}, 0
    s_mul_i32 s{S_TMP}, s{S_T}, 3072
    s_add_u32 s{S_BF}, s{S_F1}, s{S_TMP}
    s_addc_u32 s{S_BF+1}, s{S_F1+1}, 0
    s_add_u32 s{S_T}, s{S_T}, 4''')

def issue_item(A, j):
    if j > 26: return
    tile, third = divmod(j, 3); u = tile & 1
    if third == 0 and j > 0: tile_bases(A, u)
    S_B0 = S_BSET[u]; S_B1 = S_B0 + 2; S_BF = S_B0 + 4
    b = RAW[u]
    r = b + 48 + 4 * third
    A.vmop(f'    global_load_dwordx4 v[{r}:{r+3}], v{V_F1OFF}, s[{S_BF}:{S_BF+1}] offset:{third*256}{O.nt}', f'item{j}')
    for jj in range(4):
        dy, dx = jj >> 1, jj & 1
        r = b + 16 * third + 4 * jj
        base = S_B1 if dy else S_B0
        A.vmop(f'    global_load_dwordx4 v[{r}:{r+3}], v{V_F0OFF}, s[{base}:{base+1}] offset:{dx*768+third*256}{O.nt}', f'item{j}')

class Stream:
    nxt = 0
    done = 0
    pend = []
def enqueue(A, n=1):
    for _ in range(n):
        if Stream.nxt <= 26 and Stream.nxt < Stream.done + 6:
            Stream.pend += item_steps(A)
def pop(n=1):
    for _ in range(n):
        if Stream.pend: Stream.pend.pop(0)()
def flush_pend():
    pop(len(Stream.pend))
def issue_next(A, n=1):
    for _ in range(n):
        issue_item(A, Stream.nxt); Stream.nxt += 1

def item_steps(A):
    j = Stream.nxt; Stream.nxt += 1
    if j > 26: return []
    tile, third = divmod(j, 3); u = tile & 1
    S_B0 = S_BSET[u]; S_B1 = S_B0 + 2; S_BF = S_B0 + 4
    b = RAW[u]
    steps = []
    def first():
        if third == 0: tile_bases(A, u)
        r = b + 48 + 4 * third
        A.vmop(f'    global_load_dwordx4 v[{r}:{r+3}], v{V_F1OFF}, s[{S_BF}:{S_BF+1}] offset:{third*256}{O.nt}', f'item{j}')
    steps.append(first)
    for jj in range(4):
        def f(jj=jj):
            dy, dx = jj >> 1, jj & 1
            r = b + 16 * third + 4 * jj
            base = S_B1 if dy else S_B0
            A.vmop(f'    global_load_dwordx4 v[{r}:{r+3}], v{V_F0OFF}, s[{base}:{base+1}] offset:{dx*768+third*256}{O.nt}', f'item{j}')
        steps.append(f)
    return steps

def stage_A(A, k, hooks=None, quota=3, stamp=True):
    hooks = hooks or {}
    u = k & 1; b = RAW[u]; T = V_T
    A(f'    v_add_u32 v{V_CW}, {(k % 3) * SLOT}, v{V_LDSW}')
    if PV.pending: A('    s_waitcnt lgkmcnt(0)')
    units = [(third, dd) for third in range(3) for dd in range(4)]
    def tset(i): return T + 10 * (i & 1)
    def U(i):
        third, dd = units[i]; t = tset(i); f1 = b + 48 + 4 * third + dd
        return [f'    v_lshlrev_b32 v{t+8}, 16, v{f1}', f'    v_and_b32 v{t+9}, 0xffff0000, v{f1}']
    def D(i):
        third, dd = units[i]; t = tset(i)
        return ([f'    v_dot2_f32_bf16 v{t+j}, v{b+16*third+4*j+dd}, s{S_SELLO}, v{t+8}' for j in range(4)] +
                [f'    v_dot2_f32_bf16 v{t+4+j}, v{b+16*third+4*j+dd}, s{S_SELHI}, v{t+9}' for j in range(4)])
    def C(i):
        t = tset(i); o = V_STG + 4 * (i & 1)
        return [f'    v_cvt_pk_bf16_f32 v{o+kk}, v{t+2*kk}, v{t+2*kk+1}' for kk in range(4)]
    def W(i):
        third, dd = units[i]; o = V_STG + 4 * (i & 1)
        return f'    ds_write_b128 v{V_CW}, v[{o}:{o+3}] offset:{(third*4+dd)*1024}'
    enq = {0: 1, 4: 1, 8: 1} if quota == 3 else ({0: 1, 6: 1} if quota == 2 else ({0: 1} if quota == 1 else {}))
    def ensure(j):
        while any(True for _ in Stream.pend) and f'item{j}' not in A.done and A.vm.count(f'item{j}') < 5: pop()
        while Stream.nxt <= j: Stream.pend += item_steps(A); flush_pend()
    ensure(3 * k); A.vmwait(f'item{3*k}')
    enqueue(A, enq.get(0, 0))
    u0 = U(0); d0 = D(0)
    for l in u0 + d0[:4]: A(l)
    pop()
    for l in d0[4:]: A(l)
    for i in range(1, 12):
        if i % 4 == 0:
            Stream.done = 3 * k + i // 4
            ensure(3 * k + i // 4); A.vmwait(f'item{3*k + i//4}')
        enqueue(A, enq.get(i, 0))
        for l in U(i): A(l)
        if quota == 3 and i % 4 in (0, 2): pop()
        d = D(i); c = C(i - 1)
        for kk in range(4):
            A(d[kk]); A(c[kk])
        pv_pop(A, 2)
        A(W(i - 1))
        pop()
        for kk in range(4, 8): A(d[kk])
        if i % 4 == 3 and (i // 4) in hooks: hooks[i // 4]()
    Stream.done = 3 * k + 3
    flush_pend()
    A.nop(1)
    for l in C(11): A(l)
    pv_flush(A)
    A(W(11))
    if stamp: A.stamp(f'A{k}')

class PV:
    pending = []
def pv_steps():
    out = []
    for wp in range(4):
        for third in range(3):
            for e1 in range(2):
                f = A_F + (wp * 3 + third) * 4 + 2 * e1
                o = V_O + (third * 2 + e1) * 4
                out.append(f'    v_mfma_f32_16x16x16_bf16 v[{o}:{o+3}], a[{f}:{f+1}], a[{A_P+2*wp}:{A_P+2*wp+1}], v[{o}:{o+3}]')
    return out
def pv_pop(A, n=1):
    for _ in range(n):
        if PV.pending: A(PV.pending.pop(0))
def pv_flush(A):
    pv_pop(A, len(PV.pending))

def stage_B(A, k, quota=1, defer=True, strict=True):
    T = V_T; so = (k % 3) * SLOT
    enqueue(A, quota)
    A(f'    v_add_u32 v{V_CR0}, {so}, v{V_LDSR0}')
    A(f'    v_add_u32 v{V_CR1}, {so}, v{V_LDSR1}')
    A(f'    v_add_u32 v{V_CF}, {so}, v{V_LDSF}')
    if PV.pending: A('    s_waitcnt lgkmcnt(0)')
    n = 0
    for bb in range(12):
        for a2 in range(2):
            r = A_X + 4 * bb + 2 * a2
            A(f'    ds_read_b64_tr_b16 a[{r}:{r+1}], v{V_CR0+a2} offset:{bb*1024}')
            n += 1
            pv_pop(A)
    pv_flush(A)
    fine = (O.fine == k)
    if fine: A.stamp('b_tr')
    def X(bb): return f'a[{A_X+4*bb}:{A_X+4*bb+3}]'
    def G(bb): A(f'    v_mfma_f32_16x16x32_bf16 v[{V_G}:{V_G+3}], {X(bb)}, {X(bb)}, ' + ('0' if bb == 0 else f'v[{V_G}:{V_G+3}]'))
    def R(bb): A(f'    v_mfma_f32_16x16x32_bf16 v[{V_R}:{V_R+3}], {X(bb)}, a[{A_ONES}:{A_ONES+3}], ' + ('0' if bb == 0 else f'v[{V_R}:{V_R+3}]'))
    def S(bb): A(f'    v_mfma_f32_16x16x32_bf16 v[{V_S}:{V_S+3}], {X(bb)}, a[{A_QK+4*bb}:{A_QK+4*bb+3}], ' + ('0' if bb == 0 else f'v[{V_S}:{V_S+3}]'))
    for bb in range(12):
        if bb % 3 == 0:
            A(f'    s_waitcnt lgkmcnt({min(15, 24 - 2*(bb+3))})')
        G(bb)
        if bb % 2 == 1 and bb < 11: pop()
    flush_pend()
    if fine: A.stamp('b_G')
    for bb in range(8): R(bb)
    for r in range(4):
        src0 = '0' if r == 0 else f'v{T}'
        A(f'    v_cndmask_b32 v{T}, {src0}, v{V_G+r}, s[{S_MASK+2*r}:{S_MASK+2*r+1}]')
        R(8 + r)
    S(0)
    A(f'    v_mfma_f32_16x16x4_f32 v[{V_D}:{V_D+3}], v{T}, v{V_ONEF}, 0')
    for bb in range(1, 7): S(bb)
    for r in range(4):
        A(f'    v_mul_f32 v{V_R+r}, s{S_C384}, v{V_R+r}')
        S(7 + r)
    for r in range(4):
        A(f'    v_fma_f32 v{T+r}, -v{V_R+r}, v{V_R+r}, v{V_EPS}')
        if r == 1: S(11)
    for r in range(4):
        A(f'    v_fma_f32 v{V_D+r}, v{V_D+r}, s{S_C384}, v{T+r}')
    for r in range(4):
        A(f'    v_rsq_f32 v{V_D+r}, v{V_D+r}')
    for r in range(4):
        A(f'    v_fma_f32 v{V_S+r}, -v{V_R+r}, v{V_SQ}, v{V_S+r}')
    for r in range(4):
        A(f'    v_mul_f32 v{V_S+r}, v{V_S+r}, v{V_D+r}')
    A(f'    v_max3_f32 v{T}, v{V_S}, v{V_S+1}, v{V_S+2}')
    A(f'    v_max_f32 v{T}, v{T}, v{V_S+3}')
    if fine: A.stamp('b_z')
    A(f'    ds_max_f32 v{V_MB}, v{T}')
    A('    s_waitcnt lgkmcnt(0)')
    if fine: A.stamp('b_pre1')
    A('    s_barrier')
    if fine: A.stamp('b_post1')
    A(f'    ds_read_b32 v{T+1}, v{V_MB}')
    A('    s_waitcnt lgkmcnt(0)')
    if fine: A.stamp('b_m(+F)')
    A(f'    v_sub_f32 v{T+2}, v{V_MREF}, v{T+1}')
    for r in range(4):
        A(f'    v_sub_f32 v{V_S+r}, v{V_S+r}, v{T+1}')
    A(f'    v_exp_f32 v{T+2}, v{T+2}')
    for r in range(4):
        A(f'    v_exp_f32 v{V_S+r}, v{V_S+r}')
    A(f'    v_mov_b32 v{V_MREF}, v{T+1}')
    for r in range(4):
        A(f'    v_mul_f32 v{T+4+r}, v{V_S+r}, v{V_D+r}')
    A(f'    v_add_f32 v{V_S}, v{V_S}, v{V_S+1}')
    A(f'    v_cvt_pk_bf16_f32 v{V_P}, v{T+4}, v{T+5}')
    A(f'    v_cvt_pk_bf16_f32 v{V_P+1}, v{T+6}, v{T+7}')
    A(f'    v_add_f32 v{V_S+2}, v{V_S+2}, v{V_S+3}')
    A(f'    ds_write_b64 v{V_PW}, v[{V_P}:{V_P+1}]')
    for wp in range(4):
        for third in range(3):
            r = A_F + (wp * 3 + third) * 4
            A(f'    ds_read_b128 a[{r}:{r+3}], v{V_CF} offset:{wp*12288 + third*4096}')
    A(f'    v_add_f32 v{V_S}, v{V_S}, v{V_S+2}')
    A(f'    v_fma_f32 v{V_L}, v{V_L}, v{T+2}, v{V_S}')
    A(f'    v_mul_f32 v{V_U}, v{V_U}, v{T+2}')
    A(f'    v_lshlrev_b32 v{T+4}, 16, v{V_P}')
    A(f'    v_and_b32 v{T+5}, 0xffff0000, v{V_P}')
    A(f'    v_lshlrev_b32 v{T+6}, 16, v{V_P+1}')
    A(f'    v_and_b32 v{T+7}, 0xffff0000, v{V_P+1}')
    for r in range(4):
        A(f'    v_fmac_f32 v{V_U}, v{T+4+r}, v{V_R+r}')
    for kk in range(0, 24, 2):
        A(f'    v_pk_mul_f32 v[{V_O+kk}:{V_O+kk+1}], v[{V_O+kk}:{V_O+kk+1}], v[{T+2}:{T+3}] op_sel_hi:[1,0]')
    if fine: A.stamp('b_P')
    A(f'    s_waitcnt lgkmcnt({0 if strict else 12})')
    A('    s_barrier')
    if fine: A.stamp('b_post2')
    for wp in range(4):
        A(f'    ds_read_b64 a[{A_P+2*wp}:{A_P+2*wp+1}], v{V_PR} offset:{wp*512}')
    PV.pending = pv_steps()
    if not defer:
        A('    s_waitcnt lgkmcnt(0)')
        pv_flush(A)
    A.stamp(f'B{k}')

def gather_addr(A, ws_off):
    A(f'    s_mul_i32 s{S_TMP}, s{S_WAVE}, 6144')
    A(f'    s_add_u32 s{S_TMP}, s{S_TMP}, {ws_off + 2048}')
    A(f'    v_add_u32 v{V_GA}, s{S_TMP}, v{V_L16}')

def gather_issue(A, track=None):
    for kk in range(3):
        for h in range(2):
            r = V_GB + 8 * kk + 4 * h
            line = f'    global_load_dwordx4 v[{r}:{r+3}], v{V_GA}, s[{S_WS}:{S_WS+1}] offset:{kk*2048 + h*1024 - 2048} sc1'
            if track: A.vmop(line, track)
            else: A(line)

def gather_check(A):
    T = V_T
    for kk in range(3):
        A(f'    v_xor_b32 v{T+2*kk}, s{S_TAG}, v{V_GB+8*kk}')
        A(f'    v_xor_b32 v{T+2*kk+1}, s{S_TAG}, v{V_GB+8*kk+6}')
    A(f'    v_or3_b32 v{T}, v{T}, v{T+1}, v{T+2}')
    A(f'    v_or3_b32 v{T+3}, v{T+3}, v{T+4}, v{T+5}')
    A(f'    v_or_b32 v{T}, v{T}, v{T+3}')
    A(f'    v_cmp_ne_u32 vcc, 0, v{T}')

def spin_guard(A, lbl_retry):
    A(f'    s_add_u32 s{S_SPIN}, s{S_SPIN}, 1')
    A(f'    s_cmp_lt_u32 s{S_SPIN}, {SPIN_MAX}')
    A(f'    s_cbranch_scc0 K_END')
    A(f'    s_sleep 1')

def gather_loop(A):
    l = A.label('GL'); d = A.label('GD')
    A(f'{l}:')
    gather_issue(A)
    A('    s_waitcnt vmcnt(0)')
    gather_check(A)
    A(f'    s_cbranch_vccz {d}')
    spin_guard(A, l)
    A(f'    s_branch {l}')
    A(f'{d}:')

def publish8(A, dreg, ws_off_sgpr):
    A(f'    v_mov_b32 v{dreg}, s{S_TAG}')
    A(f'    v_mov_b32 v{dreg+1}, 0')
    A(f'    v_mov_b32 v{dreg+6}, s{S_TAG}')
    A(f'    v_mov_b32 v{dreg+7}, 0')
    A(f'    v_add_u32 v1, s{ws_off_sgpr}, v{V_L16}')
    A(f'    global_store_dwordx4 v1, v[{dreg}:{dreg+3}], s[{S_WS}:{S_WS+1}] sc1')
    A(f'    global_store_dwordx4 v1, v[{dreg+4}:{dreg+7}], s[{S_WS}:{S_WS+1}] offset:1024 sc1')

def slab_addr(A, perm):
    A(f'''    v_lshrrev_b32 v1, 2, v{V_LANE}
    s_mul_i32 s{S_TMP}, s{S_WAVE}, 96
    v_add_u32 v1, s{S_TMP}, v1            ; p (x = 0)
    v_and_b32 v{V_T}, 3, v{V_LANE}
    v_lshlrev_b32 v{V_T}, 4, v{V_T}
    s_lshl_b32 s{S_TMP}, s{S_JOB}, 6
    v_add_u32 v{V_T}, s{S_TMP}, v{V_T}''')
    for x in range(6):
        d = 2 + x
        if not perm:
            A(f'    v_add_u32 v{d}, {16*x}, v1')
        else:
            t = V_T + 1; kk = x >> 1
            A(f"""    v_lshrrev_b32 v{t}, 2, v{V_LANE}
    v_add_u32 v{t}, {16*(x&1)}, v{t}          ; p & 31
    v_bfe_u32 v{t+1}, v{t}, 1, 2              ; dw
    v_cmp_eq_u32 vcc, 3, v{t+1}
    v_lshlrev_b32 v{t+1}, 7, v{t+1}
    v_add_u32 v{t+1}, {32*kk}, v{t+1}
    v_mov_b32 v{t+2}, {kk*128 + 96}
    v_cndmask_b32 v{t+1}, v{t+1}, v{t+2}, vcc
    v_lshrrev_b32 v{t+2}, 3, v{t}
    v_lshlrev_b32 v{t+2}, 3, v{t+2}           ; 8g
    v_and_b32 v{t}, 1, v{t}
    v_add3_u32 v{t+1}, v{t+1}, v{t+2}, v{t}
    s_lshl_b32 s{S_TMP+1}, s{S_WAVE}, 1
    v_add_u32 v{d}, s{S_TMP+1}, v{t+1}""")
        A(f'    v_mul_u32_u24 v{d}, 768, v{d}')
        A(f'    v_add_u32 v{d}, v{d}, v{V_T}')

def slab_loads(A, sptr, dst, track=None):
    for x in range(6):
        line = f'    global_load_dwordx4 v[{dst+4*x}:{dst+4*x+3}], v{2+x}, s[{sptr}:{sptr+1}]'
        if track: A.vmop(line, track)
        else: A(line)

def slab_to_operands(A, src, lds_base):
    A(f'''    s_mul_i32 s{S_TMP}, s{S_WAVE}, 12288
    s_add_u32 s{S_TMP}, s{S_TMP}, {lds_base}
    v_add_u32 v1, s{S_TMP}, v{V_L16}''')
    for x in range(6):
        A(f'    ds_write_b128 v1, v[{src+4*x}:{src+4*x+3}] offset:{x*1024}')
    A(f'''    v_lshrrev_b32 v2, 4, v{V_LANE}
    v_lshlrev_b32 v2, 9, v2               ; g*512
    v_bfe_u32 v3, v{V_LANE}, 2, 2
    v_lshlrev_b32 v3, 6, v3               ; r*64
    v_and_b32 v4, 3, v{V_LANE}
    v_lshlrev_b32 v4, 4, v4               ; c*16
    v_add3_u32 v2, v2, v3, v4
    v_add_u32 v2, s{S_TMP}, v2''')
    for kk in range(3):
        for tb in range(2):
            for hf in range(2):
                r = A_W + (kk * 2 + tb) * 4 + 2 * hf
                A(f'    ds_read_b64_tr_b16 a[{r}:{r+1}], v2 offset:{kk*2048 + hf*256 + tb*8}')

def gemm6(A, bregs):
    for kk in range(3):
        for tb in range(2):
            d = V_S if tb == 0 else V_R
            c = '0' if kk == 0 else f'v[{d}:{d+3}]'
            w = A_W + (kk * 2 + tb) * 4
            A(f'    v_mfma_f32_16x16x32_bf16 v[{d}:{d+3}], a[{w}:{w+3}], {bregs(kk)}, {c}')

def cross_wave_sum(A, red):
    skip = A.label('XW'); w0 = A.label('XW0')
    A.nop(8)
    A(f'''    s_cmp_eq_u32 s{S_WAVE}, 0
    s_cbranch_scc1 {w0}
    s_sub_u32 s{S_TMP}, s{S_WAVE}, 1
    s_lshl_b32 s{S_TMP}, s{S_TMP}, 11
    s_add_u32 s{S_TMP}, s{S_TMP}, {red}
    v_add_u32 v1, s{S_TMP}, v{V_L16}
    ds_write_b128 v1, v[{V_S}:{V_S+3}]
    ds_write_b128 v1, v[{V_R}:{V_R+3}] offset:1024
    s_waitcnt lgkmcnt(0)
{w0}:
    s_barrier
    s_cmp_eq_u32 s{S_WAVE}, 0
    s_cbranch_scc0 {skip}
    v_add_u32 v1, {red}, v{V_L16}''')
    T = V_T
    for w in range(3):
        A(f'    ds_read_b128 v[{T+8*w}:{T+8*w+3}], v1 offset:{w*2048}')
        A(f'    ds_read_b128 v[{T+8*w+4}:{T+8*w+7}], v1 offset:{w*2048+1024}')
    for w in range(3):
        A(f'    s_waitcnt lgkmcnt({4 - 2*w})')
        for r in range(4):
            A(f'    v_add_f32 v{V_S+r}, v{V_S+r}, v{T+8*w+r}')
        for r in range(4):
            A(f'    v_add_f32 v{V_R+r}, v{V_R+r}, v{T+8*w+4+r}')
    return skip

def cross_wave_sum4(A, red):
    skip = A.label('XV'); w0 = A.label('XV0')
    A.nop(8)
    A(f"""    s_cmp_eq_u32 s{S_WAVE}, 0
    s_cbranch_scc1 {w0}
    s_sub_u32 s{S_TMP}, s{S_WAVE}, 1
    s_lshl_b32 s{S_TMP}, s{S_TMP}, 10
    s_add_u32 s{S_TMP}, s{S_TMP}, {red}
    v_add_u32 v1, s{S_TMP}, v{V_L16}
    ds_write_b128 v1, v[{V_S}:{V_S+3}]
    s_waitcnt lgkmcnt(0)
{w0}:
    s_barrier
    s_cmp_eq_u32 s{S_WAVE}, 0
    s_cbranch_scc0 {skip}
    v_add_u32 v1, {red}, v{V_L16}""")
    T = V_T
    for w in range(3):
        A(f'    ds_read_b128 v[{T+4*w}:{T+4*w+3}], v1 offset:{w*1024}')
    for w in range(3):
        A(f'    s_waitcnt lgkmcnt({2 - w})')
        for r in range(4):
            A(f'    v_add_f32 v{V_S+r}, v{V_S+r}, v{T+4*w+r}')
    return skip

def publish4(A, ws_base):
    T = V_T; odd = A.label('PB_O'); go = A.label('PB_G')
    A(f"""    v_cvt_pk_bf16_f32 v{T+2}, v{V_S}, v{V_S+1}
    v_cvt_pk_bf16_f32 v{T+3}, v{V_S+2}, v{V_S+3}
    v_mov_b32 v{T}, s{S_TAG}
    v_mov_b32 v{T+1}, 0
    v_mov_b32 v{T+4}, s{S_TAG}
    v_mov_b32 v{T+5}, 0
    s_lshl_b32 s{S_TMP}, s{S_JOB}, 10
    s_add_u32 s{S_TMP}, s{S_TMP}, {ws_base}
    v_add_u32 v1, s{S_TMP}, v{V_L16}
    s_bitcmp1_b32 s{S_JOB}, 0
    s_cbranch_scc1 {odd}
    global_store_dwordx4 v1, v[{T}:{T+3}], s[{S_WS}:{S_WS+1}] sc1
    s_branch {go}
{odd}:
    global_store_dwordx4 v1, v[{T+2}:{T+5}], s[{S_WS}:{S_WS+1}] sc1
{go}:""")

def gemm3(A, areg, breg):
    for kk in range(3):
        A(f'    v_mfma_f32_16x16x32_bf16 v[{V_S}:{V_S+3}], {areg(kk)}, {breg(kk)}, ' + ('0' if kk == 0 else f'v[{V_S}:{V_S+3}]'))

def pack_D(A, dreg):
    A(f'    v_cvt_pk_bf16_f32 v{dreg+2}, v{V_S}, v{V_S+1}')
    A(f'    v_cvt_pk_bf16_f32 v{dreg+3}, v{V_S+2}, v{V_S+3}')
    A(f'    v_cvt_pk_bf16_f32 v{dreg+4}, v{V_R}, v{V_R+1}')
    A(f'    v_cvt_pk_bf16_f32 v{dreg+5}, v{V_R+2}, v{V_R+3}')

def lin12_addr(A, nload, rowfn, dst=2):
    for x in range(nload):
        d = dst + x; t = V_T
        A(f"""    v_add_u32 v{t}, {64*x}, v{V_LANE}
    v_mul_u32_u24 v{t+1}, 43691, v{t}
    v_lshrrev_b32 v{t+1}, 19, v{t+1}      ; row
    v_mul_u32_u24 v{t+2}, 12, v{t+1}
    v_sub_u32 v{t+2}, v{t}, v{t+2}
    v_lshlrev_b32 v{t+2}, 4, v{t+2}       ; piece*16""")
        rowfn(t + 1)
        A(f"""    v_mul_u32_u24 v{t+1}, 768, v{t+1}
    v_add3_u32 v{d}, v{t+1}, v{t+2}, s{S_TMP+2}""")

def lin12_to_operands(A, src, nload, lds_off, dsts):
    A(f"""    s_mul_i32 s{S_TMP}, s{S_WAVE}, 12288
    s_add_u32 s{S_TMP}, s{S_TMP}, {L_HEAD + lds_off}
    v_add_u32 v1, s{S_TMP}, v{V_L16}""")
    for x in range(nload):
        A(f'    ds_write_b128 v1, v[{src+4*x}:{src+4*x+3}] offset:{x*1024}')
    A(f"""    v_and_b32 v2, 15, v{V_LANE}
    v_mul_u32_u24 v2, 192, v2
    v_lshrrev_b32 v3, 4, v{V_LANE}
    v_lshlrev_b32 v3, 4, v3
    v_add3_u32 v2, v2, v3, s{S_TMP}""")
    for (reg, rowblk, kk) in dsts:
        A(f'    ds_read_b128 {reg}, v2 offset:{rowblk*16*192 + kk*64}')

def role_S1_loads(A):
    A(f'    s_mul_i32 s{S_TMP+2}, s{S_WAVE}, 192')
    lin12_addr(A, 3, lambda r: None)
    for x in range(3):
        A(f'    global_load_dwordx4 v[{V_GB+12+4*x}:{V_GB+15+4*x}], v{2+x}, s[{S_Q}:{S_Q+1}]')
    A(f"""    v_lshrrev_b32 v1, 1, v{V_LANE}
    s_mul_i32 s{S_TMP}, s{S_WAVE}, 96
    v_add_u32 v1, s{S_TMP}, v1
    v_mul_u32_u24 v1, 768, v1
    v_and_b32 v2, 1, v{V_LANE}
    v_lshlrev_b32 v2, 4, v2
    s_lshl_b32 s{S_TMP}, s{S_JOB}, 5
    v_add3_u32 v1, v1, v2, s{S_TMP}
    v_add_u32 v2, 24576, v1
    v_add_u32 v3, 49152, v1""")
    for x in range(3):
        A(f'    global_load_dwordx4 v[{V_O+4*x}:{V_O+4*x+3}], v{1+x}, s[{S_WQ}:{S_WQ+1}]')

def slab16_to_operands(A, src, lds_base):
    A(f"""    s_mul_i32 s{S_TMP}, s{S_WAVE}, 12288
    s_add_u32 s{S_TMP}, s{S_TMP}, {lds_base}
    v_add_u32 v1, s{S_TMP}, v{V_L16}""")
    for x in range(3):
        A(f'    ds_write_b128 v1, v[{src+4*x}:{src+4*x+3}] offset:{x*1024}')
    A(f"""    v_lshrrev_b32 v2, 4, v{V_LANE}
    v_lshlrev_b32 v2, 8, v2               ; g*256
    v_bfe_u32 v3, v{V_LANE}, 2, 2
    v_lshlrev_b32 v3, 5, v3               ; r*32
    v_and_b32 v4, 3, v{V_LANE}
    v_lshlrev_b32 v4, 3, v4               ; c*8
    v_add3_u32 v2, v2, v3, v4
    v_add_u32 v2, s{S_TMP}, v2""")
    for kk in range(3):
        for hf in range(2):
            r = A_W + kk * 4 + 2 * hf
            A(f'    ds_read_b64_tr_b16 a[{r}:{r+1}], v2 offset:{kk*1024 + hf*128}')

def slab_addr_regs(A, perm):
    slab_addr(A, perm)

def role_S1_work(A):
    T = V_T; Qr = V_GB
    A('    s_waitcnt vmcnt(0)')
    A.stamp('s1_data')
    vm_save = list(A.vm); nxt = Stream.nxt; Stream.nxt = 0
    issue_next(A, O.l0)
    A.vm = vm_save; Stream.nxt = nxt
    lin12_to_operands(A, V_GB + 12, 3, 6144 + 2048, [(f'v[{Qr+4*kk}:{Qr+4*kk+3}]', 0, kk) for kk in range(3)])
    slab16_to_operands(A, V_O, L_HEAD)
    A('    s_waitcnt lgkmcnt(6)')
    for kk in range(3):
        q = f'v[{Qr+4*kk}:{Qr+4*kk+3}]'
        A(f'    v_mfma_f32_16x16x32_bf16 v[{V_G}:{V_G+3}], {q}, {q}, ' + ('0' if kk == 0 else f'v[{V_G}:{V_G+3}]'))
        A(f'    v_mfma_f32_16x16x32_bf16 v[{V_R}:{V_R+3}], a[{A_ONES}:{A_ONES+3}], {q}, ' + ('0' if kk == 0 else f'v[{V_R}:{V_R+3}]'))
    A.nop(7)
    A(f'    v_cndmask_b32 v{T}, 0, v{V_G}, s[{S_MASK}:{S_MASK+1}]')
    for r in range(1, 4):
        A(f'    v_cndmask_b32 v{T}, v{T}, v{V_G+r}, s[{S_MASK+2*r}:{S_MASK+2*r+1}]')
    A.nop(2)
    A(f'    v_mfma_f32_16x16x4_f32 v[{V_D}:{V_D+3}], v{V_ONEF}, v{T}, 0')
    A(f"""    s_lshl_b32 s{S_TMP}, s{S_WAVE}, 9
    s_add_u32 s{S_TMP}, s{S_TMP}, {L_STAT}
    v_lshlrev_b32 v1, 3, v{V_LANE}
    v_add_u32 v1, s{S_TMP}, v1
    v_and_b32 v2, 15, v{V_LANE}
    v_lshlrev_b32 v2, 3, v2
    v_add_u32 v2, {L_STAT}, v2
    v_mov_b32 v{T+2}, v{V_R}""")
    A.nop(3)
    A(f'    v_mov_b32 v{T+3}, v{V_D}')
    A(f'    ds_write_b64 v1, v[{T+2}:{T+3}]')
    A('    s_waitcnt lgkmcnt(0)')
    A.stamp('s1_stat')
    A('    s_barrier')
    for w in range(4):
        A(f'    ds_read_b64 v[{T+4+2*w}:{T+5+2*w}], v2 offset:{w*512}')
    A('    s_waitcnt lgkmcnt(0)')
    A(f"""    v_add_f32 v{T+4}, v{T+4}, v{T+6}
    v_add_f32 v{T+5}, v{T+5}, v{T+7}
    v_add_f32 v{T+8}, v{T+8}, v{T+10}
    v_add_f32 v{T+9}, v{T+9}, v{T+11}
    v_add_f32 v{T+4}, v{T+4}, v{T+8}
    v_add_f32 v{T+5}, v{T+5}, v{T+9}
    v_mul_f32 v{T+4}, s{S_C384}, v{T+4}          ; mean
    v_mul_f32 v{T+5}, s{S_C384}, v{T+5}          ; E[x^2]
    v_fma_f32 v{T+5}, -v{T+4}, v{T+4}, v{T+5}    ; var
    v_max_f32 v{T+5}, 0, v{T+5}
    v_cvt_pk_bf16_f32 v{T+6}, v{T+4}, v{T+5}
    v_lshlrev_b32 v{T+4}, 16, v{T+6}
    v_and_b32 v{T+5}, 0xffff0000, v{T+6}
    v_add_f32 v{T+5}, v{V_EPS}, v{T+5}
    v_cvt_pk_bf16_f32 v{T+5}, v{T+5}, v{T+5}
    v_lshlrev_b32 v{T+5}, 16, v{T+5}
    v_sqrt_f32 v{T+5}, v{T+5}
    s_nop 0
    v_cvt_pk_bf16_f32 v{T+5}, v{T+5}, v{T+5}
    v_lshlrev_b32 v{T+5}, 16, v{T+5}
    v_rcp_f32 v{T+5}, v{T+5}""")
    for k in range(0, 12, 2):
        a, b = T + 8, T + 12
        A(f'    v_lshlrev_b32 v{a}, 16, v{Qr+k}')
        A(f'    v_and_b32 v{a+1}, 0xffff0000, v{Qr+k}')
        A(f'    v_lshlrev_b32 v{b}, 16, v{Qr+k+1}')
        A(f'    v_and_b32 v{b+1}, 0xffff0000, v{Qr+k+1}')
        for x in (a, a + 1, b, b + 1): A(f'    v_sub_f32 v{x}, v{x}, v{T+4}')
        A(f'    v_cvt_pk_bf16_f32 v{a+2}, v{a}, v{a+1}')
        A(f'    v_cvt_pk_bf16_f32 v{b+2}, v{b}, v{b+1}')
        A(f'    v_lshlrev_b32 v{a}, 16, v{a+2}')
        A(f'    v_and_b32 v{a+1}, 0xffff0000, v{a+2}')
        A(f'    v_lshlrev_b32 v{b}, 16, v{b+2}')
        A(f'    v_and_b32 v{b+1}, 0xffff0000, v{b+2}')
        for x in (a, a + 1, b, b + 1): A(f'    v_mul_f32 v{x}, v{x}, v{T+5}')
        A(f'    v_cvt_pk_bf16_f32 v{Qr+k}, v{a}, v{a+1}')
        A(f'    v_cvt_pk_bf16_f32 v{Qr+k+1}, v{b}, v{b+1}')
    A.stamp('s1_norm')
    A.nop(2)
    gemm3(A, lambda kk: f'a[{A_W+4*kk}:{A_W+4*kk+3}]', lambda kk: f'v[{Qr+4*kk}:{Qr+4*kk+3}]')
    skip = cross_wave_sum4(A, L_RED_H)
    A.stamp('s1_red')
    publish4(A, WS_QG)
    A(f'{skip}:')

def role_S2_addr(A):
    A(f"""    s_lshr_b32 s{S_TMP}, s{S_JOB}, 3              ; third = b>>2
    s_lshl_b32 s{S_TMP}, s{S_TMP}, 7
    s_bfe_u32 s{S_TMP+1}, s{S_JOB}, 0x20001       ; ep = b&3
    s_lshl_b32 s{S_TMP+1}, s{S_TMP+1}, 1
    s_add_u32 s{S_TMP+3}, s{S_TMP}, s{S_TMP+1}
    s_and_b32 s{S_TMP+1}, s{S_JOB}, 1
    s_lshl_b32 s{S_TMP+1}, s{S_TMP+1}, 6          ; a2*64
    s_add_u32 s{S_TMP+3}, s{S_TMP+3}, s{S_TMP+1}
    s_mul_i32 s{S_TMP+2}, s{S_WAVE}, 192""")
    def rowfn(r):
        t = V_T + 3
        A(f"""    v_bfe_u32 v{t}, v{r}, 3, 1
    v_lshlrev_b32 v{t}, 2, v{t}
    v_bfe_u32 v{t+1}, v{r}, 2, 1
    v_lshlrev_b32 v{t+1}, 1, v{t+1}
    v_bfe_u32 v{t+2}, v{r}, 1, 1
    v_add3_u32 v{t}, v{t}, v{t+1}, v{t+2}
    v_lshlrev_b32 v{t}, 3, v{t}
    v_and_b32 v{r}, 1, v{r}
    v_add3_u32 v{r}, v{r}, v{t}, s{S_TMP+3}""")
    lin12_addr(A, 3, rowfn, V_O + 12)

def role_S2_loads(A):
    for x in range(3):
        A.vmop(f'    global_load_dwordx4 v[{V_O+4*x}:{V_O+4*x+3}], v{V_O+12+x}, s[{S_WK}:{S_WK+1}]', 'wk')

def role_S2_stage(A):
    A.vmwait('wk')
    A(f"""    s_mul_i32 s{S_TMP}, s{S_WAVE}, 12288
    s_add_u32 s{S_TMP}, s{S_TMP}, {L_HEAD}
    v_add_u32 v1, s{S_TMP}, v{V_L16}""")
    for x in range(3):
        A(f'    ds_write_b128 v1, v[{V_O+4*x}:{V_O+4*x+3}] offset:{x*1024}')
    A(f"""    v_and_b32 v2, 15, v{V_LANE}
    v_mul_u32_u24 v2, 192, v2
    v_lshrrev_b32 v3, 4, v{V_LANE}
    v_lshlrev_b32 v3, 3, v3
    v_add3_u32 v2, v2, v3, s{S_TMP}""")
    for kk in range(3):
        for hf in range(2):
            r = A_W + 4 * kk + 2 * hf
            A(f'    ds_read_b64 a[{r}:{r+1}], v2 offset:{kk*64 + hf*32}')

def role_S2_work(A, have_q=False):
    scale = 384 ** -0.5 * math.log2(math.e)
    ok = A.label('S2OK')
    if not have_q:
        A.stamp('s2_beg')
        role_S2_stage(A)
        A.vmwait('q')
        gather_check(A)
        A(f'    s_cbranch_vccz {ok}')
        gather_loop(A)
        A(f'{ok}:')
    A('    s_waitcnt lgkmcnt(0)')
    A.stamp('s2_q')
    gemm3(A, lambda kk: f'a[{A_W+4*kk}:{A_W+4*kk+3}]', lambda kk: f'v[{V_GB+8*kk+2}:{V_GB+8*kk+5}]')
    skip = cross_wave_sum4(A, L_HEAD + 6144)
    A.stamp('s2_red')
    for r in range(4):
        A(f'    v_mul_f32 v{V_S+r}, {lit(scale)}, v{V_S+r}')
    publish4(A, WS_QKG)
    A(f'{skip}:')

def get_qk(A):
    ok = A.label('QK_OK'); lp = A.label('QK_LP')
    A.vmwait('qk')
    gather_check(A)
    A(f'    s_cbranch_vccz {ok}')
    gather_loop(A)
    A(f'{ok}:')
    A(f"""    s_mul_i32 s{S_TMP}, s{S_WAVE}, 3072
    s_add_u32 s{S_TMP}, s{S_TMP}, {L_QKL}
    v_add_u32 v1, s{S_TMP}, v{V_L16}""")
    for kk in range(3):
        A(f'    ds_write_b128 v1, v[{V_GB+8*kk+2}:{V_GB+8*kk+5}] offset:{kk*1024}')
    A(f'    v_add_u32 v1, {L_QKL}, v{V_L16}')
    A('    s_waitcnt lgkmcnt(0)')
    A('    s_barrier')
    for bb in range(12):
        A(f'    ds_read_b128 a[{A_QK+4*bb}:{A_QK+4*bb+3}], v1 offset:{bb*1024}')
    for bb in range(12):
        if bb % 4 == 0: A(f'    s_waitcnt lgkmcnt({8 - bb})')
        c = '0' if bb == 0 else f'v[{V_S}:{V_S+3}]'
        A(f'    v_mfma_f32_16x16x32_bf16 v[{V_S}:{V_S+3}], a[{A_ONES}:{A_ONES+3}], a[{A_QK+4*bb}:{A_QK+4*bb+3}], {c}')
    A.nop(8)
    A(f'    v_mov_b32 v{V_SQ}, v{V_S}')
    A.stamp('Qk')

def role_G_loads(A):
    g1 = A.label('GL1'); done = A.label('GLD')
    A(f'    s_cmp_eq_u32 s{S_ROLE}, {R_G1}')
    A(f'    s_cbranch_scc1 {g1}')
    A(f'    s_cmp_eq_u32 s{S_ROLE}, {R_G2}')
    A(f'    s_cbranch_scc0 {done}')
    slab_addr(A, False)
    slab_loads(A, S_WO, RAW[1])
    A(f"""    v_and_b32 v1, 15, v{V_LANE}
    v_mul_u32_u24 v1, 768, v1
    v_lshrrev_b32 v2, 4, v{V_LANE}
    v_lshlrev_b32 v2, 4, v2
    s_lshl_b32 s{S_TMP}, s{S_JOB}, 6
    v_add3_u32 v{V_Q+4}, v1, v2, s{S_TMP}
    global_load_dwordx4 v[{V_Q}:{V_Q+3}], v{V_Q+4}, s[{S_Q}:{S_Q+1}]
    s_branch {done}
{g1}:""")
    slab_addr(A, True)
    slab_loads(A, S_WV, RAW[1])
    A(f'{done}:')

def epilogue(A):
    T = V_T
    multi_xgroup(A, 'v_add_f32', [V_L, V_U], [T, T + 1])
    A(f"""    v_and_b32 v3, 15, v{V_LANE}           ; n
    v_lshlrev_b32 v5, 4, v3
    s_lshl_b32 s{S_TMP}, s{S_WAVE}, 2
    s_add_u32 s{S_TMP}, s{S_TMP}, {L_LBUF}
    v_add_u32 v6, s{S_TMP}, v5
    ds_write_b32 v6, v{V_L}
    ds_write_b32 v6, v{V_U} offset:256""")
    for r in range(4):
        for third in range(3):
            b0 = V_O + third * 8; b1 = b0 + 4
            A(f'    v_cvt_pk_bf16_f32 v{8+4*r+third}, v{b0+r}, v{b1+r}')
        A(f'    v_mov_b32 v{8+4*r+3}, s{S_TAG}')
    A(f"""    s_mul_i32 s{S_TMP}, s{S_WAVE}, 12288
    s_add_u32 s{S_TMP}, s{S_TMP}, {L_TR}
    v_mul_u32_u24 v1, 272, v3
    v_lshrrev_b32 v2, 4, v{V_LANE}        ; g'
    v_lshlrev_b32 v4, 6, v2               ; (g'>>1)*128 + (g'&1)*64 == g'*64
    v_add3_u32 v1, v1, v4, s{S_TMP}""")
    for r in range(4):
        A(f'    ds_write_b128 v1, v[{8+4*r}:{11+4*r}] offset:{r*16}')
    A(f"""    v_mul_u32_u24 v1, 272, v2
    v_add3_u32 v1, v1, v5, s{S_TMP}""")
    for x in range(4):
        A(f'    ds_read_b128 v[{24+4*x}:{27+4*x}], v1 offset:{x*1088}')
    A(f"""    v_lshlrev_b32 v1, 18, v2              ; (l>>4)*8*32768
    v_bfe_u32 v4, v{V_LANE}, 3, 1
    v_lshlrev_b32 v4, 15, v4
    v_and_b32 v7, 7, v{V_LANE}
    v_lshlrev_b32 v7, 4, v7
    v_add3_u32 v1, v1, v4, v7
    s_lshl_b32 s{S_TMP}, s{S_WAVE}, 16
    s_lshl_b32 s{S_TMP+1}, s{S_WG}, 7
    s_add_u32 s{S_TMP}, s{S_TMP}, s{S_TMP+1}
    s_add_u32 s{S_TMP}, s{S_TMP}, {WS_PART}
    v_add_u32 v1, s{S_TMP}, v1
    v_add_u32 v2, 0x100000, v1
    v_add_u32 v4, 0x200000, v1
    v_add_u32 v7, 0x300000, v1""")
    for x, a in enumerate((1, 2, 4, 7)):
        A(f'    s_waitcnt lgkmcnt({3-x})')
        A(f'    global_store_dwordx4 v{a}, v[{24+4*x}:{27+4*x}], s[{S_WS}:{S_WS+1}] sc1')
    A('    s_barrier')
    skip = A.label('EP')
    A(f"""    s_cmp_eq_u32 s{S_WAVE}, 0
    s_cbranch_scc0 {skip}
    v_add_u32 v5, {L_LBUF}, v5
    ds_read_b128 v[40:43], v5
    ds_read_b128 v[44:47], v5 offset:256
    v_lshlrev_b32 v3, 4, v3
    s_lshl_b32 s{S_TMP}, s{S_WG}, 8
    s_add_u32 s{S_TMP}, s{S_TMP}, {WS_ML}
    v_add_u32 v3, s{S_TMP}, v3
    v_mov_b32 v48, v{V_MREF}
    v_mov_b32 v51, s{S_TAG}
    s_waitcnt lgkmcnt(0)
    v_add_f32 v40, v40, v41
    v_add_f32 v42, v42, v43
    v_add_f32 v44, v44, v45
    v_add_f32 v46, v46, v47
    v_add_f32 v49, v40, v42
    v_add_f32 v50, v44, v46
    v_cmp_gt_u32 vcc, 16, v{V_LANE}
    s_and_saveexec_b64 s[{S_EX}:{S_EX+1}], vcc
    global_store_dwordx4 v3, v[48:51], s[{S_WS}:{S_WS+1}] sc1
    s_mov_b64 exec, s[{S_EX}:{S_EX+1}]
{skip}:""")
    A.stamp('pub')

def role_R(A):
    T = V_T
    lp = A.label('RL'); ok = A.label('RO'); lp2 = A.label('RD'); ok2 = A.label('RO2'); fin = A.label('RF')
    A(f"""    s_and_b32 s{S_TMP}, s{S_JOB}, 15          ; n
    s_lshr_b32 s{S_TMP+1}, s{S_JOB}, 4        ; chunk
    s_lshl_b32 s{S_TMP+2}, s{S_TMP}, 4
    s_lshl_b32 s{S_TMP+3}, s{S_WAVE}, 14
    s_add_u32 s{S_TMP+2}, s{S_TMP+2}, s{S_TMP+3}
    s_add_u32 s{S_TMP+2}, s{S_TMP+2}, {WS_ML}
    v_lshlrev_b32 v1, 8, v{V_LANE}
    v_add_u32 v1, s{S_TMP+2}, v1
    s_lshl_b32 s{S_TMP+2}, s{S_TMP}, 3
    s_add_u32 s{S_TMP+2}, s{S_TMP+2}, s{S_TMP+1}
    s_lshl_b32 s{S_TMP+2}, s{S_TMP+2}, 15
    s_lshl_b32 s{S_TMP+3}, s{S_WAVE}, 13
    s_add_u32 s{S_TMP+2}, s{S_TMP+2}, s{S_TMP+3}
    s_add_u32 s{S_TMP+2}, s{S_TMP+2}, {WS_PART + 4096}
    v_add_u32 v2, s{S_TMP+2}, v{V_L16}
{lp}:
    global_load_dwordx4 v[8:11], v1, s[{S_WS}:{S_WS+1}] sc1
    s_waitcnt vmcnt(0)
    v_cmp_ne_u32 vcc, s{S_TAG}, v11
    s_cbranch_vccz {ok}""")
    spin_guard(A, lp)
    A(f'    s_branch {lp}')
    A(f'{ok}:')
    A.stamp('R_ml')
    def data_loads():
        for k in range(8):
            A(f'    global_load_dwordx4 v[{16+4*k}:{19+4*k}], v2, s[{S_WS}:{S_WS+1}] offset:{k*1024-4096} sc1')
    data_loads()
    A(f'    v_mov_b32 v12, v8')
    multi_row(A, 'v_max_f32', [12])
    xgroup_reduce(A, 'v_max_f32', 12, 13)
    A(f"""    v_sub_f32 v8, v8, v12
    v_exp_f32 v8, v8
    v_lshrrev_b32 v3, 3, v{V_LANE}
    v_lshlrev_b32 v3, 2, v3               ; ii*4
    v_mul_f32 v9, v9, v8
    v_mul_f32 v10, v10, v8""")
    for k in range(8):
        A(f'    v_add_u32 v4, {32*k}, v3')
        A(f'    ds_bpermute_b32 v{48+k}, v4, v8')
    multi_row(A, 'v_add_f32', [9, 10])
    multi_xgroup(A, 'v_add_f32', [9, 10], [13, 14])
    for j in range(6): A(f'    v_mov_b32 v{56+j}, 0')
    A(f'{lp2}:')
    A('    s_waitcnt vmcnt(0)')
    for k in range(0, 8, 2):
        A(f'    v_xor_b32 v{64+k}, s{S_TAG}, v{19+4*k}')
        A(f'    v_xor_b32 v{65+k}, s{S_TAG}, v{23+4*k}')
    A(f"""    v_or3_b32 v64, v64, v65, v66
    v_or3_b32 v67, v67, v68, v69
    v_or3_b32 v64, v64, v70, v71
    v_or_b32 v64, v64, v67
    v_cmp_ne_u32 vcc, 0, v64
    s_cbranch_vccz {ok2}""")
    spin_guard(A, lp2)
    data_loads()
    A(f'    s_branch {lp2}')
    A(f'{ok2}:')
    A('    s_waitcnt lgkmcnt(0)')
    for k in range(8):
        for t in range(3):
            A(f'    v_lshlrev_b32 v64, 16, v{16+4*k+t}')
            A(f'    v_and_b32 v65, 0xffff0000, v{16+4*k+t}')
            A(f'    v_fmac_f32 v{56+2*t}, v64, v{48+k}')
            A(f'    v_fmac_f32 v{57+2*t}, v65, v{48+k}')
    acc = list(range(56, 62))
    multi_row(A, 'v_add_f32', acc, rots=(8,))
    multi_xgroup(A, 'v_add_f32', acc, list(range(64, 70)))
    A(f"""    s_lshl_b32 s{S_TMP+2}, s{S_WAVE}, 8
    s_add_u32 s{S_TMP+2}, s{S_TMP+2}, {L_RB}
    v_mul_u32_u24 v3, 24, v{V_LANE}
    v_add_u32 v3, s{S_TMP+2}, v3
    v_mov_b32 v4, s{S_TMP+2}
    v_mov_b32 v13, v9
    v_mov_b32 v14, v10
    v_mov_b32 v15, 0
    v_cmp_gt_u32 vcc, 8, v{V_LANE}
    s_and_saveexec_b64 s[{S_EX}:{S_EX+1}], vcc
    ds_write_b64 v3, v[56:57]
    ds_write_b64 v3, v[58:59] offset:8
    ds_write_b64 v3, v[60:61] offset:16
    ds_write_b128 v4, v[12:15] offset:192
    s_mov_b64 exec, s[{S_EX}:{S_EX+1}]
    s_waitcnt lgkmcnt(0)
    s_barrier
    s_cmp_eq_u32 s{S_WAVE}, 0
    s_cbranch_scc0 {fin}
    v_min_u32 v3, 7, v{V_LANE}
    v_mul_u32_u24 v3, 24, v3
    v_add_u32 v3, {L_RB}, v3
    v_mov_b32 v4, {L_RB}""")
    for w in range(4):
        A(f'    ds_read_b128 v[{16+4*w}:{19+4*w}], v4 offset:{w*256+192}')
    for w in range(4):
        for j in range(3):
            A(f'    ds_read_b64 v[{32+6*w+2*j}:{33+6*w+2*j}], v3 offset:{w*256+8*j}')
    A(f"""    s_waitcnt lgkmcnt(12)
    v_max_f32 v12, v16, v20
    v_max3_f32 v12, v12, v24, v28""")
    for w in range(4): A(f'    v_sub_f32 v{16+4*w}, v{16+4*w}, v12')
    for w in range(4): A(f'    v_exp_f32 v{16+4*w}, v{16+4*w}')
    A(f"""    s_nop 0
    v_mul_f32 v13, v16, v17
    v_mul_f32 v14, v16, v18""")
    for w in range(1, 4):
        A(f'    v_fmac_f32 v13, v{16+4*w}, v{17+4*w}')
        A(f'    v_fmac_f32 v14, v{16+4*w}, v{18+4*w}')
    A(f"""    v_rcp_f32 v13, v13
    s_waitcnt lgkmcnt(0)""")
    for j in range(6): A(f'    v_mul_f32 v{56+j}, v{32+j}, v16')
    for w in range(1, 4):
        for j in range(6): A(f'    v_fmac_f32 v{56+j}, v{32+6*w+j}, v{16+4*w}')
    for j in range(6): A(f'    v_sub_f32 v{56+j}, v{56+j}, v14')
    for j in range(6): A(f'    v_mul_f32 v{56+j}, v{56+j}, v13')
    A(f"""    v_cvt_pk_bf16_f32 v8, v56, v57
    v_cvt_pk_bf16_f32 v9, v58, v59
    v_cvt_pk_bf16_f32 v10, v60, v61
    v_mov_b32 v11, s{S_TAG}
    s_lshl_b32 s{S_TMP+2}, s{S_TMP+1}, 4
    s_add_u32 s{S_TMP+2}, s{S_TMP+2}, s{S_TMP}
    s_lshl_b32 s{S_TMP+2}, s{S_TMP+2}, 7
    s_add_u32 s{S_TMP+2}, s{S_TMP+2}, {WS_CTXN}
    v_add_u32 v3, s{S_TMP+2}, v{V_L16}
    v_cmp_gt_u32 vcc, 8, v{V_LANE}
    s_and_saveexec_b64 s[{S_EX}:{S_EX+1}], vcc
    global_store_dwordx4 v3, v[8:11], s[{S_WS}:{S_WS+1}] sc1
    s_mov_b64 exec, s[{S_EX}:{S_EX+1}]
{fin}:""")
    A.stamp('R_done')

def gather4_loop(A):
    l = A.label('G4L'); d = A.label('G4D'); T = V_T
    A(f"""    s_lshl_b32 s{S_TMP}, s{S_WAVE}, 12
    s_add_u32 s{S_TMP}, s{S_TMP}, {WS_CTXN}
    v_and_b32 v1, 15, v{V_LANE}
    v_lshlrev_b32 v1, 7, v1
    v_lshrrev_b32 v2, 4, v{V_LANE}
    v_lshlrev_b32 v2, 4, v2
    v_add3_u32 v{V_GA}, v1, v2, s{S_TMP}""")
    A(f'{l}:')
    for x in range(4):
        A(f'    global_load_dwordx4 v[{V_GB+4*x}:{V_GB+4*x+3}], v{V_GA}, s[{S_WS}:{S_WS+1}] offset:{(x>>1)*2048 + (x&1)*64} sc1')
    A('    s_waitcnt vmcnt(0)')
    for x in range(4): A(f'    v_xor_b32 v{T+x}, s{S_TAG}, v{V_GB+4*x+3}')
    A(f'    v_or3_b32 v{T}, v{T}, v{T+1}, v{T+2}')
    A(f'    v_or_b32 v{T}, v{T}, v{T+3}')
    A(f'    v_cmp_ne_u32 vcc, 0, v{T}')
    A(f'    s_cbranch_vccz {d}')
    spin_guard(A, l)
    A(f'    s_branch {l}')
    A(f'{d}:')
    for j in range(3): A(f'    v_mov_b32 v{V_GB+4*j+3}, v{V_GB+12+j}')

def role_G(A):
    g2 = A.label('G2'); lj = A.label('GJ')
    role_G_loads(A)
    A('    s_waitcnt vmcnt(0)')
    slab_to_operands(A, RAW[1], 0)
    A(f'    s_cmp_eq_u32 s{S_ROLE}, {R_G2}')
    A(f'    s_cbranch_scc1 {g2}')
    gather4_loop(A)
    A('    s_waitcnt lgkmcnt(0)')
    A.stamp('G1_in')
    gemm6(A, lambda kk: f'v[{V_GB+4*kk}:{V_GB+4*kk+3}]')
    A(f'    s_branch {lj}')
    A(f'{g2}:')
    gather_addr(A, WS_CTX)
    gather_loop(A)
    A('    s_waitcnt lgkmcnt(0)')
    A.stamp('G2_in')
    gemm6(A, lambda kk: f'v[{V_GB+8*kk+2}:{V_GB+8*kk+5}]')
    A(f'{lj}:')
    skip = cross_wave_sum(A, L_RED_T)
    out2 = A.label('GO')
    A(f'    s_cmp_eq_u32 s{S_ROLE}, {R_G2}')
    A(f'    s_cbranch_scc1 {out2}')
    pack_D(A, 8)
    A(f'    s_lshl_b32 s{S_TMP}, s{S_JOB}, 11')
    A(f'    s_add_u32 s{S_TMP}, s{S_TMP}, {WS_CTX}')
    publish8(A, 8, S_TMP)
    A(f'    s_branch {skip}')
    A(f'{out2}:')
    for k in range(4):
        d = V_S if k < 2 else V_R
        j = 2 * (k & 1)
        A(f'    v_lshlrev_b32 v8, 16, v{V_Q+k}')
        A(f'    v_and_b32 v9, 0xffff0000, v{V_Q+k}')
        A(f'    v_add_f32 v8, v8, v{d+j}')
        A(f'    v_add_f32 v9, v9, v{d+j+1}')
        A(f'    v_cvt_pk_bf16_f32 v{12+k}, v8, v9')
    A(f'    global_store_dwordx4 v{V_Q+4}, v[12:15], s[{S_OUT}:{S_OUT+1}]')
    e = A.label('GE')
    A(f"""    s_cmp_eq_u32 s{S_JOB}, 0
    s_cbranch_scc0 {skip}
    s_add_u32 s{S_TMP}, s{S_EPOCH}, 1
    v_mov_b32 v8, s{S_TMP}
    v_mov_b32 v9, {WS_EPOCH}
    v_cmp_eq_u32 vcc, 0, v{V_LANE}
    s_and_saveexec_b64 s[{S_EX}:{S_EX+1}], vcc
    global_store_dword v9, v8, s[{S_WS}:{S_WS+1}]
    s_mov_b64 exec, s[{S_EX}:{S_EX+1}]""")
    A(f'{skip}:')
    A.stamp('G_done')

def build_kernel():
    A = Gen(); T = V_T
    Stream.nxt = 0; Stream.done = 0; Stream.pend = []; PV.pending = []
    A('.text')
    A(f'.globl {NAME}')
    A('.p2align 8')
    A(f'.type {NAME},@function')
    A(f'{NAME}:')
    A(f"""    s_cmp_ge_u32 s2, 256
    s_cbranch_scc1 K_END
    s_load_dwordx4 s[{S_F0}:{S_F0+3}], s[0:1], 8
    s_load_dwordx2 s[{S_WS}:{S_WS+1}], s[0:1], 72
    s_load_dwordx2 s[{S_Q}:{S_Q+1}], s[0:1], 0
    s_load_dwordx8 s[{S_WQ}:{S_WQ+7}], s[0:1], 24
    s_load_dwordx2 s[{S_OUT}:{S_OUT+1}], s[0:1], 56
    s_mov_b32 s{S_WG}, s2
    s_mov_b32 s{S_SPIN}, 0
    v_and_b32 v{V_LANE}, 63, v0
    v_lshrrev_b32 v1, 6, v0
    v_lshlrev_b32 v{V_L16}, 4, v{V_LANE}
    v_readfirstlane_b32 s{S_WAVE}, v1
    v_lshrrev_b32 v2, 4, v{V_LANE}        ; g
    v_and_b32 v3, 15, v{V_LANE}           ; i
    v_lshlrev_b32 v4, 4, v3
    v_mul_u32_u24 v5, 1536, v2
    v_add_u32 v{V_F0OFF}, v5, v4
    v_mul_u32_u24 v5, 768, v2
    v_add_u32 v{V_F1OFF}, v5, v4
    s_mul_i32 s{S_T}, s{S_WG}, 36
    s_add_u32 s{S_T}, s{S_T}, s{S_WAVE}
    s_mov_b32 s{S_ROLE}, {R_NONE}
    s_mov_b32 s{S_JOB}, 0
    s_cmp_ge_u32 s2, 128
    s_cbranch_scc0 ROLE_LOW
    s_mov_b32 s{S_ROLE}, {R_R}
    s_sub_u32 s{S_JOB}, s2, 128
    s_branch ROLE_DONE
ROLE_LOW:
    s_lshr_b32 s{S_TMP}, s2, 3            ; hi
    s_and_b32 s{S_TMP+1}, s2, 3
    s_bitcmp1_b32 s2, 2
    s_cbranch_scc1 ROLE_G
    s_cmp_ge_u32 s{S_TMP}, 12
    s_cbranch_scc1 ROLE_DONE
    s_cmp_ge_u32 s{S_TMP}, 6
    s_cselect_b32 s{S_TMP+2}, 1, 0
    s_mul_i32 s{S_TMP+3}, s{S_TMP+2}, 6
    s_sub_u32 s{S_TMP}, s{S_TMP}, s{S_TMP+3}
    s_lshl_b32 s{S_TMP}, s{S_TMP}, 2
    s_add_u32 s{S_JOB}, s{S_TMP}, s{S_TMP+1}
    s_add_u32 s{S_ROLE}, s{S_TMP+2}, {R_S1}
    s_branch ROLE_DONE
ROLE_G:
    s_cmp_ge_u32 s{S_TMP}, 6
    s_cbranch_scc1 ROLE_DONE
    s_cmp_ge_u32 s{S_TMP}, 3
    s_cselect_b32 s{S_TMP+2}, 1, 0
    s_mul_i32 s{S_TMP+3}, s{S_TMP+2}, 3
    s_sub_u32 s{S_TMP}, s{S_TMP}, s{S_TMP+3}
    s_lshl_b32 s{S_TMP}, s{S_TMP}, 2
    s_add_u32 s{S_JOB}, s{S_TMP}, s{S_TMP+1}
    s_add_u32 s{S_ROLE}, s{S_TMP+2}, {R_G1}
ROLE_DONE:
    s_waitcnt lgkmcnt(0)
    s_load_dword s{S_EPOCH}, s[{S_WS}:{S_WS+1}], {WS_EPOCH}""")
    if O.stamp: A(f'    v_mov_b32 v{V_STAMP}, 0')
    A.stamp('entry')
    l2 = A.label('P2')
    A(f'    s_cmp_eq_u32 s{S_ROLE}, {R_S1}')
    A(f'    s_cbranch_scc0 {l2}')
    role_S1_loads(A)
    A(f'{l2}:')
    tile_bases(A, 0)
    hold = A.label('PH')
    A(f'    s_cmp_eq_u32 s{S_ROLE}, {R_S1}')
    A(f'    s_cbranch_scc1 {hold}')
    issue_next(A, O.l0)
    A(f'{hold}:')
    if O.cpf:
        lc = A.label('CPF')
        A(f'''    s_sub_u32 s{S_TMP}, s{S_WG}, 96
    s_cmp_lt_u32 s{S_TMP}, 32
    s_cbranch_scc0 {lc}
    s_cmp_ge_u32 s{S_WAVE}, 2
    s_cbranch_scc0 {lc}
    s_getpc_b64 s[72:73]
CPF_PC:
    s_lshr_b32 s{S_TMP}, s{S_TMP}, 3
    s_lshl_b32 s{S_TMP}, s{S_TMP}, 1
    s_and_b32 s{S_TMP+1}, s{S_WAVE}, 1
    s_add_u32 s{S_TMP}, s{S_TMP}, s{S_TMP+1}
    s_mul_i32 s{S_TMP}, s{S_TMP}, (((K_END - CPF_PC) / 128 + 8) / 8) * 128
    v_lshlrev_b32 v1, 7, v{V_LANE}
    v_add_u32 v1, s{S_TMP}, v1
    v_cmp_gt_u32 vcc, (((K_END - CPF_PC) / 128 + 8) / 8), v{V_LANE}
    v_min_u32 v1, (K_END - CPF_PC), v1
    s_and_saveexec_b64 s[{S_EX}:{S_EX+1}], vcc
    global_load_dword v255, v1, s[72:73]
    s_mov_b64 exec, s[{S_EX}:{S_EX+1}]
{lc}:''')
    if O.touch:
        lt = A.label('TCH')
        A(f'''    s_cmp_eq_u32 s{S_WAVE}, 2
    s_cbranch_scc0 {lt}
    v_mov_b32 v1, 0
    s_mov_b64 s[{S_EX}:{S_EX+1}], exec
    s_mov_b64 exec, 1
    global_load_dword v255, v1, s[{S_WS}:{S_WS+1}] offset:2048
    v_mov_b32 v2, {WS_PART}
    v_mov_b32 v3, {WS_PART + 0x200000}
    v_mov_b32 v4, {WS_PART + 0x3ff000}
    global_load_dword v255, v2, s[{S_WS}:{S_WS+1}]
    global_load_dword v255, v3, s[{S_WS}:{S_WS+1}]
    global_load_dword v255, v4, s[{S_WS}:{S_WS+1}]
    global_load_dword v255, v1, s[{S_WK}:{S_WK+1}]
    global_load_dword v255, v1, s[{S_WV}:{S_WV+1}]
    global_load_dword v255, v1, s[{S_WO}:{S_WO+1}]
    global_load_dword v255, v1, s[{S_OUT}:{S_OUT+1}]
    s_mov_b64 exec, s[{S_EX}:{S_EX+1}]
{lt}:''')
    A.stamp('issued')
    A(f"""    v_lshrrev_b32 v2, 4, v{V_LANE}
    v_and_b32 v3, 15, v{V_LANE}
    s_mul_i32 s{S_TMP}, s{S_WAVE}, 12288
    v_lshlrev_b32 v5, 2, v2
    v_add_u32 v5, v5, v3
    v_and_b32 v5, 15, v5
    v_lshlrev_b32 v5, 4, v5
    v_lshlrev_b32 v6, 8, v2
    v_add_u32 v5, v5, v6
    v_add_u32 v{V_LDSW}, s{S_TMP}, v5
    s_lshl_b32 s{S_TMP+1}, s{S_WAVE}, 10
    v_add_u32 v{V_LDSF}, s{S_TMP+1}, v5
    v_lshrrev_b32 v5, 2, v{V_LANE}
    v_and_b32 v5, 3, v5
    v_and_b32 v6, 3, v{V_LANE}
    v_lshrrev_b32 v7, 1, v2
    v_add_u32 v7, v7, v6
    v_lshlrev_b32 v7, 2, v7
    v_and_b32 v1, 1, v2
    v_lshlrev_b32 v1, 1, v1
    v_add_u32 v7, v7, v1
    v_lshrrev_b32 v1, 1, v5
    v_add_u32 v7, v7, v1
    v_and_b32 v1, 1, v5
    v_lshlrev_b32 v1, 3, v1
    v_lshlrev_b32 v6, 8, v6
    v_add3_u32 v6, v6, v1, s{S_TMP}
    v_and_b32 v1, 15, v7
    v_lshlrev_b32 v1, 4, v1
    v_add_u32 v{V_LDSR0}, v6, v1
    v_add_u32 v7, 8, v7
    v_and_b32 v1, 15, v7
    v_lshlrev_b32 v1, 4, v1
    v_add_u32 v{V_LDSR1}, v6, v1
    v_lshlrev_b32 v5, 3, v{V_LANE}
    v_add_u32 v{V_PR}, {L_PBUF}, v5
    s_lshl_b32 s{S_TMP}, s{S_WAVE}, 9
    v_add_u32 v{V_PW}, s{S_TMP}, v{V_PR}
    v_lshlrev_b32 v5, 2, v3
    v_add_u32 v{V_MB}, {L_MBUF}, v5
    v_mov_b32 v{V_MREF}, 0xff800000
    ds_write_b32 v{V_MB}, v{V_MREF}
    v_lshlrev_b32 v5, 2, v2""")
    for r in range(4):
        A(f'    v_add_u32 v6, {r}, v5')
        A(f'    v_cmp_eq_u32 s[{S_MASK+2*r}:{S_MASK+2*r+1}], v6, v3')
    A(f"""    s_mov_b32 s{S_SELLO}, 0x{SEL_LO:08x}
    s_mov_b32 s{S_SELHI}, 0x{SEL_HI:08x}
    s_mov_b32 s{S_C384}, {lit(1/384)}
    v_mov_b32 v{V_EPS}, {lit(1e-5)}
    v_mov_b32 v{V_ONEF}, 1.0
    v_mov_b32 v{V_L}, 0
    v_mov_b32 v{V_U}, 0
    v_mov_b32 v{V_Q+4}, 0
    v_mov_b32 v1, 0x3f803f80""")
    for k in range(4):
        A(f'    v_accvgpr_write_b32 a{A_ONES+k}, v1')
    A(f"""    s_waitcnt lgkmcnt(0)
    s_mul_i32 s{S_TAG}, s{S_EPOCH}, 0x9E3779B1
    s_add_u32 s{S_TAG}, s{S_TAG}, 0x7F4A7C15""")
    l1 = A.label('H1'); l2 = A.label('H2')
    for x in range(3): A(f'    v_mov_b32 v{V_O+12+x}, 0')
    A(f'    s_cmp_eq_u32 s{S_ROLE}, {R_S1}')
    A(f'    s_cbranch_scc0 {l1}')
    role_S1_work(A)
    A(f'    s_branch {l2}')
    A(f'{l1}:')
    A(f'    s_cmp_eq_u32 s{S_ROLE}, {R_S2}')
    A(f'    s_cbranch_scc0 {l2}')
    role_S2_addr(A)
    A(f'{l2}:')
    A.stamp('head')
    if O.s2mode == 'spin0':
        lw = A.label('S2L')
        A(f'    s_cmp_eq_u32 s{S_ROLE}, {R_S2}')
        A(f'    s_cbranch_scc0 {lw}')
        vm_save = list(A.vm); role_S2_loads(A); A.vm = vm_save
        A(f'{lw}:')
        stage_A(A, 0)
        lw = A.label('S2W')
        A(f'    s_cmp_eq_u32 s{S_ROLE}, {R_S2}')
        A(f'    s_cbranch_scc0 {lw}')
        A.done.add('wk'); A.done.add('q')
        nyoung = len([t for t in A.vm if t in ('item2', 'item3', 'item4', 'item5')])
        A(f'    s_waitcnt vmcnt({nyoung})')
        role_S2_stage(A)
        gather_addr(A, WS_QG)
        A.stamp('s2_poll')
        gather_loop(A)
        role_S2_work(A, True)
        A(f'{lw}:')
        stage_A(A, 1, stamp=False)
    else:
        stage_A(A, 0)
        snap = (list(A.vm), set(A.done), Stream.nxt, Stream.done, list(Stream.pend))
        common = A.label('A1C'); join = A.label('A1J')
        A(f'    s_cmp_eq_u32 s{S_ROLE}, {R_S2}')
        A(f'    s_cbranch_scc0 {common}')
        gather_addr(A, WS_QG)
        stage_A(A, 1, {O.s2att: lambda: (gather_issue(A, 'q'), role_S2_loads(A))}, stamp=False)
        role_S2_work(A)
        A(f'    s_branch {join}')
        A(f'{common}:')
        A.vm, A.done, Stream.nxt, Stream.done, Stream.pend = list(snap[0]), set(snap[1]), snap[2], snap[3], list(snap[4])
        stage_A(A, 1, stamp=False)
        A(f'{join}:')
    A.stamp('A1')
    gather_addr(A, WS_QKG)
    attempt = lambda: gather_issue(A, 'qk')
    raise_l = lambda: (enqueue(A), flush_pend())
    if O.raise_at == 'A1': raise_l()
    if O.attempt == 'A1': attempt()
    hooks = {}
    if O.attempt == 'A2a': hooks[0] = attempt
    if O.attempt == 'A2b': hooks[1] = attempt
    if O.hold:
        h = O.hold
        if h == 1:   hooks = {1: lambda: (attempt(), enqueue(A, 2))}
        elif h == 2: hooks = {0: lambda: (attempt(), enqueue(A, 1)), 1: lambda: enqueue(A, 1)}
        elif h == 3: hooks = {2: lambda: (attempt(), enqueue(A, 2))}
        stage_A(A, 2, hooks, quota=1)
    else:
        stage_A(A, 2, hooks)
    if O.attempt == 'A2' and not O.hold: attempt()
    if O.raise_at == 'A2': raise_l()
    enqueue(A, O.extra); flush_pend()
    A.nop(2)
    for k in range(24):
        A(f'    v_mov_b32 v{V_O+k}, 0')
    get_qk(A)
    sched = O.sched.split()
    for i, st in enumerate(sched):
        k = int(st[1])
        if st[0] == 'A':
            stage_A(A, k, quota=O.qa)
        else:
            nxtB = next((j for j in range(i + 1, len(sched)) if sched[j][0] == 'B'), len(sched))
            strict = any(x[0] == 'A' and int(x[1]) % 3 == k % 3 for x in sched[i + 1:nxtB]) or k == 8
            stage_B(A, k, quota=O.qb, defer=(O.defer and k != 8), strict=strict)
    epilogue(A)
    lr = A.label('TR'); lg = A.label('TG')
    A(f'    s_cmp_eq_u32 s{S_ROLE}, {R_R}')
    A(f'    s_cbranch_scc0 {lr}')
    role_R(A)
    A('    s_branch K_FIN')
    A(f'{lr}:')
    A(f'    s_cmp_eq_u32 s{S_ROLE}, {R_G1}')
    A(f'    s_cbranch_scc1 {lg}')
    A(f'    s_cmp_eq_u32 s{S_ROLE}, {R_G2}')
    A(f'    s_cbranch_scc0 K_FIN')
    A(f'{lg}:')
    role_G(A)
    A('K_FIN:')
    if O.stamp:
        A('    s_waitcnt vmcnt(0)')
        A.stamp('end')
        A(f"""    s_lshl_b32 s42, s{S_WG}, 2
    s_add_u32 s42, s42, s{S_WAVE}
    s_lshl_b32 s42, s42, 8
    s_add_u32 s42, s42, {WS_STAMP}
    v_lshlrev_b32 v4, 2, v{V_LANE}
    v_add_u32 v4, s42, v4
    global_store_dword v4, v{V_STAMP}, s[{S_WS}:{S_WS+1}]""")
    A('K_END:')
    A('    s_endpgm')
    assert Stream.nxt >= 27
    return A

def build():
    A = build_kernel()
    txt = A.text()
    for p in check_hazards(txt): print('HAZARD', p, file=sys.stderr)
    ref = open('standalone__detection_seg_dino__vision.s.ref').read().split('\n')
    top = [l for l in ref if l.startswith(';') and '@launch' not in l and 'Override launch' not in l and 'grid=ceil' not in l][:12]
    out = '\n'.join(top) + '\n'
    out += f'; @launch grid=(256,1,1) block=(256,1,1) lds={LDS_BYTES}\n'
    out += '.amdgcn_target "amdgcn-amd-amdhsa--gfx950"\n' + txt
    out += f""".section .rodata,"a"
.p2align 6
.amdhsa_kernel {NAME}
  .amdhsa_next_free_vgpr {256 + NACC}
  .amdhsa_next_free_sgpr 96
  .amdhsa_accum_offset 256
  .amdhsa_group_segment_fixed_size 0
  .amdhsa_kernarg_size 80
  .amdhsa_user_sgpr_count 2
  .amdhsa_user_sgpr_kernarg_segment_ptr 1
  .amdhsa_system_sgpr_workgroup_id_x 1
  .amdhsa_float_denorm_mode_32 3
.end_amdhsa_kernel
"""
    return out, A.labels

if __name__ == '__main__':
    path = sys.argv[1]
    for o in (sys.argv[2].split(',') if len(sys.argv) > 2 else []):
        if o == 'stamp': O.stamp = True
        elif o == 'plain': O.nt = ''
        elif o == 'nodefer': O.defer = False
        elif o == 'nocpf': O.cpf = False
        elif o.startswith('hold='): O.hold = int(o[5:])
        elif o.startswith('s2mode='): O.s2mode = o[7:]
        elif o == 's2drain': O.s2drain = True
        elif o == 'touch': O.touch = True
        elif o.startswith('fine='): O.fine = int(o[5:])
        elif o.startswith('qa='): O.qa = int(o[3:])
        elif o.startswith('s2att='): O.s2att = int(o[6:])
        elif o.startswith('qb='): O.qb = int(o[3:])
        elif o.startswith('att='): O.attempt = o[4:]
        elif o.startswith('extra='): O.extra = int(o[6:])
        elif o.startswith('l0='): O.l0 = int(o[3:])
        elif o.startswith('raise='): O.raise_at = o[6:]
        elif o.startswith('sched='): O.sched = o[6:].replace('-', ' ')
    out, labels = build()
    open(path, 'w').write(out)
    if O.stamp: open(path + '.labels', 'w').write(','.join(labels))
    print('wrote', path, len(out), 'bytes;', out.count('\n'), 'lines')
```

```python
import sys, struct, math
from asmlib import *

def f2u(x): return struct.unpack('<I', struct.pack('<f', x))[0]
def lit(x): return f'0x{f2u(x):08x}'
NAME = 'standalone__detection_seg_dino__vision_kernel'

class Opt:
    stamp = False
    nt = ' nt'
    extra = 0
    s1mid = False
    lazy = True
    q0 = 3
    rcomb = False
    hold = 0
    s2mode = 'spin0'
    s2drain = True
    cpf = True
    touch = False
    wsoff = 0
    fine = -1
    defer = True
    s2att = 1
    qa = 2
    qb = 1
    spread = True
    l0 = 2
    raise_at = 'A2'
    attempt = 'A2b'
    sched = 'B0 A3 B1 B2 A4 B3 B4 A5 B5 A6 B6 A7 B7 A8 B8'
O = Opt()

WS_EPOCH = 0x0
WS_QG    = 0x1000
WS_QKG   = 0x8000
WS_CTXN  = 0x10000
WS_CTX   = 0x18000
WS_ML    = 0x20000
WS_PART  = 0x100000
WS_STAMP = 0x800000
SEL_LO, SEL_HI = 0x00003F80, 0x3F800000

RAW = [8, 68]
V_T   = 128
V_STG = 152
V_O   = 160
V_S, V_R, V_G, V_D = 184, 188, 192, 196
V_P   = 200
V_MREF, V_L, V_SQ, V_ONEF, V_EPS = 202, 203, 204, 205, 206
V_F0OFF, V_F1OFF = 207, 208
V_LDSW, V_LDSR0, V_LDSR1, V_LDSF = 209, 210, 211, 212
V_PW, V_PR, V_MB, V_LANE = 213, 214, 215, 216
V_CW, V_CR0, V_CR1, V_CF = 217, 218, 219, 220
V_U = 221
V_FW, V_FR = 254, 255
V_GA = 222
V_L16 = 223
V_GB = 224
V_Q = 248
V_STAMP = 253
A_QK, A_X, A_F, A_P, A_ONES, A_W = 0, 48, 96, 144, 152, 156
NACC = 180
S_F0, S_F1, S_WS = 4, 6, 8
S_BSET = [10, 44]
S_WAVE, S_WG, S_T = 16, 17, 19
S_SELLO, S_SELHI, S_C384 = 20, 21, 23
S_MASK = 26
S_TMP = 34
S_TAG, S_EPOCH, S_ROLE, S_JOB = 50, 51, 52, 53
S_Q, S_OUT = 54, 58
S_SPIN = 60
S_THR = 61
S_EX = 62
S_WQ, S_WK, S_WV, S_WO = 64, 66, 68, 70
R_NONE, R_S1, R_S2, R_G1, R_G2, R_R = 0, 1, 2, 3, 4, 5
SPIN_MAX = 1 << 18
SLOT = 49152
L_QKL  = 3 * SLOT
L_PBUF = L_QKL + 12288
L_MBUF = L_PBUF + 2048
L_LBUF = L_MBUF + 64
L_FLAG = L_LBUF + 512
LDS_BYTES = L_FLAG + 1024
assert LDS_BYTES <= 163840
L_HEAD = 2 * SLOT
L_STAT = L_HEAD + 6144
L_RED_H = L_HEAD
L_TR   = SLOT
L_RED_T = SLOT + 4608
L_RB   = 0

class Gen(Asm):
    def __init__(self):
        super().__init__()
        self.vm = []
        self.uid = 0
        self.nstamp = 0
        self.labels = []
        self.done = set()
    def vmop(self, line, tag):
        self(line); self.vm.append(tag)
    def vmwait(self, tag):
        hits = [i for i, t in enumerate(self.vm) if t == tag]
        if not hits:
            assert tag in self.done, tag
            return
        idx = hits[-1]
        self.done.update(self.vm[:idx + 1])
        n = len(self.vm) - 1 - idx
        assert n <= 63, n
        self(f'    s_waitcnt vmcnt({n})')
        self.vm = self.vm[idx + 1:]
    def vmall(self):
        self('    s_waitcnt vmcnt(0)'); self.vm = []
    def label(self, base):
        self.uid += 1
        return f'{base}_{self.uid}'
    def stamp(self, name):
        if not O.stamp: return
        idx = len(self.labels)
        assert idx < 64
        self.labels.append(name)
        self('    s_memrealtime s[40:41]')
        self('    s_waitcnt lgkmcnt(0)')
        self(f'    v_writelane_b32 v{V_STAMP}, s40, {idx}')

def xgroup_reduce(A, op, v, t):
    A(f'    v_mov_b32 v{t}, v{v}')
    A.nop(2)
    A(f'    v_permlane32_swap_b32 v{t}, v{v}')
    A(f'    {op} v{v}, v{v}, v{t}')
    A(f'    v_mov_b32 v{t}, v{v}')
    A.nop(2)
    A(f'    v_permlane16_swap_b32 v{t}, v{v}')
    A(f'    {op} v{v}, v{v}, v{t}')

def multi_xgroup(A, op, vs, ts):
    for sw in ('32', '16'):
        for v, t in zip(vs, ts): A(f'    v_mov_b32 v{t}, v{v}')
        if len(vs) < 3: A.nop(3 - len(vs))
        for v, t in zip(vs, ts): A(f'    v_permlane{sw}_swap_b32 v{t}, v{v}')
        for v, t in zip(vs, ts): A(f'    {op} v{v}, v{v}, v{t}')

def multi_row(A, op, vs, rots=(8, 4, 2, 1)):
    for rot in rots:
        if len(vs) < 3: A.nop(3 - len(vs))
        for v in vs: A(f'    {op}_dpp v{v}, v{v}, v{v} row_ror:{rot} row_mask:0xf bank_mask:0xf')

def tile_bases(A, u):
    S_B0 = S_BSET[u]; S_B1 = S_B0 + 2; S_BF = S_B0 + 4
    A(f'''    s_mul_hi_u32 s{S_TMP}, s{S_T}, 89478486
    s_mul_i32 s{S_TMP+1}, s{S_TMP}, 48
    s_sub_u32 s{S_TMP+1}, s{S_T}, s{S_TMP+1}
    s_mul_i32 s{S_TMP}, s{S_TMP}, 589824
    s_mul_i32 s{S_TMP+1}, s{S_TMP+1}, 6144
    s_add_u32 s{S_TMP}, s{S_TMP}, s{S_TMP+1}
    s_add_u32 s{S_B0}, s{S_F0}, s{S_TMP}
    s_addc_u32 s{S_B0+1}, s{S_F0+1}, 0
    s_add_u32 s{S_B1}, s{S_B0}, 294912
    s_addc_u32 s{S_B1+1}, s{S_B0+1}, 0
    s_mul_i32 s{S_TMP}, s{S_T}, 3072
    s_add_u32 s{S_BF}, s{S_F1}, s{S_TMP}
    s_addc_u32 s{S_BF+1}, s{S_F1+1}, 0
    s_add_u32 s{S_T}, s{S_T}, 4''')

def issue_item(A, j):
    if j > 26: return
    tile, third = divmod(j, 3); u = tile & 1
    if third == 0 and j > 0: tile_bases(A, u)
    S_B0 = S_BSET[u]; S_B1 = S_B0 + 2; S_BF = S_B0 + 4
    b = RAW[u]
    r = b + 48 + 4 * third
    A.vmop(f'    global_load_dwordx4 v[{r}:{r+3}], v{V_F1OFF}, s[{S_BF}:{S_BF+1}] offset:{third*256}{O.nt}', f'item{j}')
    for jj in range(4):
        dy, dx = jj >> 1, jj & 1
        r = b + 16 * third + 4 * jj
        base = S_B1 if dy else S_B0
        A.vmop(f'    global_load_dwordx4 v[{r}:{r+3}], v{V_F0OFF}, s[{base}:{base+1}] offset:{dx*768+third*256}{O.nt}', f'item{j}')

class Stream:
    nxt = 0
    done = 0
    pend = []
def enqueue(A, n=1):
    for _ in range(n):
        if Stream.nxt <= 26 and Stream.nxt < Stream.done + 6:
            Stream.pend += item_steps(A)
def pop(n=1):
    for _ in range(n):
        if Stream.pend: Stream.pend.pop(0)()
def flush_pend():
    pop(len(Stream.pend))
def issue_next(A, n=1):
    for _ in range(n):
        issue_item(A, Stream.nxt); Stream.nxt += 1

def item_steps(A):
    j = Stream.nxt; Stream.nxt += 1
    if j > 26: return []
    tile, third = divmod(j, 3); u = tile & 1
    S_B0 = S_BSET[u]; S_B1 = S_B0 + 2; S_BF = S_B0 + 4
    b = RAW[u]
    steps = []
    def first():
        if third == 0: tile_bases(A, u)
        r = b + 48 + 4 * third
        A.vmop(f'    global_load_dwordx4 v[{r}:{r+3}], v{V_F1OFF}, s[{S_BF}:{S_BF+1}] offset:{third*256}{O.nt}', f'item{j}')
    steps.append(first)
    for jj in range(4):
        def f(jj=jj):
            dy, dx = jj >> 1, jj & 1
            r = b + 16 * third + 4 * jj
            base = S_B1 if dy else S_B0
            A.vmop(f'    global_load_dwordx4 v[{r}:{r+3}], v{V_F0OFF}, s[{base}:{base+1}] offset:{dx*768+third*256}{O.nt}', f'item{j}')
        steps.append(f)
    return steps

def stage_A(A, k, hooks=None, quota=3, stamp=True):
    hooks = hooks or {}
    u = k & 1; b = RAW[u]; T = V_T
    A(f'    v_add_u32 v{V_CW}, {(k % 3) * SLOT}, v{V_LDSW}')
    if PV.pending: A('    s_waitcnt lgkmcnt(0)')
    units = [(third, dd) for third in range(3) for dd in range(4)]
    def tset(i): return T + 10 * (i & 1)
    def U(i):
        third, dd = units[i]; t = tset(i); f1 = b + 48 + 4 * third + dd
        return [f'    v_lshlrev_b32 v{t+8}, 16, v{f1}', f'    v_and_b32 v{t+9}, 0xffff0000, v{f1}']
    def D(i):
        third, dd = units[i]; t = tset(i)
        return ([f'    v_dot2_f32_bf16 v{t+j}, v{b+16*third+4*j+dd}, s{S_SELLO}, v{t+8}' for j in range(4)] +
                [f'    v_dot2_f32_bf16 v{t+4+j}, v{b+16*third+4*j+dd}, s{S_SELHI}, v{t+9}' for j in range(4)])
    def C(i):
        t = tset(i); o = V_STG + 4 * (i & 1)
        return [f'    v_cvt_pk_bf16_f32 v{o+kk}, v{t+2*kk}, v{t+2*kk+1}' for kk in range(4)]
    def W(i):
        third, dd = units[i]; o = V_STG + 4 * (i & 1)
        return f'    ds_write_b128 v{V_CW}, v[{o}:{o+3}] offset:{(third*4+dd)*1024}'
    enq = {0: 1, 4: 1, 8: 1} if quota == 3 else ({0: 1, 6: 1} if quota == 2 else ({0: 1} if quota == 1 else {}))
    def ensure(j):
        while any(True for _ in Stream.pend) and f'item{j}' not in A.done and A.vm.count(f'item{j}') < 5: pop()
        while Stream.nxt <= j: Stream.pend += item_steps(A); flush_pend()
    ensure(3 * k); A.vmwait(f'item{3*k}')
    enqueue(A, enq.get(0, 0))
    u0 = U(0); d0 = D(0)
    for l in u0 + d0[:4]: A(l)
    pop()
    for l in d0[4:]: A(l)
    for i in range(1, 12):
        if i % 4 == 0:
            Stream.done = 3 * k + i // 4
            ensure(3 * k + i // 4); A.vmwait(f'item{3*k + i//4}')
        enqueue(A, enq.get(i, 0))
        for l in U(i): A(l)
        if quota == 3 and i % 4 in (0, 2): pop()
        d = D(i); c = C(i - 1)
        for kk in range(4):
            A(d[kk]); A(c[kk])
        pv_pop(A, 2)
        A(W(i - 1))
        pop()
        for kk in range(4, 8): A(d[kk])
        if i % 4 == 3 and (i // 4) in hooks: hooks[i // 4]()
    Stream.done = 3 * k + 3
    flush_pend()
    A.nop(1)
    for l in C(11): A(l)
    pv_flush(A)
    A(W(11))
    if stamp: A.stamp(f'A{k}')

class PV:
    pending = []
def pv_steps():
    out = []
    for wp in range(4):
        for third in range(3):
            for e1 in range(2):
                f = A_F + (wp * 3 + third) * 4 + 2 * e1
                o = V_O + (third * 2 + e1) * 4
                out.append(f'    v_mfma_f32_16x16x16_bf16 v[{o}:{o+3}], a[{f}:{f+1}], a[{A_P+2*wp}:{A_P+2*wp+1}], v[{o}:{o+3}]')
    return out
def pv_pop(A, n=1):
    for _ in range(n):
        if PV.pending: A(PV.pending.pop(0))
def pv_flush(A):
    pv_pop(A, len(PV.pending))

def f_reads(A):
    for wp in range(4):
        for third in range(3):
            r = A_F + (wp * 3 + third) * 4
            A(f'    ds_read_b128 a[{r}:{r+3}], v{V_CF} offset:{wp*12288 + third*4096}')
def p_reads(A):
    for wp in range(4):
        A(f'    ds_read_b64 a[{A_P+2*wp}:{A_P+2*wp+1}], v{V_PR} offset:{wp*512}')

def eager_softmax(A, k, strict, fine):
    T = V_T
    for r in range(4):
        A(f'    v_fma_f32 v{V_S+r}, -v{V_R+r}, v{V_SQ}, v{V_S+r}')
    for r in range(4):
        A(f'    v_mul_f32 v{V_S+r}, v{V_S+r}, v{V_D+r}')
    A(f'    v_max3_f32 v{T}, v{V_S}, v{V_S+1}, v{V_S+2}')
    A(f'    v_max_f32 v{T}, v{T}, v{V_S+3}')
    if fine: A.stamp('b_z')
    A(f'    ds_max_f32 v{V_MB}, v{T}')
    A('    s_waitcnt lgkmcnt(0)')
    if fine: A.stamp('b_pre1')
    A('    s_barrier')
    if fine: A.stamp('b_post1')
    A(f'    ds_read_b32 v{T+1}, v{V_MB}')
    A('    s_waitcnt lgkmcnt(0)')
    if fine: A.stamp('b_m(+F)')
    A(f'    v_sub_f32 v{T+2}, v{V_MREF}, v{T+1}')
    for r in range(4):
        A(f'    v_sub_f32 v{V_S+r}, v{V_S+r}, v{T+1}')
    A(f'    v_exp_f32 v{T+2}, v{T+2}')
    for r in range(4):
        A(f'    v_exp_f32 v{V_S+r}, v{V_S+r}')
    A(f'    v_mov_b32 v{V_MREF}, v{T+1}')
    for r in range(4):
        A(f'    v_mul_f32 v{T+4+r}, v{V_S+r}, v{V_D+r}')
    A(f'    v_add_f32 v{V_S}, v{V_S}, v{V_S+1}')
    A(f'    v_cvt_pk_bf16_f32 v{V_P}, v{T+4}, v{T+5}')
    A(f'    v_cvt_pk_bf16_f32 v{V_P+1}, v{T+6}, v{T+7}')
    A(f'    v_add_f32 v{V_S+2}, v{V_S+2}, v{V_S+3}')
    A(f'    ds_write_b64 v{V_PW}, v[{V_P}:{V_P+1}]')
    for wp in range(4):
        for third in range(3):
            r = A_F + (wp * 3 + third) * 4
            A(f'    ds_read_b128 a[{r}:{r+3}], v{V_CF} offset:{wp*12288 + third*4096}')
    A(f'    v_add_f32 v{V_S}, v{V_S}, v{V_S+2}')
    A(f'    v_fma_f32 v{V_L}, v{V_L}, v{T+2}, v{V_S}')
    A(f'    v_mul_f32 v{V_U}, v{V_U}, v{T+2}')
    A(f'    v_lshlrev_b32 v{T+4}, 16, v{V_P}')
    A(f'    v_and_b32 v{T+5}, 0xffff0000, v{V_P}')
    A(f'    v_lshlrev_b32 v{T+6}, 16, v{V_P+1}')
    A(f'    v_and_b32 v{T+7}, 0xffff0000, v{V_P+1}')
    for r in range(4):
        A(f'    v_fmac_f32 v{V_U}, v{T+4+r}, v{V_R+r}')
    for kk in range(0, 24, 2):
        A(f'    v_pk_mul_f32 v[{V_O+kk}:{V_O+kk+1}], v[{V_O+kk}:{V_O+kk+1}], v[{T+2}:{T+3}] op_sel_hi:[1,0]')
    if fine: A.stamp('b_P')
    A(f'    s_waitcnt lgkmcnt({0 if strict else 12})')
    A('    s_barrier')
    if fine: A.stamp('b_post2')
    for wp in range(4):
        A(f'    ds_read_b64 a[{A_P+2*wp}:{A_P+2*wp+1}], v{V_PR} offset:{wp*512}')

def lazy_softmax(A, k, strict, fine):
    T = V_T; AR = T + 8; PP = T + 4; DL = T + 12; DU = T + 13
    slow = A.label('BS'); join = A.label('BJ')
    def p_from_args():
        for r in range(4): A(f'    v_exp_f32 v{AR+r}, v{AR+r}')
        A('    s_nop 0')
        for r in range(0, 4, 2):
            A(f'    v_pk_mul_f32 v[{PP+r}:{PP+r+1}], v[{AR+r}:{AR+r+1}], v[{V_D+r}:{V_D+r+1}]')
        A(f'    v_cvt_pk_bf16_f32 v{V_P}, v{PP}, v{PP+1}')
        A(f'    v_cvt_pk_bf16_f32 v{V_P+1}, v{PP+2}, v{PP+3}')
        A(f'    ds_write_b64 v{V_PW}, v[{V_P}:{V_P+1}]')
    def increments():
        A(f'    v_add_f32 v{AR}, v{AR}, v{AR+1}')
        A(f'    v_add_f32 v{AR+2}, v{AR+2}, v{AR+3}')
        A(f'    v_lshlrev_b32 v{PP}, 16, v{V_P}')
        A(f'    v_and_b32 v{PP+1}, 0xffff0000, v{V_P}')
        A(f'    v_lshlrev_b32 v{PP+2}, 16, v{V_P+1}')
        A(f'    v_and_b32 v{PP+3}, 0xffff0000, v{V_P+1}')
        A(f'    v_add_f32 v{DL}, v{AR}, v{AR+2}')
        A(f'    v_mul_f32 v{DU}, v{PP}, v{V_R}')
        A(f'    v_mul_f32 v{PP}, v{PP+1}, v{V_R+1}')
        A(f'    v_fmac_f32 v{DU}, v{PP+2}, v{V_R+2}')
        A(f'    v_fmac_f32 v{PP}, v{PP+3}, v{V_R+3}')
        A(f'    v_add_f32 v{DU}, v{DU}, v{PP}')
    for r in range(0, 4, 2):
        A(f'    v_pk_fma_f32 v[{V_S+r}:{V_S+r+1}], v[{V_R+r}:{V_R+r+1}], v[{V_SQ}:{V_SQ+1}], v[{V_S+r}:{V_S+r+1}] op_sel_hi:[1,0,1] neg_lo:[1,0,0] neg_hi:[1,0,0]')
    for r in range(0, 4, 2):
        A(f'    v_pk_fma_f32 v[{AR+r}:{AR+r+1}], v[{V_S+r}:{V_S+r+1}], v[{V_D+r}:{V_D+r+1}], v[{V_MREF}:{V_MREF+1}] op_sel_hi:[1,1,0] neg_lo:[0,0,1] neg_hi:[0,0,1]')
    A(f'    v_max3_f32 v{T}, v{AR}, v{AR+1}, v{AR+2}')
    A(f'    v_max_f32 v{T}, v{T}, v{AR+3}')
    A(f'    v_cmp_lt_f32 vcc, s{S_THR}, v{T}')
    if fine: A.stamp('b_z')
    p_from_args()
    A(f'    v_cndmask_b32 v{T}, 0, 1, vcc')
    A(f'    ds_write_b32 v{V_FW}, v{T}')
    increments()
    if fine: A.stamp('b_P')
    A('    s_waitcnt lgkmcnt(0)')
    A('    s_barrier')
    if fine: A.stamp('b_post')
    A(f'    ds_read_b128 v[{T}:{T+3}], v{V_FR}')
    p_reads(A)
    f_reads(A)
    A('    s_waitcnt lgkmcnt(15)')
    A(f'    v_or3_b32 v{T}, v{T}, v{T+1}, v{T+2}')
    A(f'    v_or_b32 v{T}, v{T}, v{T+3}')
    A(f'    v_cmp_ne_u32 vcc, 0, v{T}')
    A(f'    s_cbranch_vccz {join}')
    for r in range(4): A(f'    v_mul_f32 v{AR+r}, v{V_S+r}, v{V_D+r}')
    A(f'    v_max3_f32 v{T}, v{AR}, v{AR+1}, v{AR+2}')
    A(f'    v_max_f32 v{T}, v{T}, v{AR+3}')
    A(f'    ds_max_f32 v{V_MB}, v{T}')
    A('    s_waitcnt lgkmcnt(0)')
    A('    s_barrier')
    A(f'    ds_read_b32 v{T+1}, v{V_MB}')
    A('    s_waitcnt lgkmcnt(0)')
    A(f'    v_sub_f32 v{T+2}, v{V_MREF}, v{T+1}')
    for r in range(4): A(f'    v_sub_f32 v{AR+r}, v{AR+r}, v{T+1}')
    A(f'    v_exp_f32 v{T+2}, v{T+2}')
    A(f'    v_mov_b32 v{V_MREF}, v{T+1}')
    p_from_args()
    A(f'    v_mul_f32 v{V_L}, v{V_L}, v{T+2}')
    A(f'    v_mul_f32 v{V_U}, v{V_U}, v{T+2}')
    for kk in range(0, 24, 2):
        A(f'    v_pk_mul_f32 v[{V_O+kk}:{V_O+kk+1}], v[{V_O+kk}:{V_O+kk+1}], v[{T+2}:{T+3}] op_sel_hi:[1,0]')
    increments()
    A('    s_waitcnt lgkmcnt(0)')
    A('    s_barrier')
    p_reads(A)
    A(f'{join}:')
    A(f'    v_add_f32 v{V_L}, v{V_L}, v{DL}')
    A(f'    v_add_f32 v{V_U}, v{V_U}, v{DU}')
    if strict and k != 8:
        A('    s_waitcnt lgkmcnt(0)')
        A('    s_barrier')

def stage_B(A, k, quota=1, defer=True, strict=True):
    T = V_T; so = (k % 3) * SLOT
    enqueue(A, quota)
    A(f'    v_add_u32 v{V_CR0}, {so}, v{V_LDSR0}')
    A(f'    v_add_u32 v{V_CR1}, {so}, v{V_LDSR1}')
    A(f'    v_add_u32 v{V_CF}, {so}, v{V_LDSF}')
    if PV.pending: A('    s_waitcnt lgkmcnt(0)')
    n = 0
    for bb in range(12):
        for a2 in range(2):
            r = A_X + 4 * bb + 2 * a2
            A(f'    ds_read_b64_tr_b16 a[{r}:{r+1}], v{V_CR0+a2} offset:{bb*1024}')
            n += 1
            pv_pop(A)
    pv_flush(A)
    fine = (O.fine == k)
    if fine: A.stamp('b_tr')
    def X(bb): return f'a[{A_X+4*bb}:{A_X+4*bb+3}]'
    def G(bb): A(f'    v_mfma_f32_16x16x32_bf16 v[{V_G}:{V_G+3}], {X(bb)}, {X(bb)}, ' + ('0' if bb == 0 else f'v[{V_G}:{V_G+3}]'))
    def R(bb): A(f'    v_mfma_f32_16x16x32_bf16 v[{V_R}:{V_R+3}], {X(bb)}, a[{A_ONES}:{A_ONES+3}], ' + ('0' if bb == 0 else f'v[{V_R}:{V_R+3}]'))
    def S(bb): A(f'    v_mfma_f32_16x16x32_bf16 v[{V_S}:{V_S+3}], {X(bb)}, a[{A_QK+4*bb}:{A_QK+4*bb+3}], ' + ('0' if bb == 0 else f'v[{V_S}:{V_S+3}]'))
    for bb in range(12):
        if bb % 3 == 0:
            A(f'    s_waitcnt lgkmcnt({min(15, 24 - 2*(bb+3))})')
        G(bb)
        if bb % 2 == 1 and bb < 11: pop()
    flush_pend()
    if fine: A.stamp('b_G')
    for bb in range(8): R(bb)
    for r in range(4):
        src0 = '0' if r == 0 else f'v{T}'
        A(f'    v_cndmask_b32 v{T}, {src0}, v{V_G+r}, s[{S_MASK+2*r}:{S_MASK+2*r+1}]')
        R(8 + r)
    S(0)
    A(f'    v_mfma_f32_16x16x4_f32 v[{V_D}:{V_D+3}], v{T}, v{V_ONEF}, 0')
    for bb in range(1, 7): S(bb)
    for r in range(4):
        A(f'    v_mul_f32 v{V_R+r}, s{S_C384}, v{V_R+r}')
        S(7 + r)
    for r in range(4):
        A(f'    v_fma_f32 v{T+r}, -v{V_R+r}, v{V_R+r}, v{V_EPS}')
        if r == 1: S(11)
    for r in range(4):
        A(f'    v_fma_f32 v{V_D+r}, v{V_D+r}, s{S_C384}, v{T+r}')
    for r in range(4):
        A(f'    v_rsq_f32 v{V_D+r}, v{V_D+r}')
    if O.lazy:
        lazy_softmax(A, k, strict, fine)
    else:
        eager_softmax(A, k, strict, fine)
    PV.pending = pv_steps()
    if not defer:
        A('    s_waitcnt lgkmcnt(0)')
        pv_flush(A)
    A.stamp(f'B{k}')

def gather_addr(A, ws_off):
    A(f'    s_mul_i32 s{S_TMP}, s{S_WAVE}, 6144')
    A(f'    s_add_u32 s{S_TMP}, s{S_TMP}, {ws_off + 2048}')
    A(f'    v_add_u32 v{V_GA}, s{S_TMP}, v{V_L16}')

def gather_issue(A, track=None):
    for kk in range(3):
        for h in range(2):
            r = V_GB + 8 * kk + 4 * h
            line = f'    global_load_dwordx4 v[{r}:{r+3}], v{V_GA}, s[{S_WS}:{S_WS+1}] offset:{kk*2048 + h*1024 - 2048} sc1'
            if track: A.vmop(line, track)
            else: A(line)

def gather_check(A):
    T = V_T
    for kk in range(3):
        A(f'    v_xor_b32 v{T+2*kk}, s{S_TAG}, v{V_GB+8*kk}')
        A(f'    v_xor_b32 v{T+2*kk+1}, s{S_TAG}, v{V_GB+8*kk+6}')
    A(f'    v_or3_b32 v{T}, v{T}, v{T+1}, v{T+2}')
    A(f'    v_or3_b32 v{T+3}, v{T+3}, v{T+4}, v{T+5}')
    A(f'    v_or_b32 v{T}, v{T}, v{T+3}')
    A(f'    v_cmp_ne_u32 vcc, 0, v{T}')

def spin_guard(A, lbl_retry):
    A(f'    s_add_u32 s{S_SPIN}, s{S_SPIN}, 1')
    A(f'    s_cmp_lt_u32 s{S_SPIN}, {SPIN_MAX}')
    A(f'    s_cbranch_scc0 K_END')
    A(f'    s_sleep 1')

def gather_loop(A):
    l = A.label('GL'); d = A.label('GD')
    A(f'{l}:')
    gather_issue(A)
    A('    s_waitcnt vmcnt(0)')
    gather_check(A)
    A(f'    s_cbranch_vccz {d}')
    spin_guard(A, l)
    A(f'    s_branch {l}')
    A(f'{d}:')

def publish8(A, dreg, ws_off_sgpr):
    A(f'    v_mov_b32 v{dreg}, s{S_TAG}')
    A(f'    v_mov_b32 v{dreg+1}, 0')
    A(f'    v_mov_b32 v{dreg+6}, s{S_TAG}')
    A(f'    v_mov_b32 v{dreg+7}, 0')
    A(f'    v_add_u32 v1, s{ws_off_sgpr}, v{V_L16}')
    A(f'    global_store_dwordx4 v1, v[{dreg}:{dreg+3}], s[{S_WS}:{S_WS+1}] sc1')
    A(f'    global_store_dwordx4 v1, v[{dreg+4}:{dreg+7}], s[{S_WS}:{S_WS+1}] offset:1024 sc1')

def slab_addr(A, perm):
    A(f'''    v_lshrrev_b32 v1, 2, v{V_LANE}
    s_mul_i32 s{S_TMP}, s{S_WAVE}, 96
    v_add_u32 v1, s{S_TMP}, v1            ; p (x = 0)
    v_and_b32 v{V_T}, 3, v{V_LANE}
    v_lshlrev_b32 v{V_T}, 4, v{V_T}
    s_lshl_b32 s{S_TMP}, s{S_JOB}, 6
    v_add_u32 v{V_T}, s{S_TMP}, v{V_T}''')
    for x in range(6):
        d = 2 + x
        if not perm:
            A(f'    v_add_u32 v{d}, {16*x}, v1')
        else:
            t = V_T + 1; kk = x >> 1
            A(f"""    v_lshrrev_b32 v{t}, 2, v{V_LANE}
    v_add_u32 v{t}, {16*(x&1)}, v{t}          ; p & 31
    v_bfe_u32 v{t+1}, v{t}, 1, 2              ; dw
    v_cmp_eq_u32 vcc, 3, v{t+1}
    v_lshlrev_b32 v{t+1}, 7, v{t+1}
    v_add_u32 v{t+1}, {32*kk}, v{t+1}
    v_mov_b32 v{t+2}, {kk*128 + 96}
    v_cndmask_b32 v{t+1}, v{t+1}, v{t+2}, vcc
    v_lshrrev_b32 v{t+2}, 3, v{t}
    v_lshlrev_b32 v{t+2}, 3, v{t+2}           ; 8g
    v_and_b32 v{t}, 1, v{t}
    v_add3_u32 v{t+1}, v{t+1}, v{t+2}, v{t}
    s_lshl_b32 s{S_TMP+1}, s{S_WAVE}, 1
    v_add_u32 v{d}, s{S_TMP+1}, v{t+1}""")
        A(f'    v_mul_u32_u24 v{d}, 768, v{d}')
        A(f'    v_add_u32 v{d}, v{d}, v{V_T}')

def slab_loads(A, sptr, dst, track=None):
    for x in range(6):
        line = f'    global_load_dwordx4 v[{dst+4*x}:{dst+4*x+3}], v{2+x}, s[{sptr}:{sptr+1}]'
        if track: A.vmop(line, track)
        else: A(line)

def slab_to_operands(A, src, lds_base):
    A(f'''    s_mul_i32 s{S_TMP}, s{S_WAVE}, 12288
    s_add_u32 s{S_TMP}, s{S_TMP}, {lds_base}
    v_add_u32 v1, s{S_TMP}, v{V_L16}''')
    for x in range(6):
        A(f'    ds_write_b128 v1, v[{src+4*x}:{src+4*x+3}] offset:{x*1024}')
    A(f'''    v_lshrrev_b32 v2, 4, v{V_LANE}
    v_lshlrev_b32 v2, 9, v2               ; g*512
    v_bfe_u32 v3, v{V_LANE}, 2, 2
    v_lshlrev_b32 v3, 6, v3               ; r*64
    v_and_b32 v4, 3, v{V_LANE}
    v_lshlrev_b32 v4, 4, v4               ; c*16
    v_add3_u32 v2, v2, v3, v4
    v_add_u32 v2, s{S_TMP}, v2''')
    for kk in range(3):
        for tb in range(2):
            for hf in range(2):
                r = A_W + (kk * 2 + tb) * 4 + 2 * hf
                A(f'    ds_read_b64_tr_b16 a[{r}:{r+1}], v2 offset:{kk*2048 + hf*256 + tb*8}')

def gemm6(A, bregs):
    for kk in range(3):
        for tb in range(2):
            d = V_S if tb == 0 else V_R
            c = '0' if kk == 0 else f'v[{d}:{d+3}]'
            w = A_W + (kk * 2 + tb) * 4
            A(f'    v_mfma_f32_16x16x32_bf16 v[{d}:{d+3}], a[{w}:{w+3}], {bregs(kk)}, {c}')

def cross_wave_sum(A, red):
    skip = A.label('XW'); w0 = A.label('XW0')
    A.nop(8)
    A(f'''    s_cmp_eq_u32 s{S_WAVE}, 0
    s_cbranch_scc1 {w0}
    s_sub_u32 s{S_TMP}, s{S_WAVE}, 1
    s_lshl_b32 s{S_TMP}, s{S_TMP}, 11
    s_add_u32 s{S_TMP}, s{S_TMP}, {red}
    v_add_u32 v1, s{S_TMP}, v{V_L16}
    ds_write_b128 v1, v[{V_S}:{V_S+3}]
    ds_write_b128 v1, v[{V_R}:{V_R+3}] offset:1024
    s_waitcnt lgkmcnt(0)
{w0}:
    s_barrier
    s_cmp_eq_u32 s{S_WAVE}, 0
    s_cbranch_scc0 {skip}
    v_add_u32 v1, {red}, v{V_L16}''')
    T = V_T
    for w in range(3):
        A(f'    ds_read_b128 v[{T+8*w}:{T+8*w+3}], v1 offset:{w*2048}')
        A(f'    ds_read_b128 v[{T+8*w+4}:{T+8*w+7}], v1 offset:{w*2048+1024}')
    for w in range(3):
        A(f'    s_waitcnt lgkmcnt({4 - 2*w})')
        for r in range(4):
            A(f'    v_add_f32 v{V_S+r}, v{V_S+r}, v{T+8*w+r}')
        for r in range(4):
            A(f'    v_add_f32 v{V_R+r}, v{V_R+r}, v{T+8*w+4+r}')
    return skip

def cross_wave_sum4(A, red):
    skip = A.label('XV'); w0 = A.label('XV0')
    A.nop(8)
    A(f"""    s_cmp_eq_u32 s{S_WAVE}, 0
    s_cbranch_scc1 {w0}
    s_sub_u32 s{S_TMP}, s{S_WAVE}, 1
    s_lshl_b32 s{S_TMP}, s{S_TMP}, 10
    s_add_u32 s{S_TMP}, s{S_TMP}, {red}
    v_add_u32 v1, s{S_TMP}, v{V_L16}
    ds_write_b128 v1, v[{V_S}:{V_S+3}]
    s_waitcnt lgkmcnt(0)
{w0}:
    s_barrier
    s_cmp_eq_u32 s{S_WAVE}, 0
    s_cbranch_scc0 {skip}
    v_add_u32 v1, {red}, v{V_L16}""")
    T = V_T
    for w in range(3):
        A(f'    ds_read_b128 v[{T+4*w}:{T+4*w+3}], v1 offset:{w*1024}')
    for w in range(3):
        A(f'    s_waitcnt lgkmcnt({2 - w})')
        for r in range(4):
            A(f'    v_add_f32 v{V_S+r}, v{V_S+r}, v{T+4*w+r}')
    return skip

def publish4(A, ws_base):
    T = V_T; odd = A.label('PB_O'); go = A.label('PB_G')
    A(f"""    v_cvt_pk_bf16_f32 v{T+2}, v{V_S}, v{V_S+1}
    v_cvt_pk_bf16_f32 v{T+3}, v{V_S+2}, v{V_S+3}
    v_mov_b32 v{T}, s{S_TAG}
    v_mov_b32 v{T+1}, 0
    v_mov_b32 v{T+4}, s{S_TAG}
    v_mov_b32 v{T+5}, 0
    s_lshl_b32 s{S_TMP}, s{S_JOB}, 10
    s_add_u32 s{S_TMP}, s{S_TMP}, {ws_base}
    v_add_u32 v1, s{S_TMP}, v{V_L16}
    s_bitcmp1_b32 s{S_JOB}, 0
    s_cbranch_scc1 {odd}
    global_store_dwordx4 v1, v[{T}:{T+3}], s[{S_WS}:{S_WS+1}] sc1
    s_branch {go}
{odd}:
    global_store_dwordx4 v1, v[{T+2}:{T+5}], s[{S_WS}:{S_WS+1}] sc1
{go}:""")

def gemm3(A, areg, breg):
    for kk in range(3):
        A(f'    v_mfma_f32_16x16x32_bf16 v[{V_S}:{V_S+3}], {areg(kk)}, {breg(kk)}, ' + ('0' if kk == 0 else f'v[{V_S}:{V_S+3}]'))

def pack_D(A, dreg):
    A(f'    v_cvt_pk_bf16_f32 v{dreg+2}, v{V_S}, v{V_S+1}')
    A(f'    v_cvt_pk_bf16_f32 v{dreg+3}, v{V_S+2}, v{V_S+3}')
    A(f'    v_cvt_pk_bf16_f32 v{dreg+4}, v{V_R}, v{V_R+1}')
    A(f'    v_cvt_pk_bf16_f32 v{dreg+5}, v{V_R+2}, v{V_R+3}')

def lin12_addr(A, nload, rowfn, dst=2):
    for x in range(nload):
        d = dst + x; t = V_T
        A(f"""    v_add_u32 v{t}, {64*x}, v{V_LANE}
    v_mul_u32_u24 v{t+1}, 43691, v{t}
    v_lshrrev_b32 v{t+1}, 19, v{t+1}      ; row
    v_mul_u32_u24 v{t+2}, 12, v{t+1}
    v_sub_u32 v{t+2}, v{t}, v{t+2}
    v_lshlrev_b32 v{t+2}, 4, v{t+2}       ; piece*16""")
        rowfn(t + 1)
        A(f"""    v_mul_u32_u24 v{t+1}, 768, v{t+1}
    v_add3_u32 v{d}, v{t+1}, v{t+2}, s{S_TMP+2}""")

def lin12_to_operands(A, src, nload, lds_off, dsts):
    A(f"""    s_mul_i32 s{S_TMP}, s{S_WAVE}, 12288
    s_add_u32 s{S_TMP}, s{S_TMP}, {L_HEAD + lds_off}
    v_add_u32 v1, s{S_TMP}, v{V_L16}""")
    for x in range(nload):
        A(f'    ds_write_b128 v1, v[{src+4*x}:{src+4*x+3}] offset:{x*1024}')
    A(f"""    v_and_b32 v2, 15, v{V_LANE}
    v_mul_u32_u24 v2, 192, v2
    v_lshrrev_b32 v3, 4, v{V_LANE}
    v_lshlrev_b32 v3, 4, v3
    v_add3_u32 v2, v2, v3, s{S_TMP}""")
    for (reg, rowblk, kk) in dsts:
        A(f'    ds_read_b128 {reg}, v2 offset:{rowblk*16*192 + kk*64}')

def role_S1_loads(A):
    A(f'    s_mul_i32 s{S_TMP+2}, s{S_WAVE}, 192')
    lin12_addr(A, 3, lambda r: None)
    for x in range(3):
        A(f'    global_load_dwordx4 v[{V_GB+12+4*x}:{V_GB+15+4*x}], v{2+x}, s[{S_Q}:{S_Q+1}]')
    A(f"""    v_lshrrev_b32 v1, 1, v{V_LANE}
    s_mul_i32 s{S_TMP}, s{S_WAVE}, 96
    v_add_u32 v1, s{S_TMP}, v1
    v_mul_u32_u24 v1, 768, v1
    v_and_b32 v2, 1, v{V_LANE}
    v_lshlrev_b32 v2, 4, v2
    s_lshl_b32 s{S_TMP}, s{S_JOB}, 5
    v_add3_u32 v1, v1, v2, s{S_TMP}
    v_add_u32 v2, 24576, v1
    v_add_u32 v3, 49152, v1""")
    for x in range(3):
        A(f'    global_load_dwordx4 v[{V_O+4*x}:{V_O+4*x+3}], v{1+x}, s[{S_WQ}:{S_WQ+1}]')

def slab16_to_operands(A, src, lds_base):
    A(f"""    s_mul_i32 s{S_TMP}, s{S_WAVE}, 12288
    s_add_u32 s{S_TMP}, s{S_TMP}, {lds_base}
    v_add_u32 v1, s{S_TMP}, v{V_L16}""")
    for x in range(3):
        A(f'    ds_write_b128 v1, v[{src+4*x}:{src+4*x+3}] offset:{x*1024}')
    A(f"""    v_lshrrev_b32 v2, 4, v{V_LANE}
    v_lshlrev_b32 v2, 8, v2               ; g*256
    v_bfe_u32 v3, v{V_LANE}, 2, 2
    v_lshlrev_b32 v3, 5, v3               ; r*32
    v_and_b32 v4, 3, v{V_LANE}
    v_lshlrev_b32 v4, 3, v4               ; c*8
    v_add3_u32 v2, v2, v3, v4
    v_add_u32 v2, s{S_TMP}, v2""")
    for kk in range(3):
        for hf in range(2):
            r = A_W + kk * 4 + 2 * hf
            A(f'    ds_read_b64_tr_b16 a[{r}:{r+1}], v2 offset:{kk*1024 + hf*128}')

def slab_addr_regs(A, perm):
    slab_addr(A, perm)

def role_S1_work(A):
    T = V_T; Qr = V_GB
    A('    s_waitcnt vmcnt(0)')
    A.stamp('s1_data')
    if O.s1mid:
        A.vm = []; issue_item(A, 0); issue_item(A, 1)
    else:
        vm_save = list(A.vm); nxt = Stream.nxt; Stream.nxt = 0
        issue_next(A, O.l0)
        A.vm = vm_save; Stream.nxt = nxt
    lin12_to_operands(A, V_GB + 12, 3, 6144 + 2048, [(f'v[{Qr+4*kk}:{Qr+4*kk+3}]', 0, kk) for kk in range(3)])
    slab16_to_operands(A, V_O, L_HEAD)
    A('    s_waitcnt lgkmcnt(6)')
    for kk in range(3):
        q = f'v[{Qr+4*kk}:{Qr+4*kk+3}]'
        A(f'    v_mfma_f32_16x16x32_bf16 v[{V_G}:{V_G+3}], {q}, {q}, ' + ('0' if kk == 0 else f'v[{V_G}:{V_G+3}]'))
        A(f'    v_mfma_f32_16x16x32_bf16 v[{V_R}:{V_R+3}], a[{A_ONES}:{A_ONES+3}], {q}, ' + ('0' if kk == 0 else f'v[{V_R}:{V_R+3}]'))
    A.nop(7)
    A(f'    v_cndmask_b32 v{T}, 0, v{V_G}, s[{S_MASK}:{S_MASK+1}]')
    for r in range(1, 4):
        A(f'    v_cndmask_b32 v{T}, v{T}, v{V_G+r}, s[{S_MASK+2*r}:{S_MASK+2*r+1}]')
    A.nop(2)
    A(f'    v_mfma_f32_16x16x4_f32 v[{V_D}:{V_D+3}], v{V_ONEF}, v{T}, 0')
    A(f"""    s_lshl_b32 s{S_TMP}, s{S_WAVE}, 9
    s_add_u32 s{S_TMP}, s{S_TMP}, {L_STAT}
    v_lshlrev_b32 v1, 3, v{V_LANE}
    v_add_u32 v1, s{S_TMP}, v1
    v_and_b32 v2, 15, v{V_LANE}
    v_lshlrev_b32 v2, 3, v2
    v_add_u32 v2, {L_STAT}, v2
    v_mov_b32 v{T+2}, v{V_R}""")
    A.nop(3)
    A(f'    v_mov_b32 v{T+3}, v{V_D}')
    A(f'    ds_write_b64 v1, v[{T+2}:{T+3}]')
    A('    s_waitcnt lgkmcnt(0)')
    A.stamp('s1_stat')
    A('    s_barrier')
    if O.s1mid: issue_item(A, 2)
    for w in range(4):
        A(f'    ds_read_b64 v[{T+4+2*w}:{T+5+2*w}], v2 offset:{w*512}')
    A('    s_waitcnt lgkmcnt(0)')
    A(f"""    v_add_f32 v{T+4}, v{T+4}, v{T+6}
    v_add_f32 v{T+5}, v{T+5}, v{T+7}
    v_add_f32 v{T+8}, v{T+8}, v{T+10}
    v_add_f32 v{T+9}, v{T+9}, v{T+11}
    v_add_f32 v{T+4}, v{T+4}, v{T+8}
    v_add_f32 v{T+5}, v{T+5}, v{T+9}
    v_mul_f32 v{T+4}, s{S_C384}, v{T+4}          ; mean
    v_mul_f32 v{T+5}, s{S_C384}, v{T+5}          ; E[x^2]
    v_fma_f32 v{T+5}, -v{T+4}, v{T+4}, v{T+5}    ; var
    v_max_f32 v{T+5}, 0, v{T+5}
    v_cvt_pk_bf16_f32 v{T+6}, v{T+4}, v{T+5}
    v_lshlrev_b32 v{T+4}, 16, v{T+6}
    v_and_b32 v{T+5}, 0xffff0000, v{T+6}
    v_add_f32 v{T+5}, v{V_EPS}, v{T+5}
    v_cvt_pk_bf16_f32 v{T+5}, v{T+5}, v{T+5}
    v_lshlrev_b32 v{T+5}, 16, v{T+5}
    v_sqrt_f32 v{T+5}, v{T+5}
    s_nop 0
    v_cvt_pk_bf16_f32 v{T+5}, v{T+5}, v{T+5}
    v_lshlrev_b32 v{T+5}, 16, v{T+5}
    v_rcp_f32 v{T+5}, v{T+5}""")
    for k in range(0, 12, 2):
        a, b = T + 8, T + 12
        A(f'    v_lshlrev_b32 v{a}, 16, v{Qr+k}')
        A(f'    v_and_b32 v{a+1}, 0xffff0000, v{Qr+k}')
        A(f'    v_lshlrev_b32 v{b}, 16, v{Qr+k+1}')
        A(f'    v_and_b32 v{b+1}, 0xffff0000, v{Qr+k+1}')
        for x in (a, a + 1, b, b + 1): A(f'    v_sub_f32 v{x}, v{x}, v{T+4}')
        A(f'    v_cvt_pk_bf16_f32 v{a+2}, v{a}, v{a+1}')
        A(f'    v_cvt_pk_bf16_f32 v{b+2}, v{b}, v{b+1}')
        A(f'    v_lshlrev_b32 v{a}, 16, v{a+2}')
        A(f'    v_and_b32 v{a+1}, 0xffff0000, v{a+2}')
        A(f'    v_lshlrev_b32 v{b}, 16, v{b+2}')
        A(f'    v_and_b32 v{b+1}, 0xffff0000, v{b+2}')
        for x in (a, a + 1, b, b + 1): A(f'    v_mul_f32 v{x}, v{x}, v{T+5}')
        A(f'    v_cvt_pk_bf16_f32 v{Qr+k}, v{a}, v{a+1}')
        A(f'    v_cvt_pk_bf16_f32 v{Qr+k+1}, v{b}, v{b+1}')
    A.stamp('s1_norm')
    A.nop(2)
    gemm3(A, lambda kk: f'a[{A_W+4*kk}:{A_W+4*kk+3}]', lambda kk: f'v[{Qr+4*kk}:{Qr+4*kk+3}]')
    skip = cross_wave_sum4(A, L_RED_H)
    A.stamp('s1_red')
    publish4(A, WS_QG)
    A(f'{skip}:')

def role_S2_addr(A):
    A(f"""    s_lshr_b32 s{S_TMP}, s{S_JOB}, 3              ; third = b>>2
    s_lshl_b32 s{S_TMP}, s{S_TMP}, 7
    s_bfe_u32 s{S_TMP+1}, s{S_JOB}, 0x20001       ; ep = b&3
    s_lshl_b32 s{S_TMP+1}, s{S_TMP+1}, 1
    s_add_u32 s{S_TMP+3}, s{S_TMP}, s{S_TMP+1}
    s_and_b32 s{S_TMP+1}, s{S_JOB}, 1
    s_lshl_b32 s{S_TMP+1}, s{S_TMP+1}, 6          ; a2*64
    s_add_u32 s{S_TMP+3}, s{S_TMP+3}, s{S_TMP+1}
    s_mul_i32 s{S_TMP+2}, s{S_WAVE}, 192""")
    def rowfn(r):
        t = V_T + 3
        A(f"""    v_bfe_u32 v{t}, v{r}, 3, 1
    v_lshlrev_b32 v{t}, 2, v{t}
    v_bfe_u32 v{t+1}, v{r}, 2, 1
    v_lshlrev_b32 v{t+1}, 1, v{t+1}
    v_bfe_u32 v{t+2}, v{r}, 1, 1
    v_add3_u32 v{t}, v{t}, v{t+1}, v{t+2}
    v_lshlrev_b32 v{t}, 3, v{t}
    v_and_b32 v{r}, 1, v{r}
    v_add3_u32 v{r}, v{r}, v{t}, s{S_TMP+3}""")
    lin12_addr(A, 3, rowfn, V_O + 12)

def role_S2_loads(A):
    for x in range(3):
        A.vmop(f'    global_load_dwordx4 v[{V_O+4*x}:{V_O+4*x+3}], v{V_O+12+x}, s[{S_WK}:{S_WK+1}]', 'wk')

def role_S2_stage(A):
    A.vmwait('wk')
    A(f"""    s_mul_i32 s{S_TMP}, s{S_WAVE}, 12288
    s_add_u32 s{S_TMP}, s{S_TMP}, {L_HEAD}
    v_add_u32 v1, s{S_TMP}, v{V_L16}""")
    for x in range(3):
        A(f'    ds_write_b128 v1, v[{V_O+4*x}:{V_O+4*x+3}] offset:{x*1024}')
    A(f"""    v_and_b32 v2, 15, v{V_LANE}
    v_mul_u32_u24 v2, 192, v2
    v_lshrrev_b32 v3, 4, v{V_LANE}
    v_lshlrev_b32 v3, 3, v3
    v_add3_u32 v2, v2, v3, s{S_TMP}""")
    for kk in range(3):
        for hf in range(2):
            r = A_W + 4 * kk + 2 * hf
            A(f'    ds_read_b64 a[{r}:{r+1}], v2 offset:{kk*64 + hf*32}')

def role_S2_work(A, have_q=False):
    scale = 384 ** -0.5 * math.log2(math.e)
    ok = A.label('S2OK')
    if not have_q:
        A.vmwait('q')
        gather_check(A)
        A(f'    s_cbranch_vccz {ok}')
        gather_loop(A)
        A(f'{ok}:')
    A('    s_waitcnt lgkmcnt(0)')
    A.stamp('s2_q')
    gemm3(A, lambda kk: f'a[{A_W+4*kk}:{A_W+4*kk+3}]', lambda kk: f'v[{V_GB+8*kk+2}:{V_GB+8*kk+5}]')
    skip = cross_wave_sum4(A, L_HEAD + 6144)
    A.stamp('s2_red')
    for r in range(4):
        A(f'    v_mul_f32 v{V_S+r}, {lit(scale)}, v{V_S+r}')
    publish4(A, WS_QKG)
    A(f'{skip}:')

def get_qk(A):
    ok = A.label('QK_OK'); lp = A.label('QK_LP')
    A.vmwait('qk')
    gather_check(A)
    A(f'    s_cbranch_vccz {ok}')
    gather_loop(A)
    A(f'{ok}:')
    A(f"""    s_mul_i32 s{S_TMP}, s{S_WAVE}, 3072
    s_add_u32 s{S_TMP}, s{S_TMP}, {L_QKL}
    v_add_u32 v1, s{S_TMP}, v{V_L16}""")
    for kk in range(3):
        A(f'    ds_write_b128 v1, v[{V_GB+8*kk+2}:{V_GB+8*kk+5}] offset:{kk*1024}')
    A(f'    v_add_u32 v1, {L_QKL}, v{V_L16}')
    A('    s_waitcnt lgkmcnt(0)')
    A('    s_barrier')
    for bb in range(12):
        A(f'    ds_read_b128 a[{A_QK+4*bb}:{A_QK+4*bb+3}], v1 offset:{bb*1024}')
    for bb in range(12):
        if bb % 4 == 0: A(f'    s_waitcnt lgkmcnt({8 - bb})')
        c = '0' if bb == 0 else f'v[{V_S}:{V_S+3}]'
        A(f'    v_mfma_f32_16x16x32_bf16 v[{V_S}:{V_S+3}], a[{A_ONES}:{A_ONES+3}], a[{A_QK+4*bb}:{A_QK+4*bb+3}], {c}')
    A.nop(8)
    A(f'    v_mov_b32 v{V_SQ}, v{V_S}')
    A.stamp('Qk')

def role_G_loads(A):
    g1 = A.label('GL1'); done = A.label('GLD')
    A(f'    s_cmp_eq_u32 s{S_ROLE}, {R_G1}')
    A(f'    s_cbranch_scc1 {g1}')
    A(f'    s_cmp_eq_u32 s{S_ROLE}, {R_G2}')
    A(f'    s_cbranch_scc0 {done}')
    slab_addr(A, False)
    slab_loads(A, S_WO, RAW[1])
    A(f"""    v_and_b32 v1, 15, v{V_LANE}
    v_mul_u32_u24 v1, 768, v1
    v_lshrrev_b32 v2, 4, v{V_LANE}
    v_lshlrev_b32 v2, 4, v2
    s_lshl_b32 s{S_TMP}, s{S_JOB}, 6
    v_add3_u32 v{V_Q+4}, v1, v2, s{S_TMP}
    global_load_dwordx4 v[{V_Q}:{V_Q+3}], v{V_Q+4}, s[{S_Q}:{S_Q+1}]
    s_branch {done}
{g1}:""")
    slab_addr(A, True)
    slab_loads(A, S_WV, RAW[1])
    A(f'{done}:')

def epilogue(A):
    T = V_T
    multi_xgroup(A, 'v_add_f32', [V_L, V_U], [T, T + 1])
    A(f"""    v_and_b32 v3, 15, v{V_LANE}           ; n
    v_lshlrev_b32 v5, 4, v3
    s_lshl_b32 s{S_TMP}, s{S_WAVE}, 2
    s_add_u32 s{S_TMP}, s{S_TMP}, {L_LBUF}
    v_add_u32 v6, s{S_TMP}, v5
    ds_write_b32 v6, v{V_L}
    ds_write_b32 v6, v{V_U} offset:256""")
    for r in range(4):
        for third in range(3):
            b0 = V_O + third * 8; b1 = b0 + 4
            A(f'    v_cvt_pk_bf16_f32 v{8+4*r+third}, v{b0+r}, v{b1+r}')
        A(f'    v_mov_b32 v{8+4*r+3}, s{S_TAG}')
    A(f"""    s_mul_i32 s{S_TMP}, s{S_WAVE}, 12288
    s_add_u32 s{S_TMP}, s{S_TMP}, {L_TR}
    v_mul_u32_u24 v1, 272, v3
    v_lshrrev_b32 v2, 4, v{V_LANE}        ; g'
    v_lshlrev_b32 v4, 6, v2               ; (g'>>1)*128 + (g'&1)*64 == g'*64
    v_add3_u32 v1, v1, v4, s{S_TMP}""")
    for r in range(4):
        A(f'    ds_write_b128 v1, v[{8+4*r}:{11+4*r}] offset:{r*16}')
    A(f"""    v_mul_u32_u24 v1, 272, v2
    v_add3_u32 v1, v1, v5, s{S_TMP}""")
    for x in range(4):
        A(f'    ds_read_b128 v[{24+4*x}:{27+4*x}], v1 offset:{x*1088}')
    A(f"""    v_lshlrev_b32 v1, 18, v2              ; (l>>4)*8*32768
    v_bfe_u32 v4, v{V_LANE}, 3, 1
    v_lshlrev_b32 v4, 15, v4
    v_and_b32 v7, 7, v{V_LANE}
    v_lshlrev_b32 v7, 4, v7
    v_add3_u32 v1, v1, v4, v7
    s_lshl_b32 s{S_TMP}, s{S_WAVE}, 16
    s_lshl_b32 s{S_TMP+1}, s{S_WG}, 7
    s_add_u32 s{S_TMP}, s{S_TMP}, s{S_TMP+1}
    s_add_u32 s{S_TMP}, s{S_TMP}, {WS_PART}
    v_add_u32 v1, s{S_TMP}, v1
    v_add_u32 v2, 0x100000, v1
    v_add_u32 v4, 0x200000, v1
    v_add_u32 v7, 0x300000, v1""")
    for x, a in enumerate((1, 2, 4, 7)):
        A(f'    s_waitcnt lgkmcnt({3-x})')
        A(f'    global_store_dwordx4 v{a}, v[{24+4*x}:{27+4*x}], s[{S_WS}:{S_WS+1}] sc1')
    A('    s_barrier')
    skip = A.label('EP')
    A(f"""    s_cmp_eq_u32 s{S_WAVE}, 0
    s_cbranch_scc0 {skip}
    v_add_u32 v5, {L_LBUF}, v5
    ds_read_b128 v[40:43], v5
    ds_read_b128 v[44:47], v5 offset:256
    v_lshlrev_b32 v3, 4, v3
    s_lshl_b32 s{S_TMP}, s{S_WG}, 8
    s_add_u32 s{S_TMP}, s{S_TMP}, {WS_ML}
    v_add_u32 v3, s{S_TMP}, v3
    v_mov_b32 v48, v{V_MREF}
    v_mov_b32 v51, s{S_TAG}
    s_waitcnt lgkmcnt(0)
    v_add_f32 v40, v40, v41
    v_add_f32 v42, v42, v43
    v_add_f32 v44, v44, v45
    v_add_f32 v46, v46, v47
    v_add_f32 v49, v40, v42
    v_add_f32 v50, v44, v46
    v_cmp_gt_u32 vcc, 16, v{V_LANE}
    s_and_saveexec_b64 s[{S_EX}:{S_EX+1}], vcc
    global_store_dwordx4 v3, v[48:51], s[{S_WS}:{S_WS+1}] sc1
    s_mov_b64 exec, s[{S_EX}:{S_EX+1}]
{skip}:""")
    A.stamp('pub')

def role_R(A):
    T = V_T
    lp = A.label('RL'); ok = A.label('RO'); lp2 = A.label('RD'); ok2 = A.label('RO2'); fin = A.label('RF')
    A(f"""    s_and_b32 s{S_TMP}, s{S_JOB}, 15          ; n
    s_lshr_b32 s{S_TMP+1}, s{S_JOB}, 4        ; chunk
    s_lshl_b32 s{S_TMP+2}, s{S_TMP}, 4
    s_lshl_b32 s{S_TMP+3}, s{S_WAVE}, 14
    s_add_u32 s{S_TMP+2}, s{S_TMP+2}, s{S_TMP+3}
    s_add_u32 s{S_TMP+2}, s{S_TMP+2}, {WS_ML}
    v_lshlrev_b32 v1, 8, v{V_LANE}
    v_add_u32 v1, s{S_TMP+2}, v1
    s_lshl_b32 s{S_TMP+2}, s{S_TMP}, 3
    s_add_u32 s{S_TMP+2}, s{S_TMP+2}, s{S_TMP+1}
    s_lshl_b32 s{S_TMP+2}, s{S_TMP+2}, 15
    s_lshl_b32 s{S_TMP+3}, s{S_WAVE}, 13
    s_add_u32 s{S_TMP+2}, s{S_TMP+2}, s{S_TMP+3}
    s_add_u32 s{S_TMP+2}, s{S_TMP+2}, {WS_PART + 4096}
    v_add_u32 v2, s{S_TMP+2}, v{V_L16}
{lp}:""")
    def data_loads():
        for k in range(8):
            A(f'    global_load_dwordx4 v[{16+4*k}:{19+4*k}], v2, s[{S_WS}:{S_WS+1}] offset:{k*1024-4096} sc1')
    A(f'    global_load_dwordx4 v[8:11], v1, s[{S_WS}:{S_WS+1}] sc1')
    if O.rcomb:
        data_loads()
        A('    s_waitcnt vmcnt(8)')
    else:
        A('    s_waitcnt vmcnt(0)')
    A(f"""    v_cmp_ne_u32 vcc, s{S_TAG}, v11
    s_cbranch_vccz {ok}""")
    if O.rcomb: A('    s_waitcnt vmcnt(0)')
    spin_guard(A, lp)
    A(f'    s_branch {lp}')
    A(f'{ok}:')
    A.stamp('R_ml')
    if not O.rcomb: data_loads()
    A(f'    v_mov_b32 v12, v8')
    multi_row(A, 'v_max_f32', [12])
    xgroup_reduce(A, 'v_max_f32', 12, 13)
    A(f"""    v_sub_f32 v8, v8, v12
    v_exp_f32 v8, v8
    v_lshrrev_b32 v3, 3, v{V_LANE}
    v_lshlrev_b32 v3, 2, v3               ; ii*4
    v_mul_f32 v9, v9, v8
    v_mul_f32 v10, v10, v8""")
    for k in range(8):
        A(f'    v_add_u32 v4, {32*k}, v3')
        A(f'    ds_bpermute_b32 v{48+k}, v4, v8')
    multi_row(A, 'v_add_f32', [9, 10])
    multi_xgroup(A, 'v_add_f32', [9, 10], [13, 14])
    for j in range(6): A(f'    v_mov_b32 v{56+j}, 0')
    A(f'{lp2}:')
    A('    s_waitcnt vmcnt(0)')
    for k in range(0, 8, 2):
        A(f'    v_xor_b32 v{64+k}, s{S_TAG}, v{19+4*k}')
        A(f'    v_xor_b32 v{65+k}, s{S_TAG}, v{23+4*k}')
    A(f"""    v_or3_b32 v64, v64, v65, v66
    v_or3_b32 v67, v67, v68, v69
    v_or3_b32 v64, v64, v70, v71
    v_or_b32 v64, v64, v67
    v_cmp_ne_u32 vcc, 0, v64
    s_cbranch_vccz {ok2}""")
    spin_guard(A, lp2)
    data_loads()
    A(f'    s_branch {lp2}')
    A(f'{ok2}:')
    A('    s_waitcnt lgkmcnt(0)')
    for k in range(8):
        for t in range(3):
            A(f'    v_lshlrev_b32 v64, 16, v{16+4*k+t}')
            A(f'    v_and_b32 v65, 0xffff0000, v{16+4*k+t}')
            A(f'    v_fmac_f32 v{56+2*t}, v64, v{48+k}')
            A(f'    v_fmac_f32 v{57+2*t}, v65, v{48+k}')
    acc = list(range(56, 62))
    multi_row(A, 'v_add_f32', acc, rots=(8,))
    multi_xgroup(A, 'v_add_f32', acc, list(range(64, 70)))
    A(f"""    s_lshl_b32 s{S_TMP+2}, s{S_WAVE}, 8
    s_add_u32 s{S_TMP+2}, s{S_TMP+2}, {L_RB}
    v_mul_u32_u24 v3, 24, v{V_LANE}
    v_add_u32 v3, s{S_TMP+2}, v3
    v_mov_b32 v4, s{S_TMP+2}
    v_mov_b32 v13, v9
    v_mov_b32 v14, v10
    v_mov_b32 v15, 0
    v_cmp_gt_u32 vcc, 8, v{V_LANE}
    s_and_saveexec_b64 s[{S_EX}:{S_EX+1}], vcc
    ds_write_b64 v3, v[56:57]
    ds_write_b64 v3, v[58:59] offset:8
    ds_write_b64 v3, v[60:61] offset:16
    ds_write_b128 v4, v[12:15] offset:192
    s_mov_b64 exec, s[{S_EX}:{S_EX+1}]
    s_waitcnt lgkmcnt(0)
    s_barrier
    s_cmp_eq_u32 s{S_WAVE}, 0
    s_cbranch_scc0 {fin}
    v_min_u32 v3, 7, v{V_LANE}
    v_mul_u32_u24 v3, 24, v3
    v_add_u32 v3, {L_RB}, v3
    v_mov_b32 v4, {L_RB}""")
    for w in range(4):
        A(f'    ds_read_b128 v[{16+4*w}:{19+4*w}], v4 offset:{w*256+192}')
    for w in range(4):
        for j in range(3):
            A(f'    ds_read_b64 v[{32+6*w+2*j}:{33+6*w+2*j}], v3 offset:{w*256+8*j}')
    A(f"""    s_waitcnt lgkmcnt(12)
    v_max_f32 v12, v16, v20
    v_max3_f32 v12, v12, v24, v28""")
    for w in range(4): A(f'    v_sub_f32 v{16+4*w}, v{16+4*w}, v12')
    for w in range(4): A(f'    v_exp_f32 v{16+4*w}, v{16+4*w}')
    A(f"""    s_nop 0
    v_mul_f32 v13, v16, v17
    v_mul_f32 v14, v16, v18""")
    for w in range(1, 4):
        A(f'    v_fmac_f32 v13, v{16+4*w}, v{17+4*w}')
        A(f'    v_fmac_f32 v14, v{16+4*w}, v{18+4*w}')
    A(f"""    v_rcp_f32 v13, v13
    s_waitcnt lgkmcnt(0)""")
    for j in range(6): A(f'    v_mul_f32 v{56+j}, v{32+j}, v16')
    for w in range(1, 4):
        for j in range(6): A(f'    v_fmac_f32 v{56+j}, v{32+6*w+j}, v{16+4*w}')
    for j in range(6): A(f'    v_sub_f32 v{56+j}, v{56+j}, v14')
    for j in range(6): A(f'    v_mul_f32 v{56+j}, v{56+j}, v13')
    A(f"""    v_cvt_pk_bf16_f32 v8, v56, v57
    v_cvt_pk_bf16_f32 v9, v58, v59
    v_cvt_pk_bf16_f32 v10, v60, v61
    v_mov_b32 v11, s{S_TAG}
    s_lshl_b32 s{S_TMP+2}, s{S_TMP+1}, 4
    s_add_u32 s{S_TMP+2}, s{S_TMP+2}, s{S_TMP}
    s_lshl_b32 s{S_TMP+2}, s{S_TMP+2}, 7
    s_add_u32 s{S_TMP+2}, s{S_TMP+2}, {WS_CTXN}
    v_add_u32 v3, s{S_TMP+2}, v{V_L16}
    v_cmp_gt_u32 vcc, 8, v{V_LANE}
    s_and_saveexec_b64 s[{S_EX}:{S_EX+1}], vcc
    global_store_dwordx4 v3, v[8:11], s[{S_WS}:{S_WS+1}] sc1
    s_mov_b64 exec, s[{S_EX}:{S_EX+1}]
{fin}:""")
    A.stamp('R_done')

def gather4_loop(A):
    l = A.label('G4L'); d = A.label('G4D'); T = V_T
    A(f"""    s_lshl_b32 s{S_TMP}, s{S_WAVE}, 12
    s_add_u32 s{S_TMP}, s{S_TMP}, {WS_CTXN}
    v_and_b32 v1, 15, v{V_LANE}
    v_lshlrev_b32 v1, 7, v1
    v_lshrrev_b32 v2, 4, v{V_LANE}
    v_lshlrev_b32 v2, 4, v2
    v_add3_u32 v{V_GA}, v1, v2, s{S_TMP}""")
    A(f'{l}:')
    for x in range(4):
        A(f'    global_load_dwordx4 v[{V_GB+4*x}:{V_GB+4*x+3}], v{V_GA}, s[{S_WS}:{S_WS+1}] offset:{(x>>1)*2048 + (x&1)*64} sc1')
    A('    s_waitcnt vmcnt(0)')
    for x in range(4): A(f'    v_xor_b32 v{T+x}, s{S_TAG}, v{V_GB+4*x+3}')
    A(f'    v_or3_b32 v{T}, v{T}, v{T+1}, v{T+2}')
    A(f'    v_or_b32 v{T}, v{T}, v{T+3}')
    A(f'    v_cmp_ne_u32 vcc, 0, v{T}')
    A(f'    s_cbranch_vccz {d}')
    spin_guard(A, l)
    A(f'    s_branch {l}')
    A(f'{d}:')
    for j in range(3): A(f'    v_mov_b32 v{V_GB+4*j+3}, v{V_GB+12+j}')

def role_G(A):
    g2 = A.label('G2'); lj = A.label('GJ')
    role_G_loads(A)
    A('    s_waitcnt vmcnt(0)')
    slab_to_operands(A, RAW[1], 0)
    A(f'    s_cmp_eq_u32 s{S_ROLE}, {R_G2}')
    A(f'    s_cbranch_scc1 {g2}')
    gather4_loop(A)
    A('    s_waitcnt lgkmcnt(0)')
    A.stamp('G1_in')
    gemm6(A, lambda kk: f'v[{V_GB+4*kk}:{V_GB+4*kk+3}]')
    A(f'    s_branch {lj}')
    A(f'{g2}:')
    gather_addr(A, WS_CTX)
    gather_loop(A)
    A('    s_waitcnt lgkmcnt(0)')
    A.stamp('G2_in')
    gemm6(A, lambda kk: f'v[{V_GB+8*kk+2}:{V_GB+8*kk+5}]')
    A(f'{lj}:')
    skip = cross_wave_sum(A, L_RED_T)
    out2 = A.label('GO')
    A(f'    s_cmp_eq_u32 s{S_ROLE}, {R_G2}')
    A(f'    s_cbranch_scc1 {out2}')
    pack_D(A, 8)
    A(f'    s_lshl_b32 s{S_TMP}, s{S_JOB}, 11')
    A(f'    s_add_u32 s{S_TMP}, s{S_TMP}, {WS_CTX}')
    publish8(A, 8, S_TMP)
    A(f'    s_branch {skip}')
    A(f'{out2}:')
    for k in range(4):
        d = V_S if k < 2 else V_R
        j = 2 * (k & 1)
        A(f'    v_lshlrev_b32 v8, 16, v{V_Q+k}')
        A(f'    v_and_b32 v9, 0xffff0000, v{V_Q+k}')
        A(f'    v_add_f32 v8, v8, v{d+j}')
        A(f'    v_add_f32 v9, v9, v{d+j+1}')
        A(f'    v_cvt_pk_bf16_f32 v{12+k}, v8, v9')
    A(f'    global_store_dwordx4 v{V_Q+4}, v[12:15], s[{S_OUT}:{S_OUT+1}]')
    e = A.label('GE')
    A(f"""    s_cmp_eq_u32 s{S_JOB}, 0
    s_cbranch_scc0 {skip}
    s_add_u32 s{S_TMP}, s{S_EPOCH}, 1
    v_mov_b32 v8, s{S_TMP}
    v_mov_b32 v9, {WS_EPOCH}
    v_cmp_eq_u32 vcc, 0, v{V_LANE}
    s_and_saveexec_b64 s[{S_EX}:{S_EX+1}], vcc
    global_store_dword v9, v8, s[{S_WS}:{S_WS+1}]
    s_mov_b64 exec, s[{S_EX}:{S_EX+1}]""")
    A(f'{skip}:')
    A.stamp('G_done')

def build_kernel():
    A = Gen(); T = V_T
    Stream.nxt = 0; Stream.done = 0; Stream.pend = []; PV.pending = []
    A('.text')
    A(f'.globl {NAME}')
    A('.p2align 8')
    A(f'.type {NAME},@function')
    A(f'{NAME}:')
    A(f"""    s_cmp_ge_u32 s2, 256
    s_cbranch_scc1 K_END
    s_load_dwordx4 s[{S_F0}:{S_F0+3}], s[0:1], 8
    s_load_dwordx2 s[{S_WS}:{S_WS+1}], s[0:1], 72
    s_load_dwordx2 s[{S_Q}:{S_Q+1}], s[0:1], 0
    s_load_dwordx8 s[{S_WQ}:{S_WQ+7}], s[0:1], 24
    s_load_dwordx2 s[{S_OUT}:{S_OUT+1}], s[0:1], 56
    s_mov_b32 s{S_WG}, s2
    s_mov_b32 s{S_SPIN}, 0
    v_and_b32 v{V_LANE}, 63, v0
    v_lshrrev_b32 v1, 6, v0
    v_lshlrev_b32 v{V_L16}, 4, v{V_LANE}
    v_readfirstlane_b32 s{S_WAVE}, v1
    v_lshrrev_b32 v2, 4, v{V_LANE}        ; g
    v_and_b32 v3, 15, v{V_LANE}           ; i
    v_lshlrev_b32 v4, 4, v3
    v_mul_u32_u24 v5, 1536, v2
    v_add_u32 v{V_F0OFF}, v5, v4
    v_mul_u32_u24 v5, 768, v2
    v_add_u32 v{V_F1OFF}, v5, v4
    s_mul_i32 s{S_T}, s{S_WG}, 36
    s_add_u32 s{S_T}, s{S_T}, s{S_WAVE}
    s_mov_b32 s{S_ROLE}, {R_NONE}
    s_mov_b32 s{S_JOB}, 0
    s_cmp_ge_u32 s2, 128
    s_cbranch_scc0 ROLE_LOW
    s_mov_b32 s{S_ROLE}, {R_R}
    s_sub_u32 s{S_JOB}, s2, 128
    s_branch ROLE_DONE
ROLE_LOW:
    s_lshr_b32 s{S_TMP}, s2, 3            ; hi
    s_and_b32 s{S_TMP+1}, s2, 3
    s_bitcmp1_b32 s2, 2
    s_cbranch_scc1 ROLE_G
    s_cmp_ge_u32 s{S_TMP}, 12
    s_cbranch_scc1 ROLE_DONE
    s_cmp_ge_u32 s{S_TMP}, 6
    s_cselect_b32 s{S_TMP+2}, 1, 0
    s_mul_i32 s{S_TMP+3}, s{S_TMP+2}, 6
    s_sub_u32 s{S_TMP}, s{S_TMP}, s{S_TMP+3}
    s_lshl_b32 s{S_TMP}, s{S_TMP}, 2
    s_add_u32 s{S_JOB}, s{S_TMP}, s{S_TMP+1}
    s_add_u32 s{S_ROLE}, s{S_TMP+2}, {R_S1}
    s_branch ROLE_DONE
ROLE_G:
    s_cmp_ge_u32 s{S_TMP}, 6
    s_cbranch_scc1 ROLE_DONE
    s_cmp_ge_u32 s{S_TMP}, 3
    s_cselect_b32 s{S_TMP+2}, 1, 0
    s_mul_i32 s{S_TMP+3}, s{S_TMP+2}, 3
    s_sub_u32 s{S_TMP}, s{S_TMP}, s{S_TMP+3}
    s_lshl_b32 s{S_TMP}, s{S_TMP}, 2
    s_add_u32 s{S_JOB}, s{S_TMP}, s{S_TMP+1}
    s_add_u32 s{S_ROLE}, s{S_TMP+2}, {R_G1}
ROLE_DONE:
    s_waitcnt lgkmcnt(0)
    s_load_dword s{S_EPOCH}, s[{S_WS}:{S_WS+1}], {WS_EPOCH}""")
    if O.stamp: A(f'    v_mov_b32 v{V_STAMP}, 0')
    A.stamp('entry')
    l2 = A.label('P2')
    A(f'    s_cmp_eq_u32 s{S_ROLE}, {R_S1}')
    A(f'    s_cbranch_scc0 {l2}')
    role_S1_loads(A)
    A(f'{l2}:')
    tile_bases(A, 0)
    hold = A.label('PH')
    A(f'    s_cmp_eq_u32 s{S_ROLE}, {R_S1}')
    A(f'    s_cbranch_scc1 {hold}')
    issue_next(A, O.l0)
    A(f'{hold}:')
    if O.cpf:
        lc = A.label('CPF')
        A(f'''    s_sub_u32 s{S_TMP}, s{S_WG}, 96
    s_cmp_lt_u32 s{S_TMP}, 32
    s_cbranch_scc0 {lc}
    s_cmp_ge_u32 s{S_WAVE}, 2
    s_cbranch_scc0 {lc}
    s_getpc_b64 s[72:73]
CPF_PC:
    s_lshr_b32 s{S_TMP}, s{S_TMP}, 3
    s_lshl_b32 s{S_TMP}, s{S_TMP}, 1
    s_and_b32 s{S_TMP+1}, s{S_WAVE}, 1
    s_add_u32 s{S_TMP}, s{S_TMP}, s{S_TMP+1}
    s_mul_i32 s{S_TMP}, s{S_TMP}, (((K_END - CPF_PC) / 128 + 8) / 8) * 128
    v_lshlrev_b32 v1, 7, v{V_LANE}
    v_add_u32 v1, s{S_TMP}, v1
    v_cmp_gt_u32 vcc, (((K_END - CPF_PC) / 128 + 8) / 8), v{V_LANE}
    v_min_u32 v1, (K_END - CPF_PC), v1
    s_and_saveexec_b64 s[{S_EX}:{S_EX+1}], vcc
    global_load_dword v248, v1, s[72:73]
    s_mov_b64 exec, s[{S_EX}:{S_EX+1}]
{lc}:''')
    if O.touch:
        lt = A.label('TCH')
        A(f'''    s_cmp_eq_u32 s{S_WAVE}, 2
    s_cbranch_scc0 {lt}
    v_mov_b32 v1, 0
    s_mov_b64 s[{S_EX}:{S_EX+1}], exec
    s_mov_b64 exec, 1
    global_load_dword v249, v1, s[{S_WS}:{S_WS+1}] offset:2048
    v_mov_b32 v2, {WS_PART}
    v_mov_b32 v3, {WS_PART + 0x200000}
    v_mov_b32 v4, {WS_PART + 0x3ff000}
    global_load_dword v249, v2, s[{S_WS}:{S_WS+1}]
    global_load_dword v249, v3, s[{S_WS}:{S_WS+1}]
    global_load_dword v249, v4, s[{S_WS}:{S_WS+1}]
    global_load_dword v249, v1, s[{S_WK}:{S_WK+1}]
    global_load_dword v249, v1, s[{S_WV}:{S_WV+1}]
    global_load_dword v249, v1, s[{S_WO}:{S_WO+1}]
    global_load_dword v249, v1, s[{S_OUT}:{S_OUT+1}]
    s_mov_b64 exec, s[{S_EX}:{S_EX+1}]
{lt}:''')
    A.stamp('issued')
    A(f"""    v_lshrrev_b32 v2, 4, v{V_LANE}
    v_and_b32 v3, 15, v{V_LANE}
    s_mul_i32 s{S_TMP}, s{S_WAVE}, 12288
    v_lshlrev_b32 v5, 2, v2
    v_add_u32 v5, v5, v3
    v_and_b32 v5, 15, v5
    v_lshlrev_b32 v5, 4, v5
    v_lshlrev_b32 v6, 8, v2
    v_add_u32 v5, v5, v6
    v_add_u32 v{V_LDSW}, s{S_TMP}, v5
    s_lshl_b32 s{S_TMP+1}, s{S_WAVE}, 10
    v_add_u32 v{V_LDSF}, s{S_TMP+1}, v5
    v_lshrrev_b32 v5, 2, v{V_LANE}
    v_and_b32 v5, 3, v5
    v_and_b32 v6, 3, v{V_LANE}
    v_lshrrev_b32 v7, 1, v2
    v_add_u32 v7, v7, v6
    v_lshlrev_b32 v7, 2, v7
    v_and_b32 v1, 1, v2
    v_lshlrev_b32 v1, 1, v1
    v_add_u32 v7, v7, v1
    v_lshrrev_b32 v1, 1, v5
    v_add_u32 v7, v7, v1
    v_and_b32 v1, 1, v5
    v_lshlrev_b32 v1, 3, v1
    v_lshlrev_b32 v6, 8, v6
    v_add3_u32 v6, v6, v1, s{S_TMP}
    v_and_b32 v1, 15, v7
    v_lshlrev_b32 v1, 4, v1
    v_add_u32 v{V_LDSR0}, v6, v1
    v_add_u32 v7, 8, v7
    v_and_b32 v1, 15, v7
    v_lshlrev_b32 v1, 4, v1
    v_add_u32 v{V_LDSR1}, v6, v1
    v_lshlrev_b32 v5, 3, v{V_LANE}
    v_add_u32 v{V_PR}, {L_PBUF}, v5
    s_lshl_b32 s{S_TMP}, s{S_WAVE}, 9
    v_add_u32 v{V_PW}, s{S_TMP}, v{V_PR}
    v_add_u32 v{V_FR}, {L_FLAG}, v{V_L16}
    s_lshl_b32 s{S_TMP}, s{S_WAVE}, 2
    v_add_u32 v{V_FW}, s{S_TMP}, v{V_FR}
    s_mov_b32 s{S_THR}, {lit(8.0)}
    v_lshlrev_b32 v5, 2, v3
    v_add_u32 v{V_MB}, {L_MBUF}, v5
    v_mov_b32 v{V_MREF}, 0xff800000
    ds_write_b32 v{V_MB}, v{V_MREF}
    v_lshlrev_b32 v5, 2, v2""")
    for r in range(4):
        A(f'    v_add_u32 v6, {r}, v5')
        A(f'    v_cmp_eq_u32 s[{S_MASK+2*r}:{S_MASK+2*r+1}], v6, v3')
    A(f"""    s_mov_b32 s{S_SELLO}, 0x{SEL_LO:08x}
    s_mov_b32 s{S_SELHI}, 0x{SEL_HI:08x}
    s_mov_b32 s{S_C384}, {lit(1/384)}
    v_mov_b32 v{V_EPS}, {lit(1e-5)}
    v_mov_b32 v{V_ONEF}, 1.0
    v_mov_b32 v{V_L}, 0
    v_mov_b32 v{V_U}, 0
    v_mov_b32 v{V_Q+4}, 0
    v_mov_b32 v1, 0x3f803f80""")
    for k in range(4):
        A(f'    v_accvgpr_write_b32 a{A_ONES+k}, v1')
    A(f"""    s_waitcnt lgkmcnt(0)
    s_mul_i32 s{S_TAG}, s{S_EPOCH}, 0x9E3779B1
    s_add_u32 s{S_TAG}, s{S_TAG}, 0x7F4A7C15""")
    def snapshot(): return (list(A.vm), set(A.done), Stream.nxt, Stream.done, list(Stream.pend))
    def restore(sn): A.vm, A.done, Stream.nxt, Stream.done, Stream.pend = list(sn[0]), set(sn[1]), sn[2], sn[3], list(sn[4])
    l1 = A.label('H1'); l2 = A.label('H2'); j0 = A.label('A0J')
    for x in range(3): A(f'    v_mov_b32 v{V_O+12+x}, 0')
    A(f'    s_cmp_eq_u32 s{S_ROLE}, {R_S1}')
    A(f'    s_cbranch_scc0 {l1}')
    sn = snapshot()
    role_S1_work(A)
    if O.s1mid:
        Stream.nxt = 3
        stage_A(A, 0, quota=2, stamp=False)
        assert Stream.nxt == O.l0 + 3
        A(f'    s_branch {j0}')
        restore(sn)
    else:
        A(f'    s_branch {l2}')
    A(f'{l1}:')
    A(f'    s_cmp_eq_u32 s{S_ROLE}, {R_S2}')
    A(f'    s_cbranch_scc0 {l2}')
    role_S2_addr(A)
    vm_save = list(A.vm); role_S2_loads(A); A.vm = vm_save
    A(f'{l2}:')
    stage_A(A, 0, quota=O.q0, stamp=False)
    A(f'{j0}:')
    A.stamp('A0')
    lw = A.label('S2W'); j1 = A.label('A1J')
    A(f'    s_cmp_eq_u32 s{S_ROLE}, {R_S2}')
    A(f'    s_cbranch_scc0 {lw}')
    if O.s2mode == 'spin0':
        A.done.add('wk'); A.done.add('q')
        role_S2_stage(A)
        gather_addr(A, WS_QG)
        if O.s2drain: A('    s_waitcnt vmcnt(0)')
        A.stamp('s2_poll')
        gather_loop(A)
        role_S2_work(A, True)
        A(f'{lw}:')
        stage_A(A, 1, stamp=False)
    else:
        sn = snapshot()
        A.done.add('wk')
        role_S2_stage(A)
        gather_addr(A, WS_QG)
        n0 = Stream.nxt
        stage_A(A, 1, quota=1, stamp=False)
        A.stamp('s2_poll')
        gather_issue(A, 'q')
        issue_next(A, 2)
        role_S2_work(A)
        assert Stream.nxt == n0 + 3
        A(f'    s_branch {j1}')
        A(f'{lw}:')
        restore(sn)
        stage_A(A, 1, stamp=False)
        A(f'{j1}:')
    A.stamp('A1')
    gather_addr(A, WS_QKG)
    attempt = lambda: gather_issue(A, 'qk')
    raise_l = lambda: (enqueue(A), flush_pend())
    if O.raise_at == 'A1': raise_l()
    if O.attempt == 'A1': attempt()
    hooks = {}
    if O.attempt == 'A2a': hooks[0] = attempt
    if O.attempt == 'A2b': hooks[1] = attempt
    if O.hold:
        h = O.hold
        if h == 1:   hooks = {1: lambda: (attempt(), enqueue(A, 2))}
        elif h == 2: hooks = {0: lambda: (attempt(), enqueue(A, 1)), 1: lambda: enqueue(A, 1)}
        elif h == 3: hooks = {2: lambda: (attempt(), enqueue(A, 2))}
        stage_A(A, 2, hooks, quota=1)
    else:
        stage_A(A, 2, hooks)
    if O.attempt == 'A2' and not O.hold: attempt()
    if O.raise_at == 'A2': raise_l()
    enqueue(A, O.extra); flush_pend()
    A.nop(2)
    for k in range(24):
        A(f'    v_mov_b32 v{V_O+k}, 0')
    get_qk(A)
    sched = O.sched.split()
    for i, st in enumerate(sched):
        k = int(st[1])
        if st[0] == 'A':
            stage_A(A, k, quota=O.qa)
        else:
            nxtB = next((j for j in range(i + 1, len(sched)) if sched[j][0] == 'B'), len(sched))
            strict = any(x[0] == 'A' and int(x[1]) % 3 == k % 3 for x in sched[i + 1:nxtB]) or k == 8
            stage_B(A, k, quota=O.qb, defer=(O.defer and k != 8), strict=strict)
    epilogue(A)
    lr = A.label('TR'); lg = A.label('TG')
    A(f'    s_cmp_eq_u32 s{S_ROLE}, {R_R}')
    A(f'    s_cbranch_scc0 {lr}')
    role_R(A)
    A('    s_branch K_FIN')
    A(f'{lr}:')
    A(f'    s_cmp_eq_u32 s{S_ROLE}, {R_G1}')
    A(f'    s_cbranch_scc1 {lg}')
    A(f'    s_cmp_eq_u32 s{S_ROLE}, {R_G2}')
    A(f'    s_cbranch_scc0 K_FIN')
    A(f'{lg}:')
    role_G(A)
    A('K_FIN:')
    if O.stamp:
        A('    s_waitcnt vmcnt(0)')
        A.stamp('end')
        A(f"""    s_lshl_b32 s42, s{S_WG}, 2
    s_add_u32 s42, s42, s{S_WAVE}
    s_lshl_b32 s42, s42, 8
    s_add_u32 s42, s42, {WS_STAMP}
    v_lshlrev_b32 v4, 2, v{V_LANE}
    v_add_u32 v4, s42, v4
    global_store_dword v4, v{V_STAMP}, s[{S_WS}:{S_WS+1}]""")
    A('K_END:')
    A('    s_endpgm')
    assert Stream.nxt >= 27
    return A

def build():
    A = build_kernel()
    txt = A.text()
    for p in check_hazards(txt): print('HAZARD', p, file=sys.stderr)
    ref = open('standalone__detection_seg_dino__vision.s.ref').read().split('\n')
    top = [l for l in ref if l.startswith(';') and '@launch' not in l and 'Override launch' not in l and 'grid=ceil' not in l][:12]
    out = '\n'.join(top) + '\n'
    out += f'; @launch grid=(256,1,1) block=(256,1,1) lds={LDS_BYTES}\n'
    out += '.amdgcn_target "amdgcn-amd-amdhsa--gfx950"\n' + txt
    out += f""".section .rodata,"a"
.p2align 6
.amdhsa_kernel {NAME}
  .amdhsa_next_free_vgpr {256 + NACC}
  .amdhsa_next_free_sgpr 96
  .amdhsa_accum_offset 256
  .amdhsa_group_segment_fixed_size 0
  .amdhsa_kernarg_size 80
  .amdhsa_user_sgpr_count 2
  .amdhsa_user_sgpr_kernarg_segment_ptr 1
  .amdhsa_system_sgpr_workgroup_id_x 1
  .amdhsa_float_denorm_mode_32 3
.end_amdhsa_kernel
"""
    return out, A.labels

if __name__ == '__main__':
    path = sys.argv[1]
    for o in (sys.argv[2].split(',') if len(sys.argv) > 2 else []):
        if o == 'stamp': O.stamp = True
        elif o == 'plain': O.nt = ''
        elif o == 'nodefer': O.defer = False
        elif o == 'nocpf': O.cpf = False
        elif o == 's1mid': O.s1mid = True
        elif o == 'eager': O.lazy = False
        elif o.startswith('q0='): O.q0 = int(o[3:])
        elif o == 'rcomb': O.rcomb = True
        elif o.startswith('hold='): O.hold = int(o[5:])
        elif o.startswith('s2mode='): O.s2mode = o[7:]
        elif o == 's2drain': O.s2drain = True
        elif o == 'touch': O.touch = True
        elif o.startswith('fine='): O.fine = int(o[5:])
        elif o.startswith('qa='): O.qa = int(o[3:])
        elif o.startswith('s2att='): O.s2att = int(o[6:])
        elif o.startswith('qb='): O.qb = int(o[3:])
        elif o.startswith('att='): O.attempt = o[4:]
        elif o.startswith('extra='): O.extra = int(o[6:])
        elif o.startswith('l0='): O.l0 = int(o[3:])
        elif o.startswith('raise='): O.raise_at = o[6:]
        elif o.startswith('sched='): O.sched = o[6:].replace('-', ' ')
    out, labels = build()
    open(path, 'w').write(out)
    if O.stamp: open(path + '.labels', 'w').write(','.join(labels))
    print('wrote', path, len(out), 'bytes;', out.count('\n'), 'lines')
```

```python
import sys, struct, math
from asmlib import *

def f2u(x): return struct.unpack('<I', struct.pack('<f', x))[0]
def lit(x): return f'0x{f2u(x):08x}'
NAME = 'standalone__detection_seg_dino__vision_kernel'

class Opt:
    stamp = False
    nt = ' nt'
    extra = 0
    dbg = None
    dbgwg = 28
    s1mid = False
    lazy = True
    q0 = 3
    rcomb = False
    hold = 0
    s2mode = 'spin0'
    s2drain = True
    cpf = True
    touch = False
    wsoff = 0
    fine = -1
    defer = True
    s2att = 1
    qa = 2
    qb = 1
    spread = True
    l0 = 2
    raise_at = 'A2'
    attempt = 'A2b'
    sched = 'B0 A3 B1 B2 A4 B3 B4 A5 B5 A6 B6 A7 B7 A8 B8'
O = Opt()

WS_EPOCH = 0x0
WS_QG    = 0x1000
WS_QKG   = 0x8000
WS_CTXN  = 0x10000
WS_CTX   = 0x18000
WS_ML    = 0x20000
WS_PART  = 0x100000
WS_STAMP = 0x800000
SEL_LO, SEL_HI = 0x00003F80, 0x3F800000

RAW = [8, 68]
V_T   = 128
V_STG = 152
V_O   = 160
V_S, V_R, V_G, V_D = 184, 188, 192, 196
V_P   = 200
V_MREF, V_L, V_SQ, V_ONEF, V_EPS = 202, 203, 204, 205, 206
V_F0OFF, V_F1OFF = 207, 208
V_LDSW, V_LDSR0, V_LDSR1, V_LDSF = 209, 210, 211, 212
V_PW, V_PR, V_MB, V_LANE = 213, 214, 215, 216
V_CW, V_CR0, V_CR1, V_CF = 217, 218, 219, 220
V_U = 221
V_FW, V_FR = 254, 255
V_GA = 222
V_L16 = 223
V_GB = 224
V_Q = 248
V_STAMP = 253
A_QK, A_X, A_F, A_P, A_ONES, A_W = 0, 48, 96, 144, 152, 156
NACC = 180
S_F0, S_F1, S_WS = 4, 6, 8
S_BSET = [10, 44]
S_WAVE, S_WG, S_T = 16, 17, 19
S_SELLO, S_SELHI, S_C384 = 20, 21, 23
S_MASK = 26
S_TMP = 34
S_TAG, S_EPOCH, S_ROLE, S_JOB = 50, 51, 52, 53
S_Q, S_OUT = 54, 58
S_SPIN = 60
S_THR = 61
S_EX = 62
S_WQ, S_WK, S_WV, S_WO = 64, 66, 68, 70
R_NONE, R_S1, R_S2, R_G1, R_G2, R_R = 0, 1, 2, 3, 4, 5
SPIN_MAX = 1 << 18
SLOT = 49152
L_QKL  = 3 * SLOT
L_PBUF = L_QKL + 12288
L_MBUF = L_PBUF + 2048
L_LBUF = L_MBUF + 64
L_FLAG = L_LBUF + 512
LDS_BYTES = L_FLAG + 1024
assert LDS_BYTES <= 163840
L_HEAD = 2 * SLOT
L_STAT = L_HEAD + 6144
L_RED_H = L_HEAD
L_TR   = SLOT
L_RED_T = SLOT + 4608
L_RB   = 0

class Gen(Asm):
    def __init__(self):
        super().__init__()
        self.vm = []
        self.uid = 0
        self.nstamp = 0
        self.labels = []
        self.done = set()
    def vmop(self, line, tag):
        self(line); self.vm.append(tag)
    def vmwait(self, tag):
        hits = [i for i, t in enumerate(self.vm) if t == tag]
        if not hits:
            assert tag in self.done, tag
            return
        idx = hits[-1]
        self.done.update(self.vm[:idx + 1])
        n = len(self.vm) - 1 - idx
        assert n <= 63, n
        self(f'    s_waitcnt vmcnt({n})')
        self.vm = self.vm[idx + 1:]
    def vmall(self):
        self('    s_waitcnt vmcnt(0)'); self.vm = []
    def label(self, base):
        self.uid += 1
        return f'{base}_{self.uid}'
    def stamp(self, name):
        if not O.stamp: return
        if O.dbg and name not in O.dbg: return
        idx = len(self.labels)
        assert idx < 64
        self.labels.append(name)
        self('    s_memrealtime s[40:41]')
        self('    s_waitcnt lgkmcnt(0)')
        self(f'    v_writelane_b32 v{V_STAMP}, s40, {idx}')

def xgroup_reduce(A, op, v, t):
    A(f'    v_mov_b32 v{t}, v{v}')
    A.nop(2)
    A(f'    v_permlane32_swap_b32 v{t}, v{v}')
    A(f'    {op} v{v}, v{v}, v{t}')
    A(f'    v_mov_b32 v{t}, v{v}')
    A.nop(2)
    A(f'    v_permlane16_swap_b32 v{t}, v{v}')
    A(f'    {op} v{v}, v{v}, v{t}')

def multi_xgroup(A, op, vs, ts):
    for sw in ('32', '16'):
        for v, t in zip(vs, ts): A(f'    v_mov_b32 v{t}, v{v}')
        if len(vs) < 3: A.nop(3 - len(vs))
        for v, t in zip(vs, ts): A(f'    v_permlane{sw}_swap_b32 v{t}, v{v}')
        for v, t in zip(vs, ts): A(f'    {op} v{v}, v{v}, v{t}')

def multi_row(A, op, vs, rots=(8, 4, 2, 1)):
    for rot in rots:
        if len(vs) < 3: A.nop(3 - len(vs))
        for v in vs: A(f'    {op}_dpp v{v}, v{v}, v{v} row_ror:{rot} row_mask:0xf bank_mask:0xf')

def tile_bases(A, u):
    S_B0 = S_BSET[u]; S_B1 = S_B0 + 2; S_BF = S_B0 + 4
    A(f'''    s_mul_hi_u32 s{S_TMP}, s{S_T}, 89478486
    s_mul_i32 s{S_TMP+1}, s{S_TMP}, 48
    s_sub_u32 s{S_TMP+1}, s{S_T}, s{S_TMP+1}
    s_mul_i32 s{S_TMP}, s{S_TMP}, 589824
    s_mul_i32 s{S_TMP+1}, s{S_TMP+1}, 6144
    s_add_u32 s{S_TMP}, s{S_TMP}, s{S_TMP+1}
    s_add_u32 s{S_B0}, s{S_F0}, s{S_TMP}
    s_addc_u32 s{S_B0+1}, s{S_F0+1}, 0
    s_add_u32 s{S_B1}, s{S_B0}, 294912
    s_addc_u32 s{S_B1+1}, s{S_B0+1}, 0
    s_mul_i32 s{S_TMP}, s{S_T}, 3072
    s_add_u32 s{S_BF}, s{S_F1}, s{S_TMP}
    s_addc_u32 s{S_BF+1}, s{S_F1+1}, 0
    s_add_u32 s{S_T}, s{S_T}, 4''')

def issue_item(A, j):
    if j > 26: return
    tile, third = divmod(j, 3); u = tile & 1
    if third == 0 and j > 0: tile_bases(A, u)
    S_B0 = S_BSET[u]; S_B1 = S_B0 + 2; S_BF = S_B0 + 4
    b = RAW[u]
    r = b + 48 + 4 * third
    A.vmop(f'    global_load_dwordx4 v[{r}:{r+3}], v{V_F1OFF}, s[{S_BF}:{S_BF+1}] offset:{third*256}{O.nt}', f'item{j}')
    for jj in range(4):
        dy, dx = jj >> 1, jj & 1
        r = b + 16 * third + 4 * jj
        base = S_B1 if dy else S_B0
        A.vmop(f'    global_load_dwordx4 v[{r}:{r+3}], v{V_F0OFF}, s[{base}:{base+1}] offset:{dx*768+third*256}{O.nt}', f'item{j}')

class Stream:
    nxt = 0
    done = 0
    pend = []
def enqueue(A, n=1):
    for _ in range(n):
        if Stream.nxt <= 26 and Stream.nxt < Stream.done + 6:
            Stream.pend += item_steps(A)
def pop(n=1):
    for _ in range(n):
        if Stream.pend: Stream.pend.pop(0)()
def flush_pend():
    pop(len(Stream.pend))
def issue_next(A, n=1):
    for _ in range(n):
        issue_item(A, Stream.nxt); Stream.nxt += 1

def item_steps(A):
    j = Stream.nxt; Stream.nxt += 1
    if j > 26: return []
    tile, third = divmod(j, 3); u = tile & 1
    S_B0 = S_BSET[u]; S_B1 = S_B0 + 2; S_BF = S_B0 + 4
    b = RAW[u]
    steps = []
    def first():
        if third == 0: tile_bases(A, u)
        r = b + 48 + 4 * third
        A.vmop(f'    global_load_dwordx4 v[{r}:{r+3}], v{V_F1OFF}, s[{S_BF}:{S_BF+1}] offset:{third*256}{O.nt}', f'item{j}')
    steps.append(first)
    for jj in range(4):
        def f(jj=jj):
            dy, dx = jj >> 1, jj & 1
            r = b + 16 * third + 4 * jj
            base = S_B1 if dy else S_B0
            A.vmop(f'    global_load_dwordx4 v[{r}:{r+3}], v{V_F0OFF}, s[{base}:{base+1}] offset:{dx*768+third*256}{O.nt}', f'item{j}')
        steps.append(f)
    return steps

def stage_A(A, k, hooks=None, quota=3, stamp=True):
    hooks = hooks or {}
    u = k & 1; b = RAW[u]; T = V_T
    A(f'    v_add_u32 v{V_CW}, {(k % 3) * SLOT}, v{V_LDSW}')
    if PV.pending: A('    s_waitcnt lgkmcnt(0)')
    units = [(third, dd) for third in range(3) for dd in range(4)]
    def tset(i): return T + 10 * (i & 1)
    def U(i):
        third, dd = units[i]; t = tset(i); f1 = b + 48 + 4 * third + dd
        return [f'    v_lshlrev_b32 v{t+8}, 16, v{f1}', f'    v_and_b32 v{t+9}, 0xffff0000, v{f1}']
    def D(i):
        third, dd = units[i]; t = tset(i)
        return ([f'    v_dot2_f32_bf16 v{t+j}, v{b+16*third+4*j+dd}, s{S_SELLO}, v{t+8}' for j in range(4)] +
                [f'    v_dot2_f32_bf16 v{t+4+j}, v{b+16*third+4*j+dd}, s{S_SELHI}, v{t+9}' for j in range(4)])
    def C(i):
        t = tset(i); o = V_STG + 4 * (i & 1)
        return [f'    v_cvt_pk_bf16_f32 v{o+kk}, v{t+2*kk}, v{t+2*kk+1}' for kk in range(4)]
    def W(i):
        third, dd = units[i]; o = V_STG + 4 * (i & 1)
        return f'    ds_write_b128 v{V_CW}, v[{o}:{o+3}] offset:{(third*4+dd)*1024}'
    enq = {0: 1, 4: 1, 8: 1} if quota == 3 else ({0: 1, 6: 1} if quota == 2 else ({0: 1} if quota == 1 else {}))
    def ensure(j):
        while any(True for _ in Stream.pend) and f'item{j}' not in A.done and A.vm.count(f'item{j}') < 5: pop()
        while Stream.nxt <= j: Stream.pend += item_steps(A); flush_pend()
    ensure(3 * k); A.vmwait(f'item{3*k}')
    enqueue(A, enq.get(0, 0))
    u0 = U(0); d0 = D(0)
    for l in u0 + d0[:4]: A(l)
    pop()
    for l in d0[4:]: A(l)
    for i in range(1, 12):
        if i % 4 == 0:
            Stream.done = 3 * k + i // 4
            ensure(3 * k + i // 4); A.vmwait(f'item{3*k + i//4}')
        enqueue(A, enq.get(i, 0))
        for l in U(i): A(l)
        if quota == 3 and i % 4 in (0, 2): pop()
        d = D(i); c = C(i - 1)
        for kk in range(4):
            A(d[kk]); A(c[kk])
        pv_pop(A, 2)
        A(W(i - 1))
        pop()
        for kk in range(4, 8): A(d[kk])
        if i % 4 == 3 and (i // 4) in hooks: hooks[i // 4]()
    Stream.done = 3 * k + 3
    flush_pend()
    A.nop(1)
    for l in C(11): A(l)
    pv_flush(A)
    A(W(11))
    if stamp: A.stamp(f'A{k}')

class PV:
    pending = []
def pv_steps():
    out = []
    for wp in range(4):
        for third in range(3):
            for e1 in range(2):
                f = A_F + (wp * 3 + third) * 4 + 2 * e1
                o = V_O + (third * 2 + e1) * 4
                out.append(f'    v_mfma_f32_16x16x16_bf16 v[{o}:{o+3}], a[{f}:{f+1}], a[{A_P+2*wp}:{A_P+2*wp+1}], v[{o}:{o+3}]')
    return out
def pv_pop(A, n=1):
    for _ in range(n):
        if PV.pending: A(PV.pending.pop(0))
def pv_flush(A):
    pv_pop(A, len(PV.pending))

def f_reads(A):
    for wp in range(4):
        for third in range(3):
            r = A_F + (wp * 3 + third) * 4
            A(f'    ds_read_b128 a[{r}:{r+3}], v{V_CF} offset:{wp*12288 + third*4096}')
def p_reads(A):
    for wp in range(4):
        A(f'    ds_read_b64 a[{A_P+2*wp}:{A_P+2*wp+1}], v{V_PR} offset:{wp*512}')

def eager_softmax(A, k, strict, fine):
    T = V_T
    for r in range(4):
        A(f'    v_fma_f32 v{V_S+r}, -v{V_R+r}, v{V_SQ}, v{V_S+r}')
    for r in range(4):
        A(f'    v_mul_f32 v{V_S+r}, v{V_S+r}, v{V_D+r}')
    A(f'    v_max3_f32 v{T}, v{V_S}, v{V_S+1}, v{V_S+2}')
    A(f'    v_max_f32 v{T}, v{T}, v{V_S+3}')
    if fine: A.stamp('b_z')
    A(f'    ds_max_f32 v{V_MB}, v{T}')
    A('    s_waitcnt lgkmcnt(0)')
    if fine: A.stamp('b_pre1')
    A('    s_barrier')
    if fine: A.stamp('b_post1')
    A(f'    ds_read_b32 v{T+1}, v{V_MB}')
    A('    s_waitcnt lgkmcnt(0)')
    if fine: A.stamp('b_m(+F)')
    A(f'    v_sub_f32 v{T+2}, v{V_MREF}, v{T+1}')
    for r in range(4):
        A(f'    v_sub_f32 v{V_S+r}, v{V_S+r}, v{T+1}')
    A(f'    v_exp_f32 v{T+2}, v{T+2}')
    for r in range(4):
        A(f'    v_exp_f32 v{V_S+r}, v{V_S+r}')
    A(f'    v_mov_b32 v{V_MREF}, v{T+1}')
    for r in range(4):
        A(f'    v_mul_f32 v{T+4+r}, v{V_S+r}, v{V_D+r}')
    A(f'    v_add_f32 v{V_S}, v{V_S}, v{V_S+1}')
    A(f'    v_cvt_pk_bf16_f32 v{V_P}, v{T+4}, v{T+5}')
    A(f'    v_cvt_pk_bf16_f32 v{V_P+1}, v{T+6}, v{T+7}')
    A(f'    v_add_f32 v{V_S+2}, v{V_S+2}, v{V_S+3}')
    A(f'    ds_write_b64 v{V_PW}, v[{V_P}:{V_P+1}]')
    for wp in range(4):
        for third in range(3):
            r = A_F + (wp * 3 + third) * 4
            A(f'    ds_read_b128 a[{r}:{r+3}], v{V_CF} offset:{wp*12288 + third*4096}')
    A(f'    v_add_f32 v{V_S}, v{V_S}, v{V_S+2}')
    A(f'    v_fma_f32 v{V_L}, v{V_L}, v{T+2}, v{V_S}')
    A(f'    v_mul_f32 v{V_U}, v{V_U}, v{T+2}')
    A(f'    v_lshlrev_b32 v{T+4}, 16, v{V_P}')
    A(f'    v_and_b32 v{T+5}, 0xffff0000, v{V_P}')
    A(f'    v_lshlrev_b32 v{T+6}, 16, v{V_P+1}')
    A(f'    v_and_b32 v{T+7}, 0xffff0000, v{V_P+1}')
    for r in range(4):
        A(f'    v_fmac_f32 v{V_U}, v{T+4+r}, v{V_R+r}')
    for kk in range(0, 24, 2):
        A(f'    v_pk_mul_f32 v[{V_O+kk}:{V_O+kk+1}], v[{V_O+kk}:{V_O+kk+1}], v[{T+2}:{T+3}] op_sel_hi:[1,0]')
    if fine: A.stamp('b_P')
    A(f'    s_waitcnt lgkmcnt({0 if strict else 12})')
    A('    s_barrier')
    if fine: A.stamp('b_post2')
    for wp in range(4):
        A(f'    ds_read_b64 a[{A_P+2*wp}:{A_P+2*wp+1}], v{V_PR} offset:{wp*512}')

def lazy_softmax(A, k, strict, fine):
    T = V_T; AR = T + 8; PP = T + 4; DL = T + 12; DU = T + 13
    slow = A.label('BS'); join = A.label('BJ')
    def p_from_args():
        for r in range(4): A(f'    v_exp_f32 v{AR+r}, v{AR+r}')
        A('    s_nop 0')
        for r in range(0, 4, 2):
            A(f'    v_pk_mul_f32 v[{PP+r}:{PP+r+1}], v[{AR+r}:{AR+r+1}], v[{V_D+r}:{V_D+r+1}]')
        A(f'    v_cvt_pk_bf16_f32 v{V_P}, v{PP}, v{PP+1}')
        A(f'    v_cvt_pk_bf16_f32 v{V_P+1}, v{PP+2}, v{PP+3}')
        A(f'    ds_write_b64 v{V_PW}, v[{V_P}:{V_P+1}]')
    def increments():
        A(f'    v_add_f32 v{AR}, v{AR}, v{AR+1}')
        A(f'    v_add_f32 v{AR+2}, v{AR+2}, v{AR+3}')
        A(f'    v_lshlrev_b32 v{PP}, 16, v{V_P}')
        A(f'    v_and_b32 v{PP+1}, 0xffff0000, v{V_P}')
        A(f'    v_lshlrev_b32 v{PP+2}, 16, v{V_P+1}')
        A(f'    v_and_b32 v{PP+3}, 0xffff0000, v{V_P+1}')
        A(f'    v_add_f32 v{DL}, v{AR}, v{AR+2}')
        A(f'    v_mul_f32 v{DU}, v{PP}, v{V_R}')
        A(f'    v_mul_f32 v{PP}, v{PP+1}, v{V_R+1}')
        A(f'    v_fmac_f32 v{DU}, v{PP+2}, v{V_R+2}')
        A(f'    v_fmac_f32 v{PP}, v{PP+3}, v{V_R+3}')
        A(f'    v_add_f32 v{DU}, v{DU}, v{PP}')
    for r in range(0, 4, 2):
        A(f'    v_pk_fma_f32 v[{V_S+r}:{V_S+r+1}], v[{V_R+r}:{V_R+r+1}], v[{V_SQ}:{V_SQ+1}], v[{V_S+r}:{V_S+r+1}] op_sel_hi:[1,0,1] neg_lo:[1,0,0] neg_hi:[1,0,0]')
    for r in range(0, 4, 2):
        A(f'    v_pk_fma_f32 v[{AR+r}:{AR+r+1}], v[{V_S+r}:{V_S+r+1}], v[{V_D+r}:{V_D+r+1}], v[{V_MREF}:{V_MREF+1}] op_sel_hi:[1,1,0] neg_lo:[0,0,1] neg_hi:[0,0,1]')
    A(f'    v_max3_f32 v{T}, v{AR}, v{AR+1}, v{AR+2}')
    A(f'    v_max_f32 v{T}, v{T}, v{AR+3}')
    A(f'    v_cmp_lt_f32 vcc, s{S_THR}, v{T}')
    if fine: A.stamp('b_z')
    p_from_args()
    A(f'    v_cndmask_b32 v{T}, 0, 1, vcc')
    A(f'    ds_write_b32 v{V_FW}, v{T}')
    increments()
    if fine: A.stamp('b_P')
    A('    s_waitcnt lgkmcnt(0)')
    A('    s_barrier')
    if fine: A.stamp('b_post')
    A(f'    ds_read_b128 v[{T}:{T+3}], v{V_FR}')
    p_reads(A)
    f_reads(A)
    A('    s_waitcnt lgkmcnt(15)')
    A(f'    v_or3_b32 v{T}, v{T}, v{T+1}, v{T+2}')
    A(f'    v_or_b32 v{T}, v{T}, v{T+3}')
    A(f'    v_cmp_ne_u32 vcc, 0, v{T}')
    A(f'    s_cbranch_vccz {join}')
    for r in range(4): A(f'    v_mul_f32 v{AR+r}, v{V_S+r}, v{V_D+r}')
    A(f'    v_max3_f32 v{T}, v{AR}, v{AR+1}, v{AR+2}')
    A(f'    v_max_f32 v{T}, v{T}, v{AR+3}')
    A(f'    ds_max_f32 v{V_MB}, v{T}')
    A('    s_waitcnt lgkmcnt(0)')
    A('    s_barrier')
    A(f'    ds_read_b32 v{T+1}, v{V_MB}')
    A('    s_waitcnt lgkmcnt(0)')
    A(f'    v_sub_f32 v{T+2}, v{V_MREF}, v{T+1}')
    for r in range(4): A(f'    v_sub_f32 v{AR+r}, v{AR+r}, v{T+1}')
    A(f'    v_exp_f32 v{T+2}, v{T+2}')
    A(f'    v_mov_b32 v{V_MREF}, v{T+1}')
    p_from_args()
    A(f'    v_mul_f32 v{V_L}, v{V_L}, v{T+2}')
    A(f'    v_mul_f32 v{V_U}, v{V_U}, v{T+2}')
    for kk in range(0, 24, 2):
        A(f'    v_pk_mul_f32 v[{V_O+kk}:{V_O+kk+1}], v[{V_O+kk}:{V_O+kk+1}], v[{T+2}:{T+3}] op_sel_hi:[1,0]')
    increments()
    A('    s_waitcnt lgkmcnt(0)')
    A('    s_barrier')
    p_reads(A)
    A(f'{join}:')
    A(f'    v_add_f32 v{V_L}, v{V_L}, v{DL}')
    A(f'    v_add_f32 v{V_U}, v{V_U}, v{DU}')
    if strict and k != 8:
        A('    s_waitcnt lgkmcnt(0)')
        A('    s_barrier')

def stage_B(A, k, quota=1, defer=True, strict=True):
    T = V_T; so = (k % 3) * SLOT
    enqueue(A, quota)
    A(f'    v_add_u32 v{V_CR0}, {so}, v{V_LDSR0}')
    A(f'    v_add_u32 v{V_CR1}, {so}, v{V_LDSR1}')
    A(f'    v_add_u32 v{V_CF}, {so}, v{V_LDSF}')
    if PV.pending: A('    s_waitcnt lgkmcnt(0)')
    n = 0
    for bb in range(12):
        for a2 in range(2):
            r = A_X + 4 * bb + 2 * a2
            A(f'    ds_read_b64_tr_b16 a[{r}:{r+1}], v{V_CR0+a2} offset:{bb*1024}')
            n += 1
            pv_pop(A)
    pv_flush(A)
    fine = (O.fine == k)
    if fine: A.stamp('b_tr')
    def X(bb): return f'a[{A_X+4*bb}:{A_X+4*bb+3}]'
    def G(bb): A(f'    v_mfma_f32_16x16x32_bf16 v[{V_G}:{V_G+3}], {X(bb)}, {X(bb)}, ' + ('0' if bb == 0 else f'v[{V_G}:{V_G+3}]'))
    def R(bb): A(f'    v_mfma_f32_16x16x32_bf16 v[{V_R}:{V_R+3}], {X(bb)}, a[{A_ONES}:{A_ONES+3}], ' + ('0' if bb == 0 else f'v[{V_R}:{V_R+3}]'))
    def S(bb): A(f'    v_mfma_f32_16x16x32_bf16 v[{V_S}:{V_S+3}], {X(bb)}, a[{A_QK+4*bb}:{A_QK+4*bb+3}], ' + ('0' if bb == 0 else f'v[{V_S}:{V_S+3}]'))
    for bb in range(12):
        if bb % 3 == 0:
            A(f'    s_waitcnt lgkmcnt({min(15, 24 - 2*(bb+3))})')
        G(bb)
        if bb % 2 == 1 and bb < 11: pop()
    flush_pend()
    if fine: A.stamp('b_G')
    for bb in range(8): R(bb)
    for r in range(4):
        src0 = '0' if r == 0 else f'v{T}'
        A(f'    v_cndmask_b32 v{T}, {src0}, v{V_G+r}, s[{S_MASK+2*r}:{S_MASK+2*r+1}]')
        R(8 + r)
    S(0)
    A(f'    v_mfma_f32_16x16x4_f32 v[{V_D}:{V_D+3}], v{T}, v{V_ONEF}, 0')
    for bb in range(1, 7): S(bb)
    for r in range(4):
        A(f'    v_mul_f32 v{V_R+r}, s{S_C384}, v{V_R+r}')
        S(7 + r)
    for r in range(4):
        A(f'    v_fma_f32 v{T+r}, -v{V_R+r}, v{V_R+r}, v{V_EPS}')
        if r == 1: S(11)
    for r in range(4):
        A(f'    v_fma_f32 v{V_D+r}, v{V_D+r}, s{S_C384}, v{T+r}')
    for r in range(4):
        A(f'    v_rsq_f32 v{V_D+r}, v{V_D+r}')
    if O.lazy:
        lazy_softmax(A, k, strict, fine)
    else:
        eager_softmax(A, k, strict, fine)
    PV.pending = pv_steps()
    if not defer:
        A('    s_waitcnt lgkmcnt(0)')
        pv_flush(A)
    A.stamp(f'B{k}')

def gather_addr(A, ws_off):
    A(f'    s_mul_i32 s{S_TMP}, s{S_WAVE}, 6144')
    A(f'    s_add_u32 s{S_TMP}, s{S_TMP}, {ws_off + 2048}')
    A(f'    v_add_u32 v{V_GA}, s{S_TMP}, v{V_L16}')

def gather_issue(A, track=None):
    for kk in range(3):
        for h in range(2):
            r = V_GB + 8 * kk + 4 * h
            line = f'    global_load_dwordx4 v[{r}:{r+3}], v{V_GA}, s[{S_WS}:{S_WS+1}] offset:{kk*2048 + h*1024 - 2048} sc1'
            if track: A.vmop(line, track)
            else: A(line)

def gather_check(A):
    T = V_T
    for kk in range(3):
        A(f'    v_xor_b32 v{T+2*kk}, s{S_TAG}, v{V_GB+8*kk}')
        A(f'    v_xor_b32 v{T+2*kk+1}, s{S_TAG}, v{V_GB+8*kk+6}')
    A(f'    v_or3_b32 v{T}, v{T}, v{T+1}, v{T+2}')
    A(f'    v_or3_b32 v{T+3}, v{T+3}, v{T+4}, v{T+5}')
    A(f'    v_or_b32 v{T}, v{T}, v{T+3}')
    A(f'    v_cmp_ne_u32 vcc, 0, v{T}')

def spin_guard(A, lbl_retry):
    A(f'    s_add_u32 s{S_SPIN}, s{S_SPIN}, 1')
    A(f'    s_cmp_lt_u32 s{S_SPIN}, {SPIN_MAX}')
    A(f'    s_cbranch_scc0 K_END')
    A(f'    s_sleep 1')

def gather_loop(A):
    l = A.label('GL'); d = A.label('GD')
    A(f'{l}:')
    gather_issue(A)
    A('    s_waitcnt vmcnt(0)')
    gather_check(A)
    A(f'    s_cbranch_vccz {d}')
    spin_guard(A, l)
    A(f'    s_branch {l}')
    A(f'{d}:')

def publish8(A, dreg, ws_off_sgpr):
    A(f'    v_mov_b32 v{dreg}, s{S_TAG}')
    A(f'    v_mov_b32 v{dreg+1}, 0')
    A(f'    v_mov_b32 v{dreg+6}, s{S_TAG}')
    A(f'    v_mov_b32 v{dreg+7}, 0')
    A(f'    v_add_u32 v1, s{ws_off_sgpr}, v{V_L16}')
    A(f'    global_store_dwordx4 v1, v[{dreg}:{dreg+3}], s[{S_WS}:{S_WS+1}] sc1')
    A(f'    global_store_dwordx4 v1, v[{dreg+4}:{dreg+7}], s[{S_WS}:{S_WS+1}] offset:1024 sc1')

def slab_addr(A, perm):
    A(f'''    v_lshrrev_b32 v1, 2, v{V_LANE}
    s_mul_i32 s{S_TMP}, s{S_WAVE}, 96
    v_add_u32 v1, s{S_TMP}, v1            ; p (x = 0)
    v_and_b32 v{V_T}, 3, v{V_LANE}
    v_lshlrev_b32 v{V_T}, 4, v{V_T}
    s_lshl_b32 s{S_TMP}, s{S_JOB}, 6
    v_add_u32 v{V_T}, s{S_TMP}, v{V_T}''')
    for x in range(6):
        d = 2 + x
        if not perm:
            A(f'    v_add_u32 v{d}, {16*x}, v1')
        else:
            t = V_T + 1; kk = x >> 1
            A(f"""    v_lshrrev_b32 v{t}, 2, v{V_LANE}
    v_add_u32 v{t}, {16*(x&1)}, v{t}          ; p & 31
    v_bfe_u32 v{t+1}, v{t}, 1, 2              ; dw
    v_cmp_eq_u32 vcc, 3, v{t+1}
    v_lshlrev_b32 v{t+1}, 7, v{t+1}
    v_add_u32 v{t+1}, {32*kk}, v{t+1}
    v_mov_b32 v{t+2}, {kk*128 + 96}
    v_cndmask_b32 v{t+1}, v{t+1}, v{t+2}, vcc
    v_lshrrev_b32 v{t+2}, 3, v{t}
    v_lshlrev_b32 v{t+2}, 3, v{t+2}           ; 8g
    v_and_b32 v{t}, 1, v{t}
    v_add3_u32 v{t+1}, v{t+1}, v{t+2}, v{t}
    s_lshl_b32 s{S_TMP+1}, s{S_WAVE}, 1
    v_add_u32 v{d}, s{S_TMP+1}, v{t+1}""")
        A(f'    v_mul_u32_u24 v{d}, 768, v{d}')
        A(f'    v_add_u32 v{d}, v{d}, v{V_T}')

def slab_loads(A, sptr, dst, track=None):
    for x in range(6):
        line = f'    global_load_dwordx4 v[{dst+4*x}:{dst+4*x+3}], v{2+x}, s[{sptr}:{sptr+1}]'
        if track: A.vmop(line, track)
        else: A(line)

def slab_to_operands(A, src, lds_base):
    A(f'''    s_mul_i32 s{S_TMP}, s{S_WAVE}, 12288
    s_add_u32 s{S_TMP}, s{S_TMP}, {lds_base}
    v_add_u32 v1, s{S_TMP}, v{V_L16}''')
    for x in range(6):
        A(f'    ds_write_b128 v1, v[{src+4*x}:{src+4*x+3}] offset:{x*1024}')
    A(f'''    v_lshrrev_b32 v2, 4, v{V_LANE}
    v_lshlrev_b32 v2, 9, v2               ; g*512
    v_bfe_u32 v3, v{V_LANE}, 2, 2
    v_lshlrev_b32 v3, 6, v3               ; r*64
    v_and_b32 v4, 3, v{V_LANE}
    v_lshlrev_b32 v4, 4, v4               ; c*16
    v_add3_u32 v2, v2, v3, v4
    v_add_u32 v2, s{S_TMP}, v2''')
    for kk in range(3):
        for tb in range(2):
            for hf in range(2):
                r = A_W + (kk * 2 + tb) * 4 + 2 * hf
                A(f'    ds_read_b64_tr_b16 a[{r}:{r+1}], v2 offset:{kk*2048 + hf*256 + tb*8}')

def gemm6(A, bregs):
    for kk in range(3):
        for tb in range(2):
            d = V_S if tb == 0 else V_R
            c = '0' if kk == 0 else f'v[{d}:{d+3}]'
            w = A_W + (kk * 2 + tb) * 4
            A(f'    v_mfma_f32_16x16x32_bf16 v[{d}:{d+3}], a[{w}:{w+3}], {bregs(kk)}, {c}')

def cross_wave_sum(A, red):
    skip = A.label('XW'); w0 = A.label('XW0')
    A.nop(8)
    A(f'''    s_cmp_eq_u32 s{S_WAVE}, 0
    s_cbranch_scc1 {w0}
    s_sub_u32 s{S_TMP}, s{S_WAVE}, 1
    s_lshl_b32 s{S_TMP}, s{S_TMP}, 11
    s_add_u32 s{S_TMP}, s{S_TMP}, {red}
    v_add_u32 v1, s{S_TMP}, v{V_L16}
    ds_write_b128 v1, v[{V_S}:{V_S+3}]
    ds_write_b128 v1, v[{V_R}:{V_R+3}] offset:1024
    s_waitcnt lgkmcnt(0)
{w0}:
    s_barrier
    s_cmp_eq_u32 s{S_WAVE}, 0
    s_cbranch_scc0 {skip}
    v_add_u32 v1, {red}, v{V_L16}''')
    T = V_T
    for w in range(3):
        A(f'    ds_read_b128 v[{T+8*w}:{T+8*w+3}], v1 offset:{w*2048}')
        A(f'    ds_read_b128 v[{T+8*w+4}:{T+8*w+7}], v1 offset:{w*2048+1024}')
    for w in range(3):
        A(f'    s_waitcnt lgkmcnt({4 - 2*w})')
        for r in range(4):
            A(f'    v_add_f32 v{V_S+r}, v{V_S+r}, v{T+8*w+r}')
        for r in range(4):
            A(f'    v_add_f32 v{V_R+r}, v{V_R+r}, v{T+8*w+4+r}')
    return skip

def cross_wave_sum4(A, red):
    skip = A.label('XV'); w0 = A.label('XV0')
    A.nop(8)
    A(f"""    s_cmp_eq_u32 s{S_WAVE}, 0
    s_cbranch_scc1 {w0}
    s_sub_u32 s{S_TMP}, s{S_WAVE}, 1
    s_lshl_b32 s{S_TMP}, s{S_TMP}, 10
    s_add_u32 s{S_TMP}, s{S_TMP}, {red}
    v_add_u32 v1, s{S_TMP}, v{V_L16}
    ds_write_b128 v1, v[{V_S}:{V_S+3}]
    s_waitcnt lgkmcnt(0)
{w0}:
    s_barrier
    s_cmp_eq_u32 s{S_WAVE}, 0
    s_cbranch_scc0 {skip}
    v_add_u32 v1, {red}, v{V_L16}""")
    T = V_T
    for w in range(3):
        A(f'    ds_read_b128 v[{T+4*w}:{T+4*w+3}], v1 offset:{w*1024}')
    for w in range(3):
        A(f'    s_waitcnt lgkmcnt({2 - w})')
        for r in range(4):
            A(f'    v_add_f32 v{V_S+r}, v{V_S+r}, v{T+4*w+r}')
    return skip

def publish4(A, ws_base):
    T = V_T; odd = A.label('PB_O'); go = A.label('PB_G')
    A(f"""    v_cvt_pk_bf16_f32 v{T+2}, v{V_S}, v{V_S+1}
    v_cvt_pk_bf16_f32 v{T+3}, v{V_S+2}, v{V_S+3}
    v_mov_b32 v{T}, s{S_TAG}
    v_mov_b32 v{T+1}, 0
    v_mov_b32 v{T+4}, s{S_TAG}
    v_mov_b32 v{T+5}, 0
    s_lshl_b32 s{S_TMP}, s{S_JOB}, 10
    s_add_u32 s{S_TMP}, s{S_TMP}, {ws_base}
    v_add_u32 v1, s{S_TMP}, v{V_L16}
    s_bitcmp1_b32 s{S_JOB}, 0
    s_cbranch_scc1 {odd}
    global_store_dwordx4 v1, v[{T}:{T+3}], s[{S_WS}:{S_WS+1}] sc1
    s_branch {go}
{odd}:
    global_store_dwordx4 v1, v[{T+2}:{T+5}], s[{S_WS}:{S_WS+1}] sc1
{go}:""")

def gemm3(A, areg, breg):
    for kk in range(3):
        A(f'    v_mfma_f32_16x16x32_bf16 v[{V_S}:{V_S+3}], {areg(kk)}, {breg(kk)}, ' + ('0' if kk == 0 else f'v[{V_S}:{V_S+3}]'))

def pack_D(A, dreg):
    A(f'    v_cvt_pk_bf16_f32 v{dreg+2}, v{V_S}, v{V_S+1}')
    A(f'    v_cvt_pk_bf16_f32 v{dreg+3}, v{V_S+2}, v{V_S+3}')
    A(f'    v_cvt_pk_bf16_f32 v{dreg+4}, v{V_R}, v{V_R+1}')
    A(f'    v_cvt_pk_bf16_f32 v{dreg+5}, v{V_R+2}, v{V_R+3}')

def lin12_addr(A, nload, rowfn, dst=2):
    for x in range(nload):
        d = dst + x; t = V_T
        A(f"""    v_add_u32 v{t}, {64*x}, v{V_LANE}
    v_mul_u32_u24 v{t+1}, 43691, v{t}
    v_lshrrev_b32 v{t+1}, 19, v{t+1}      ; row
    v_mul_u32_u24 v{t+2}, 12, v{t+1}
    v_sub_u32 v{t+2}, v{t}, v{t+2}
    v_lshlrev_b32 v{t+2}, 4, v{t+2}       ; piece*16""")
        rowfn(t + 1)
        A(f"""    v_mul_u32_u24 v{t+1}, 768, v{t+1}
    v_add3_u32 v{d}, v{t+1}, v{t+2}, s{S_TMP+2}""")

def lin12_to_operands(A, src, nload, lds_off, dsts):
    A(f"""    s_mul_i32 s{S_TMP}, s{S_WAVE}, 12288
    s_add_u32 s{S_TMP}, s{S_TMP}, {L_HEAD + lds_off}
    v_add_u32 v1, s{S_TMP}, v{V_L16}""")
    for x in range(nload):
        A(f'    ds_write_b128 v1, v[{src+4*x}:{src+4*x+3}] offset:{x*1024}')
    A(f"""    v_and_b32 v2, 15, v{V_LANE}
    v_mul_u32_u24 v2, 192, v2
    v_lshrrev_b32 v3, 4, v{V_LANE}
    v_lshlrev_b32 v3, 4, v3
    v_add3_u32 v2, v2, v3, s{S_TMP}""")
    for (reg, rowblk, kk) in dsts:
        A(f'    ds_read_b128 {reg}, v2 offset:{rowblk*16*192 + kk*64}')

def role_S1_loads(A):
    A(f'    s_mul_i32 s{S_TMP+2}, s{S_WAVE}, 192')
    lin12_addr(A, 3, lambda r: None)
    for x in range(3):
        A(f'    global_load_dwordx4 v[{V_GB+12+4*x}:{V_GB+15+4*x}], v{2+x}, s[{S_Q}:{S_Q+1}]')
    A(f"""    v_lshrrev_b32 v1, 1, v{V_LANE}
    s_mul_i32 s{S_TMP}, s{S_WAVE}, 96
    v_add_u32 v1, s{S_TMP}, v1
    v_mul_u32_u24 v1, 768, v1
    v_and_b32 v2, 1, v{V_LANE}
    v_lshlrev_b32 v2, 4, v2
    s_lshl_b32 s{S_TMP}, s{S_JOB}, 5
    v_add3_u32 v1, v1, v2, s{S_TMP}
    v_add_u32 v2, 24576, v1
    v_add_u32 v3, 49152, v1""")
    for x in range(3):
        A(f'    global_load_dwordx4 v[{V_O+4*x}:{V_O+4*x+3}], v{1+x}, s[{S_WQ}:{S_WQ+1}]')

def slab16_to_operands(A, src, lds_base):
    A(f"""    s_mul_i32 s{S_TMP}, s{S_WAVE}, 12288
    s_add_u32 s{S_TMP}, s{S_TMP}, {lds_base}
    v_add_u32 v1, s{S_TMP}, v{V_L16}""")
    for x in range(3):
        A(f'    ds_write_b128 v1, v[{src+4*x}:{src+4*x+3}] offset:{x*1024}')
    A(f"""    v_lshrrev_b32 v2, 4, v{V_LANE}
    v_lshlrev_b32 v2, 8, v2               ; g*256
    v_bfe_u32 v3, v{V_LANE}, 2, 2
    v_lshlrev_b32 v3, 5, v3               ; r*32
    v_and_b32 v4, 3, v{V_LANE}
    v_lshlrev_b32 v4, 3, v4               ; c*8
    v_add3_u32 v2, v2, v3, v4
    v_add_u32 v2, s{S_TMP}, v2""")
    for kk in range(3):
        for hf in range(2):
            r = A_W + kk * 4 + 2 * hf
            A(f'    ds_read_b64_tr_b16 a[{r}:{r+1}], v2 offset:{kk*1024 + hf*128}')

def slab_addr_regs(A, perm):
    slab_addr(A, perm)

def role_S1_work(A):
    T = V_T; Qr = V_GB
    A('    s_waitcnt vmcnt(0)')
    A.stamp('s1_data')
    if O.s1mid:
        A.vm = []; issue_item(A, 0); issue_item(A, 1)
    else:
        vm_save = list(A.vm); nxt = Stream.nxt; Stream.nxt = 0
        issue_next(A, O.l0)
        A.vm = vm_save; Stream.nxt = nxt
    lin12_to_operands(A, V_GB + 12, 3, 6144 + 2048, [(f'v[{Qr+4*kk}:{Qr+4*kk+3}]', 0, kk) for kk in range(3)])
    slab16_to_operands(A, V_O, L_HEAD)
    A('    s_waitcnt lgkmcnt(6)')
    for kk in range(3):
        q = f'v[{Qr+4*kk}:{Qr+4*kk+3}]'
        A(f'    v_mfma_f32_16x16x32_bf16 v[{V_G}:{V_G+3}], {q}, {q}, ' + ('0' if kk == 0 else f'v[{V_G}:{V_G+3}]'))
        A(f'    v_mfma_f32_16x16x32_bf16 v[{V_R}:{V_R+3}], a[{A_ONES}:{A_ONES+3}], {q}, ' + ('0' if kk == 0 else f'v[{V_R}:{V_R+3}]'))
    A.nop(7)
    A(f'    v_cndmask_b32 v{T}, 0, v{V_G}, s[{S_MASK}:{S_MASK+1}]')
    for r in range(1, 4):
        A(f'    v_cndmask_b32 v{T}, v{T}, v{V_G+r}, s[{S_MASK+2*r}:{S_MASK+2*r+1}]')
    A.nop(2)
    A(f'    v_mfma_f32_16x16x4_f32 v[{V_D}:{V_D+3}], v{V_ONEF}, v{T}, 0')
    A(f"""    s_lshl_b32 s{S_TMP}, s{S_WAVE}, 9
    s_add_u32 s{S_TMP}, s{S_TMP}, {L_STAT}
    v_lshlrev_b32 v1, 3, v{V_LANE}
    v_add_u32 v1, s{S_TMP}, v1
    v_and_b32 v2, 15, v{V_LANE}
    v_lshlrev_b32 v2, 3, v2
    v_add_u32 v2, {L_STAT}, v2
    v_mov_b32 v{T+2}, v{V_R}""")
    A.nop(3)
    A(f'    v_mov_b32 v{T+3}, v{V_D}')
    A(f'    ds_write_b64 v1, v[{T+2}:{T+3}]')
    A('    s_waitcnt lgkmcnt(0)')
    A.stamp('s1_stat')
    A('    s_barrier')
    if O.s1mid: issue_item(A, 2)
    for w in range(4):
        A(f'    ds_read_b64 v[{T+4+2*w}:{T+5+2*w}], v2 offset:{w*512}')
    A('    s_waitcnt lgkmcnt(0)')
    A(f"""    v_add_f32 v{T+4}, v{T+4}, v{T+6}
    v_add_f32 v{T+5}, v{T+5}, v{T+7}
    v_add_f32 v{T+8}, v{T+8}, v{T+10}
    v_add_f32 v{T+9}, v{T+9}, v{T+11}
    v_add_f32 v{T+4}, v{T+4}, v{T+8}
    v_add_f32 v{T+5}, v{T+5}, v{T+9}
    v_mul_f32 v{T+4}, s{S_C384}, v{T+4}          ; mean
    v_mul_f32 v{T+5}, s{S_C384}, v{T+5}          ; E[x^2]
    v_fma_f32 v{T+5}, -v{T+4}, v{T+4}, v{T+5}    ; var
    v_max_f32 v{T+5}, 0, v{T+5}
    v_cvt_pk_bf16_f32 v{T+6}, v{T+4}, v{T+5}
    v_lshlrev_b32 v{T+4}, 16, v{T+6}
    v_and_b32 v{T+5}, 0xffff0000, v{T+6}
    v_add_f32 v{T+5}, v{V_EPS}, v{T+5}
    v_cvt_pk_bf16_f32 v{T+5}, v{T+5}, v{T+5}
    v_lshlrev_b32 v{T+5}, 16, v{T+5}
    v_sqrt_f32 v{T+5}, v{T+5}
    s_nop 0
    v_cvt_pk_bf16_f32 v{T+5}, v{T+5}, v{T+5}
    v_lshlrev_b32 v{T+5}, 16, v{T+5}
    v_rcp_f32 v{T+5}, v{T+5}""")
    for k in range(0, 12, 2):
        a, b = T + 8, T + 12
        A(f'    v_lshlrev_b32 v{a}, 16, v{Qr+k}')
        A(f'    v_and_b32 v{a+1}, 0xffff0000, v{Qr+k}')
        A(f'    v_lshlrev_b32 v{b}, 16, v{Qr+k+1}')
        A(f'    v_and_b32 v{b+1}, 0xffff0000, v{Qr+k+1}')
        for x in (a, a + 1, b, b + 1): A(f'    v_sub_f32 v{x}, v{x}, v{T+4}')
        A(f'    v_cvt_pk_bf16_f32 v{a+2}, v{a}, v{a+1}')
        A(f'    v_cvt_pk_bf16_f32 v{b+2}, v{b}, v{b+1}')
        A(f'    v_lshlrev_b32 v{a}, 16, v{a+2}')
        A(f'    v_and_b32 v{a+1}, 0xffff0000, v{a+2}')
        A(f'    v_lshlrev_b32 v{b}, 16, v{b+2}')
        A(f'    v_and_b32 v{b+1}, 0xffff0000, v{b+2}')
        for x in (a, a + 1, b, b + 1): A(f'    v_mul_f32 v{x}, v{x}, v{T+5}')
        A(f'    v_cvt_pk_bf16_f32 v{Qr+k}, v{a}, v{a+1}')
        A(f'    v_cvt_pk_bf16_f32 v{Qr+k+1}, v{b}, v{b+1}')
    A.stamp('s1_norm')
    A.nop(2)
    gemm3(A, lambda kk: f'a[{A_W+4*kk}:{A_W+4*kk+3}]', lambda kk: f'v[{Qr+4*kk}:{Qr+4*kk+3}]')
    skip = cross_wave_sum4(A, L_RED_H)
    A.stamp('s1_red')
    publish4(A, WS_QG)
    A(f'{skip}:')

def role_S2_addr(A):
    A(f"""    s_lshr_b32 s{S_TMP}, s{S_JOB}, 3              ; third = b>>2
    s_lshl_b32 s{S_TMP}, s{S_TMP}, 7
    s_bfe_u32 s{S_TMP+1}, s{S_JOB}, 0x20001       ; ep = b&3
    s_lshl_b32 s{S_TMP+1}, s{S_TMP+1}, 1
    s_add_u32 s{S_TMP+3}, s{S_TMP}, s{S_TMP+1}
    s_and_b32 s{S_TMP+1}, s{S_JOB}, 1
    s_lshl_b32 s{S_TMP+1}, s{S_TMP+1}, 6          ; a2*64
    s_add_u32 s{S_TMP+3}, s{S_TMP+3}, s{S_TMP+1}
    s_mul_i32 s{S_TMP+2}, s{S_WAVE}, 192""")
    def rowfn(r):
        t = V_T + 3
        A(f"""    v_bfe_u32 v{t}, v{r}, 3, 1
    v_lshlrev_b32 v{t}, 2, v{t}
    v_bfe_u32 v{t+1}, v{r}, 2, 1
    v_lshlrev_b32 v{t+1}, 1, v{t+1}
    v_bfe_u32 v{t+2}, v{r}, 1, 1
    v_add3_u32 v{t}, v{t}, v{t+1}, v{t+2}
    v_lshlrev_b32 v{t}, 3, v{t}
    v_and_b32 v{r}, 1, v{r}
    v_add3_u32 v{r}, v{r}, v{t}, s{S_TMP+3}""")
    lin12_addr(A, 3, rowfn, V_O + 12)

def role_S2_loads(A):
    for x in range(3):
        A.vmop(f'    global_load_dwordx4 v[{V_O+4*x}:{V_O+4*x+3}], v{V_O+12+x}, s[{S_WK}:{S_WK+1}]', 'wk')

def role_S2_stage(A):
    A.vmwait('wk')
    A(f"""    s_mul_i32 s{S_TMP}, s{S_WAVE}, 12288
    s_add_u32 s{S_TMP}, s{S_TMP}, {L_HEAD}
    v_add_u32 v1, s{S_TMP}, v{V_L16}""")
    for x in range(3):
        A(f'    ds_write_b128 v1, v[{V_O+4*x}:{V_O+4*x+3}] offset:{x*1024}')
    A(f"""    v_and_b32 v2, 15, v{V_LANE}
    v_mul_u32_u24 v2, 192, v2
    v_lshrrev_b32 v3, 4, v{V_LANE}
    v_lshlrev_b32 v3, 3, v3
    v_add3_u32 v2, v2, v3, s{S_TMP}""")
    for kk in range(3):
        for hf in range(2):
            r = A_W + 4 * kk + 2 * hf
            A(f'    ds_read_b64 a[{r}:{r+1}], v2 offset:{kk*64 + hf*32}')

def role_S2_work(A, have_q=False):
    scale = 384 ** -0.5 * math.log2(math.e)
    ok = A.label('S2OK')
    if not have_q:
        A.vmwait('q')
        gather_check(A)
        A(f'    s_cbranch_vccz {ok}')
        gather_loop(A)
        A(f'{ok}:')
    A('    s_waitcnt lgkmcnt(0)')
    A.stamp('s2_q')
    gemm3(A, lambda kk: f'a[{A_W+4*kk}:{A_W+4*kk+3}]', lambda kk: f'v[{V_GB+8*kk+2}:{V_GB+8*kk+5}]')
    skip = cross_wave_sum4(A, L_HEAD + 6144)
    A.stamp('s2_red')
    for r in range(4):
        A(f'    v_mul_f32 v{V_S+r}, {lit(scale)}, v{V_S+r}')
    publish4(A, WS_QKG)
    A(f'{skip}:')

def get_qk(A):
    ok = A.label('QK_OK'); lp = A.label('QK_LP')
    A.vmwait('qk')
    gather_check(A)
    A(f'    s_cbranch_vccz {ok}')
    gather_loop(A)
    A(f'{ok}:')
    A(f"""    s_mul_i32 s{S_TMP}, s{S_WAVE}, 3072
    s_add_u32 s{S_TMP}, s{S_TMP}, {L_QKL}
    v_add_u32 v1, s{S_TMP}, v{V_L16}""")
    for kk in range(3):
        A(f'    ds_write_b128 v1, v[{V_GB+8*kk+2}:{V_GB+8*kk+5}] offset:{kk*1024}')
    A(f'    v_add_u32 v1, {L_QKL}, v{V_L16}')
    A('    s_waitcnt lgkmcnt(0)')
    A('    s_barrier')
    for bb in range(12):
        A(f'    ds_read_b128 a[{A_QK+4*bb}:{A_QK+4*bb+3}], v1 offset:{bb*1024}')
    for bb in range(12):
        if bb % 4 == 0: A(f'    s_waitcnt lgkmcnt({8 - bb})')
        c = '0' if bb == 0 else f'v[{V_S}:{V_S+3}]'
        A(f'    v_mfma_f32_16x16x32_bf16 v[{V_S}:{V_S+3}], a[{A_ONES}:{A_ONES+3}], a[{A_QK+4*bb}:{A_QK+4*bb+3}], {c}')
    A.nop(8)
    A(f'    v_mov_b32 v{V_SQ}, v{V_S}')
    A.stamp('Qk')

def role_G_loads(A):
    g1 = A.label('GL1'); done = A.label('GLD')
    A(f'    s_cmp_eq_u32 s{S_ROLE}, {R_G1}')
    A(f'    s_cbranch_scc1 {g1}')
    A(f'    s_cmp_eq_u32 s{S_ROLE}, {R_G2}')
    A(f'    s_cbranch_scc0 {done}')
    slab_addr(A, False)
    slab_loads(A, S_WO, RAW[1])
    A(f"""    v_and_b32 v1, 15, v{V_LANE}
    v_mul_u32_u24 v1, 768, v1
    v_lshrrev_b32 v2, 4, v{V_LANE}
    v_lshlrev_b32 v2, 4, v2
    s_lshl_b32 s{S_TMP}, s{S_JOB}, 6
    v_add3_u32 v{V_Q+4}, v1, v2, s{S_TMP}
    global_load_dwordx4 v[{V_Q}:{V_Q+3}], v{V_Q+4}, s[{S_Q}:{S_Q+1}]
    s_branch {done}
{g1}:""")
    slab_addr(A, True)
    slab_loads(A, S_WV, RAW[1])
    A(f'{done}:')

def epilogue(A):
    T = V_T
    multi_xgroup(A, 'v_add_f32', [V_L, V_U], [T, T + 1])
    A(f"""    v_and_b32 v3, 15, v{V_LANE}           ; n
    v_lshlrev_b32 v5, 4, v3
    s_lshl_b32 s{S_TMP}, s{S_WAVE}, 2
    s_add_u32 s{S_TMP}, s{S_TMP}, {L_LBUF}
    v_add_u32 v6, s{S_TMP}, v5
    ds_write_b32 v6, v{V_L}
    ds_write_b32 v6, v{V_U} offset:256""")
    for r in range(4):
        for third in range(3):
            b0 = V_O + third * 8; b1 = b0 + 4
            A(f'    v_cvt_pk_bf16_f32 v{8+4*r+third}, v{b0+r}, v{b1+r}')
        A(f'    v_mov_b32 v{8+4*r+3}, s{S_TAG}')
    A(f"""    s_mul_i32 s{S_TMP}, s{S_WAVE}, 12288
    s_add_u32 s{S_TMP}, s{S_TMP}, {L_TR}
    v_mul_u32_u24 v1, 272, v3
    v_lshrrev_b32 v2, 4, v{V_LANE}        ; g'
    v_lshlrev_b32 v4, 6, v2               ; (g'>>1)*128 + (g'&1)*64 == g'*64
    v_add3_u32 v1, v1, v4, s{S_TMP}""")
    for r in range(4):
        A(f'    ds_write_b128 v1, v[{8+4*r}:{11+4*r}] offset:{r*16}')
    A(f"""    v_mul_u32_u24 v1, 272, v2
    v_add3_u32 v1, v1, v5, s{S_TMP}""")
    for x in range(4):
        A(f'    ds_read_b128 v[{24+4*x}:{27+4*x}], v1 offset:{x*1088}')
    A(f"""    v_lshlrev_b32 v1, 18, v2              ; (l>>4)*8*32768
    v_bfe_u32 v4, v{V_LANE}, 3, 1
    v_lshlrev_b32 v4, 15, v4
    v_and_b32 v7, 7, v{V_LANE}
    v_lshlrev_b32 v7, 4, v7
    v_add3_u32 v1, v1, v4, v7
    s_lshl_b32 s{S_TMP}, s{S_WAVE}, 16
    s_lshl_b32 s{S_TMP+1}, s{S_WG}, 7
    s_add_u32 s{S_TMP}, s{S_TMP}, s{S_TMP+1}
    s_add_u32 s{S_TMP}, s{S_TMP}, {WS_PART}
    v_add_u32 v1, s{S_TMP}, v1
    v_add_u32 v2, 0x100000, v1
    v_add_u32 v4, 0x200000, v1
    v_add_u32 v7, 0x300000, v1""")
    for x, a in enumerate((1, 2, 4, 7)):
        A(f'    s_waitcnt lgkmcnt({3-x})')
        A(f'    global_store_dwordx4 v{a}, v[{24+4*x}:{27+4*x}], s[{S_WS}:{S_WS+1}] sc1')
    A('    s_barrier')
    skip = A.label('EP')
    A(f"""    s_cmp_eq_u32 s{S_WAVE}, 0
    s_cbranch_scc0 {skip}
    v_add_u32 v5, {L_LBUF}, v5
    ds_read_b128 v[40:43], v5
    ds_read_b128 v[44:47], v5 offset:256
    v_lshlrev_b32 v3, 4, v3
    s_lshl_b32 s{S_TMP}, s{S_WG}, 8
    s_add_u32 s{S_TMP}, s{S_TMP}, {WS_ML}
    v_add_u32 v3, s{S_TMP}, v3
    v_mov_b32 v48, v{V_MREF}
    v_mov_b32 v51, s{S_TAG}
    s_waitcnt lgkmcnt(0)
    v_add_f32 v40, v40, v41
    v_add_f32 v42, v42, v43
    v_add_f32 v44, v44, v45
    v_add_f32 v46, v46, v47
    v_add_f32 v49, v40, v42
    v_add_f32 v50, v44, v46
    v_cmp_gt_u32 vcc, 16, v{V_LANE}
    s_and_saveexec_b64 s[{S_EX}:{S_EX+1}], vcc
    global_store_dwordx4 v3, v[48:51], s[{S_WS}:{S_WS+1}] sc1
    s_mov_b64 exec, s[{S_EX}:{S_EX+1}]
{skip}:""")
    A.stamp('pub')

def role_R(A):
    T = V_T
    lp = A.label('RL'); ok = A.label('RO'); lp2 = A.label('RD'); ok2 = A.label('RO2'); fin = A.label('RF')
    A(f"""    s_and_b32 s{S_TMP}, s{S_JOB}, 15          ; n
    s_lshr_b32 s{S_TMP+1}, s{S_JOB}, 4        ; chunk
    s_lshl_b32 s{S_TMP+2}, s{S_TMP}, 4
    s_lshl_b32 s{S_TMP+3}, s{S_WAVE}, 14
    s_add_u32 s{S_TMP+2}, s{S_TMP+2}, s{S_TMP+3}
    s_add_u32 s{S_TMP+2}, s{S_TMP+2}, {WS_ML}
    v_lshlrev_b32 v1, 8, v{V_LANE}
    v_add_u32 v1, s{S_TMP+2}, v1
    s_lshl_b32 s{S_TMP+2}, s{S_TMP}, 3
    s_add_u32 s{S_TMP+2}, s{S_TMP+2}, s{S_TMP+1}
    s_lshl_b32 s{S_TMP+2}, s{S_TMP+2}, 15
    s_lshl_b32 s{S_TMP+3}, s{S_WAVE}, 13
    s_add_u32 s{S_TMP+2}, s{S_TMP+2}, s{S_TMP+3}
    s_add_u32 s{S_TMP+2}, s{S_TMP+2}, {WS_PART + 4096}
    v_add_u32 v2, s{S_TMP+2}, v{V_L16}
{lp}:""")
    def data_loads():
        for k in range(8):
            A(f'    global_load_dwordx4 v[{16+4*k}:{19+4*k}], v2, s[{S_WS}:{S_WS+1}] offset:{k*1024-4096} sc1')
    A(f'    global_load_dwordx4 v[8:11], v1, s[{S_WS}:{S_WS+1}] sc1')
    if O.rcomb:
        data_loads()
        A('    s_waitcnt vmcnt(8)')
    else:
        A('    s_waitcnt vmcnt(0)')
    A(f"""    v_cmp_ne_u32 vcc, s{S_TAG}, v11
    s_cbranch_vccz {ok}""")
    if O.rcomb: A('    s_waitcnt vmcnt(0)')
    spin_guard(A, lp)
    A(f'    s_branch {lp}')
    A(f'{ok}:')
    A.stamp('R_ml')
    if not O.rcomb: data_loads()
    A(f'    v_mov_b32 v12, v8')
    multi_row(A, 'v_max_f32', [12])
    xgroup_reduce(A, 'v_max_f32', 12, 13)
    A(f"""    v_sub_f32 v8, v8, v12
    v_exp_f32 v8, v8
    v_lshrrev_b32 v3, 3, v{V_LANE}
    v_lshlrev_b32 v3, 2, v3               ; ii*4
    v_mul_f32 v9, v9, v8
    v_mul_f32 v10, v10, v8""")
    for k in range(8):
        A(f'    v_add_u32 v4, {32*k}, v3')
        A(f'    ds_bpermute_b32 v{48+k}, v4, v8')
    multi_row(A, 'v_add_f32', [9, 10])
    multi_xgroup(A, 'v_add_f32', [9, 10], [13, 14])
    for j in range(6): A(f'    v_mov_b32 v{56+j}, 0')
    A(f'{lp2}:')
    A('    s_waitcnt vmcnt(0)')
    for k in range(0, 8, 2):
        A(f'    v_xor_b32 v{64+k}, s{S_TAG}, v{19+4*k}')
        A(f'    v_xor_b32 v{65+k}, s{S_TAG}, v{23+4*k}')
    A(f"""    v_or3_b32 v64, v64, v65, v66
    v_or3_b32 v67, v67, v68, v69
    v_or3_b32 v64, v64, v70, v71
    v_or_b32 v64, v64, v67
    v_cmp_ne_u32 vcc, 0, v64
    s_cbranch_vccz {ok2}""")
    spin_guard(A, lp2)
    data_loads()
    A(f'    s_branch {lp2}')
    A(f'{ok2}:')
    A('    s_waitcnt lgkmcnt(0)')
    for k in range(8):
        for t in range(3):
            A(f'    v_lshlrev_b32 v64, 16, v{16+4*k+t}')
            A(f'    v_and_b32 v65, 0xffff0000, v{16+4*k+t}')
            A(f'    v_fmac_f32 v{56+2*t}, v64, v{48+k}')
            A(f'    v_fmac_f32 v{57+2*t}, v65, v{48+k}')
    acc = list(range(56, 62))
    multi_row(A, 'v_add_f32', acc, rots=(8,))
    multi_xgroup(A, 'v_add_f32', acc, list(range(64, 70)))
    A(f"""    s_lshl_b32 s{S_TMP+2}, s{S_WAVE}, 8
    s_add_u32 s{S_TMP+2}, s{S_TMP+2}, {L_RB}
    v_mul_u32_u24 v3, 24, v{V_LANE}
    v_add_u32 v3, s{S_TMP+2}, v3
    v_mov_b32 v4, s{S_TMP+2}
    v_mov_b32 v13, v9
    v_mov_b32 v14, v10
    v_mov_b32 v15, 0
    v_cmp_gt_u32 vcc, 8, v{V_LANE}
    s_and_saveexec_b64 s[{S_EX}:{S_EX+1}], vcc
    ds_write_b64 v3, v[56:57]
    ds_write_b64 v3, v[58:59] offset:8
    ds_write_b64 v3, v[60:61] offset:16
    ds_write_b128 v4, v[12:15] offset:192
    s_mov_b64 exec, s[{S_EX}:{S_EX+1}]
    s_waitcnt lgkmcnt(0)
    s_barrier
    s_cmp_eq_u32 s{S_WAVE}, 0
    s_cbranch_scc0 {fin}
    v_min_u32 v3, 7, v{V_LANE}
    v_mul_u32_u24 v3, 24, v3
    v_add_u32 v3, {L_RB}, v3
    v_mov_b32 v4, {L_RB}""")
    for w in range(4):
        A(f'    ds_read_b128 v[{16+4*w}:{19+4*w}], v4 offset:{w*256+192}')
    for w in range(4):
        for j in range(3):
            A(f'    ds_read_b64 v[{32+6*w+2*j}:{33+6*w+2*j}], v3 offset:{w*256+8*j}')
    A(f"""    s_waitcnt lgkmcnt(12)
    v_max_f32 v12, v16, v20
    v_max3_f32 v12, v12, v24, v28""")
    for w in range(4): A(f'    v_sub_f32 v{16+4*w}, v{16+4*w}, v12')
    for w in range(4): A(f'    v_exp_f32 v{16+4*w}, v{16+4*w}')
    A(f"""    s_nop 0
    v_mul_f32 v13, v16, v17
    v_mul_f32 v14, v16, v18""")
    for w in range(1, 4):
        A(f'    v_fmac_f32 v13, v{16+4*w}, v{17+4*w}')
        A(f'    v_fmac_f32 v14, v{16+4*w}, v{18+4*w}')
    A(f"""    v_rcp_f32 v13, v13
    s_waitcnt lgkmcnt(0)""")
    for j in range(6): A(f'    v_mul_f32 v{56+j}, v{32+j}, v16')
    for w in range(1, 4):
        for j in range(6): A(f'    v_fmac_f32 v{56+j}, v{32+6*w+j}, v{16+4*w}')
    for j in range(6): A(f'    v_sub_f32 v{56+j}, v{56+j}, v14')
    for j in range(6): A(f'    v_mul_f32 v{56+j}, v{56+j}, v13')
    A(f"""    v_cvt_pk_bf16_f32 v8, v56, v57
    v_cvt_pk_bf16_f32 v9, v58, v59
    v_cvt_pk_bf16_f32 v10, v60, v61
    v_mov_b32 v11, s{S_TAG}
    s_lshl_b32 s{S_TMP+2}, s{S_TMP+1}, 4
    s_add_u32 s{S_TMP+2}, s{S_TMP+2}, s{S_TMP}
    s_lshl_b32 s{S_TMP+2}, s{S_TMP+2}, 7
    s_add_u32 s{S_TMP+2}, s{S_TMP+2}, {WS_CTXN}
    v_add_u32 v3, s{S_TMP+2}, v{V_L16}
    v_cmp_gt_u32 vcc, 8, v{V_LANE}
    s_and_saveexec_b64 s[{S_EX}:{S_EX+1}], vcc
    global_store_dwordx4 v3, v[8:11], s[{S_WS}:{S_WS+1}] sc1
    s_mov_b64 exec, s[{S_EX}:{S_EX+1}]
{fin}:""")
    A.stamp('R_done')

def gather4_loop(A):
    l = A.label('G4L'); d = A.label('G4D'); T = V_T
    A(f"""    s_lshl_b32 s{S_TMP}, s{S_WAVE}, 12
    s_add_u32 s{S_TMP}, s{S_TMP}, {WS_CTXN}
    v_and_b32 v1, 15, v{V_LANE}
    v_lshlrev_b32 v1, 7, v1
    v_lshrrev_b32 v2, 4, v{V_LANE}
    v_lshlrev_b32 v2, 4, v2
    v_add3_u32 v{V_GA}, v1, v2, s{S_TMP}""")
    A(f'{l}:')
    for x in range(4):
        A(f'    global_load_dwordx4 v[{V_GB+4*x}:{V_GB+4*x+3}], v{V_GA}, s[{S_WS}:{S_WS+1}] offset:{(x>>1)*2048 + (x&1)*64} sc1')
    A('    s_waitcnt vmcnt(0)')
    for x in range(4): A(f'    v_xor_b32 v{T+x}, s{S_TAG}, v{V_GB+4*x+3}')
    A(f'    v_or3_b32 v{T}, v{T}, v{T+1}, v{T+2}')
    A(f'    v_or_b32 v{T}, v{T}, v{T+3}')
    A(f'    v_cmp_ne_u32 vcc, 0, v{T}')
    A(f'    s_cbranch_vccz {d}')
    spin_guard(A, l)
    A(f'    s_branch {l}')
    A(f'{d}:')
    for j in range(3): A(f'    v_mov_b32 v{V_GB+4*j+3}, v{V_GB+12+j}')

def role_G(A):
    g2 = A.label('G2'); lj = A.label('GJ')
    role_G_loads(A)
    A('    s_waitcnt vmcnt(0)')
    slab_to_operands(A, RAW[1], 0)
    A(f'    s_cmp_eq_u32 s{S_ROLE}, {R_G2}')
    A(f'    s_cbranch_scc1 {g2}')
    gather4_loop(A)
    A('    s_waitcnt lgkmcnt(0)')
    A.stamp('G1_in')
    gemm6(A, lambda kk: f'v[{V_GB+4*kk}:{V_GB+4*kk+3}]')
    A(f'    s_branch {lj}')
    A(f'{g2}:')
    gather_addr(A, WS_CTX)
    gather_loop(A)
    A('    s_waitcnt lgkmcnt(0)')
    A.stamp('G2_in')
    gemm6(A, lambda kk: f'v[{V_GB+8*kk+2}:{V_GB+8*kk+5}]')
    A(f'{lj}:')
    skip = cross_wave_sum(A, L_RED_T)
    out2 = A.label('GO')
    A(f'    s_cmp_eq_u32 s{S_ROLE}, {R_G2}')
    A(f'    s_cbranch_scc1 {out2}')
    pack_D(A, 8)
    A(f'    s_lshl_b32 s{S_TMP}, s{S_JOB}, 11')
    A(f'    s_add_u32 s{S_TMP}, s{S_TMP}, {WS_CTX}')
    publish8(A, 8, S_TMP)
    A(f'    s_branch {skip}')
    A(f'{out2}:')
    for k in range(4):
        d = V_S if k < 2 else V_R
        j = 2 * (k & 1)
        A(f'    v_lshlrev_b32 v8, 16, v{V_Q+k}')
        A(f'    v_and_b32 v9, 0xffff0000, v{V_Q+k}')
        A(f'    v_add_f32 v8, v8, v{d+j}')
        A(f'    v_add_f32 v9, v9, v{d+j+1}')
        A(f'    v_cvt_pk_bf16_f32 v{12+k}, v8, v9')
    A(f'    global_store_dwordx4 v{V_Q+4}, v[12:15], s[{S_OUT}:{S_OUT+1}]')
    e = A.label('GE')
    A(f"""    s_cmp_eq_u32 s{S_JOB}, 0
    s_cbranch_scc0 {skip}
    s_add_u32 s{S_TMP}, s{S_EPOCH}, 1
    v_mov_b32 v8, s{S_TMP}
    v_mov_b32 v9, {WS_EPOCH}
    v_cmp_eq_u32 vcc, 0, v{V_LANE}
    s_and_saveexec_b64 s[{S_EX}:{S_EX+1}], vcc
    global_store_dword v9, v8, s[{S_WS}:{S_WS+1}]
    s_mov_b64 exec, s[{S_EX}:{S_EX+1}]""")
    A(f'{skip}:')
    A.stamp('G_done')

def build_kernel():
    A = Gen(); T = V_T
    Stream.nxt = 0; Stream.done = 0; Stream.pend = []; PV.pending = []
    A('.text')
    A(f'.globl {NAME}')
    A('.p2align 8')
    A(f'.type {NAME},@function')
    A(f'{NAME}:')
    A(f"""    s_cmp_ge_u32 s2, 256
    s_cbranch_scc1 K_END
    s_load_dwordx4 s[{S_F0}:{S_F0+3}], s[0:1], 8
    s_load_dwordx2 s[{S_WS}:{S_WS+1}], s[0:1], 72
    s_load_dwordx2 s[{S_Q}:{S_Q+1}], s[0:1], 0
    s_load_dwordx8 s[{S_WQ}:{S_WQ+7}], s[0:1], 24
    s_load_dwordx2 s[{S_OUT}:{S_OUT+1}], s[0:1], 56
    s_mov_b32 s{S_WG}, s2
    s_mov_b32 s{S_SPIN}, 0
    v_and_b32 v{V_LANE}, 63, v0
    v_lshrrev_b32 v1, 6, v0
    v_lshlrev_b32 v{V_L16}, 4, v{V_LANE}
    v_readfirstlane_b32 s{S_WAVE}, v1
    v_lshrrev_b32 v2, 4, v{V_LANE}        ; g
    v_and_b32 v3, 15, v{V_LANE}           ; i
    v_lshlrev_b32 v4, 4, v3
    v_mul_u32_u24 v5, 1536, v2
    v_add_u32 v{V_F0OFF}, v5, v4
    v_mul_u32_u24 v5, 768, v2
    v_add_u32 v{V_F1OFF}, v5, v4
    s_mul_i32 s{S_T}, s{S_WG}, 36
    s_add_u32 s{S_T}, s{S_T}, s{S_WAVE}
    s_mov_b32 s{S_ROLE}, {R_NONE}
    s_mov_b32 s{S_JOB}, 0
    s_cmp_ge_u32 s2, 128
    s_cbranch_scc0 ROLE_LOW
    s_mov_b32 s{S_ROLE}, {R_R}
    s_sub_u32 s{S_JOB}, s2, 128
    s_branch ROLE_DONE
ROLE_LOW:
    s_lshr_b32 s{S_TMP}, s2, 3            ; hi
    s_and_b32 s{S_TMP+1}, s2, 3
    s_bitcmp1_b32 s2, 2
    s_cbranch_scc1 ROLE_G
    s_cmp_ge_u32 s{S_TMP}, 12
    s_cbranch_scc1 ROLE_DONE
    s_cmp_ge_u32 s{S_TMP}, 6
    s_cselect_b32 s{S_TMP+2}, 1, 0
    s_mul_i32 s{S_TMP+3}, s{S_TMP+2}, 6
    s_sub_u32 s{S_TMP}, s{S_TMP}, s{S_TMP+3}
    s_lshl_b32 s{S_TMP}, s{S_TMP}, 2
    s_add_u32 s{S_JOB}, s{S_TMP}, s{S_TMP+1}
    s_add_u32 s{S_ROLE}, s{S_TMP+2}, {R_S1}
    s_branch ROLE_DONE
ROLE_G:
    s_cmp_ge_u32 s{S_TMP}, 6
    s_cbranch_scc1 ROLE_DONE
    s_cmp_ge_u32 s{S_TMP}, 3
    s_cselect_b32 s{S_TMP+2}, 1, 0
    s_mul_i32 s{S_TMP+3}, s{S_TMP+2}, 3
    s_sub_u32 s{S_TMP}, s{S_TMP}, s{S_TMP+3}
    s_lshl_b32 s{S_TMP}, s{S_TMP}, 2
    s_add_u32 s{S_JOB}, s{S_TMP}, s{S_TMP+1}
    s_add_u32 s{S_ROLE}, s{S_TMP+2}, {R_G1}
ROLE_DONE:
    s_waitcnt lgkmcnt(0)
    s_load_dword s{S_EPOCH}, s[{S_WS}:{S_WS+1}], {WS_EPOCH}""")
    if O.stamp: A(f'    v_mov_b32 v{V_STAMP}, 0')
    A.stamp('entry')
    l2 = A.label('P2')
    A(f'    s_cmp_eq_u32 s{S_ROLE}, {R_S1}')
    A(f'    s_cbranch_scc0 {l2}')
    role_S1_loads(A)
    A(f'{l2}:')
    tile_bases(A, 0)
    hold = A.label('PH')
    A(f'    s_cmp_eq_u32 s{S_ROLE}, {R_S1}')
    A(f'    s_cbranch_scc1 {hold}')
    issue_next(A, O.l0)
    A(f'{hold}:')
    if O.cpf:
        lc = A.label('CPF')
        A(f'''    s_sub_u32 s{S_TMP}, s{S_WG}, 96
    s_cmp_lt_u32 s{S_TMP}, 32
    s_cbranch_scc0 {lc}
    s_cmp_ge_u32 s{S_WAVE}, 2
    s_cbranch_scc0 {lc}
    s_getpc_b64 s[72:73]
CPF_PC:
    s_lshr_b32 s{S_TMP}, s{S_TMP}, 3
    s_lshl_b32 s{S_TMP}, s{S_TMP}, 1
    s_and_b32 s{S_TMP+1}, s{S_WAVE}, 1
    s_add_u32 s{S_TMP}, s{S_TMP}, s{S_TMP+1}
    s_mul_i32 s{S_TMP}, s{S_TMP}, (((K_END - CPF_PC) / 128 + 8) / 8) * 128
    v_lshlrev_b32 v1, 7, v{V_LANE}
    v_add_u32 v1, s{S_TMP}, v1
    v_cmp_gt_u32 vcc, (((K_END - CPF_PC) / 128 + 8) / 8), v{V_LANE}
    v_min_u32 v1, (K_END - CPF_PC), v1
    s_and_saveexec_b64 s[{S_EX}:{S_EX+1}], vcc
    global_load_dword v248, v1, s[72:73]
    s_mov_b64 exec, s[{S_EX}:{S_EX+1}]
{lc}:''')
    if O.touch:
        lt = A.label('TCH')
        A(f'''    s_cmp_eq_u32 s{S_WAVE}, 2
    s_cbranch_scc0 {lt}
    v_mov_b32 v1, 0
    s_mov_b64 s[{S_EX}:{S_EX+1}], exec
    s_mov_b64 exec, 1
    global_load_dword v249, v1, s[{S_WS}:{S_WS+1}] offset:2048
    v_mov_b32 v2, {WS_PART}
    v_mov_b32 v3, {WS_PART + 0x200000}
    v_mov_b32 v4, {WS_PART + 0x3ff000}
    global_load_dword v249, v2, s[{S_WS}:{S_WS+1}]
    global_load_dword v249, v3, s[{S_WS}:{S_WS+1}]
    global_load_dword v249, v4, s[{S_WS}:{S_WS+1}]
    global_load_dword v249, v1, s[{S_WK}:{S_WK+1}]
    global_load_dword v249, v1, s[{S_WV}:{S_WV+1}]
    global_load_dword v249, v1, s[{S_WO}:{S_WO+1}]
    global_load_dword v249, v1, s[{S_OUT}:{S_OUT+1}]
    s_mov_b64 exec, s[{S_EX}:{S_EX+1}]
{lt}:''')
    A.stamp('issued')
    A(f"""    v_lshrrev_b32 v2, 4, v{V_LANE}
    v_and_b32 v3, 15, v{V_LANE}
    s_mul_i32 s{S_TMP}, s{S_WAVE}, 12288
    v_lshlrev_b32 v5, 2, v2
    v_add_u32 v5, v5, v3
    v_and_b32 v5, 15, v5
    v_lshlrev_b32 v5, 4, v5
    v_lshlrev_b32 v6, 8, v2
    v_add_u32 v5, v5, v6
    v_add_u32 v{V_LDSW}, s{S_TMP}, v5
    s_lshl_b32 s{S_TMP+1}, s{S_WAVE}, 10
    v_add_u32 v{V_LDSF}, s{S_TMP+1}, v5
    v_lshrrev_b32 v5, 2, v{V_LANE}
    v_and_b32 v5, 3, v5
    v_and_b32 v6, 3, v{V_LANE}
    v_lshrrev_b32 v7, 1, v2
    v_add_u32 v7, v7, v6
    v_lshlrev_b32 v7, 2, v7
    v_and_b32 v1, 1, v2
    v_lshlrev_b32 v1, 1, v1
    v_add_u32 v7, v7, v1
    v_lshrrev_b32 v1, 1, v5
    v_add_u32 v7, v7, v1
    v_and_b32 v1, 1, v5
    v_lshlrev_b32 v1, 3, v1
    v_lshlrev_b32 v6, 8, v6
    v_add3_u32 v6, v6, v1, s{S_TMP}
    v_and_b32 v1, 15, v7
    v_lshlrev_b32 v1, 4, v1
    v_add_u32 v{V_LDSR0}, v6, v1
    v_add_u32 v7, 8, v7
    v_and_b32 v1, 15, v7
    v_lshlrev_b32 v1, 4, v1
    v_add_u32 v{V_LDSR1}, v6, v1
    v_lshlrev_b32 v5, 3, v{V_LANE}
    v_add_u32 v{V_PR}, {L_PBUF}, v5
    s_lshl_b32 s{S_TMP}, s{S_WAVE}, 9
    v_add_u32 v{V_PW}, s{S_TMP}, v{V_PR}
    v_add_u32 v{V_FR}, {L_FLAG}, v{V_L16}
    s_lshl_b32 s{S_TMP}, s{S_WAVE}, 2
    v_add_u32 v{V_FW}, s{S_TMP}, v{V_FR}
    s_mov_b32 s{S_THR}, {lit(8.0)}
    v_lshlrev_b32 v5, 2, v3
    v_add_u32 v{V_MB}, {L_MBUF}, v5
    v_mov_b32 v{V_MREF}, 0xff800000
    ds_write_b32 v{V_MB}, v{V_MREF}
    v_lshlrev_b32 v5, 2, v2""")
    for r in range(4):
        A(f'    v_add_u32 v6, {r}, v5')
        A(f'    v_cmp_eq_u32 s[{S_MASK+2*r}:{S_MASK+2*r+1}], v6, v3')
    A(f"""    s_mov_b32 s{S_SELLO}, 0x{SEL_LO:08x}
    s_mov_b32 s{S_SELHI}, 0x{SEL_HI:08x}
    s_mov_b32 s{S_C384}, {lit(1/384)}
    v_mov_b32 v{V_EPS}, {lit(1e-5)}
    v_mov_b32 v{V_ONEF}, 1.0
    v_mov_b32 v{V_L}, 0
    v_mov_b32 v{V_U}, 0
    v_mov_b32 v{V_Q+4}, 0
    v_mov_b32 v1, 0x3f803f80""")
    for k in range(4):
        A(f'    v_accvgpr_write_b32 a{A_ONES+k}, v1')
    A(f"""    s_waitcnt lgkmcnt(0)
    s_mul_i32 s{S_TAG}, s{S_EPOCH}, 0x9E3779B1
    s_add_u32 s{S_TAG}, s{S_TAG}, 0x7F4A7C15""")
    def snapshot(): return (list(A.vm), set(A.done), Stream.nxt, Stream.done, list(Stream.pend))
    def restore(sn): A.vm, A.done, Stream.nxt, Stream.done, Stream.pend = list(sn[0]), set(sn[1]), sn[2], sn[3], list(sn[4])
    l1 = A.label('H1'); l2 = A.label('H2'); j0 = A.label('A0J')
    for x in range(3): A(f'    v_mov_b32 v{V_O+12+x}, 0')
    A(f'    s_cmp_eq_u32 s{S_ROLE}, {R_S1}')
    A(f'    s_cbranch_scc0 {l1}')
    sn = snapshot()
    role_S1_work(A)
    if O.s1mid:
        Stream.nxt = 3
        stage_A(A, 0, quota=2, stamp=False)
        assert Stream.nxt == O.l0 + 3
        A(f'    s_branch {j0}')
        restore(sn)
    else:
        A(f'    s_branch {l2}')
    A(f'{l1}:')
    A(f'    s_cmp_eq_u32 s{S_ROLE}, {R_S2}')
    A(f'    s_cbranch_scc0 {l2}')
    role_S2_addr(A)
    vm_save = list(A.vm); role_S2_loads(A); A.vm = vm_save
    A(f'{l2}:')
    stage_A(A, 0, quota=O.q0, stamp=False)
    A(f'{j0}:')
    A.stamp('A0')
    lw = A.label('S2W'); j1 = A.label('A1J')
    A(f'    s_cmp_eq_u32 s{S_ROLE}, {R_S2}')
    A(f'    s_cbranch_scc0 {lw}')
    if O.s2mode == 'spin0':
        A.done.add('wk'); A.done.add('q')
        role_S2_stage(A)
        gather_addr(A, WS_QG)
        if O.s2drain: A('    s_waitcnt vmcnt(0)')
        A.stamp('s2_poll')
        gather_loop(A)
        role_S2_work(A, True)
        A(f'{lw}:')
        stage_A(A, 1, stamp=False)
    else:
        sn = snapshot()
        A.done.add('wk')
        role_S2_stage(A)
        gather_addr(A, WS_QG)
        n0 = Stream.nxt
        stage_A(A, 1, quota=1, stamp=False)
        A.stamp('s2_poll')
        gather_issue(A, 'q')
        issue_next(A, 2)
        role_S2_work(A)
        assert Stream.nxt == n0 + 3
        A(f'    s_branch {j1}')
        A(f'{lw}:')
        restore(sn)
        stage_A(A, 1, stamp=False)
        A(f'{j1}:')
    A.stamp('A1')
    gather_addr(A, WS_QKG)
    attempt = lambda: gather_issue(A, 'qk')
    raise_l = lambda: (enqueue(A), flush_pend())
    if O.raise_at == 'A1': raise_l()
    if O.attempt == 'A1': attempt()
    hooks = {}
    if O.attempt == 'A2a': hooks[0] = attempt
    if O.attempt == 'A2b': hooks[1] = attempt
    if O.hold:
        h = O.hold
        if h == 1:   hooks = {1: lambda: (attempt(), enqueue(A, 2))}
        elif h == 2: hooks = {0: lambda: (attempt(), enqueue(A, 1)), 1: lambda: enqueue(A, 1)}
        elif h == 3: hooks = {2: lambda: (attempt(), enqueue(A, 2))}
        stage_A(A, 2, hooks, quota=1)
    else:
        stage_A(A, 2, hooks)
    if O.attempt == 'A2' and not O.hold: attempt()
    if O.raise_at == 'A2': raise_l()
    enqueue(A, O.extra); flush_pend()
    A.nop(2)
    for k in range(24):
        A(f'    v_mov_b32 v{V_O+k}, 0')
    get_qk(A)
    sched = O.sched.split()
    for i, st in enumerate(sched):
        k = int(st[1])
        if st[0] == 'A':
            stage_A(A, k, quota=O.qa)
        else:
            nxtB = next((j for j in range(i + 1, len(sched)) if sched[j][0] == 'B'), len(sched))
            strict = any(x[0] == 'A' and int(x[1]) % 3 == k % 3 for x in sched[i + 1:nxtB]) or k == 8
            stage_B(A, k, quota=O.qb, defer=(O.defer and k != 8), strict=strict)
    epilogue(A)
    lr = A.label('TR'); lg = A.label('TG')
    A(f'    s_cmp_eq_u32 s{S_ROLE}, {R_R}')
    A(f'    s_cbranch_scc0 {lr}')
    role_R(A)
    A('    s_branch K_FIN')
    A(f'{lr}:')
    A(f'    s_cmp_eq_u32 s{S_ROLE}, {R_G1}')
    A(f'    s_cbranch_scc1 {lg}')
    A(f'    s_cmp_eq_u32 s{S_ROLE}, {R_G2}')
    A(f'    s_cbranch_scc0 K_FIN')
    A(f'{lg}:')
    role_G(A)
    A('K_FIN:')
    if O.stamp and O.dbg:
        A('    s_waitcnt vmcnt(0)')
        A.stamp('end')
        A(f"""    s_cmp_eq_u32 s{S_WG}, {O.dbgwg}
    s_cbranch_scc0 K_END
    s_cmp_eq_u32 s{S_WAVE}, 0
    s_cbranch_scc0 K_END
    s_load_dwordx2 s[42:43], s[0:1], 64
    v_readlane_b32 s44, v{V_STAMP}, 0
    v_lshlrev_b32 v4, 2, v{V_LANE}
    s_waitcnt lgkmcnt(0)
    v_subrev_u32 v5, s44, v{V_STAMP}
    v_cmp_gt_u32 vcc, 16, v{V_LANE}
    s_and_saveexec_b64 s[{S_EX}:{S_EX+1}], vcc
    global_store_dword v4, v5, s[42:43]
    s_mov_b64 exec, s[{S_EX}:{S_EX+1}]""")
    elif O.stamp:
        A('    s_waitcnt vmcnt(0)')
        A.stamp('end')
        A(f"""    s_lshl_b32 s42, s{S_WG}, 2
    s_add_u32 s42, s42, s{S_WAVE}
    s_lshl_b32 s42, s42, 8
    s_add_u32 s42, s42, {WS_STAMP}
    v_lshlrev_b32 v4, 2, v{V_LANE}
    v_add_u32 v4, s42, v4
    global_store_dword v4, v{V_STAMP}, s[{S_WS}:{S_WS+1}]""")
    A('K_END:')
    A('    s_endpgm')
    assert Stream.nxt >= 27
    return A

def build():
    A = build_kernel()
    txt = A.text()
    for p in check_hazards(txt): print('HAZARD', p, file=sys.stderr)
    ref = open('standalone__detection_seg_dino__vision.s.ref').read().split('\n')
    top = [l for l in ref if l.startswith(';') and '@launch' not in l and 'Override launch' not in l and 'grid=ceil' not in l][:12]
    out = '\n'.join(top) + '\n'
    out += f'; @launch grid=(256,1,1) block=(256,1,1) lds={LDS_BYTES}\n'
    out += '.amdgcn_target "amdgcn-amd-amdhsa--gfx950"\n' + txt
    out += f""".section .rodata,"a"
.p2align 6
.amdhsa_kernel {NAME}
  .amdhsa_next_free_vgpr {256 + NACC}
  .amdhsa_next_free_sgpr 96
  .amdhsa_accum_offset 256
  .amdhsa_group_segment_fixed_size 0
  .amdhsa_kernarg_size 80
  .amdhsa_user_sgpr_count 2
  .amdhsa_user_sgpr_kernarg_segment_ptr 1
  .amdhsa_system_sgpr_workgroup_id_x 1
  .amdhsa_float_denorm_mode_32 3
.end_amdhsa_kernel
"""
    return out, A.labels

if __name__ == '__main__':
    path = sys.argv[1]
    for o in (sys.argv[2].split(',') if len(sys.argv) > 2 else []):
        if o == 'stamp': O.stamp = True
        elif o == 'plain': O.nt = ''
        elif o == 'nodefer': O.defer = False
        elif o == 'nocpf': O.cpf = False
        elif o.startswith('dbg='): O.stamp = True; O.dbgwg = int(o[4:]); O.dbg = ['entry','issued','head','A0','A1','A2','Qk','B0','B4','B8','pub','R_ml','R_done','G2_in','G_done','end']
        elif o == 's1mid': O.s1mid = True
        elif o == 'eager': O.lazy = False
        elif o.startswith('q0='): O.q0 = int(o[3:])
        elif o == 'rcomb': O.rcomb = True
        elif o.startswith('hold='): O.hold = int(o[5:])
        elif o.startswith('s2mode='): O.s2mode = o[7:]
        elif o == 's2drain': O.s2drain = True
        elif o == 'touch': O.touch = True
        elif o.startswith('fine='): O.fine = int(o[5:])
        elif o.startswith('qa='): O.qa = int(o[3:])
        elif o.startswith('s2att='): O.s2att = int(o[6:])
        elif o.startswith('qb='): O.qb = int(o[3:])
        elif o.startswith('att='): O.attempt = o[4:]
        elif o.startswith('extra='): O.extra = int(o[6:])
        elif o.startswith('l0='): O.l0 = int(o[3:])
        elif o.startswith('raise='): O.raise_at = o[6:]
        elif o.startswith('sched='): O.sched = o[6:].replace('-', ' ')
    out, labels = build()
    open(path, 'w').write(out)
    if O.stamp: open(path + '.labels', 'w').write(','.join(labels))
    print('wrote', path, len(out), 'bytes;', out.count('\n'), 'lines')
```

```python
import sys, struct, math
from asmlib import *

def f2u(x): return struct.unpack('<I', struct.pack('<f', x))[0]
def lit(x): return f'0x{f2u(x):08x}'
NAME = 'standalone__detection_seg_dino__vision_kernel'

class Opt:
    stamp = False
    nt = ' nt'
    extra = 0
    s1early = 2
    s2q = 1
    qtouch = False
    na = 16
    earlyf = True
    rthr = 0
    s2n = 2
    dbg = None
    dbgwg = 28
    s1mid = False
    lazy = True
    q0 = 3
    rcomb = False
    hold = 0
    s2mode = 'spin0'
    s2drain = True
    cpf = True
    touch = False
    wsoff = 0
    fine = -1
    defer = True
    s2att = 1
    qa = 2
    qb = 1
    spread = True
    l0 = 2
    raise_at = 'A2'
    attempt = 'A2b'
    sched = 'B0 A3 B1 B2 A4 B3 B4 A5 B5 A6 B6 A7 B7 A8 B8'
O = Opt()

WS_EPOCH = 0x0
WS_QG    = 0x1000
WS_QKG   = 0x8000
WS_CTXN  = 0x10000
WS_CTX   = 0x18000
WS_ML    = 0x20000
WS_QGA   = 0x40000
WS_QGB   = 0x50000
WS_CTXA  = 0x60000
WS_PART  = 0x100000
WS_STAMP = 0x800000
SEL_LO, SEL_HI = 0x00003F80, 0x3F800000

RAW = [8, 68]
V_T   = 128
V_STG = 152
V_O   = 160
V_S, V_R, V_G, V_D = 184, 188, 192, 196
V_P   = 200
V_MREF, V_L, V_SQ, V_ONEF, V_EPS = 202, 203, 204, 205, 206
V_F0OFF, V_F1OFF = 207, 208
V_LDSW, V_LDSR0, V_LDSR1, V_LDSF = 209, 210, 211, 212
V_PW, V_PR, V_MB, V_LANE = 213, 214, 215, 216
V_CW, V_CR0, V_CR1, V_CF = 217, 218, 219, 220
V_U = 221
V_FW, V_FR = 254, 255
V_GA = 222
V_L16 = 223
V_GB = 224
V_Q = 248
V_STAMP = 253
A_QK, A_X, A_F, A_P, A_ONES, A_W = 0, 48, 96, 144, 152, 156
NACC = 180
S_F0, S_F1, S_WS = 4, 6, 8
S_BSET = [10, 44]
S_WAVE, S_WG, S_T = 16, 17, 19
S_SELLO, S_SELHI, S_C384 = 20, 21, 23
S_MASK = 26
S_TMP = 34
S_TAG, S_EPOCH, S_ROLE, S_JOB = 50, 51, 52, 53
S_Q, S_OUT = 54, 58
S_SPIN = 60
S_COPY = 74
S_THR = 61
S_EX = 62
S_WQ, S_WK, S_WV, S_WO = 64, 66, 68, 70
R_NONE, R_S1, R_S2, R_G1, R_G2, R_R = 0, 1, 2, 3, 4, 5
SPIN_MAX = 1 << 18
SLOT = 49152
L_QKL  = 3 * SLOT
L_PBUF = L_QKL + 12288
L_MBUF = L_PBUF + 2048
L_LBUF = L_MBUF + 64
L_FLAG = L_LBUF + 512
LDS_BYTES = L_FLAG + 1024
assert LDS_BYTES <= 163840
L_HEAD = 2 * SLOT
L_STAT = L_HEAD + 6144
L_RED_H = L_HEAD
L_TR   = SLOT
L_RED_T = SLOT + 4608
L_RB   = 0

class Gen(Asm):
    def __init__(self):
        super().__init__()
        self.vm = []
        self.uid = 0
        self.nstamp = 0
        self.labels = []
        self.done = set()
    def vmop(self, line, tag):
        self(line); self.vm.append(tag)
    def vmwait(self, tag):
        hits = [i for i, t in enumerate(self.vm) if t == tag]
        if not hits:
            assert tag in self.done, tag
            return
        idx = hits[-1]
        self.done.update(self.vm[:idx + 1])
        n = len(self.vm) - 1 - idx
        assert n <= 63, n
        self(f'    s_waitcnt vmcnt({n})')
        self.vm = self.vm[idx + 1:]
    def vmall(self):
        self('    s_waitcnt vmcnt(0)'); self.vm = []
    def label(self, base):
        self.uid += 1
        return f'{base}_{self.uid}'
    def stamp(self, name):
        if not O.stamp: return
        if O.dbg and name not in O.dbg: return
        idx = len(self.labels)
        assert idx < 64
        self.labels.append(name)
        self('    s_memrealtime s[40:41]')
        self('    s_waitcnt lgkmcnt(0)')
        self(f'    v_writelane_b32 v{V_STAMP}, s40, {idx}')

def xgroup_reduce(A, op, v, t):
    A(f'    v_mov_b32 v{t}, v{v}')
    A.nop(2)
    A(f'    v_permlane32_swap_b32 v{t}, v{v}')
    A(f'    {op} v{v}, v{v}, v{t}')
    A(f'    v_mov_b32 v{t}, v{v}')
    A.nop(2)
    A(f'    v_permlane16_swap_b32 v{t}, v{v}')
    A(f'    {op} v{v}, v{v}, v{t}')

def multi_xgroup(A, op, vs, ts):
    for sw in ('32', '16'):
        for v, t in zip(vs, ts): A(f'    v_mov_b32 v{t}, v{v}')
        if len(vs) < 3: A.nop(3 - len(vs))
        for v, t in zip(vs, ts): A(f'    v_permlane{sw}_swap_b32 v{t}, v{v}')
        for v, t in zip(vs, ts): A(f'    {op} v{v}, v{v}, v{t}')

def multi_row(A, op, vs, rots=(8, 4, 2, 1)):
    for rot in rots:
        if len(vs) < 3: A.nop(3 - len(vs))
        for v in vs: A(f'    {op}_dpp v{v}, v{v}, v{v} row_ror:{rot} row_mask:0xf bank_mask:0xf')

def tile_bases(A, u):
    S_B0 = S_BSET[u]; S_B1 = S_B0 + 2; S_BF = S_B0 + 4
    A(f'''    s_mul_hi_u32 s{S_TMP}, s{S_T}, 89478486
    s_mul_i32 s{S_TMP+1}, s{S_TMP}, 48
    s_sub_u32 s{S_TMP+1}, s{S_T}, s{S_TMP+1}
    s_mul_i32 s{S_TMP}, s{S_TMP}, 589824
    s_mul_i32 s{S_TMP+1}, s{S_TMP+1}, 6144
    s_add_u32 s{S_TMP}, s{S_TMP}, s{S_TMP+1}
    s_add_u32 s{S_B0}, s{S_F0}, s{S_TMP}
    s_addc_u32 s{S_B0+1}, s{S_F0+1}, 0
    s_add_u32 s{S_B1}, s{S_B0}, 294912
    s_addc_u32 s{S_B1+1}, s{S_B0+1}, 0
    s_mul_i32 s{S_TMP}, s{S_T}, 3072
    s_add_u32 s{S_BF}, s{S_F1}, s{S_TMP}
    s_addc_u32 s{S_BF+1}, s{S_F1+1}, 0
    s_add_u32 s{S_T}, s{S_T}, 4''')

def issue_item(A, j):
    if j > 26: return
    tile, third = divmod(j, 3); u = tile & 1
    if third == 0 and j > 0: tile_bases(A, u)
    S_B0 = S_BSET[u]; S_B1 = S_B0 + 2; S_BF = S_B0 + 4
    b = RAW[u]
    r = b + 48 + 4 * third
    A.vmop(f'    global_load_dwordx4 v[{r}:{r+3}], v{V_F1OFF}, s[{S_BF}:{S_BF+1}] offset:{third*256}{O.nt}', f'item{j}')
    for jj in range(4):
        dy, dx = jj >> 1, jj & 1
        r = b + 16 * third + 4 * jj
        base = S_B1 if dy else S_B0
        A.vmop(f'    global_load_dwordx4 v[{r}:{r+3}], v{V_F0OFF}, s[{base}:{base+1}] offset:{dx*768+third*256}{O.nt}', f'item{j}')

class Stream:
    nxt = 0
    done = 0
    pend = []
def enqueue(A, n=1):
    for _ in range(n):
        if Stream.nxt <= 26 and Stream.nxt < Stream.done + 6:
            Stream.pend += item_steps(A)
def pop(n=1):
    for _ in range(n):
        if Stream.pend: Stream.pend.pop(0)()
def flush_pend():
    pop(len(Stream.pend))
def issue_next(A, n=1):
    for _ in range(n):
        issue_item(A, Stream.nxt); Stream.nxt += 1

def item_steps(A):
    j = Stream.nxt; Stream.nxt += 1
    if j > 26: return []
    tile, third = divmod(j, 3); u = tile & 1
    S_B0 = S_BSET[u]; S_B1 = S_B0 + 2; S_BF = S_B0 + 4
    b = RAW[u]
    steps = []
    def first():
        if third == 0: tile_bases(A, u)
        r = b + 48 + 4 * third
        A.vmop(f'    global_load_dwordx4 v[{r}:{r+3}], v{V_F1OFF}, s[{S_BF}:{S_BF+1}] offset:{third*256}{O.nt}', f'item{j}')
    steps.append(first)
    for jj in range(4):
        def f(jj=jj):
            dy, dx = jj >> 1, jj & 1
            r = b + 16 * third + 4 * jj
            base = S_B1 if dy else S_B0
            A.vmop(f'    global_load_dwordx4 v[{r}:{r+3}], v{V_F0OFF}, s[{base}:{base+1}] offset:{dx*768+third*256}{O.nt}', f'item{j}')
        steps.append(f)
    return steps

def stage_A(A, k, hooks=None, quota=3, stamp=True):
    hooks = hooks or {}
    u = k & 1; b = RAW[u]; T = V_T
    A(f'    v_add_u32 v{V_CW}, {(k % 3) * SLOT}, v{V_LDSW}')
    if PV.pending: A('    s_waitcnt lgkmcnt(0)')
    units = [(third, dd) for third in range(3) for dd in range(4)]
    def tset(i): return T + 10 * (i & 1)
    def U(i):
        third, dd = units[i]; t = tset(i); f1 = b + 48 + 4 * third + dd
        return [f'    v_lshlrev_b32 v{t+8}, 16, v{f1}', f'    v_and_b32 v{t+9}, 0xffff0000, v{f1}']
    def D(i):
        third, dd = units[i]; t = tset(i)
        return ([f'    v_dot2_f32_bf16 v{t+j}, v{b+16*third+4*j+dd}, s{S_SELLO}, v{t+8}' for j in range(4)] +
                [f'    v_dot2_f32_bf16 v{t+4+j}, v{b+16*third+4*j+dd}, s{S_SELHI}, v{t+9}' for j in range(4)])
    def C(i):
        t = tset(i); o = V_STG + 4 * (i & 1)
        return [f'    v_cvt_pk_bf16_f32 v{o+kk}, v{t+2*kk}, v{t+2*kk+1}' for kk in range(4)]
    def W(i):
        third, dd = units[i]; o = V_STG + 4 * (i & 1)
        return f'    ds_write_b128 v{V_CW}, v[{o}:{o+3}] offset:{(third*4+dd)*1024}'
    enq = {0: 1, 4: 1, 8: 1} if quota == 3 else ({0: 1, 6: 1} if quota == 2 else ({0: 1} if quota == 1 else {}))
    def ensure(j):
        while any(True for _ in Stream.pend) and f'item{j}' not in A.done and A.vm.count(f'item{j}') < 5: pop()
        while Stream.nxt <= j: Stream.pend += item_steps(A); flush_pend()
    ensure(3 * k); A.vmwait(f'item{3*k}')
    enqueue(A, enq.get(0, 0))
    u0 = U(0); d0 = D(0)
    for l in u0 + d0[:4]: A(l)
    pop()
    for l in d0[4:]: A(l)
    for i in range(1, 12):
        if i % 4 == 0:
            Stream.done = 3 * k + i // 4
            ensure(3 * k + i // 4); A.vmwait(f'item{3*k + i//4}')
        enqueue(A, enq.get(i, 0))
        for l in U(i): A(l)
        if quota == 3 and i % 4 in (0, 2): pop()
        d = D(i); c = C(i - 1)
        for kk in range(4):
            A(d[kk]); A(c[kk])
        pv_pop(A, 2)
        A(W(i - 1))
        pop()
        for kk in range(4, 8): A(d[kk])
        if i % 4 == 3 and (i // 4) in hooks: hooks[i // 4]()
    Stream.done = 3 * k + 3
    flush_pend()
    A.nop(1)
    for l in C(11): A(l)
    pv_flush(A)
    A(W(11))
    if stamp: A.stamp(f'A{k}')

class PV:
    pending = []
def pv_steps():
    out = []
    for wp in range(4):
        for third in range(3):
            for e1 in range(2):
                f = A_F + (wp * 3 + third) * 4 + 2 * e1
                o = V_O + (third * 2 + e1) * 4
                out.append(f'    v_mfma_f32_16x16x16_bf16 v[{o}:{o+3}], a[{f}:{f+1}], a[{A_P+2*wp}:{A_P+2*wp+1}], v[{o}:{o+3}]')
    return out
def pv_pop(A, n=1):
    for _ in range(n):
        if PV.pending: A(PV.pending.pop(0))
def pv_flush(A):
    pv_pop(A, len(PV.pending))

def f_reads(A):
    for wp in range(4):
        for third in range(3):
            r = A_F + (wp * 3 + third) * 4
            A(f'    ds_read_b128 a[{r}:{r+3}], v{V_CF} offset:{wp*12288 + third*4096}')
def p_reads(A):
    for wp in range(4):
        A(f'    ds_read_b64 a[{A_P+2*wp}:{A_P+2*wp+1}], v{V_PR} offset:{wp*512}')

def eager_softmax(A, k, strict, fine):
    T = V_T
    for r in range(4):
        A(f'    v_fma_f32 v{V_S+r}, -v{V_R+r}, v{V_SQ}, v{V_S+r}')
    for r in range(4):
        A(f'    v_mul_f32 v{V_S+r}, v{V_S+r}, v{V_D+r}')
    A(f'    v_max3_f32 v{T}, v{V_S}, v{V_S+1}, v{V_S+2}')
    A(f'    v_max_f32 v{T}, v{T}, v{V_S+3}')
    if fine: A.stamp('b_z')
    A(f'    ds_max_f32 v{V_MB}, v{T}')
    A('    s_waitcnt lgkmcnt(0)')
    if fine: A.stamp('b_pre1')
    A('    s_barrier')
    if fine: A.stamp('b_post1')
    A(f'    ds_read_b32 v{T+1}, v{V_MB}')
    A('    s_waitcnt lgkmcnt(0)')
    if fine: A.stamp('b_m(+F)')
    A(f'    v_sub_f32 v{T+2}, v{V_MREF}, v{T+1}')
    for r in range(4):
        A(f'    v_sub_f32 v{V_S+r}, v{V_S+r}, v{T+1}')
    A(f'    v_exp_f32 v{T+2}, v{T+2}')
    for r in range(4):
        A(f'    v_exp_f32 v{V_S+r}, v{V_S+r}')
    A(f'    v_mov_b32 v{V_MREF}, v{T+1}')
    for r in range(4):
        A(f'    v_mul_f32 v{T+4+r}, v{V_S+r}, v{V_D+r}')
    A(f'    v_add_f32 v{V_S}, v{V_S}, v{V_S+1}')
    A(f'    v_cvt_pk_bf16_f32 v{V_P}, v{T+4}, v{T+5}')
    A(f'    v_cvt_pk_bf16_f32 v{V_P+1}, v{T+6}, v{T+7}')
    A(f'    v_add_f32 v{V_S+2}, v{V_S+2}, v{V_S+3}')
    A(f'    ds_write_b64 v{V_PW}, v[{V_P}:{V_P+1}]')
    for wp in range(4):
        for third in range(3):
            r = A_F + (wp * 3 + third) * 4
            A(f'    ds_read_b128 a[{r}:{r+3}], v{V_CF} offset:{wp*12288 + third*4096}')
    A(f'    v_add_f32 v{V_S}, v{V_S}, v{V_S+2}')
    A(f'    v_fma_f32 v{V_L}, v{V_L}, v{T+2}, v{V_S}')
    A(f'    v_mul_f32 v{V_U}, v{V_U}, v{T+2}')
    A(f'    v_lshlrev_b32 v{T+4}, 16, v{V_P}')
    A(f'    v_and_b32 v{T+5}, 0xffff0000, v{V_P}')
    A(f'    v_lshlrev_b32 v{T+6}, 16, v{V_P+1}')
    A(f'    v_and_b32 v{T+7}, 0xffff0000, v{V_P+1}')
    for r in range(4):
        A(f'    v_fmac_f32 v{V_U}, v{T+4+r}, v{V_R+r}')
    for kk in range(0, 24, 2):
        A(f'    v_pk_mul_f32 v[{V_O+kk}:{V_O+kk+1}], v[{V_O+kk}:{V_O+kk+1}], v[{T+2}:{T+3}] op_sel_hi:[1,0]')
    if fine: A.stamp('b_P')
    A(f'    s_waitcnt lgkmcnt({0 if strict else 12})')
    A('    s_barrier')
    if fine: A.stamp('b_post2')
    for wp in range(4):
        A(f'    ds_read_b64 a[{A_P+2*wp}:{A_P+2*wp+1}], v{V_PR} offset:{wp*512}')

def lazy_softmax(A, k, strict, fine, early=False):
    T = V_T; AR = T + 8; PP = T + 4; DL = T + 12; DU = T + 13
    slow = A.label('BS'); join = A.label('BJ')
    def p_from_args():
        for r in range(4): A(f'    v_exp_f32 v{AR+r}, v{AR+r}')
        A('    s_nop 0')
        for r in range(0, 4, 2):
            A(f'    v_pk_mul_f32 v[{PP+r}:{PP+r+1}], v[{AR+r}:{AR+r+1}], v[{V_D+r}:{V_D+r+1}]')
        A(f'    v_cvt_pk_bf16_f32 v{V_P}, v{PP}, v{PP+1}')
        A(f'    v_cvt_pk_bf16_f32 v{V_P+1}, v{PP+2}, v{PP+3}')
        A(f'    ds_write_b64 v{V_PW}, v[{V_P}:{V_P+1}]')
    def increments():
        A(f'    v_add_f32 v{AR}, v{AR}, v{AR+1}')
        A(f'    v_add_f32 v{AR+2}, v{AR+2}, v{AR+3}')
        A(f'    v_lshlrev_b32 v{PP}, 16, v{V_P}')
        A(f'    v_and_b32 v{PP+1}, 0xffff0000, v{V_P}')
        A(f'    v_lshlrev_b32 v{PP+2}, 16, v{V_P+1}')
        A(f'    v_and_b32 v{PP+3}, 0xffff0000, v{V_P+1}')
        A(f'    v_add_f32 v{DL}, v{AR}, v{AR+2}')
        A(f'    v_mul_f32 v{DU}, v{PP}, v{V_R}')
        A(f'    v_mul_f32 v{PP}, v{PP+1}, v{V_R+1}')
        A(f'    v_fmac_f32 v{DU}, v{PP+2}, v{V_R+2}')
        A(f'    v_fmac_f32 v{PP}, v{PP+3}, v{V_R+3}')
        A(f'    v_add_f32 v{DU}, v{DU}, v{PP}')
    for r in range(0, 4, 2):
        A(f'    v_pk_fma_f32 v[{V_S+r}:{V_S+r+1}], v[{V_R+r}:{V_R+r+1}], v[{V_SQ}:{V_SQ+1}], v[{V_S+r}:{V_S+r+1}] op_sel_hi:[1,0,1] neg_lo:[1,0,0] neg_hi:[1,0,0]')
    for r in range(0, 4, 2):
        A(f'    v_pk_fma_f32 v[{AR+r}:{AR+r+1}], v[{V_S+r}:{V_S+r+1}], v[{V_D+r}:{V_D+r+1}], v[{V_MREF}:{V_MREF+1}] op_sel_hi:[1,1,0] neg_lo:[0,0,1] neg_hi:[0,0,1]')
    A(f'    v_max3_f32 v{T}, v{AR}, v{AR+1}, v{AR+2}')
    A(f'    v_max_f32 v{T}, v{T}, v{AR+3}')
    A(f'    v_cmp_lt_f32 vcc, s{S_THR}, v{T}')
    if fine: A.stamp('b_z')
    p_from_args()
    A(f'    v_cndmask_b32 v{T}, 0, 1, vcc')
    A(f'    ds_write_b32 v{V_FW}, v{T}')
    increments()
    if fine: A.stamp('b_P')
    A('    s_waitcnt lgkmcnt(0)')
    A('    s_barrier')
    if fine: A.stamp('b_post')
    A(f'    ds_read_b128 v[{T}:{T+3}], v{V_FR}')
    p_reads(A)
    if early:
        A('    s_waitcnt lgkmcnt(4)')
    else:
        f_reads(A)
        A('    s_waitcnt lgkmcnt(15)')
    A(f'    v_or3_b32 v{T}, v{T}, v{T+1}, v{T+2}')
    A(f'    v_or_b32 v{T}, v{T}, v{T+3}')
    A(f'    v_cmp_ne_u32 vcc, 0, v{T}')
    A(f'    s_cbranch_vccz {join}')
    for r in range(4): A(f'    v_mul_f32 v{AR+r}, v{V_S+r}, v{V_D+r}')
    A(f'    v_max3_f32 v{T}, v{AR}, v{AR+1}, v{AR+2}')
    A(f'    v_max_f32 v{T}, v{T}, v{AR+3}')
    A(f'    ds_max_f32 v{V_MB}, v{T}')
    A('    s_waitcnt lgkmcnt(0)')
    A('    s_barrier')
    A(f'    ds_read_b32 v{T+1}, v{V_MB}')
    A('    s_waitcnt lgkmcnt(0)')
    A(f'    v_sub_f32 v{T+2}, v{V_MREF}, v{T+1}')
    for r in range(4): A(f'    v_sub_f32 v{AR+r}, v{AR+r}, v{T+1}')
    A(f'    v_exp_f32 v{T+2}, v{T+2}')
    A(f'    v_mov_b32 v{V_MREF}, v{T+1}')
    p_from_args()
    A(f'    v_mul_f32 v{V_L}, v{V_L}, v{T+2}')
    A(f'    v_mul_f32 v{V_U}, v{V_U}, v{T+2}')
    for kk in range(0, 24, 2):
        A(f'    v_pk_mul_f32 v[{V_O+kk}:{V_O+kk+1}], v[{V_O+kk}:{V_O+kk+1}], v[{T+2}:{T+3}] op_sel_hi:[1,0]')
    increments()
    A('    s_waitcnt lgkmcnt(0)')
    A('    s_barrier')
    p_reads(A)
    A(f'{join}:')
    A(f'    v_add_f32 v{V_L}, v{V_L}, v{DL}')
    A(f'    v_add_f32 v{V_U}, v{V_U}, v{DU}')
    if strict and k != 8:
        A('    s_waitcnt lgkmcnt(0)')
        A('    s_barrier')

def stage_B(A, k, quota=1, defer=True, strict=True, fresh=True):
    T = V_T; so = (k % 3) * SLOT
    early = O.earlyf and O.lazy
    enqueue(A, quota)
    A(f'    v_add_u32 v{V_CR0}, {so}, v{V_LDSR0}')
    A(f'    v_add_u32 v{V_CR1}, {so}, v{V_LDSR1}')
    A(f'    v_add_u32 v{V_CF}, {so}, v{V_LDSF}')
    if PV.pending or (early and fresh): A('    s_waitcnt lgkmcnt(0)')
    if early and fresh: A('    s_barrier')
    n = 0
    for bb in range(12):
        for a2 in range(2):
            r = A_X + 4 * bb + 2 * a2
            A(f'    ds_read_b64_tr_b16 a[{r}:{r+1}], v{V_CR0+a2} offset:{bb*1024}')
            n += 1
            pv_pop(A)
    pv_flush(A)
    fine = (O.fine == k)
    if fine: A.stamp('b_tr')
    def X(bb): return f'a[{A_X+4*bb}:{A_X+4*bb+3}]'
    def G(bb): A(f'    v_mfma_f32_16x16x32_bf16 v[{V_G}:{V_G+3}], {X(bb)}, {X(bb)}, ' + ('0' if bb == 0 else f'v[{V_G}:{V_G+3}]'))
    def R(bb): A(f'    v_mfma_f32_16x16x32_bf16 v[{V_R}:{V_R+3}], {X(bb)}, a[{A_ONES}:{A_ONES+3}], ' + ('0' if bb == 0 else f'v[{V_R}:{V_R+3}]'))
    def S(bb): A(f'    v_mfma_f32_16x16x32_bf16 v[{V_S}:{V_S+3}], {X(bb)}, a[{A_QK+4*bb}:{A_QK+4*bb+3}], ' + ('0' if bb == 0 else f'v[{V_S}:{V_S+3}]'))
    fl = []
    if early:
        for wp in range(4):
            for third in range(3):
                r = A_F + (wp * 3 + third) * 4
                fl.append(f'    ds_read_b128 a[{r}:{r+3}], v{V_CF} offset:{wp*12288 + third*4096}')
    nf = 0
    for bb in range(12):
        if bb % 3 == 0:
            A(f'    s_waitcnt lgkmcnt({min(15, 24 - 2*(bb+3) + nf)})')
        G(bb)
        if fl: A(fl.pop(0)); nf += 1
        if bb % 2 == 1 and bb < 11: pop()
    flush_pend()
    if fine: A.stamp('b_G')
    for bb in range(8): R(bb)
    for r in range(4):
        src0 = '0' if r == 0 else f'v{T}'
        A(f'    v_cndmask_b32 v{T}, {src0}, v{V_G+r}, s[{S_MASK+2*r}:{S_MASK+2*r+1}]')
        R(8 + r)
    S(0)
    A(f'    v_mfma_f32_16x16x4_f32 v[{V_D}:{V_D+3}], v{T}, v{V_ONEF}, 0')
    for bb in range(1, 7): S(bb)
    for r in range(4):
        A(f'    v_mul_f32 v{V_R+r}, s{S_C384}, v{V_R+r}')
        S(7 + r)
    for r in range(4):
        A(f'    v_fma_f32 v{T+r}, -v{V_R+r}, v{V_R+r}, v{V_EPS}')
        if r == 1: S(11)
    for r in range(4):
        A(f'    v_fma_f32 v{V_D+r}, v{V_D+r}, s{S_C384}, v{T+r}')
    for r in range(4):
        A(f'    v_rsq_f32 v{V_D+r}, v{V_D+r}')
    if O.lazy:
        lazy_softmax(A, k, strict and not early, fine, early)
    else:
        eager_softmax(A, k, strict, fine)
    PV.pending = pv_steps()
    if not defer:
        A('    s_waitcnt lgkmcnt(0)')
        pv_flush(A)
    A.stamp(f'B{k}')

def gather_addr(A, ws_off):
    A(f'    s_mul_i32 s{S_TMP}, s{S_WAVE}, 6144')
    A(f'    s_add_u32 s{S_TMP}, s{S_TMP}, {ws_off + 2048}')
    A(f'    v_add_u32 v{V_GA}, s{S_TMP}, v{V_L16}')

def gather_issue(A, track=None):
    for kk in range(3):
        for h in range(2):
            r = V_GB + 8 * kk + 4 * h
            line = f'    global_load_dwordx4 v[{r}:{r+3}], v{V_GA}, s[{S_WS}:{S_WS+1}] offset:{kk*2048 + h*1024 - 2048} sc1'
            if track: A.vmop(line, track)
            else: A(line)

def gather_check(A):
    T = V_T
    for kk in range(3):
        A(f'    v_xor_b32 v{T+2*kk}, s{S_TAG}, v{V_GB+8*kk}')
        A(f'    v_xor_b32 v{T+2*kk+1}, s{S_TAG}, v{V_GB+8*kk+6}')
    A(f'    v_or3_b32 v{T}, v{T}, v{T+1}, v{T+2}')
    A(f'    v_or3_b32 v{T+3}, v{T+3}, v{T+4}, v{T+5}')
    A(f'    v_or_b32 v{T}, v{T}, v{T+3}')
    A(f'    v_cmp_ne_u32 vcc, 0, v{T}')

def spin_guard(A, lbl_retry):
    A(f'    s_add_u32 s{S_SPIN}, s{S_SPIN}, 1')
    A(f'    s_cmp_lt_u32 s{S_SPIN}, {SPIN_MAX}')
    A(f'    s_cbranch_scc0 K_END')
    A(f'    s_sleep 1')

def gather_loop(A):
    l = A.label('GL'); d = A.label('GD')
    A(f'{l}:')
    gather_issue(A)
    A('    s_waitcnt vmcnt(0)')
    gather_check(A)
    A(f'    s_cbranch_vccz {d}')
    spin_guard(A, l)
    A(f'    s_branch {l}')
    A(f'{d}:')

def publish8(A, dreg, ws_off_sgpr):
    A(f'    v_mov_b32 v{dreg}, s{S_TAG}')
    A(f'    v_mov_b32 v{dreg+1}, 0')
    A(f'    v_mov_b32 v{dreg+6}, s{S_TAG}')
    A(f'    v_mov_b32 v{dreg+7}, 0')
    A(f'    v_add_u32 v1, s{ws_off_sgpr}, v{V_L16}')
    A(f'    global_store_dwordx4 v1, v[{dreg}:{dreg+3}], s[{S_WS}:{S_WS+1}] sc1')
    A(f'    global_store_dwordx4 v1, v[{dreg+4}:{dreg+7}], s[{S_WS}:{S_WS+1}] offset:1024 sc1')

def publish8_dual(A, dreg, off_a_sgpr, delta_b):
    A(f'    v_mov_b32 v{dreg}, s{S_TAG}')
    A(f'    v_mov_b32 v{dreg+1}, 0')
    A(f'    v_mov_b32 v{dreg+6}, s{S_TAG}')
    A(f'    v_mov_b32 v{dreg+7}, 0')
    A(f'    v_add_u32 v1, s{off_a_sgpr}, v{V_L16}')
    A(f'    v_add_u32 v2, {delta_b & 0xffffffff}, v1')
    A(f'    global_store_dwordx4 v1, v[{dreg}:{dreg+3}], s[{S_WS}:{S_WS+1}]')
    A(f'    global_store_dwordx4 v1, v[{dreg+4}:{dreg+7}], s[{S_WS}:{S_WS+1}] offset:1024')
    A(f'    global_store_dwordx4 v2, v[{dreg}:{dreg+3}], s[{S_WS}:{S_WS+1}] sc1')
    A(f'    global_store_dwordx4 v2, v[{dreg+4}:{dreg+7}], s[{S_WS}:{S_WS+1}] offset:1024 sc1')

def gather_loop_dual(A, delta_b, na=3):
    l = A.label('GL'); li = A.label('GI'); d = A.label('GD')
    A(f'{l}:')
    A(f'    s_mov_b32 s{S_TMP+3}, 0')
    A(f'{li}:')
    gather_issue(A)
    A('    s_waitcnt vmcnt(0)')
    gather_check(A)
    A(f'    s_cbranch_vccz {d}')
    A(f'    s_add_u32 s{S_TMP+3}, s{S_TMP+3}, 1')
    A(f'    s_cmp_lt_u32 s{S_TMP+3}, {na}')
    A(f'    s_cbranch_scc1 {li}')
    A(f'    v_add_u32 v{V_GA}, {delta_b & 0xffffffff}, v{V_GA}')
    gather_issue(A)
    A(f'    v_subrev_u32 v{V_GA}, {delta_b & 0xffffffff}, v{V_GA}')
    A('    s_waitcnt vmcnt(0)')
    gather_check(A)
    A(f'    s_cbranch_vccz {d}')
    spin_guard(A, l)
    A(f'    s_branch {l}')
    A(f'{d}:')

def slab_addr(A, perm):
    A(f'''    v_lshrrev_b32 v1, 2, v{V_LANE}
    s_mul_i32 s{S_TMP}, s{S_WAVE}, 96
    v_add_u32 v1, s{S_TMP}, v1            ; p (x = 0)
    v_and_b32 v{V_T}, 3, v{V_LANE}
    v_lshlrev_b32 v{V_T}, 4, v{V_T}
    s_lshl_b32 s{S_TMP}, s{S_JOB}, 6
    v_add_u32 v{V_T}, s{S_TMP}, v{V_T}''')
    for x in range(6):
        d = 2 + x
        if not perm:
            A(f'    v_add_u32 v{d}, {16*x}, v1')
        else:
            t = V_T + 1; kk = x >> 1
            A(f"""    v_lshrrev_b32 v{t}, 2, v{V_LANE}
    v_add_u32 v{t}, {16*(x&1)}, v{t}          ; p & 31
    v_bfe_u32 v{t+1}, v{t}, 1, 2              ; dw
    v_cmp_eq_u32 vcc, 3, v{t+1}
    v_lshlrev_b32 v{t+1}, 7, v{t+1}
    v_add_u32 v{t+1}, {32*kk}, v{t+1}
    v_mov_b32 v{t+2}, {kk*128 + 96}
    v_cndmask_b32 v{t+1}, v{t+1}, v{t+2}, vcc
    v_lshrrev_b32 v{t+2}, 3, v{t}
    v_lshlrev_b32 v{t+2}, 3, v{t+2}           ; 8g
    v_and_b32 v{t}, 1, v{t}
    v_add3_u32 v{t+1}, v{t+1}, v{t+2}, v{t}
    s_lshl_b32 s{S_TMP+1}, s{S_WAVE}, 1
    v_add_u32 v{d}, s{S_TMP+1}, v{t+1}""")
        A(f'    v_mul_u32_u24 v{d}, 768, v{d}')
        A(f'    v_add_u32 v{d}, v{d}, v{V_T}')

def slab_loads(A, sptr, dst, track=None):
    for x in range(6):
        line = f'    global_load_dwordx4 v[{dst+4*x}:{dst+4*x+3}], v{2+x}, s[{sptr}:{sptr+1}]'
        if track: A.vmop(line, track)
        else: A(line)

def slab_to_operands(A, src, lds_base):
    A(f'''    s_mul_i32 s{S_TMP}, s{S_WAVE}, 12288
    s_add_u32 s{S_TMP}, s{S_TMP}, {lds_base}
    v_add_u32 v1, s{S_TMP}, v{V_L16}''')
    for x in range(6):
        A(f'    ds_write_b128 v1, v[{src+4*x}:{src+4*x+3}] offset:{x*1024}')
    A(f'''    v_lshrrev_b32 v2, 4, v{V_LANE}
    v_lshlrev_b32 v2, 9, v2               ; g*512
    v_bfe_u32 v3, v{V_LANE}, 2, 2
    v_lshlrev_b32 v3, 6, v3               ; r*64
    v_and_b32 v4, 3, v{V_LANE}
    v_lshlrev_b32 v4, 4, v4               ; c*16
    v_add3_u32 v2, v2, v3, v4
    v_add_u32 v2, s{S_TMP}, v2''')
    for kk in range(3):
        for tb in range(2):
            for hf in range(2):
                r = A_W + (kk * 2 + tb) * 4 + 2 * hf
                A(f'    ds_read_b64_tr_b16 a[{r}:{r+1}], v2 offset:{kk*2048 + hf*256 + tb*8}')

def gemm6(A, bregs):
    for kk in range(3):
        for tb in range(2):
            d = V_S if tb == 0 else V_R
            c = '0' if kk == 0 else f'v[{d}:{d+3}]'
            w = A_W + (kk * 2 + tb) * 4
            A(f'    v_mfma_f32_16x16x32_bf16 v[{d}:{d+3}], a[{w}:{w+3}], {bregs(kk)}, {c}')

def cross_wave_sum(A, red):
    skip = A.label('XW'); w0 = A.label('XW0')
    A.nop(8)
    A(f'''    s_cmp_eq_u32 s{S_WAVE}, 0
    s_cbranch_scc1 {w0}
    s_sub_u32 s{S_TMP}, s{S_WAVE}, 1
    s_lshl_b32 s{S_TMP}, s{S_TMP}, 11
    s_add_u32 s{S_TMP}, s{S_TMP}, {red}
    v_add_u32 v1, s{S_TMP}, v{V_L16}
    ds_write_b128 v1, v[{V_S}:{V_S+3}]
    ds_write_b128 v1, v[{V_R}:{V_R+3}] offset:1024
    s_waitcnt lgkmcnt(0)
{w0}:
    s_barrier
    s_cmp_eq_u32 s{S_WAVE}, 0
    s_cbranch_scc0 {skip}
    v_add_u32 v1, {red}, v{V_L16}''')
    T = V_T
    for w in range(3):
        A(f'    ds_read_b128 v[{T+8*w}:{T+8*w+3}], v1 offset:{w*2048}')
        A(f'    ds_read_b128 v[{T+8*w+4}:{T+8*w+7}], v1 offset:{w*2048+1024}')
    for w in range(3):
        A(f'    s_waitcnt lgkmcnt({4 - 2*w})')
        for r in range(4):
            A(f'    v_add_f32 v{V_S+r}, v{V_S+r}, v{T+8*w+r}')
        for r in range(4):
            A(f'    v_add_f32 v{V_R+r}, v{V_R+r}, v{T+8*w+4+r}')
    return skip

def cross_wave_sum4(A, red):
    skip = A.label('XV'); w0 = A.label('XV0')
    A.nop(8)
    A(f"""    s_cmp_eq_u32 s{S_WAVE}, 0
    s_cbranch_scc1 {w0}
    s_sub_u32 s{S_TMP}, s{S_WAVE}, 1
    s_lshl_b32 s{S_TMP}, s{S_TMP}, 10
    s_add_u32 s{S_TMP}, s{S_TMP}, {red}
    v_add_u32 v1, s{S_TMP}, v{V_L16}
    ds_write_b128 v1, v[{V_S}:{V_S+3}]
    s_waitcnt lgkmcnt(0)
{w0}:
    s_barrier
    s_cmp_eq_u32 s{S_WAVE}, 0
    s_cbranch_scc0 {skip}
    v_add_u32 v1, {red}, v{V_L16}""")
    T = V_T
    for w in range(3):
        A(f'    ds_read_b128 v[{T+4*w}:{T+4*w+3}], v1 offset:{w*1024}')
    for w in range(3):
        A(f'    s_waitcnt lgkmcnt({2 - w})')
        for r in range(4):
            A(f'    v_add_f32 v{V_S+r}, v{V_S+r}, v{T+4*w+r}')
    return skip

def publish4(A, ws_base):
    T = V_T; odd = A.label('PB_O'); go = A.label('PB_G')
    A(f"""    v_cvt_pk_bf16_f32 v{T+2}, v{V_S}, v{V_S+1}
    v_cvt_pk_bf16_f32 v{T+3}, v{V_S+2}, v{V_S+3}
    v_mov_b32 v{T}, s{S_TAG}
    v_mov_b32 v{T+1}, 0
    v_mov_b32 v{T+4}, s{S_TAG}
    v_mov_b32 v{T+5}, 0
    s_lshl_b32 s{S_TMP}, s{S_JOB}, 10
    s_add_u32 s{S_TMP}, s{S_TMP}, {ws_base}
    v_add_u32 v1, s{S_TMP}, v{V_L16}
    s_bitcmp1_b32 s{S_JOB}, 0
    s_cbranch_scc1 {odd}
    global_store_dwordx4 v1, v[{T}:{T+3}], s[{S_WS}:{S_WS+1}] sc1
    s_branch {go}
{odd}:
    global_store_dwordx4 v1, v[{T+2}:{T+5}], s[{S_WS}:{S_WS+1}] sc1
{go}:""")

def gemm3(A, areg, breg):
    for kk in range(3):
        A(f'    v_mfma_f32_16x16x32_bf16 v[{V_S}:{V_S+3}], {areg(kk)}, {breg(kk)}, ' + ('0' if kk == 0 else f'v[{V_S}:{V_S+3}]'))

def pack_D(A, dreg):
    A(f'    v_cvt_pk_bf16_f32 v{dreg+2}, v{V_S}, v{V_S+1}')
    A(f'    v_cvt_pk_bf16_f32 v{dreg+3}, v{V_S+2}, v{V_S+3}')
    A(f'    v_cvt_pk_bf16_f32 v{dreg+4}, v{V_R}, v{V_R+1}')
    A(f'    v_cvt_pk_bf16_f32 v{dreg+5}, v{V_R+2}, v{V_R+3}')

def lin12_addr(A, nload, rowfn, dst=2):
    for x in range(nload):
        d = dst + x; t = V_T
        A(f"""    v_add_u32 v{t}, {64*x}, v{V_LANE}
    v_mul_u32_u24 v{t+1}, 43691, v{t}
    v_lshrrev_b32 v{t+1}, 19, v{t+1}      ; row
    v_mul_u32_u24 v{t+2}, 12, v{t+1}
    v_sub_u32 v{t+2}, v{t}, v{t+2}
    v_lshlrev_b32 v{t+2}, 4, v{t+2}       ; piece*16""")
        rowfn(t + 1)
        A(f"""    v_mul_u32_u24 v{t+1}, 768, v{t+1}
    v_add3_u32 v{d}, v{t+1}, v{t+2}, s{S_TMP+2}""")

def lin12_to_operands(A, src, nload, lds_off, dsts):
    A(f"""    s_mul_i32 s{S_TMP}, s{S_WAVE}, 12288
    s_add_u32 s{S_TMP}, s{S_TMP}, {L_HEAD + lds_off}
    v_add_u32 v1, s{S_TMP}, v{V_L16}""")
    for x in range(nload):
        A(f'    ds_write_b128 v1, v[{src+4*x}:{src+4*x+3}] offset:{x*1024}')
    A(f"""    v_and_b32 v2, 15, v{V_LANE}
    v_mul_u32_u24 v2, 192, v2
    v_lshrrev_b32 v3, 4, v{V_LANE}
    v_lshlrev_b32 v3, 4, v3
    v_add3_u32 v2, v2, v3, s{S_TMP}""")
    for (reg, rowblk, kk) in dsts:
        A(f'    ds_read_b128 {reg}, v2 offset:{rowblk*16*192 + kk*64}')

def role_S1_loads(A):
    A(f'    s_mul_i32 s{S_TMP+2}, s{S_WAVE}, 192')
    lin12_addr(A, 3, lambda r: None)
    for x in range(3):
        A(f'    global_load_dwordx4 v[{V_GB+12+4*x}:{V_GB+15+4*x}], v{2+x}, s[{S_Q}:{S_Q+1}]')
    slab_addr(A, False)
    slab_loads(A, S_WQ, V_O)

def slab16_to_operands(A, src, lds_base):
    A(f"""    s_mul_i32 s{S_TMP}, s{S_WAVE}, 12288
    s_add_u32 s{S_TMP}, s{S_TMP}, {lds_base}
    v_add_u32 v1, s{S_TMP}, v{V_L16}""")
    for x in range(3):
        A(f'    ds_write_b128 v1, v[{src+4*x}:{src+4*x+3}] offset:{x*1024}')
    A(f"""    v_lshrrev_b32 v2, 4, v{V_LANE}
    v_lshlrev_b32 v2, 8, v2               ; g*256
    v_bfe_u32 v3, v{V_LANE}, 2, 2
    v_lshlrev_b32 v3, 5, v3               ; r*32
    v_and_b32 v4, 3, v{V_LANE}
    v_lshlrev_b32 v4, 3, v4               ; c*8
    v_add3_u32 v2, v2, v3, v4
    v_add_u32 v2, s{S_TMP}, v2""")
    for kk in range(3):
        for hf in range(2):
            r = A_W + kk * 4 + 2 * hf
            A(f'    ds_read_b64_tr_b16 a[{r}:{r+1}], v2 offset:{kk*1024 + hf*128}')

def slab_addr_regs(A, perm):
    slab_addr(A, perm)

def role_S1_work(A):
    T = V_T; Qr = V_GB
    A('    s_waitcnt vmcnt(0)')
    A.stamp('s1_data')
    def held_items(js):
        vm_save = list(A.vm)
        for j in js: issue_item(A, j)
        A.vm = vm_save
    early = list(range(O.l0))[:O.s1early]; late = list(range(O.l0))[O.s1early:]
    held_items(early)
    lin12_to_operands(A, V_GB + 12, 3, 6144 + 2048, [(f'v[{Qr+4*kk}:{Qr+4*kk+3}]', 0, kk) for kk in range(3)])
    slab_to_operands(A, V_O, L_HEAD)
    A('    s_waitcnt lgkmcnt(12)')
    for kk in range(3):
        q = f'v[{Qr+4*kk}:{Qr+4*kk+3}]'
        A(f'    v_mfma_f32_16x16x32_bf16 v[{V_G}:{V_G+3}], {q}, {q}, ' + ('0' if kk == 0 else f'v[{V_G}:{V_G+3}]'))
        A(f'    v_mfma_f32_16x16x32_bf16 v[{V_R}:{V_R+3}], a[{A_ONES}:{A_ONES+3}], {q}, ' + ('0' if kk == 0 else f'v[{V_R}:{V_R+3}]'))
    A.nop(7)
    A(f'    v_cndmask_b32 v{T}, 0, v{V_G}, s[{S_MASK}:{S_MASK+1}]')
    for r in range(1, 4):
        A(f'    v_cndmask_b32 v{T}, v{T}, v{V_G+r}, s[{S_MASK+2*r}:{S_MASK+2*r+1}]')
    A.nop(2)
    A(f'    v_mfma_f32_16x16x4_f32 v[{V_D}:{V_D+3}], v{V_ONEF}, v{T}, 0')
    A(f"""    s_lshl_b32 s{S_TMP}, s{S_WAVE}, 9
    s_add_u32 s{S_TMP}, s{S_TMP}, {L_STAT}
    v_lshlrev_b32 v1, 3, v{V_LANE}
    v_add_u32 v1, s{S_TMP}, v1
    v_and_b32 v2, 15, v{V_LANE}
    v_lshlrev_b32 v2, 3, v2
    v_add_u32 v2, {L_STAT}, v2
    v_mov_b32 v{T+2}, v{V_R}""")
    A.nop(3)
    A(f'    v_mov_b32 v{T+3}, v{V_D}')
    A(f'    ds_write_b64 v1, v[{T+2}:{T+3}]')
    A('    s_waitcnt lgkmcnt(0)')
    A.stamp('s1_stat')
    A('    s_barrier')
    pass
    for w in range(4):
        A(f'    ds_read_b64 v[{T+4+2*w}:{T+5+2*w}], v2 offset:{w*512}')
    A('    s_waitcnt lgkmcnt(0)')
    A(f"""    v_add_f32 v{T+4}, v{T+4}, v{T+6}
    v_add_f32 v{T+5}, v{T+5}, v{T+7}
    v_add_f32 v{T+8}, v{T+8}, v{T+10}
    v_add_f32 v{T+9}, v{T+9}, v{T+11}
    v_add_f32 v{T+4}, v{T+4}, v{T+8}
    v_add_f32 v{T+5}, v{T+5}, v{T+9}
    v_mul_f32 v{T+4}, s{S_C384}, v{T+4}          ; mean
    v_mul_f32 v{T+5}, s{S_C384}, v{T+5}          ; E[x^2]
    v_fma_f32 v{T+5}, -v{T+4}, v{T+4}, v{T+5}    ; var
    v_max_f32 v{T+5}, 0, v{T+5}
    v_cvt_pk_bf16_f32 v{T+6}, v{T+4}, v{T+5}
    v_lshlrev_b32 v{T+4}, 16, v{T+6}
    v_and_b32 v{T+5}, 0xffff0000, v{T+6}
    v_add_f32 v{T+5}, v{V_EPS}, v{T+5}
    v_cvt_pk_bf16_f32 v{T+5}, v{T+5}, v{T+5}
    v_lshlrev_b32 v{T+5}, 16, v{T+5}
    v_sqrt_f32 v{T+5}, v{T+5}
    s_nop 0
    v_cvt_pk_bf16_f32 v{T+5}, v{T+5}, v{T+5}
    v_lshlrev_b32 v{T+5}, 16, v{T+5}
    v_rcp_f32 v{T+5}, v{T+5}""")
    for k in range(0, 12, 2):
        a, b = T + 8, T + 12
        A(f'    v_lshlrev_b32 v{a}, 16, v{Qr+k}')
        A(f'    v_and_b32 v{a+1}, 0xffff0000, v{Qr+k}')
        A(f'    v_lshlrev_b32 v{b}, 16, v{Qr+k+1}')
        A(f'    v_and_b32 v{b+1}, 0xffff0000, v{Qr+k+1}')
        for x in (a, a + 1, b, b + 1): A(f'    v_sub_f32 v{x}, v{x}, v{T+4}')
        A(f'    v_cvt_pk_bf16_f32 v{a+2}, v{a}, v{a+1}')
        A(f'    v_cvt_pk_bf16_f32 v{b+2}, v{b}, v{b+1}')
        A(f'    v_lshlrev_b32 v{a}, 16, v{a+2}')
        A(f'    v_and_b32 v{a+1}, 0xffff0000, v{a+2}')
        A(f'    v_lshlrev_b32 v{b}, 16, v{b+2}')
        A(f'    v_and_b32 v{b+1}, 0xffff0000, v{b+2}')
        for x in (a, a + 1, b, b + 1): A(f'    v_mul_f32 v{x}, v{x}, v{T+5}')
        A(f'    v_cvt_pk_bf16_f32 v{Qr+k}, v{a}, v{a+1}')
        A(f'    v_cvt_pk_bf16_f32 v{Qr+k+1}, v{b}, v{b+1}')
    A.stamp('s1_norm')
    A.nop(2)
    gemm6(A, lambda kk: f'v[{Qr+4*kk}:{Qr+4*kk+3}]')
    skip = cross_wave_sum(A, L_RED_H)
    A.stamp('s1_red')
    pack_D(A, V_T)
    A(f'    s_lshl_b32 s{S_TMP}, s{S_JOB}, 11')
    A(f'    s_lshl_b32 s{S_TMP+1}, s{S_COPY}, 15')
    A(f'    s_add_u32 s{S_TMP}, s{S_TMP}, s{S_TMP+1}')
    A(f'    s_add_u32 s{S_TMP}, s{S_TMP}, {WS_QGA}')
    publish8_dual(A, V_T, S_TMP, WS_QGB - WS_QGA)
    A(f'{skip}:')
    held_items(late)

def role_S2_addr(A):
    A(f"""    s_lshr_b32 s{S_TMP}, s{S_JOB}, 3              ; third = b>>2
    s_lshl_b32 s{S_TMP}, s{S_TMP}, 7
    s_bfe_u32 s{S_TMP+1}, s{S_JOB}, 0x20001       ; ep = b&3
    s_lshl_b32 s{S_TMP+1}, s{S_TMP+1}, 1
    s_add_u32 s{S_TMP+3}, s{S_TMP}, s{S_TMP+1}
    s_and_b32 s{S_TMP+1}, s{S_JOB}, 1
    s_lshl_b32 s{S_TMP+1}, s{S_TMP+1}, 6          ; a2*64
    s_add_u32 s{S_TMP+3}, s{S_TMP+3}, s{S_TMP+1}
    s_mul_i32 s{S_TMP+2}, s{S_WAVE}, 192""")
    def rowfn(r):
        t = V_T + 3
        A(f"""    v_bfe_u32 v{t}, v{r}, 3, 1
    v_lshlrev_b32 v{t}, 2, v{t}
    v_bfe_u32 v{t+1}, v{r}, 2, 1
    v_lshlrev_b32 v{t+1}, 1, v{t+1}
    v_bfe_u32 v{t+2}, v{r}, 1, 1
    v_add3_u32 v{t}, v{t}, v{t+1}, v{t+2}
    v_lshlrev_b32 v{t}, 3, v{t}
    v_and_b32 v{r}, 1, v{r}
    v_add3_u32 v{r}, v{r}, v{t}, s{S_TMP+3}""")
    lin12_addr(A, 3, rowfn, V_O + 12)

def role_S2_loads(A):
    for x in range(3):
        A.vmop(f'    global_load_dwordx4 v[{V_O+4*x}:{V_O+4*x+3}], v{V_O+12+x}, s[{S_WK}:{S_WK+1}]', 'wk')

def role_S2_stage(A):
    A.vmwait('wk')
    lin12_to_operands(A, V_O, 3, 0, [(f'a[{A_W+4*kk}:{A_W+4*kk+3}]', 0, kk) for kk in range(3)])

def role_S2_work(A, have_q=False):
    scale = 384 ** -0.5 * math.log2(math.e)
    ok = A.label('S2OK')
    if not have_q:
        A.vmwait('q')
        gather_check(A)
        A(f'    s_cbranch_vccz {ok}')
        gather_loop(A)
        A(f'{ok}:')
    A('    s_waitcnt lgkmcnt(0)')
    A.stamp('s2_q')
    gemm3(A, lambda kk: f'a[{A_W+4*kk}:{A_W+4*kk+3}]', lambda kk: f'v[{V_GB+8*kk+2}:{V_GB+8*kk+5}]')
    skip = cross_wave_sum4(A, L_HEAD + 6144)
    A.stamp('s2_red')
    for r in range(4):
        A(f'    v_mul_f32 v{V_S+r}, {lit(scale)}, v{V_S+r}')
    publish4(A, WS_QKG)
    A(f'{skip}:')

def get_qk(A):
    ok = A.label('QK_OK'); lp = A.label('QK_LP')
    A.vmwait('qk')
    gather_check(A)
    A(f'    s_cbranch_vccz {ok}')
    gather_loop(A)
    A(f'{ok}:')
    A(f"""    s_mul_i32 s{S_TMP}, s{S_WAVE}, 3072
    s_add_u32 s{S_TMP}, s{S_TMP}, {L_QKL}
    v_add_u32 v1, s{S_TMP}, v{V_L16}""")
    for kk in range(3):
        A(f'    ds_write_b128 v1, v[{V_GB+8*kk+2}:{V_GB+8*kk+5}] offset:{kk*1024}')
    A(f'    v_add_u32 v1, {L_QKL}, v{V_L16}')
    A('    s_waitcnt lgkmcnt(0)')
    A('    s_barrier')
    for bb in range(12):
        A(f'    ds_read_b128 a[{A_QK+4*bb}:{A_QK+4*bb+3}], v1 offset:{bb*1024}')
    for bb in range(12):
        if bb % 4 == 0: A(f'    s_waitcnt lgkmcnt({8 - bb})')
        c = '0' if bb == 0 else f'v[{V_S}:{V_S+3}]'
        A(f'    v_mfma_f32_16x16x32_bf16 v[{V_S}:{V_S+3}], a[{A_ONES}:{A_ONES+3}], a[{A_QK+4*bb}:{A_QK+4*bb+3}], {c}')
    A.nop(8)
    A(f'    v_mov_b32 v{V_SQ}, v{V_S}')
    A.stamp('Qk')

def role_G_loads(A):
    g1 = A.label('GL1'); done = A.label('GLD')
    A(f'    s_cmp_eq_u32 s{S_ROLE}, {R_G1}')
    A(f'    s_cbranch_scc1 {g1}')
    A(f'    s_cmp_eq_u32 s{S_ROLE}, {R_G2}')
    A(f'    s_cbranch_scc0 {done}')
    slab_addr(A, False)
    slab_loads(A, S_WO, RAW[1])
    A(f"""    v_and_b32 v1, 15, v{V_LANE}
    v_mul_u32_u24 v1, 768, v1
    v_lshrrev_b32 v2, 4, v{V_LANE}
    v_lshlrev_b32 v2, 4, v2
    s_lshl_b32 s{S_TMP}, s{S_JOB}, 6
    v_add3_u32 v{V_Q+4}, v1, v2, s{S_TMP}
    global_load_dwordx4 v[{V_Q}:{V_Q+3}], v{V_Q+4}, s[{S_Q}:{S_Q+1}]
    s_branch {done}
{g1}:""")
    slab_addr(A, True)
    slab_loads(A, S_WV, RAW[1])
    A(f'{done}:')

def epilogue(A):
    T = V_T
    multi_xgroup(A, 'v_add_f32', [V_L, V_U], [T, T + 1])
    A(f"""    v_and_b32 v3, 15, v{V_LANE}           ; n
    v_lshlrev_b32 v5, 4, v3
    s_lshl_b32 s{S_TMP}, s{S_WAVE}, 2
    s_add_u32 s{S_TMP}, s{S_TMP}, {L_LBUF}
    v_add_u32 v6, s{S_TMP}, v5
    ds_write_b32 v6, v{V_L}
    ds_write_b32 v6, v{V_U} offset:256""")
    for r in range(4):
        for third in range(3):
            b0 = V_O + third * 8; b1 = b0 + 4
            A(f'    v_cvt_pk_bf16_f32 v{8+4*r+third}, v{b0+r}, v{b1+r}')
        A(f'    v_mov_b32 v{8+4*r+3}, s{S_TAG}')
    A(f"""    s_mul_i32 s{S_TMP}, s{S_WAVE}, 12288
    s_add_u32 s{S_TMP}, s{S_TMP}, {L_TR}
    v_mul_u32_u24 v1, 272, v3
    v_lshrrev_b32 v2, 4, v{V_LANE}        ; g'
    v_lshlrev_b32 v4, 6, v2               ; (g'>>1)*128 + (g'&1)*64 == g'*64
    v_add3_u32 v1, v1, v4, s{S_TMP}""")
    for r in range(4):
        A(f'    ds_write_b128 v1, v[{8+4*r}:{11+4*r}] offset:{r*16}')
    A(f"""    v_mul_u32_u24 v1, 272, v2
    v_add3_u32 v1, v1, v5, s{S_TMP}""")
    for x in range(4):
        A(f'    ds_read_b128 v[{24+4*x}:{27+4*x}], v1 offset:{x*1088}')
    A(f"""    v_lshlrev_b32 v1, 18, v2              ; (l>>4)*8*32768
    v_bfe_u32 v4, v{V_LANE}, 3, 1
    v_lshlrev_b32 v4, 15, v4
    v_and_b32 v7, 7, v{V_LANE}
    v_lshlrev_b32 v7, 4, v7
    v_add3_u32 v1, v1, v4, v7
    s_lshl_b32 s{S_TMP}, s{S_WAVE}, 16
    s_lshl_b32 s{S_TMP+1}, s{S_WG}, 7
    s_add_u32 s{S_TMP}, s{S_TMP}, s{S_TMP+1}
    s_add_u32 s{S_TMP}, s{S_TMP}, {WS_PART}
    v_add_u32 v1, s{S_TMP}, v1
    v_add_u32 v2, 0x100000, v1
    v_add_u32 v4, 0x200000, v1
    v_add_u32 v7, 0x300000, v1""")
    for x, a in enumerate((1, 2, 4, 7)):
        A(f'    s_waitcnt lgkmcnt({3-x})')
        A(f'    global_store_dwordx4 v{a}, v[{24+4*x}:{27+4*x}], s[{S_WS}:{S_WS+1}] sc1')
    A('    s_barrier')
    skip = A.label('EP')
    A(f"""    s_cmp_eq_u32 s{S_WAVE}, 0
    s_cbranch_scc0 {skip}
    v_add_u32 v5, {L_LBUF}, v5
    ds_read_b128 v[40:43], v5
    ds_read_b128 v[44:47], v5 offset:256
    v_lshlrev_b32 v3, 4, v3
    s_lshl_b32 s{S_TMP}, s{S_WG}, 8
    s_add_u32 s{S_TMP}, s{S_TMP}, {WS_ML}
    v_add_u32 v3, s{S_TMP}, v3
    v_mov_b32 v48, v{V_MREF}
    v_mov_b32 v51, s{S_TAG}
    s_waitcnt lgkmcnt(0)
    v_add_f32 v40, v40, v41
    v_add_f32 v42, v42, v43
    v_add_f32 v44, v44, v45
    v_add_f32 v46, v46, v47
    v_add_f32 v49, v40, v42
    v_add_f32 v50, v44, v46
    v_cmp_gt_u32 vcc, 16, v{V_LANE}
    s_and_saveexec_b64 s[{S_EX}:{S_EX+1}], vcc
    global_store_dwordx4 v3, v[48:51], s[{S_WS}:{S_WS+1}] sc1
    s_mov_b64 exec, s[{S_EX}:{S_EX+1}]
{skip}:""")
    A.stamp('pub')

def role_R(A):
    T = V_T
    lp = A.label('RL'); ok = A.label('RO'); lp2 = A.label('RD'); ok2 = A.label('RO2'); fin = A.label('RF')
    A(f"""    s_and_b32 s{S_TMP}, s{S_JOB}, 15          ; n
    s_lshr_b32 s{S_TMP+1}, s{S_JOB}, 4        ; chunk
    s_lshl_b32 s{S_TMP+2}, s{S_TMP}, 4
    s_lshl_b32 s{S_TMP+3}, s{S_WAVE}, 14
    s_add_u32 s{S_TMP+2}, s{S_TMP+2}, s{S_TMP+3}
    s_add_u32 s{S_TMP+2}, s{S_TMP+2}, {WS_ML}
    v_lshlrev_b32 v1, 8, v{V_LANE}
    v_add_u32 v1, s{S_TMP+2}, v1
    s_lshl_b32 s{S_TMP+2}, s{S_TMP}, 3
    s_add_u32 s{S_TMP+2}, s{S_TMP+2}, s{S_TMP+1}
    s_lshl_b32 s{S_TMP+2}, s{S_TMP+2}, 15
    s_lshl_b32 s{S_TMP+3}, s{S_WAVE}, 13
    s_add_u32 s{S_TMP+2}, s{S_TMP+2}, s{S_TMP+3}
    s_add_u32 s{S_TMP+2}, s{S_TMP+2}, {WS_PART + 4096}
    v_add_u32 v2, s{S_TMP+2}, v{V_L16}
{lp}:""")
    def data_loads():
        for k in range(8):
            A(f'    global_load_dwordx4 v[{16+4*k}:{19+4*k}], v2, s[{S_WS}:{S_WS+1}] offset:{k*1024-4096} sc1')
    if O.rthr:
        l2 = A.label('RL2')
        A(f'    global_load_dwordx4 v[8:11], v1, s[{S_WS}:{S_WS+1}] sc1')
        A('    s_waitcnt vmcnt(0)')
        A(f'    v_cmp_ne_u32 vcc, s{S_TAG}, v11')
        A(f'    s_bcnt1_i32_b64 s{S_TMP+3}, vcc')
        A(f'    s_cmp_le_u32 s{S_TMP+3}, {O.rthr}')
        A(f'    s_cbranch_scc1 {l2}')
        spin_guard(A, lp)
        A(f'    s_branch {lp}')
        A(f'{l2}:')
        A(f'    global_load_dwordx4 v[8:11], v1, s[{S_WS}:{S_WS+1}] sc1')
        data_loads()
        A('    s_waitcnt vmcnt(8)')
        A(f'    v_cmp_ne_u32 vcc, s{S_TAG}, v11')
        A(f'    s_cbranch_vccz {ok}')
        A('    s_waitcnt vmcnt(0)')
        spin_guard(A, l2)
        A(f'    s_branch {l2}')
        A(f'{ok}:')
    else:
        A(f'    global_load_dwordx4 v[8:11], v1, s[{S_WS}:{S_WS+1}] sc1')
        if O.rcomb:
            data_loads()
            A('    s_waitcnt vmcnt(8)')
        else:
            A('    s_waitcnt vmcnt(0)')
        A(f"""    v_cmp_ne_u32 vcc, s{S_TAG}, v11
    s_cbranch_vccz {ok}""")
        if O.rcomb: A('    s_waitcnt vmcnt(0)')
        spin_guard(A, lp)
        A(f'    s_branch {lp}')
        A(f'{ok}:')
    A.stamp('R_ml')
    if not O.rcomb and not O.rthr: data_loads()
    A(f'    v_mov_b32 v12, v8')
    multi_row(A, 'v_max_f32', [12])
    xgroup_reduce(A, 'v_max_f32', 12, 13)
    A(f"""    v_sub_f32 v8, v8, v12
    v_exp_f32 v8, v8
    v_lshrrev_b32 v3, 3, v{V_LANE}
    v_lshlrev_b32 v3, 2, v3               ; ii*4
    v_mul_f32 v9, v9, v8
    v_mul_f32 v10, v10, v8""")
    for k in range(8):
        A(f'    v_add_u32 v4, {32*k}, v3')
        A(f'    ds_bpermute_b32 v{48+k}, v4, v8')
    multi_row(A, 'v_add_f32', [9, 10])
    multi_xgroup(A, 'v_add_f32', [9, 10], [13, 14])
    for j in range(6): A(f'    v_mov_b32 v{56+j}, 0')
    A(f'{lp2}:')
    A('    s_waitcnt vmcnt(0)')
    for k in range(0, 8, 2):
        A(f'    v_xor_b32 v{64+k}, s{S_TAG}, v{19+4*k}')
        A(f'    v_xor_b32 v{65+k}, s{S_TAG}, v{23+4*k}')
    A(f"""    v_or3_b32 v64, v64, v65, v66
    v_or3_b32 v67, v67, v68, v69
    v_or3_b32 v64, v64, v70, v71
    v_or_b32 v64, v64, v67
    v_cmp_ne_u32 vcc, 0, v64
    s_cbranch_vccz {ok2}""")
    spin_guard(A, lp2)
    data_loads()
    A(f'    s_branch {lp2}')
    A(f'{ok2}:')
    A('    s_waitcnt lgkmcnt(0)')
    for k in range(8):
        for t in range(3):
            A(f'    v_lshlrev_b32 v64, 16, v{16+4*k+t}')
            A(f'    v_and_b32 v65, 0xffff0000, v{16+4*k+t}')
            A(f'    v_fmac_f32 v{56+2*t}, v64, v{48+k}')
            A(f'    v_fmac_f32 v{57+2*t}, v65, v{48+k}')
    acc = list(range(56, 62))
    multi_row(A, 'v_add_f32', acc, rots=(8,))
    multi_xgroup(A, 'v_add_f32', acc, list(range(64, 70)))
    A(f"""    s_lshl_b32 s{S_TMP+2}, s{S_WAVE}, 8
    s_add_u32 s{S_TMP+2}, s{S_TMP+2}, {L_RB}
    v_mul_u32_u24 v3, 24, v{V_LANE}
    v_add_u32 v3, s{S_TMP+2}, v3
    v_mov_b32 v4, s{S_TMP+2}
    v_mov_b32 v13, v9
    v_mov_b32 v14, v10
    v_mov_b32 v15, 0
    v_cmp_gt_u32 vcc, 8, v{V_LANE}
    s_and_saveexec_b64 s[{S_EX}:{S_EX+1}], vcc
    ds_write_b64 v3, v[56:57]
    ds_write_b64 v3, v[58:59] offset:8
    ds_write_b64 v3, v[60:61] offset:16
    ds_write_b128 v4, v[12:15] offset:192
    s_mov_b64 exec, s[{S_EX}:{S_EX+1}]
    s_waitcnt lgkmcnt(0)
    s_barrier
    s_cmp_eq_u32 s{S_WAVE}, 0
    s_cbranch_scc0 {fin}
    v_min_u32 v3, 7, v{V_LANE}
    v_mul_u32_u24 v3, 24, v3
    v_add_u32 v3, {L_RB}, v3
    v_mov_b32 v4, {L_RB}""")
    for w in range(4):
        A(f'    ds_read_b128 v[{16+4*w}:{19+4*w}], v4 offset:{w*256+192}')
    for w in range(4):
        for j in range(3):
            A(f'    ds_read_b64 v[{32+6*w+2*j}:{33+6*w+2*j}], v3 offset:{w*256+8*j}')
    A(f"""    s_waitcnt lgkmcnt(12)
    v_max_f32 v12, v16, v20
    v_max3_f32 v12, v12, v24, v28""")
    for w in range(4): A(f'    v_sub_f32 v{16+4*w}, v{16+4*w}, v12')
    for w in range(4): A(f'    v_exp_f32 v{16+4*w}, v{16+4*w}')
    A(f"""    s_nop 0
    v_mul_f32 v13, v16, v17
    v_mul_f32 v14, v16, v18""")
    for w in range(1, 4):
        A(f'    v_fmac_f32 v13, v{16+4*w}, v{17+4*w}')
        A(f'    v_fmac_f32 v14, v{16+4*w}, v{18+4*w}')
    A(f"""    v_rcp_f32 v13, v13
    s_waitcnt lgkmcnt(0)""")
    for j in range(6): A(f'    v_mul_f32 v{56+j}, v{32+j}, v16')
    for w in range(1, 4):
        for j in range(6): A(f'    v_fmac_f32 v{56+j}, v{32+6*w+j}, v{16+4*w}')
    for j in range(6): A(f'    v_sub_f32 v{56+j}, v{56+j}, v14')
    for j in range(6): A(f'    v_mul_f32 v{56+j}, v{56+j}, v13')
    A(f"""    v_cvt_pk_bf16_f32 v8, v56, v57
    v_cvt_pk_bf16_f32 v9, v58, v59
    v_cvt_pk_bf16_f32 v10, v60, v61
    v_mov_b32 v11, s{S_TAG}
    s_lshl_b32 s{S_TMP+2}, s{S_TMP+1}, 4
    s_add_u32 s{S_TMP+2}, s{S_TMP+2}, s{S_TMP}
    s_lshl_b32 s{S_TMP+2}, s{S_TMP+2}, 7
    s_add_u32 s{S_TMP+2}, s{S_TMP+2}, {WS_CTXN}
    v_add_u32 v3, s{S_TMP+2}, v{V_L16}
    v_cmp_gt_u32 vcc, 8, v{V_LANE}
    s_and_saveexec_b64 s[{S_EX}:{S_EX+1}], vcc
    global_store_dwordx4 v3, v[8:11], s[{S_WS}:{S_WS+1}] sc1
    s_mov_b64 exec, s[{S_EX}:{S_EX+1}]
{fin}:""")
    A.stamp('R_done')

def gather4_loop(A):
    l = A.label('G4L'); d = A.label('G4D'); T = V_T
    A(f"""    s_lshl_b32 s{S_TMP}, s{S_WAVE}, 12
    s_add_u32 s{S_TMP}, s{S_TMP}, {WS_CTXN}
    v_and_b32 v1, 15, v{V_LANE}
    v_lshlrev_b32 v1, 7, v1
    v_lshrrev_b32 v2, 4, v{V_LANE}
    v_lshlrev_b32 v2, 4, v2
    v_add3_u32 v{V_GA}, v1, v2, s{S_TMP}""")
    A(f'{l}:')
    for x in range(4):
        A(f'    global_load_dwordx4 v[{V_GB+4*x}:{V_GB+4*x+3}], v{V_GA}, s[{S_WS}:{S_WS+1}] offset:{(x>>1)*2048 + (x&1)*64} sc1')
    A('    s_waitcnt vmcnt(0)')
    for x in range(4): A(f'    v_xor_b32 v{T+x}, s{S_TAG}, v{V_GB+4*x+3}')
    A(f'    v_or3_b32 v{T}, v{T}, v{T+1}, v{T+2}')
    A(f'    v_or_b32 v{T}, v{T}, v{T+3}')
    A(f'    v_cmp_ne_u32 vcc, 0, v{T}')
    A(f'    s_cbranch_vccz {d}')
    spin_guard(A, l)
    A(f'    s_branch {l}')
    A(f'{d}:')
    for j in range(3): A(f'    v_mov_b32 v{V_GB+4*j+3}, v{V_GB+12+j}')

def role_G(A):
    g2 = A.label('G2'); lj = A.label('GJ')
    role_G_loads(A)
    A('    s_waitcnt vmcnt(0)')
    slab_to_operands(A, RAW[1], 0)
    A(f'    s_cmp_eq_u32 s{S_ROLE}, {R_G2}')
    A(f'    s_cbranch_scc1 {g2}')
    gather4_loop(A)
    A('    s_waitcnt lgkmcnt(0)')
    A.stamp('G1_in')
    gemm6(A, lambda kk: f'v[{V_GB+4*kk}:{V_GB+4*kk+3}]')
    A(f'    s_branch {lj}')
    A(f'{g2}:')
    gather_addr(A, WS_CTXA)
    gather_loop_dual(A, WS_CTX - WS_CTXA, O.na)
    A('    s_waitcnt lgkmcnt(0)')
    A.stamp('G2_in')
    gemm6(A, lambda kk: f'v[{V_GB+8*kk+2}:{V_GB+8*kk+5}]')
    A(f'{lj}:')
    skip = cross_wave_sum(A, L_RED_T)
    out2 = A.label('GO')
    A(f'    s_cmp_eq_u32 s{S_ROLE}, {R_G2}')
    A(f'    s_cbranch_scc1 {out2}')
    pack_D(A, 8)
    A(f'    s_lshl_b32 s{S_TMP}, s{S_JOB}, 11')
    A(f'    s_add_u32 s{S_TMP}, s{S_TMP}, {WS_CTXA}')
    publish8_dual(A, 8, S_TMP, WS_CTX - WS_CTXA)
    A(f'    s_branch {skip}')
    A(f'{out2}:')
    for k in range(4):
        d = V_S if k < 2 else V_R
        j = 2 * (k & 1)
        A(f'    v_lshlrev_b32 v8, 16, v{V_Q+k}')
        A(f'    v_and_b32 v9, 0xffff0000, v{V_Q+k}')
        A(f'    v_add_f32 v8, v8, v{d+j}')
        A(f'    v_add_f32 v9, v9, v{d+j+1}')
        A(f'    v_cvt_pk_bf16_f32 v{12+k}, v8, v9')
    A(f'    global_store_dwordx4 v{V_Q+4}, v[12:15], s[{S_OUT}:{S_OUT+1}]')
    e = A.label('GE')
    A(f"""    s_cmp_eq_u32 s{S_JOB}, 0
    s_cbranch_scc0 {skip}
    s_add_u32 s{S_TMP}, s{S_EPOCH}, 1
    v_mov_b32 v8, s{S_TMP}
    v_mov_b32 v9, {WS_EPOCH}
    v_cmp_eq_u32 vcc, 0, v{V_LANE}
    s_and_saveexec_b64 s[{S_EX}:{S_EX+1}], vcc
    global_store_dword v9, v8, s[{S_WS}:{S_WS+1}]
    s_mov_b64 exec, s[{S_EX}:{S_EX+1}]""")
    A(f'{skip}:')
    A.stamp('G_done')

def build_kernel():
    A = Gen(); T = V_T
    Stream.nxt = 0; Stream.done = 0; Stream.pend = []; PV.pending = []
    A('.text')
    A(f'.globl {NAME}')
    A('.p2align 8')
    A(f'.type {NAME},@function')
    A(f'{NAME}:')
    A(f"""    s_cmp_ge_u32 s2, 256
    s_cbranch_scc1 K_END
    s_load_dwordx4 s[{S_F0}:{S_F0+3}], s[0:1], 8
    s_load_dwordx2 s[{S_WS}:{S_WS+1}], s[0:1], 72
    s_load_dwordx2 s[{S_Q}:{S_Q+1}], s[0:1], 0
    s_load_dwordx8 s[{S_WQ}:{S_WQ+7}], s[0:1], 24
    s_load_dwordx2 s[{S_OUT}:{S_OUT+1}], s[0:1], 56
    s_mov_b32 s{S_WG}, s2
    s_mov_b32 s{S_SPIN}, 0
    v_and_b32 v{V_LANE}, 63, v0
    v_lshrrev_b32 v1, 6, v0
    v_lshlrev_b32 v{V_L16}, 4, v{V_LANE}
    v_readfirstlane_b32 s{S_WAVE}, v1
    v_lshrrev_b32 v2, 4, v{V_LANE}        ; g
    v_and_b32 v3, 15, v{V_LANE}           ; i
    v_lshlrev_b32 v4, 4, v3
    v_mul_u32_u24 v5, 1536, v2
    v_add_u32 v{V_F0OFF}, v5, v4
    v_mul_u32_u24 v5, 768, v2
    v_add_u32 v{V_F1OFF}, v5, v4
    s_mul_i32 s{S_T}, s{S_WG}, 36
    s_add_u32 s{S_T}, s{S_T}, s{S_WAVE}
    s_mov_b32 s{S_ROLE}, {R_NONE}
    s_mov_b32 s{S_JOB}, 0
    s_and_b32 s{S_COPY}, s2, 7
    s_lshr_b32 s{S_TMP}, s2, 3            ; j
    s_cmp_lt_u32 s{S_COPY}, 2
    s_cbranch_scc1 ROLE_S
    s_cmp_eq_u32 s{S_COPY}, 4
    s_cbranch_scc1 ROLE_G
    s_cmp_eq_u32 s{S_COPY}, 7
    s_cbranch_scc1 ROLE_DONE
    s_cmp_ge_u32 s{S_COPY}, 5
    s_cselect_b32 s{S_TMP+1}, 3, 2
    s_sub_u32 s{S_TMP+1}, s{S_COPY}, s{S_TMP+1}   ; 2,3,5,6 -> 0,1,2,3
    s_lshl_b32 s{S_TMP+1}, s{S_TMP+1}, 5
    s_add_u32 s{S_JOB}, s{S_TMP+1}, s{S_TMP}
    s_mov_b32 s{S_ROLE}, {R_R}
    s_branch ROLE_DONE
ROLE_S:
    s_cmp_ge_u32 s{S_TMP}, 24
    s_cbranch_scc1 ROLE_DONE
    s_mov_b32 s{S_JOB}, s{S_TMP}
    s_mov_b32 s{S_ROLE}, {R_S1}
    s_cmp_ge_u32 s{S_TMP}, 12
    s_cbranch_scc0 ROLE_DONE
    s_mul_i32 s{S_TMP+1}, s{S_COPY}, 12
    s_add_u32 s{S_JOB}, s{S_TMP}, s{S_TMP+1}
    s_sub_u32 s{S_JOB}, s{S_JOB}, 12
    s_mov_b32 s{S_ROLE}, {R_S2}
    s_branch ROLE_DONE
ROLE_G:
    s_cmp_ge_u32 s{S_TMP}, 24
    s_cbranch_scc1 ROLE_DONE
    s_mov_b32 s{S_JOB}, s{S_TMP}
    s_mov_b32 s{S_ROLE}, {R_G1}
    s_cmp_ge_u32 s{S_TMP}, 12
    s_cbranch_scc0 ROLE_DONE
    s_sub_u32 s{S_JOB}, s{S_TMP}, 12
    s_mov_b32 s{S_ROLE}, {R_G2}
ROLE_DONE:
    s_waitcnt lgkmcnt(0)
    s_load_dword s{S_EPOCH}, s[{S_WS}:{S_WS+1}], {WS_EPOCH}""")
    if O.stamp: A(f'    v_mov_b32 v{V_STAMP}, 0')
    A.stamp('entry')
    l2 = A.label('P2')
    A(f'    s_cmp_eq_u32 s{S_ROLE}, {R_S1}')
    A(f'    s_cbranch_scc0 {l2}')
    role_S1_loads(A)
    A(f'{l2}:')
    tile_bases(A, 0)
    hold = A.label('PH')
    A(f'    s_cmp_eq_u32 s{S_ROLE}, {R_S1}')
    A(f'    s_cbranch_scc1 {hold}')
    issue_next(A, O.l0)
    A(f'{hold}:')
    if O.cpf:
        lc = A.label('CPF')
        A(f'''    s_sub_u32 s{S_TMP}, s{S_WG}, 192
    s_cmp_lt_u32 s{S_TMP}, 64
    s_cbranch_scc0 {lc}
    s_cmp_eq_u32 s{S_WAVE}, 3
    s_cbranch_scc0 {lc}
    s_getpc_b64 s[72:73]
CPF_PC:
    s_lshr_b32 s{S_TMP}, s{S_TMP}, 3
    s_mul_i32 s{S_TMP}, s{S_TMP}, (((K_END - CPF_PC) / 128 + 8) / 8) * 128
    v_lshlrev_b32 v1, 7, v{V_LANE}
    v_add_u32 v1, s{S_TMP}, v1
    v_cmp_gt_u32 vcc, (((K_END - CPF_PC) / 128 + 8) / 8), v{V_LANE}
    v_min_u32 v1, (K_END - CPF_PC), v1
    s_and_saveexec_b64 s[{S_EX}:{S_EX+1}], vcc
    global_load_dword v248, v1, s[72:73]
    s_mov_b64 exec, s[{S_EX}:{S_EX+1}]
{lc}:''')
    if O.touch:
        lt = A.label('TCH')
        A(f'''    s_cmp_eq_u32 s{S_WAVE}, 2
    s_cbranch_scc0 {lt}
    v_mov_b32 v1, 0
    s_mov_b64 s[{S_EX}:{S_EX+1}], exec
    s_mov_b64 exec, 1
    global_load_dword v249, v1, s[{S_WS}:{S_WS+1}] offset:2048
    v_mov_b32 v2, {WS_PART}
    v_mov_b32 v3, {WS_PART + 0x200000}
    v_mov_b32 v4, {WS_PART + 0x3ff000}
    global_load_dword v249, v2, s[{S_WS}:{S_WS+1}]
    global_load_dword v249, v3, s[{S_WS}:{S_WS+1}]
    global_load_dword v249, v4, s[{S_WS}:{S_WS+1}]
    global_load_dword v249, v1, s[{S_WK}:{S_WK+1}]
    global_load_dword v249, v1, s[{S_WV}:{S_WV+1}]
    global_load_dword v249, v1, s[{S_WO}:{S_WO+1}]
    global_load_dword v249, v1, s[{S_OUT}:{S_OUT+1}]
    s_mov_b64 exec, s[{S_EX}:{S_EX+1}]
{lt}:''')
    A.stamp('issued')
    A(f"""    v_lshrrev_b32 v2, 4, v{V_LANE}
    v_and_b32 v3, 15, v{V_LANE}
    s_mul_i32 s{S_TMP}, s{S_WAVE}, 12288
    v_lshlrev_b32 v5, 2, v2
    v_add_u32 v5, v5, v3
    v_and_b32 v5, 15, v5
    v_lshlrev_b32 v5, 4, v5
    v_lshlrev_b32 v6, 8, v2
    v_add_u32 v5, v5, v6
    v_add_u32 v{V_LDSW}, s{S_TMP}, v5
    s_lshl_b32 s{S_TMP+1}, s{S_WAVE}, 10
    v_add_u32 v{V_LDSF}, s{S_TMP+1}, v5
    v_lshrrev_b32 v5, 2, v{V_LANE}
    v_and_b32 v5, 3, v5
    v_and_b32 v6, 3, v{V_LANE}
    v_lshrrev_b32 v7, 1, v2
    v_add_u32 v7, v7, v6
    v_lshlrev_b32 v7, 2, v7
    v_and_b32 v1, 1, v2
    v_lshlrev_b32 v1, 1, v1
    v_add_u32 v7, v7, v1
    v_lshrrev_b32 v1, 1, v5
    v_add_u32 v7, v7, v1
    v_and_b32 v1, 1, v5
    v_lshlrev_b32 v1, 3, v1
    v_lshlrev_b32 v6, 8, v6
    v_add3_u32 v6, v6, v1, s{S_TMP}
    v_and_b32 v1, 15, v7
    v_lshlrev_b32 v1, 4, v1
    v_add_u32 v{V_LDSR0}, v6, v1
    v_add_u32 v7, 8, v7
    v_and_b32 v1, 15, v7
    v_lshlrev_b32 v1, 4, v1
    v_add_u32 v{V_LDSR1}, v6, v1
    v_lshlrev_b32 v5, 3, v{V_LANE}
    v_add_u32 v{V_PR}, {L_PBUF}, v5
    s_lshl_b32 s{S_TMP}, s{S_WAVE}, 9
    v_add_u32 v{V_PW}, s{S_TMP}, v{V_PR}
    v_add_u32 v{V_FR}, {L_FLAG}, v{V_L16}
    s_lshl_b32 s{S_TMP}, s{S_WAVE}, 2
    v_add_u32 v{V_FW}, s{S_TMP}, v{V_FR}
    s_mov_b32 s{S_THR}, {lit(8.0)}
    v_lshlrev_b32 v5, 2, v3
    v_add_u32 v{V_MB}, {L_MBUF}, v5
    v_mov_b32 v{V_MREF}, 0xff800000
    ds_write_b32 v{V_MB}, v{V_MREF}
    v_lshlrev_b32 v5, 2, v2""")
    for r in range(4):
        A(f'    v_add_u32 v6, {r}, v5')
        A(f'    v_cmp_eq_u32 s[{S_MASK+2*r}:{S_MASK+2*r+1}], v6, v3')
    A(f"""    s_mov_b32 s{S_SELLO}, 0x{SEL_LO:08x}
    s_mov_b32 s{S_SELHI}, 0x{SEL_HI:08x}
    s_mov_b32 s{S_C384}, {lit(1/384)}
    v_mov_b32 v{V_EPS}, {lit(1e-5)}
    v_mov_b32 v{V_ONEF}, 1.0
    v_mov_b32 v{V_L}, 0
    v_mov_b32 v{V_U}, 0
    v_mov_b32 v{V_Q+4}, 0
    v_mov_b32 v1, 0x3f803f80""")
    for k in range(4):
        A(f'    v_accvgpr_write_b32 a{A_ONES+k}, v1')
    A(f"""    s_waitcnt lgkmcnt(0)
    s_mul_i32 s{S_TAG}, s{S_EPOCH}, 0x9E3779B1
    s_add_u32 s{S_TAG}, s{S_TAG}, 0x7F4A7C15""")
    def snapshot(): return (list(A.vm), set(A.done), Stream.nxt, Stream.done, list(Stream.pend))
    def restore(sn): A.vm, A.done, Stream.nxt, Stream.done, Stream.pend = list(sn[0]), set(sn[1]), sn[2], sn[3], list(sn[4])
    l1 = A.label('H1'); l2 = A.label('H2'); j0 = A.label('A0J')
    A(f'    s_cmp_eq_u32 s{S_ROLE}, {R_S1}')
    A(f'    s_cbranch_scc0 {l1}')
    sn = snapshot()
    role_S1_work(A)
    if O.s1mid:
        Stream.nxt = 3
        stage_A(A, 0, quota=2, stamp=False)
        assert Stream.nxt == O.l0 + 3
        A(f'    s_branch {j0}')
        restore(sn)
    else:
        A(f'    s_branch {l2}')
    A(f'{l1}:')
    A(f'    s_cmp_eq_u32 s{S_ROLE}, {R_S2}')
    A(f'    s_cbranch_scc0 {l2}')
    sn2 = snapshot()
    role_S2_addr(A)
    role_S2_loads(A)
    if O.qtouch:
        lt = A.label('QT')
        A(f"""    s_cmp_eq_u32 s{S_WAVE}, 0
    s_cbranch_scc0 {lt}
    s_mul_i32 s{S_TMP}, s{S_COPY}, 12
    s_sub_u32 s{S_TMP}, s{S_JOB}, s{S_TMP}        ; 0..11
    s_lshl_b32 s{S_TMP}, s{S_TMP}, 11
    s_lshl_b32 s{S_TMP+1}, s{S_COPY}, 15
    s_add_u32 s{S_TMP}, s{S_TMP}, s{S_TMP+1}
    s_add_u32 s{S_TMP}, s{S_TMP}, {WS_QGA}
    v_and_b32 v1, 15, v{V_LANE}
    v_lshlrev_b32 v1, 7, v1
    v_add_u32 v1, s{S_TMP}, v1
    global_load_dword v248, v1, s[{S_WS}:{S_WS+1}]
{lt}:""")
    stage_A(A, 0, quota=O.s2q, stamp=False)
    role_S2_stage(A)
    gather_addr(A, WS_QGA)
    A(f'    s_lshl_b32 s{S_TMP}, s{S_COPY}, 15')
    A(f'    v_add_u32 v{V_GA}, s{S_TMP}, v{V_GA}')
    A.vmall()
    A.stamp('s2_poll')
    gather_loop_dual(A, WS_QGB - WS_QGA, O.na)
    flush_pend()
    issue_next(A, O.l0 + 3 - Stream.nxt)
    role_S2_work(A, True)
    assert Stream.nxt == O.l0 + 3
    A(f'    s_branch {j0}')
    restore(sn2)
    A(f'{l2}:')
    stage_A(A, 0, quota=O.q0, stamp=False)
    A(f'{j0}:')
    A.stamp('A0')
    stage_A(A, 1, stamp=False)
    A.stamp('A1')
    gather_addr(A, WS_QKG)
    attempt = lambda: gather_issue(A, 'qk')
    raise_l = lambda: (enqueue(A), flush_pend())
    if O.raise_at == 'A1': raise_l()
    if O.attempt == 'A1': attempt()
    hooks = {}
    if O.attempt == 'A2a': hooks[0] = attempt
    if O.attempt == 'A2b': hooks[1] = attempt
    if O.hold:
        h = O.hold
        if h == 1:   hooks = {1: lambda: (attempt(), enqueue(A, 2))}
        elif h == 2: hooks = {0: lambda: (attempt(), enqueue(A, 1)), 1: lambda: enqueue(A, 1)}
        elif h == 3: hooks = {2: lambda: (attempt(), enqueue(A, 2))}
        stage_A(A, 2, hooks, quota=1)
    else:
        stage_A(A, 2, hooks)
    if O.attempt == 'A2' and not O.hold: attempt()
    if O.raise_at == 'A2': raise_l()
    enqueue(A, O.extra); flush_pend()
    A.nop(2)
    for k in range(24):
        A(f'    v_mov_b32 v{V_O+k}, 0')
    get_qk(A)
    sched = O.sched.split()
    for i, st in enumerate(sched):
        k = int(st[1])
        if st[0] == 'A':
            stage_A(A, k, quota=O.qa)
        else:
            nxtB = next((j for j in range(i + 1, len(sched)) if sched[j][0] == 'B'), len(sched))
            strict = any(x[0] == 'A' and int(x[1]) % 3 == k % 3 for x in sched[i + 1:nxtB]) or k == 8
            ia = next((j for j in range(i) if sched[j] == f'A{k}'), -1)
            fresh = ia >= 0 and not any(x[0] == 'B' for x in sched[ia + 1:i])
            stage_B(A, k, quota=O.qb, defer=(O.defer and k != 8), strict=strict, fresh=fresh)
    epilogue(A)
    lr = A.label('TR'); lg = A.label('TG')
    A(f'    s_cmp_eq_u32 s{S_ROLE}, {R_R}')
    A(f'    s_cbranch_scc0 {lr}')
    role_R(A)
    A('    s_branch K_FIN')
    A(f'{lr}:')
    A(f'    s_cmp_eq_u32 s{S_ROLE}, {R_G1}')
    A(f'    s_cbranch_scc1 {lg}')
    A(f'    s_cmp_eq_u32 s{S_ROLE}, {R_G2}')
    A(f'    s_cbranch_scc0 K_FIN')
    A(f'{lg}:')
    role_G(A)
    A('K_FIN:')
    if O.stamp and O.dbg:
        A('    s_waitcnt vmcnt(0)')
        A.stamp('end')
        A(f"""    s_cmp_eq_u32 s{S_WG}, {O.dbgwg}
    s_cbranch_scc0 K_END
    s_cmp_eq_u32 s{S_WAVE}, 0
    s_cbranch_scc0 K_END
    s_load_dwordx2 s[42:43], s[0:1], 64
    v_readlane_b32 s44, v{V_STAMP}, 0
    v_lshlrev_b32 v4, 2, v{V_LANE}
    s_waitcnt lgkmcnt(0)
    v_subrev_u32 v5, s44, v{V_STAMP}
    v_cmp_gt_u32 vcc, 16, v{V_LANE}
    s_and_saveexec_b64 s[{S_EX}:{S_EX+1}], vcc
    global_store_dword v4, v5, s[42:43]
    s_mov_b64 exec, s[{S_EX}:{S_EX+1}]""")
    elif O.stamp:
        A('    s_waitcnt vmcnt(0)')
        A.stamp('end')
        A(f"""    s_lshl_b32 s42, s{S_WG}, 2
    s_add_u32 s42, s42, s{S_WAVE}
    s_lshl_b32 s42, s42, 8
    s_add_u32 s42, s42, {WS_STAMP}
    v_lshlrev_b32 v4, 2, v{V_LANE}
    v_add_u32 v4, s42, v4
    global_store_dword v4, v{V_STAMP}, s[{S_WS}:{S_WS+1}]""")
    A('K_END:')
    A('    s_endpgm')
    assert Stream.nxt >= 27
    return A

def build():
    A = build_kernel()
    txt = A.text()
    for p in check_hazards(txt): print('HAZARD', p, file=sys.stderr)
    ref = open('standalone__detection_seg_dino__vision.s.ref').read().split('\n')
    top = [l for l in ref if l.startswith(';') and '@launch' not in l and 'Override launch' not in l and 'grid=ceil' not in l][:12]
    out = '\n'.join(top) + '\n'
    out += f'; @launch grid=(256,1,1) block=(256,1,1) lds={LDS_BYTES}\n'
    out += '.amdgcn_target "amdgcn-amd-amdhsa--gfx950"\n' + txt
    out += f""".section .rodata,"a"
.p2align 6
.amdhsa_kernel {NAME}
  .amdhsa_next_free_vgpr {256 + NACC}
  .amdhsa_next_free_sgpr 96
  .amdhsa_accum_offset 256
  .amdhsa_group_segment_fixed_size 0
  .amdhsa_kernarg_size 80
  .amdhsa_user_sgpr_count 2
  .amdhsa_user_sgpr_kernarg_segment_ptr 1
  .amdhsa_system_sgpr_workgroup_id_x 1
  .amdhsa_float_denorm_mode_32 3
.end_amdhsa_kernel
"""
    return out, A.labels

if __name__ == '__main__':
    path = sys.argv[1]
    for o in (sys.argv[2].split(',') if len(sys.argv) > 2 else []):
        if o == 'stamp': O.stamp = True
        elif o == 'plain': O.nt = ''
        elif o == 'nodefer': O.defer = False
        elif o == 'nocpf': O.cpf = False
        elif o.startswith('s1early='): O.s1early = int(o[8:])
        elif o.startswith('s2q='): O.s2q = int(o[4:])
        elif o == 'qtouch': O.qtouch = True
        elif o.startswith('na='): O.na = int(o[3:])
        elif o == 'latef': O.earlyf = False
        elif o.startswith('rthr='): O.rthr = int(o[5:])
        elif o.startswith('s2n='): O.s2n = int(o[4:])
        elif o.startswith('dbg='): O.stamp = True; O.dbgwg = int(o[4:]); O.dbg = ['entry','issued','head','A0','A1','A2','Qk','B0','B4','B8','pub','R_ml','R_done','G2_in','G_done','end']
        elif o == 's1mid': O.s1mid = True
        elif o == 'eager': O.lazy = False
        elif o.startswith('q0='): O.q0 = int(o[3:])
        elif o == 'rcomb': O.rcomb = True
        elif o.startswith('hold='): O.hold = int(o[5:])
        elif o.startswith('s2mode='): O.s2mode = o[7:]
        elif o == 's2drain': O.s2drain = True
        elif o == 'touch': O.touch = True
        elif o.startswith('fine='): O.fine = int(o[5:])
        elif o.startswith('qa='): O.qa = int(o[3:])
        elif o.startswith('s2att='): O.s2att = int(o[6:])
        elif o.startswith('qb='): O.qb = int(o[3:])
        elif o.startswith('att='): O.attempt = o[4:]
        elif o.startswith('extra='): O.extra = int(o[6:])
        elif o.startswith('l0='): O.l0 = int(o[3:])
        elif o.startswith('raise='): O.raise_at = o[6:]
        elif o.startswith('sched='): O.sched = o[6:].replace('-', ' ')
    out, labels = build()
    open(path, 'w').write(out)
    if O.stamp: open(path + '.labels', 'w').write(','.join(labels))
    print('wrote', path, len(out), 'bytes;', out.count('\n'), 'lines')
```

```python
import sys, struct, math
from asmlib import *

def f2u(x): return struct.unpack('<I', struct.pack('<f', x))[0]
def lit(x): return f'0x{f2u(x):08x}'
NAME = 'standalone__detection_seg_dino__vision_kernel'

class Opt:
    stamp = False
    nt = ' nt'
    extra = 0
    earlyf = True
    rthr = 0
    s2n = 2
    dbg = None
    dbgwg = 28
    s1mid = False
    lazy = True
    q0 = 3
    rcomb = False
    hold = 0
    s2mode = 'spin0'
    s2drain = True
    cpf = True
    touch = False
    wsoff = 0
    fine = -1
    defer = True
    s2att = 1
    qa = 2
    qb = 1
    spread = True
    l0 = 2
    raise_at = 'A2'
    attempt = 'A2b'
    sched = 'B0 A3 B1 B2 A4 B3 B4 A5 B5 A6 B6 A7 B7 A8 B8'
O = Opt()

WS_EPOCH = 0x0
WS_QG    = 0x1000
WS_QKG   = 0x8000
WS_CTXN  = 0x10000
WS_CTX   = 0x18000
WS_ML    = 0x20000
WS_PART  = 0x100000
WS_STAMP = 0x800000
SEL_LO, SEL_HI = 0x00003F80, 0x3F800000

RAW = [8, 68]
V_T   = 128
V_STG = 152
V_O   = 160
V_S, V_R, V_G, V_D = 184, 188, 192, 196
V_P   = 200
V_MREF, V_L, V_SQ, V_ONEF, V_EPS = 202, 203, 204, 205, 206
V_F0OFF, V_F1OFF = 207, 208
V_LDSW, V_LDSR0, V_LDSR1, V_LDSF = 209, 210, 211, 212
V_PW, V_PR, V_MB, V_LANE = 213, 214, 215, 216
V_CW, V_CR0, V_CR1, V_CF = 217, 218, 219, 220
V_U = 221
V_FW, V_FR = 254, 255
V_GA = 222
V_L16 = 223
V_GB = 224
V_Q = 248
V_STAMP = 253
A_QK, A_X, A_F, A_P, A_ONES, A_W = 0, 48, 96, 144, 152, 156
NACC = 180
S_F0, S_F1, S_WS = 4, 6, 8
S_BSET = [10, 44]
S_WAVE, S_WG, S_T = 16, 17, 19
S_SELLO, S_SELHI, S_C384 = 20, 21, 23
S_MASK = 26
S_TMP = 34
S_TAG, S_EPOCH, S_ROLE, S_JOB = 50, 51, 52, 53
S_Q, S_OUT = 54, 58
S_SPIN = 60
S_THR = 61
S_EX = 62
S_WQ, S_WK, S_WV, S_WO = 64, 66, 68, 70
R_NONE, R_S1, R_S2, R_G1, R_G2, R_R = 0, 1, 2, 3, 4, 5
SPIN_MAX = 1 << 18
SLOT = 49152
L_QKL  = 3 * SLOT
L_PBUF = L_QKL + 12288
L_MBUF = L_PBUF + 2048
L_LBUF = L_MBUF + 64
L_FLAG = L_LBUF + 512
LDS_BYTES = L_FLAG + 1024
assert LDS_BYTES <= 163840
L_HEAD = 2 * SLOT
L_STAT = L_HEAD + 6144
L_RED_H = L_HEAD
L_TR   = SLOT
L_RED_T = SLOT + 4608
L_RB   = 0

class Gen(Asm):
    def __init__(self):
        super().__init__()
        self.vm = []
        self.uid = 0
        self.nstamp = 0
        self.labels = []
        self.done = set()
    def vmop(self, line, tag):
        self(line); self.vm.append(tag)
    def vmwait(self, tag):
        hits = [i for i, t in enumerate(self.vm) if t == tag]
        if not hits:
            assert tag in self.done, tag
            return
        idx = hits[-1]
        self.done.update(self.vm[:idx + 1])
        n = len(self.vm) - 1 - idx
        assert n <= 63, n
        self(f'    s_waitcnt vmcnt({n})')
        self.vm = self.vm[idx + 1:]
    def vmall(self):
        self('    s_waitcnt vmcnt(0)'); self.vm = []
    def label(self, base):
        self.uid += 1
        return f'{base}_{self.uid}'
    def stamp(self, name):
        if not O.stamp: return
        if O.dbg and name not in O.dbg: return
        idx = len(self.labels)
        assert idx < 64
        self.labels.append(name)
        self('    s_memrealtime s[40:41]')
        self('    s_waitcnt lgkmcnt(0)')
        self(f'    v_writelane_b32 v{V_STAMP}, s40, {idx}')

def xgroup_reduce(A, op, v, t):
    A(f'    v_mov_b32 v{t}, v{v}')
    A.nop(2)
    A(f'    v_permlane32_swap_b32 v{t}, v{v}')
    A(f'    {op} v{v}, v{v}, v{t}')
    A(f'    v_mov_b32 v{t}, v{v}')
    A.nop(2)
    A(f'    v_permlane16_swap_b32 v{t}, v{v}')
    A(f'    {op} v{v}, v{v}, v{t}')

def multi_xgroup(A, op, vs, ts):
    for sw in ('32', '16'):
        for v, t in zip(vs, ts): A(f'    v_mov_b32 v{t}, v{v}')
        if len(vs) < 3: A.nop(3 - len(vs))
        for v, t in zip(vs, ts): A(f'    v_permlane{sw}_swap_b32 v{t}, v{v}')
        for v, t in zip(vs, ts): A(f'    {op} v{v}, v{v}, v{t}')

def multi_row(A, op, vs, rots=(8, 4, 2, 1)):
    for rot in rots:
        if len(vs) < 3: A.nop(3 - len(vs))
        for v in vs: A(f'    {op}_dpp v{v}, v{v}, v{v} row_ror:{rot} row_mask:0xf bank_mask:0xf')

def tile_bases(A, u):
    S_B0 = S_BSET[u]; S_B1 = S_B0 + 2; S_BF = S_B0 + 4
    A(f'''    s_mul_hi_u32 s{S_TMP}, s{S_T}, 89478486
    s_mul_i32 s{S_TMP+1}, s{S_TMP}, 48
    s_sub_u32 s{S_TMP+1}, s{S_T}, s{S_TMP+1}
    s_mul_i32 s{S_TMP}, s{S_TMP}, 589824
    s_mul_i32 s{S_TMP+1}, s{S_TMP+1}, 6144
    s_add_u32 s{S_TMP}, s{S_TMP}, s{S_TMP+1}
    s_add_u32 s{S_B0}, s{S_F0}, s{S_TMP}
    s_addc_u32 s{S_B0+1}, s{S_F0+1}, 0
    s_add_u32 s{S_B1}, s{S_B0}, 294912
    s_addc_u32 s{S_B1+1}, s{S_B0+1}, 0
    s_mul_i32 s{S_TMP}, s{S_T}, 3072
    s_add_u32 s{S_BF}, s{S_F1}, s{S_TMP}
    s_addc_u32 s{S_BF+1}, s{S_F1+1}, 0
    s_add_u32 s{S_T}, s{S_T}, 4''')

def issue_item(A, j):
    if j > 26: return
    tile, third = divmod(j, 3); u = tile & 1
    if third == 0 and j > 0: tile_bases(A, u)
    S_B0 = S_BSET[u]; S_B1 = S_B0 + 2; S_BF = S_B0 + 4
    b = RAW[u]
    r = b + 48 + 4 * third
    A.vmop(f'    global_load_dwordx4 v[{r}:{r+3}], v{V_F1OFF}, s[{S_BF}:{S_BF+1}] offset:{third*256}{O.nt}', f'item{j}')
    for jj in range(4):
        dy, dx = jj >> 1, jj & 1
        r = b + 16 * third + 4 * jj
        base = S_B1 if dy else S_B0
        A.vmop(f'    global_load_dwordx4 v[{r}:{r+3}], v{V_F0OFF}, s[{base}:{base+1}] offset:{dx*768+third*256}{O.nt}', f'item{j}')

class Stream:
    nxt = 0
    done = 0
    pend = []
def enqueue(A, n=1):
    for _ in range(n):
        if Stream.nxt <= 26 and Stream.nxt < Stream.done + 6:
            Stream.pend += item_steps(A)
def pop(n=1):
    for _ in range(n):
        if Stream.pend: Stream.pend.pop(0)()
def flush_pend():
    pop(len(Stream.pend))
def issue_next(A, n=1):
    for _ in range(n):
        issue_item(A, Stream.nxt); Stream.nxt += 1

def item_steps(A):
    j = Stream.nxt; Stream.nxt += 1
    if j > 26: return []
    tile, third = divmod(j, 3); u = tile & 1
    S_B0 = S_BSET[u]; S_B1 = S_B0 + 2; S_BF = S_B0 + 4
    b = RAW[u]
    steps = []
    def first():
        if third == 0: tile_bases(A, u)
        r = b + 48 + 4 * third
        A.vmop(f'    global_load_dwordx4 v[{r}:{r+3}], v{V_F1OFF}, s[{S_BF}:{S_BF+1}] offset:{third*256}{O.nt}', f'item{j}')
    steps.append(first)
    for jj in range(4):
        def f(jj=jj):
            dy, dx = jj >> 1, jj & 1
            r = b + 16 * third + 4 * jj
            base = S_B1 if dy else S_B0
            A.vmop(f'    global_load_dwordx4 v[{r}:{r+3}], v{V_F0OFF}, s[{base}:{base+1}] offset:{dx*768+third*256}{O.nt}', f'item{j}')
        steps.append(f)
    return steps

def stage_A(A, k, hooks=None, quota=3, stamp=True):
    hooks = hooks or {}
    u = k & 1; b = RAW[u]; T = V_T
    A(f'    v_add_u32 v{V_CW}, {(k % 3) * SLOT}, v{V_LDSW}')
    if PV.pending: A('    s_waitcnt lgkmcnt(0)')
    units = [(third, dd) for third in range(3) for dd in range(4)]
    def tset(i): return T + 10 * (i & 1)
    def U(i):
        third, dd = units[i]; t = tset(i); f1 = b + 48 + 4 * third + dd
        return [f'    v_lshlrev_b32 v{t+8}, 16, v{f1}', f'    v_and_b32 v{t+9}, 0xffff0000, v{f1}']
    def D(i):
        third, dd = units[i]; t = tset(i)
        return ([f'    v_dot2_f32_bf16 v{t+j}, v{b+16*third+4*j+dd}, s{S_SELLO}, v{t+8}' for j in range(4)] +
                [f'    v_dot2_f32_bf16 v{t+4+j}, v{b+16*third+4*j+dd}, s{S_SELHI}, v{t+9}' for j in range(4)])
    def C(i):
        t = tset(i); o = V_STG + 4 * (i & 1)
        return [f'    v_cvt_pk_bf16_f32 v{o+kk}, v{t+2*kk}, v{t+2*kk+1}' for kk in range(4)]
    def W(i):
        third, dd = units[i]; o = V_STG + 4 * (i & 1)
        return f'    ds_write_b128 v{V_CW}, v[{o}:{o+3}] offset:{(third*4+dd)*1024}'
    enq = {0: 1, 4: 1, 8: 1} if quota == 3 else ({0: 1, 6: 1} if quota == 2 else ({0: 1} if quota == 1 else {}))
    def ensure(j):
        while any(True for _ in Stream.pend) and f'item{j}' not in A.done and A.vm.count(f'item{j}') < 5: pop()
        while Stream.nxt <= j: Stream.pend += item_steps(A); flush_pend()
    ensure(3 * k); A.vmwait(f'item{3*k}')
    enqueue(A, enq.get(0, 0))
    u0 = U(0); d0 = D(0)
    for l in u0 + d0[:4]: A(l)
    pop()
    for l in d0[4:]: A(l)
    for i in range(1, 12):
        if i % 4 == 0:
            Stream.done = 3 * k + i // 4
            ensure(3 * k + i // 4); A.vmwait(f'item{3*k + i//4}')
        enqueue(A, enq.get(i, 0))
        for l in U(i): A(l)
        if quota == 3 and i % 4 in (0, 2): pop()
        d = D(i); c = C(i - 1)
        for kk in range(4):
            A(d[kk]); A(c[kk])
        pv_pop(A, 2)
        A(W(i - 1))
        pop()
        for kk in range(4, 8): A(d[kk])
        if i % 4 == 3 and (i // 4) in hooks: hooks[i // 4]()
    Stream.done = 3 * k + 3
    flush_pend()
    A.nop(1)
    for l in C(11): A(l)
    pv_flush(A)
    A(W(11))
    if stamp: A.stamp(f'A{k}')

class PV:
    pending = []
def pv_steps():
    out = []
    for wp in range(4):
        for third in range(3):
            for e1 in range(2):
                f = A_F + (wp * 3 + third) * 4 + 2 * e1
                o = V_O + (third * 2 + e1) * 4
                out.append(f'    v_mfma_f32_16x16x16_bf16 v[{o}:{o+3}], a[{f}:{f+1}], a[{A_P+2*wp}:{A_P+2*wp+1}], v[{o}:{o+3}]')
    return out
def pv_pop(A, n=1):
    for _ in range(n):
        if PV.pending: A(PV.pending.pop(0))
def pv_flush(A):
    pv_pop(A, len(PV.pending))

def f_reads(A):
    for wp in range(4):
        for third in range(3):
            r = A_F + (wp * 3 + third) * 4
            A(f'    ds_read_b128 a[{r}:{r+3}], v{V_CF} offset:{wp*12288 + third*4096}')
def p_reads(A):
    for wp in range(4):
        A(f'    ds_read_b64 a[{A_P+2*wp}:{A_P+2*wp+1}], v{V_PR} offset:{wp*512}')

def eager_softmax(A, k, strict, fine):
    T = V_T
    for r in range(4):
        A(f'    v_fma_f32 v{V_S+r}, -v{V_R+r}, v{V_SQ}, v{V_S+r}')
    for r in range(4):
        A(f'    v_mul_f32 v{V_S+r}, v{V_S+r}, v{V_D+r}')
    A(f'    v_max3_f32 v{T}, v{V_S}, v{V_S+1}, v{V_S+2}')
    A(f'    v_max_f32 v{T}, v{T}, v{V_S+3}')
    if fine: A.stamp('b_z')
    A(f'    ds_max_f32 v{V_MB}, v{T}')
    A('    s_waitcnt lgkmcnt(0)')
    if fine: A.stamp('b_pre1')
    A('    s_barrier')
    if fine: A.stamp('b_post1')
    A(f'    ds_read_b32 v{T+1}, v{V_MB}')
    A('    s_waitcnt lgkmcnt(0)')
    if fine: A.stamp('b_m(+F)')
    A(f'    v_sub_f32 v{T+2}, v{V_MREF}, v{T+1}')
    for r in range(4):
        A(f'    v_sub_f32 v{V_S+r}, v{V_S+r}, v{T+1}')
    A(f'    v_exp_f32 v{T+2}, v{T+2}')
    for r in range(4):
        A(f'    v_exp_f32 v{V_S+r}, v{V_S+r}')
    A(f'    v_mov_b32 v{V_MREF}, v{T+1}')
    for r in range(4):
        A(f'    v_mul_f32 v{T+4+r}, v{V_S+r}, v{V_D+r}')
    A(f'    v_add_f32 v{V_S}, v{V_S}, v{V_S+1}')
    A(f'    v_cvt_pk_bf16_f32 v{V_P}, v{T+4}, v{T+5}')
    A(f'    v_cvt_pk_bf16_f32 v{V_P+1}, v{T+6}, v{T+7}')
    A(f'    v_add_f32 v{V_S+2}, v{V_S+2}, v{V_S+3}')
    A(f'    ds_write_b64 v{V_PW}, v[{V_P}:{V_P+1}]')
    for wp in range(4):
        for third in range(3):
            r = A_F + (wp * 3 + third) * 4
            A(f'    ds_read_b128 a[{r}:{r+3}], v{V_CF} offset:{wp*12288 + third*4096}')
    A(f'    v_add_f32 v{V_S}, v{V_S}, v{V_S+2}')
    A(f'    v_fma_f32 v{V_L}, v{V_L}, v{T+2}, v{V_S}')
    A(f'    v_mul_f32 v{V_U}, v{V_U}, v{T+2}')
    A(f'    v_lshlrev_b32 v{T+4}, 16, v{V_P}')
    A(f'    v_and_b32 v{T+5}, 0xffff0000, v{V_P}')
    A(f'    v_lshlrev_b32 v{T+6}, 16, v{V_P+1}')
    A(f'    v_and_b32 v{T+7}, 0xffff0000, v{V_P+1}')
    for r in range(4):
        A(f'    v_fmac_f32 v{V_U}, v{T+4+r}, v{V_R+r}')
    for kk in range(0, 24, 2):
        A(f'    v_pk_mul_f32 v[{V_O+kk}:{V_O+kk+1}], v[{V_O+kk}:{V_O+kk+1}], v[{T+2}:{T+3}] op_sel_hi:[1,0]')
    if fine: A.stamp('b_P')
    A(f'    s_waitcnt lgkmcnt({0 if strict else 12})')
    A('    s_barrier')
    if fine: A.stamp('b_post2')
    for wp in range(4):
        A(f'    ds_read_b64 a[{A_P+2*wp}:{A_P+2*wp+1}], v{V_PR} offset:{wp*512}')

def lazy_softmax(A, k, strict, fine, early=False):
    T = V_T; AR = T + 8; PP = T + 4; DL = T + 12; DU = T + 13
    slow = A.label('BS'); join = A.label('BJ')
    def p_from_args():
        for r in range(4): A(f'    v_exp_f32 v{AR+r}, v{AR+r}')
        A('    s_nop 0')
        for r in range(0, 4, 2):
            A(f'    v_pk_mul_f32 v[{PP+r}:{PP+r+1}], v[{AR+r}:{AR+r+1}], v[{V_D+r}:{V_D+r+1}]')
        A(f'    v_cvt_pk_bf16_f32 v{V_P}, v{PP}, v{PP+1}')
        A(f'    v_cvt_pk_bf16_f32 v{V_P+1}, v{PP+2}, v{PP+3}')
        A(f'    ds_write_b64 v{V_PW}, v[{V_P}:{V_P+1}]')
    def increments():
        A(f'    v_add_f32 v{AR}, v{AR}, v{AR+1}')
        A(f'    v_add_f32 v{AR+2}, v{AR+2}, v{AR+3}')
        A(f'    v_lshlrev_b32 v{PP}, 16, v{V_P}')
        A(f'    v_and_b32 v{PP+1}, 0xffff0000, v{V_P}')
        A(f'    v_lshlrev_b32 v{PP+2}, 16, v{V_P+1}')
        A(f'    v_and_b32 v{PP+3}, 0xffff0000, v{V_P+1}')
        A(f'    v_add_f32 v{DL}, v{AR}, v{AR+2}')
        A(f'    v_mul_f32 v{DU}, v{PP}, v{V_R}')
        A(f'    v_mul_f32 v{PP}, v{PP+1}, v{V_R+1}')
        A(f'    v_fmac_f32 v{DU}, v{PP+2}, v{V_R+2}')
        A(f'    v_fmac_f32 v{PP}, v{PP+3}, v{V_R+3}')
        A(f'    v_add_f32 v{DU}, v{DU}, v{PP}')
    for r in range(0, 4, 2):
        A(f'    v_pk_fma_f32 v[{V_S+r}:{V_S+r+1}], v[{V_R+r}:{V_R+r+1}], v[{V_SQ}:{V_SQ+1}], v[{V_S+r}:{V_S+r+1}] op_sel_hi:[1,0,1] neg_lo:[1,0,0] neg_hi:[1,0,0]')
    for r in range(0, 4, 2):
        A(f'    v_pk_fma_f32 v[{AR+r}:{AR+r+1}], v[{V_S+r}:{V_S+r+1}], v[{V_D+r}:{V_D+r+1}], v[{V_MREF}:{V_MREF+1}] op_sel_hi:[1,1,0] neg_lo:[0,0,1] neg_hi:[0,0,1]')
    A(f'    v_max3_f32 v{T}, v{AR}, v{AR+1}, v{AR+2}')
    A(f'    v_max_f32 v{T}, v{T}, v{AR+3}')
    A(f'    v_cmp_lt_f32 vcc, s{S_THR}, v{T}')
    if fine: A.stamp('b_z')
    p_from_args()
    A(f'    v_cndmask_b32 v{T}, 0, 1, vcc')
    A(f'    ds_write_b32 v{V_FW}, v{T}')
    increments()
    if fine: A.stamp('b_P')
    A('    s_waitcnt lgkmcnt(0)')
    A('    s_barrier')
    if fine: A.stamp('b_post')
    A(f'    ds_read_b128 v[{T}:{T+3}], v{V_FR}')
    p_reads(A)
    if early:
        A('    s_waitcnt lgkmcnt(4)')
    else:
        f_reads(A)
        A('    s_waitcnt lgkmcnt(15)')
    A(f'    v_or3_b32 v{T}, v{T}, v{T+1}, v{T+2}')
    A(f'    v_or_b32 v{T}, v{T}, v{T+3}')
    A(f'    v_cmp_ne_u32 vcc, 0, v{T}')
    A(f'    s_cbranch_vccz {join}')
    for r in range(4): A(f'    v_mul_f32 v{AR+r}, v{V_S+r}, v{V_D+r}')
    A(f'    v_max3_f32 v{T}, v{AR}, v{AR+1}, v{AR+2}')
    A(f'    v_max_f32 v{T}, v{T}, v{AR+3}')
    A(f'    ds_max_f32 v{V_MB}, v{T}')
    A('    s_waitcnt lgkmcnt(0)')
    A('    s_barrier')
    A(f'    ds_read_b32 v{T+1}, v{V_MB}')
    A('    s_waitcnt lgkmcnt(0)')
    A(f'    v_sub_f32 v{T+2}, v{V_MREF}, v{T+1}')
    for r in range(4): A(f'    v_sub_f32 v{AR+r}, v{AR+r}, v{T+1}')
    A(f'    v_exp_f32 v{T+2}, v{T+2}')
    A(f'    v_mov_b32 v{V_MREF}, v{T+1}')
    p_from_args()
    A(f'    v_mul_f32 v{V_L}, v{V_L}, v{T+2}')
    A(f'    v_mul_f32 v{V_U}, v{V_U}, v{T+2}')
    for kk in range(0, 24, 2):
        A(f'    v_pk_mul_f32 v[{V_O+kk}:{V_O+kk+1}], v[{V_O+kk}:{V_O+kk+1}], v[{T+2}:{T+3}] op_sel_hi:[1,0]')
    increments()
    A('    s_waitcnt lgkmcnt(0)')
    A('    s_barrier')
    p_reads(A)
    A(f'{join}:')
    A(f'    v_add_f32 v{V_L}, v{V_L}, v{DL}')
    A(f'    v_add_f32 v{V_U}, v{V_U}, v{DU}')
    if strict and k != 8:
        A('    s_waitcnt lgkmcnt(0)')
        A('    s_barrier')

def stage_B(A, k, quota=1, defer=True, strict=True, fresh=True):
    T = V_T; so = (k % 3) * SLOT
    early = O.earlyf and O.lazy
    enqueue(A, quota)
    A(f'    v_add_u32 v{V_CR0}, {so}, v{V_LDSR0}')
    A(f'    v_add_u32 v{V_CR1}, {so}, v{V_LDSR1}')
    A(f'    v_add_u32 v{V_CF}, {so}, v{V_LDSF}')
    if PV.pending or (early and fresh): A('    s_waitcnt lgkmcnt(0)')
    if early and fresh: A('    s_barrier')
    n = 0
    for bb in range(12):
        for a2 in range(2):
            r = A_X + 4 * bb + 2 * a2
            A(f'    ds_read_b64_tr_b16 a[{r}:{r+1}], v{V_CR0+a2} offset:{bb*1024}')
            n += 1
            pv_pop(A)
    pv_flush(A)
    fine = (O.fine == k)
    if fine: A.stamp('b_tr')
    def X(bb): return f'a[{A_X+4*bb}:{A_X+4*bb+3}]'
    def G(bb): A(f'    v_mfma_f32_16x16x32_bf16 v[{V_G}:{V_G+3}], {X(bb)}, {X(bb)}, ' + ('0' if bb == 0 else f'v[{V_G}:{V_G+3}]'))
    def R(bb): A(f'    v_mfma_f32_16x16x32_bf16 v[{V_R}:{V_R+3}], {X(bb)}, a[{A_ONES}:{A_ONES+3}], ' + ('0' if bb == 0 else f'v[{V_R}:{V_R+3}]'))
    def S(bb): A(f'    v_mfma_f32_16x16x32_bf16 v[{V_S}:{V_S+3}], {X(bb)}, a[{A_QK+4*bb}:{A_QK+4*bb+3}], ' + ('0' if bb == 0 else f'v[{V_S}:{V_S+3}]'))
    fl = []
    if early:
        for wp in range(4):
            for third in range(3):
                r = A_F + (wp * 3 + third) * 4
                fl.append(f'    ds_read_b128 a[{r}:{r+3}], v{V_CF} offset:{wp*12288 + third*4096}')
    nf = 0
    for bb in range(12):
        if bb % 3 == 0:
            A(f'    s_waitcnt lgkmcnt({min(15, 24 - 2*(bb+3) + nf)})')
        G(bb)
        if fl: A(fl.pop(0)); nf += 1
        if bb % 2 == 1 and bb < 11: pop()
    flush_pend()
    if fine: A.stamp('b_G')
    for bb in range(8): R(bb)
    for r in range(4):
        src0 = '0' if r == 0 else f'v{T}'
        A(f'    v_cndmask_b32 v{T}, {src0}, v{V_G+r}, s[{S_MASK+2*r}:{S_MASK+2*r+1}]')
        R(8 + r)
    S(0)
    A(f'    v_mfma_f32_16x16x4_f32 v[{V_D}:{V_D+3}], v{T}, v{V_ONEF}, 0')
    for bb in range(1, 7): S(bb)
    for r in range(4):
        A(f'    v_mul_f32 v{V_R+r}, s{S_C384}, v{V_R+r}')
        S(7 + r)
    for r in range(4):
        A(f'    v_fma_f32 v{T+r}, -v{V_R+r}, v{V_R+r}, v{V_EPS}')
        if r == 1: S(11)
    for r in range(4):
        A(f'    v_fma_f32 v{V_D+r}, v{V_D+r}, s{S_C384}, v{T+r}')
    for r in range(4):
        A(f'    v_rsq_f32 v{V_D+r}, v{V_D+r}')
    if O.lazy:
        lazy_softmax(A, k, strict and not early, fine, early)
    else:
        eager_softmax(A, k, strict, fine)
    PV.pending = pv_steps()
    if not defer:
        A('    s_waitcnt lgkmcnt(0)')
        pv_flush(A)
    A.stamp(f'B{k}')

def gather_addr(A, ws_off):
    A(f'    s_mul_i32 s{S_TMP}, s{S_WAVE}, 6144')
    A(f'    s_add_u32 s{S_TMP}, s{S_TMP}, {ws_off + 2048}')
    A(f'    v_add_u32 v{V_GA}, s{S_TMP}, v{V_L16}')

def gather_issue(A, track=None):
    for kk in range(3):
        for h in range(2):
            r = V_GB + 8 * kk + 4 * h
            line = f'    global_load_dwordx4 v[{r}:{r+3}], v{V_GA}, s[{S_WS}:{S_WS+1}] offset:{kk*2048 + h*1024 - 2048} sc1'
            if track: A.vmop(line, track)
            else: A(line)

def gather_check(A):
    T = V_T
    for kk in range(3):
        A(f'    v_xor_b32 v{T+2*kk}, s{S_TAG}, v{V_GB+8*kk}')
        A(f'    v_xor_b32 v{T+2*kk+1}, s{S_TAG}, v{V_GB+8*kk+6}')
    A(f'    v_or3_b32 v{T}, v{T}, v{T+1}, v{T+2}')
    A(f'    v_or3_b32 v{T+3}, v{T+3}, v{T+4}, v{T+5}')
    A(f'    v_or_b32 v{T}, v{T}, v{T+3}')
    A(f'    v_cmp_ne_u32 vcc, 0, v{T}')

def spin_guard(A, lbl_retry):
    A(f'    s_add_u32 s{S_SPIN}, s{S_SPIN}, 1')
    A(f'    s_cmp_lt_u32 s{S_SPIN}, {SPIN_MAX}')
    A(f'    s_cbranch_scc0 K_END')
    A(f'    s_sleep 1')

def gather_loop(A):
    l = A.label('GL'); d = A.label('GD')
    A(f'{l}:')
    gather_issue(A)
    A('    s_waitcnt vmcnt(0)')
    gather_check(A)
    A(f'    s_cbranch_vccz {d}')
    spin_guard(A, l)
    A(f'    s_branch {l}')
    A(f'{d}:')

def publish8(A, dreg, ws_off_sgpr):
    A(f'    v_mov_b32 v{dreg}, s{S_TAG}')
    A(f'    v_mov_b32 v{dreg+1}, 0')
    A(f'    v_mov_b32 v{dreg+6}, s{S_TAG}')
    A(f'    v_mov_b32 v{dreg+7}, 0')
    A(f'    v_add_u32 v1, s{ws_off_sgpr}, v{V_L16}')
    A(f'    global_store_dwordx4 v1, v[{dreg}:{dreg+3}], s[{S_WS}:{S_WS+1}] sc1')
    A(f'    global_store_dwordx4 v1, v[{dreg+4}:{dreg+7}], s[{S_WS}:{S_WS+1}] offset:1024 sc1')

def slab_addr(A, perm):
    A(f'''    v_lshrrev_b32 v1, 2, v{V_LANE}
    s_mul_i32 s{S_TMP}, s{S_WAVE}, 96
    v_add_u32 v1, s{S_TMP}, v1            ; p (x = 0)
    v_and_b32 v{V_T}, 3, v{V_LANE}
    v_lshlrev_b32 v{V_T}, 4, v{V_T}
    s_lshl_b32 s{S_TMP}, s{S_JOB}, 6
    v_add_u32 v{V_T}, s{S_TMP}, v{V_T}''')
    for x in range(6):
        d = 2 + x
        if not perm:
            A(f'    v_add_u32 v{d}, {16*x}, v1')
        else:
            t = V_T + 1; kk = x >> 1
            A(f"""    v_lshrrev_b32 v{t}, 2, v{V_LANE}
    v_add_u32 v{t}, {16*(x&1)}, v{t}          ; p & 31
    v_bfe_u32 v{t+1}, v{t}, 1, 2              ; dw
    v_cmp_eq_u32 vcc, 3, v{t+1}
    v_lshlrev_b32 v{t+1}, 7, v{t+1}
    v_add_u32 v{t+1}, {32*kk}, v{t+1}
    v_mov_b32 v{t+2}, {kk*128 + 96}
    v_cndmask_b32 v{t+1}, v{t+1}, v{t+2}, vcc
    v_lshrrev_b32 v{t+2}, 3, v{t}
    v_lshlrev_b32 v{t+2}, 3, v{t+2}           ; 8g
    v_and_b32 v{t}, 1, v{t}
    v_add3_u32 v{t+1}, v{t+1}, v{t+2}, v{t}
    s_lshl_b32 s{S_TMP+1}, s{S_WAVE}, 1
    v_add_u32 v{d}, s{S_TMP+1}, v{t+1}""")
        A(f'    v_mul_u32_u24 v{d}, 768, v{d}')
        A(f'    v_add_u32 v{d}, v{d}, v{V_T}')

def slab_loads(A, sptr, dst, track=None):
    for x in range(6):
        line = f'    global_load_dwordx4 v[{dst+4*x}:{dst+4*x+3}], v{2+x}, s[{sptr}:{sptr+1}]'
        if track: A.vmop(line, track)
        else: A(line)

def slab_to_operands(A, src, lds_base):
    A(f'''    s_mul_i32 s{S_TMP}, s{S_WAVE}, 12288
    s_add_u32 s{S_TMP}, s{S_TMP}, {lds_base}
    v_add_u32 v1, s{S_TMP}, v{V_L16}''')
    for x in range(6):
        A(f'    ds_write_b128 v1, v[{src+4*x}:{src+4*x+3}] offset:{x*1024}')
    A(f'''    v_lshrrev_b32 v2, 4, v{V_LANE}
    v_lshlrev_b32 v2, 9, v2               ; g*512
    v_bfe_u32 v3, v{V_LANE}, 2, 2
    v_lshlrev_b32 v3, 6, v3               ; r*64
    v_and_b32 v4, 3, v{V_LANE}
    v_lshlrev_b32 v4, 4, v4               ; c*16
    v_add3_u32 v2, v2, v3, v4
    v_add_u32 v2, s{S_TMP}, v2''')
    for kk in range(3):
        for tb in range(2):
            for hf in range(2):
                r = A_W + (kk * 2 + tb) * 4 + 2 * hf
                A(f'    ds_read_b64_tr_b16 a[{r}:{r+1}], v2 offset:{kk*2048 + hf*256 + tb*8}')

def gemm6(A, bregs):
    for kk in range(3):
        for tb in range(2):
            d = V_S if tb == 0 else V_R
            c = '0' if kk == 0 else f'v[{d}:{d+3}]'
            w = A_W + (kk * 2 + tb) * 4
            A(f'    v_mfma_f32_16x16x32_bf16 v[{d}:{d+3}], a[{w}:{w+3}], {bregs(kk)}, {c}')

def cross_wave_sum(A, red):
    skip = A.label('XW'); w0 = A.label('XW0')
    A.nop(8)
    A(f'''    s_cmp_eq_u32 s{S_WAVE}, 0
    s_cbranch_scc1 {w0}
    s_sub_u32 s{S_TMP}, s{S_WAVE}, 1
    s_lshl_b32 s{S_TMP}, s{S_TMP}, 11
    s_add_u32 s{S_TMP}, s{S_TMP}, {red}
    v_add_u32 v1, s{S_TMP}, v{V_L16}
    ds_write_b128 v1, v[{V_S}:{V_S+3}]
    ds_write_b128 v1, v[{V_R}:{V_R+3}] offset:1024
    s_waitcnt lgkmcnt(0)
{w0}:
    s_barrier
    s_cmp_eq_u32 s{S_WAVE}, 0
    s_cbranch_scc0 {skip}
    v_add_u32 v1, {red}, v{V_L16}''')
    T = V_T
    for w in range(3):
        A(f'    ds_read_b128 v[{T+8*w}:{T+8*w+3}], v1 offset:{w*2048}')
        A(f'    ds_read_b128 v[{T+8*w+4}:{T+8*w+7}], v1 offset:{w*2048+1024}')
    for w in range(3):
        A(f'    s_waitcnt lgkmcnt({4 - 2*w})')
        for r in range(4):
            A(f'    v_add_f32 v{V_S+r}, v{V_S+r}, v{T+8*w+r}')
        for r in range(4):
            A(f'    v_add_f32 v{V_R+r}, v{V_R+r}, v{T+8*w+4+r}')
    return skip

def cross_wave_sum4(A, red):
    skip = A.label('XV'); w0 = A.label('XV0')
    A.nop(8)
    A(f"""    s_cmp_eq_u32 s{S_WAVE}, 0
    s_cbranch_scc1 {w0}
    s_sub_u32 s{S_TMP}, s{S_WAVE}, 1
    s_lshl_b32 s{S_TMP}, s{S_TMP}, 10
    s_add_u32 s{S_TMP}, s{S_TMP}, {red}
    v_add_u32 v1, s{S_TMP}, v{V_L16}
    ds_write_b128 v1, v[{V_S}:{V_S+3}]
    s_waitcnt lgkmcnt(0)
{w0}:
    s_barrier
    s_cmp_eq_u32 s{S_WAVE}, 0
    s_cbranch_scc0 {skip}
    v_add_u32 v1, {red}, v{V_L16}""")
    T = V_T
    for w in range(3):
        A(f'    ds_read_b128 v[{T+4*w}:{T+4*w+3}], v1 offset:{w*1024}')
    for w in range(3):
        A(f'    s_waitcnt lgkmcnt({2 - w})')
        for r in range(4):
            A(f'    v_add_f32 v{V_S+r}, v{V_S+r}, v{T+4*w+r}')
    return skip

def publish4(A, ws_base):
    T = V_T; odd = A.label('PB_O'); go = A.label('PB_G')
    A(f"""    v_cvt_pk_bf16_f32 v{T+2}, v{V_S}, v{V_S+1}
    v_cvt_pk_bf16_f32 v{T+3}, v{V_S+2}, v{V_S+3}
    v_mov_b32 v{T}, s{S_TAG}
    v_mov_b32 v{T+1}, 0
    v_mov_b32 v{T+4}, s{S_TAG}
    v_mov_b32 v{T+5}, 0
    s_lshl_b32 s{S_TMP}, s{S_JOB}, 10
    s_add_u32 s{S_TMP}, s{S_TMP}, {ws_base}
    v_add_u32 v1, s{S_TMP}, v{V_L16}
    s_bitcmp1_b32 s{S_JOB}, 0
    s_cbranch_scc1 {odd}
    global_store_dwordx4 v1, v[{T}:{T+3}], s[{S_WS}:{S_WS+1}] sc1
    s_branch {go}
{odd}:
    global_store_dwordx4 v1, v[{T+2}:{T+5}], s[{S_WS}:{S_WS+1}] sc1
{go}:""")

def gemm3(A, areg, breg):
    for kk in range(3):
        A(f'    v_mfma_f32_16x16x32_bf16 v[{V_S}:{V_S+3}], {areg(kk)}, {breg(kk)}, ' + ('0' if kk == 0 else f'v[{V_S}:{V_S+3}]'))

def pack_D(A, dreg):
    A(f'    v_cvt_pk_bf16_f32 v{dreg+2}, v{V_S}, v{V_S+1}')
    A(f'    v_cvt_pk_bf16_f32 v{dreg+3}, v{V_S+2}, v{V_S+3}')
    A(f'    v_cvt_pk_bf16_f32 v{dreg+4}, v{V_R}, v{V_R+1}')
    A(f'    v_cvt_pk_bf16_f32 v{dreg+5}, v{V_R+2}, v{V_R+3}')

def lin12_addr(A, nload, rowfn, dst=2):
    for x in range(nload):
        d = dst + x; t = V_T
        A(f"""    v_add_u32 v{t}, {64*x}, v{V_LANE}
    v_mul_u32_u24 v{t+1}, 43691, v{t}
    v_lshrrev_b32 v{t+1}, 19, v{t+1}      ; row
    v_mul_u32_u24 v{t+2}, 12, v{t+1}
    v_sub_u32 v{t+2}, v{t}, v{t+2}
    v_lshlrev_b32 v{t+2}, 4, v{t+2}       ; piece*16""")
        rowfn(t + 1)
        A(f"""    v_mul_u32_u24 v{t+1}, 768, v{t+1}
    v_add3_u32 v{d}, v{t+1}, v{t+2}, s{S_TMP+2}""")

def lin12_to_operands(A, src, nload, lds_off, dsts):
    A(f"""    s_mul_i32 s{S_TMP}, s{S_WAVE}, 12288
    s_add_u32 s{S_TMP}, s{S_TMP}, {L_HEAD + lds_off}
    v_add_u32 v1, s{S_TMP}, v{V_L16}""")
    for x in range(nload):
        A(f'    ds_write_b128 v1, v[{src+4*x}:{src+4*x+3}] offset:{x*1024}')
    A(f"""    v_and_b32 v2, 15, v{V_LANE}
    v_mul_u32_u24 v2, 192, v2
    v_lshrrev_b32 v3, 4, v{V_LANE}
    v_lshlrev_b32 v3, 4, v3
    v_add3_u32 v2, v2, v3, s{S_TMP}""")
    for (reg, rowblk, kk) in dsts:
        A(f'    ds_read_b128 {reg}, v2 offset:{rowblk*16*192 + kk*64}')

def role_S1_loads(A):
    A(f'    s_mul_i32 s{S_TMP+2}, s{S_WAVE}, 192')
    lin12_addr(A, 3, lambda r: None)
    for x in range(3):
        A(f'    global_load_dwordx4 v[{V_GB+12+4*x}:{V_GB+15+4*x}], v{2+x}, s[{S_Q}:{S_Q+1}]')
    A(f"""    v_lshrrev_b32 v1, 1, v{V_LANE}
    s_mul_i32 s{S_TMP}, s{S_WAVE}, 96
    v_add_u32 v1, s{S_TMP}, v1
    v_mul_u32_u24 v1, 768, v1
    v_and_b32 v2, 1, v{V_LANE}
    v_lshlrev_b32 v2, 4, v2
    s_lshl_b32 s{S_TMP}, s{S_JOB}, 5
    v_add3_u32 v1, v1, v2, s{S_TMP}
    v_add_u32 v2, 24576, v1
    v_add_u32 v3, 49152, v1""")
    for x in range(3):
        A(f'    global_load_dwordx4 v[{V_O+4*x}:{V_O+4*x+3}], v{1+x}, s[{S_WQ}:{S_WQ+1}]')

def slab16_to_operands(A, src, lds_base):
    A(f"""    s_mul_i32 s{S_TMP}, s{S_WAVE}, 12288
    s_add_u32 s{S_TMP}, s{S_TMP}, {lds_base}
    v_add_u32 v1, s{S_TMP}, v{V_L16}""")
    for x in range(3):
        A(f'    ds_write_b128 v1, v[{src+4*x}:{src+4*x+3}] offset:{x*1024}')
    A(f"""    v_lshrrev_b32 v2, 4, v{V_LANE}
    v_lshlrev_b32 v2, 8, v2               ; g*256
    v_bfe_u32 v3, v{V_LANE}, 2, 2
    v_lshlrev_b32 v3, 5, v3               ; r*32
    v_and_b32 v4, 3, v{V_LANE}
    v_lshlrev_b32 v4, 3, v4               ; c*8
    v_add3_u32 v2, v2, v3, v4
    v_add_u32 v2, s{S_TMP}, v2""")
    for kk in range(3):
        for hf in range(2):
            r = A_W + kk * 4 + 2 * hf
            A(f'    ds_read_b64_tr_b16 a[{r}:{r+1}], v2 offset:{kk*1024 + hf*128}')

def slab_addr_regs(A, perm):
    slab_addr(A, perm)

def role_S1_work(A):
    T = V_T; Qr = V_GB
    A('    s_waitcnt vmcnt(0)')
    A.stamp('s1_data')
    if O.s1mid:
        A.vm = []; issue_item(A, 0); issue_item(A, 1)
    else:
        vm_save = list(A.vm); nxt = Stream.nxt; Stream.nxt = 0
        issue_next(A, O.l0)
        A.vm = vm_save; Stream.nxt = nxt
    lin12_to_operands(A, V_GB + 12, 3, 6144 + 2048, [(f'v[{Qr+4*kk}:{Qr+4*kk+3}]', 0, kk) for kk in range(3)])
    slab16_to_operands(A, V_O, L_HEAD)
    A('    s_waitcnt lgkmcnt(6)')
    for kk in range(3):
        q = f'v[{Qr+4*kk}:{Qr+4*kk+3}]'
        A(f'    v_mfma_f32_16x16x32_bf16 v[{V_G}:{V_G+3}], {q}, {q}, ' + ('0' if kk == 0 else f'v[{V_G}:{V_G+3}]'))
        A(f'    v_mfma_f32_16x16x32_bf16 v[{V_R}:{V_R+3}], a[{A_ONES}:{A_ONES+3}], {q}, ' + ('0' if kk == 0 else f'v[{V_R}:{V_R+3}]'))
    A.nop(7)
    A(f'    v_cndmask_b32 v{T}, 0, v{V_G}, s[{S_MASK}:{S_MASK+1}]')
    for r in range(1, 4):
        A(f'    v_cndmask_b32 v{T}, v{T}, v{V_G+r}, s[{S_MASK+2*r}:{S_MASK+2*r+1}]')
    A.nop(2)
    A(f'    v_mfma_f32_16x16x4_f32 v[{V_D}:{V_D+3}], v{V_ONEF}, v{T}, 0')
    A(f"""    s_lshl_b32 s{S_TMP}, s{S_WAVE}, 9
    s_add_u32 s{S_TMP}, s{S_TMP}, {L_STAT}
    v_lshlrev_b32 v1, 3, v{V_LANE}
    v_add_u32 v1, s{S_TMP}, v1
    v_and_b32 v2, 15, v{V_LANE}
    v_lshlrev_b32 v2, 3, v2
    v_add_u32 v2, {L_STAT}, v2
    v_mov_b32 v{T+2}, v{V_R}""")
    A.nop(3)
    A(f'    v_mov_b32 v{T+3}, v{V_D}')
    A(f'    ds_write_b64 v1, v[{T+2}:{T+3}]')
    A('    s_waitcnt lgkmcnt(0)')
    A.stamp('s1_stat')
    A('    s_barrier')
    if O.s1mid: issue_item(A, 2)
    for w in range(4):
        A(f'    ds_read_b64 v[{T+4+2*w}:{T+5+2*w}], v2 offset:{w*512}')
    A('    s_waitcnt lgkmcnt(0)')
    A(f"""    v_add_f32 v{T+4}, v{T+4}, v{T+6}
    v_add_f32 v{T+5}, v{T+5}, v{T+7}
    v_add_f32 v{T+8}, v{T+8}, v{T+10}
    v_add_f32 v{T+9}, v{T+9}, v{T+11}
    v_add_f32 v{T+4}, v{T+4}, v{T+8}
    v_add_f32 v{T+5}, v{T+5}, v{T+9}
    v_mul_f32 v{T+4}, s{S_C384}, v{T+4}          ; mean
    v_mul_f32 v{T+5}, s{S_C384}, v{T+5}          ; E[x^2]
    v_fma_f32 v{T+5}, -v{T+4}, v{T+4}, v{T+5}    ; var
    v_max_f32 v{T+5}, 0, v{T+5}
    v_cvt_pk_bf16_f32 v{T+6}, v{T+4}, v{T+5}
    v_lshlrev_b32 v{T+4}, 16, v{T+6}
    v_and_b32 v{T+5}, 0xffff0000, v{T+6}
    v_add_f32 v{T+5}, v{V_EPS}, v{T+5}
    v_cvt_pk_bf16_f32 v{T+5}, v{T+5}, v{T+5}
    v_lshlrev_b32 v{T+5}, 16, v{T+5}
    v_sqrt_f32 v{T+5}, v{T+5}
    s_nop 0
    v_cvt_pk_bf16_f32 v{T+5}, v{T+5}, v{T+5}
    v_lshlrev_b32 v{T+5}, 16, v{T+5}
    v_rcp_f32 v{T+5}, v{T+5}""")
    for k in range(0, 12, 2):
        a, b = T + 8, T + 12
        A(f'    v_lshlrev_b32 v{a}, 16, v{Qr+k}')
        A(f'    v_and_b32 v{a+1}, 0xffff0000, v{Qr+k}')
        A(f'    v_lshlrev_b32 v{b}, 16, v{Qr+k+1}')
        A(f'    v_and_b32 v{b+1}, 0xffff0000, v{Qr+k+1}')
        for x in (a, a + 1, b, b + 1): A(f'    v_sub_f32 v{x}, v{x}, v{T+4}')
        A(f'    v_cvt_pk_bf16_f32 v{a+2}, v{a}, v{a+1}')
        A(f'    v_cvt_pk_bf16_f32 v{b+2}, v{b}, v{b+1}')
        A(f'    v_lshlrev_b32 v{a}, 16, v{a+2}')
        A(f'    v_and_b32 v{a+1}, 0xffff0000, v{a+2}')
        A(f'    v_lshlrev_b32 v{b}, 16, v{b+2}')
        A(f'    v_and_b32 v{b+1}, 0xffff0000, v{b+2}')
        for x in (a, a + 1, b, b + 1): A(f'    v_mul_f32 v{x}, v{x}, v{T+5}')
        A(f'    v_cvt_pk_bf16_f32 v{Qr+k}, v{a}, v{a+1}')
        A(f'    v_cvt_pk_bf16_f32 v{Qr+k+1}, v{b}, v{b+1}')
    A.stamp('s1_norm')
    A.nop(2)
    gemm3(A, lambda kk: f'a[{A_W+4*kk}:{A_W+4*kk+3}]', lambda kk: f'v[{Qr+4*kk}:{Qr+4*kk+3}]')
    skip = cross_wave_sum4(A, L_RED_H)
    A.stamp('s1_red')
    publish4(A, WS_QG)
    A(f'{skip}:')

def role_S2_addr(A):
    A(f"""    s_lshr_b32 s{S_TMP}, s{S_JOB}, 3              ; third = b>>2
    s_lshl_b32 s{S_TMP}, s{S_TMP}, 7
    s_bfe_u32 s{S_TMP+1}, s{S_JOB}, 0x20001       ; ep = b&3
    s_lshl_b32 s{S_TMP+1}, s{S_TMP+1}, 1
    s_add_u32 s{S_TMP+3}, s{S_TMP}, s{S_TMP+1}
    s_and_b32 s{S_TMP+1}, s{S_JOB}, 1
    s_lshl_b32 s{S_TMP+1}, s{S_TMP+1}, 6          ; a2*64
    s_add_u32 s{S_TMP+3}, s{S_TMP+3}, s{S_TMP+1}
    s_mul_i32 s{S_TMP+2}, s{S_WAVE}, 192""")
    def rowfn(r):
        t = V_T + 3
        A(f"""    v_bfe_u32 v{t}, v{r}, 3, 1
    v_lshlrev_b32 v{t}, 2, v{t}
    v_bfe_u32 v{t+1}, v{r}, 2, 1
    v_lshlrev_b32 v{t+1}, 1, v{t+1}
    v_bfe_u32 v{t+2}, v{r}, 1, 1
    v_add3_u32 v{t}, v{t}, v{t+1}, v{t+2}
    v_lshlrev_b32 v{t}, 3, v{t}
    v_and_b32 v{r}, 1, v{r}
    v_add3_u32 v{r}, v{r}, v{t}, s{S_TMP+3}""")
    lin12_addr(A, 3, rowfn, V_O + 12)

def role_S2_loads(A):
    for x in range(3):
        A.vmop(f'    global_load_dwordx4 v[{V_O+4*x}:{V_O+4*x+3}], v{V_O+12+x}, s[{S_WK}:{S_WK+1}]', 'wk')

def role_S2_stage(A):
    A.vmwait('wk')
    A(f"""    s_mul_i32 s{S_TMP}, s{S_WAVE}, 12288
    s_add_u32 s{S_TMP}, s{S_TMP}, {L_HEAD}
    v_add_u32 v1, s{S_TMP}, v{V_L16}""")
    for x in range(3):
        A(f'    ds_write_b128 v1, v[{V_O+4*x}:{V_O+4*x+3}] offset:{x*1024}')
    A(f"""    v_and_b32 v2, 15, v{V_LANE}
    v_mul_u32_u24 v2, 192, v2
    v_lshrrev_b32 v3, 4, v{V_LANE}
    v_lshlrev_b32 v3, 3, v3
    v_add3_u32 v2, v2, v3, s{S_TMP}""")
    for kk in range(3):
        for hf in range(2):
            r = A_W + 4 * kk + 2 * hf
            A(f'    ds_read_b64 a[{r}:{r+1}], v2 offset:{kk*64 + hf*32}')

def role_S2_work(A, have_q=False):
    scale = 384 ** -0.5 * math.log2(math.e)
    ok = A.label('S2OK')
    if not have_q:
        A.vmwait('q')
        gather_check(A)
        A(f'    s_cbranch_vccz {ok}')
        gather_loop(A)
        A(f'{ok}:')
    A('    s_waitcnt lgkmcnt(0)')
    A.stamp('s2_q')
    gemm3(A, lambda kk: f'a[{A_W+4*kk}:{A_W+4*kk+3}]', lambda kk: f'v[{V_GB+8*kk+2}:{V_GB+8*kk+5}]')
    skip = cross_wave_sum4(A, L_HEAD + 6144)
    A.stamp('s2_red')
    for r in range(4):
        A(f'    v_mul_f32 v{V_S+r}, {lit(scale)}, v{V_S+r}')
    publish4(A, WS_QKG)
    A(f'{skip}:')

def get_qk(A):
    ok = A.label('QK_OK'); lp = A.label('QK_LP')
    A.vmwait('qk')
    gather_check(A)
    A(f'    s_cbranch_vccz {ok}')
    gather_loop(A)
    A(f'{ok}:')
    A(f"""    s_mul_i32 s{S_TMP}, s{S_WAVE}, 3072
    s_add_u32 s{S_TMP}, s{S_TMP}, {L_QKL}
    v_add_u32 v1, s{S_TMP}, v{V_L16}""")
    for kk in range(3):
        A(f'    ds_write_b128 v1, v[{V_GB+8*kk+2}:{V_GB+8*kk+5}] offset:{kk*1024}')
    A(f'    v_add_u32 v1, {L_QKL}, v{V_L16}')
    A('    s_waitcnt lgkmcnt(0)')
    A('    s_barrier')
    for bb in range(12):
        A(f'    ds_read_b128 a[{A_QK+4*bb}:{A_QK+4*bb+3}], v1 offset:{bb*1024}')
    for bb in range(12):
        if bb % 4 == 0: A(f'    s_waitcnt lgkmcnt({8 - bb})')
        c = '0' if bb == 0 else f'v[{V_S}:{V_S+3}]'
        A(f'    v_mfma_f32_16x16x32_bf16 v[{V_S}:{V_S+3}], a[{A_ONES}:{A_ONES+3}], a[{A_QK+4*bb}:{A_QK+4*bb+3}], {c}')
    A.nop(8)
    A(f'    v_mov_b32 v{V_SQ}, v{V_S}')
    A.stamp('Qk')

def role_G_loads(A):
    g1 = A.label('GL1'); done = A.label('GLD')
    A(f'    s_cmp_eq_u32 s{S_ROLE}, {R_G1}')
    A(f'    s_cbranch_scc1 {g1}')
    A(f'    s_cmp_eq_u32 s{S_ROLE}, {R_G2}')
    A(f'    s_cbranch_scc0 {done}')
    slab_addr(A, False)
    slab_loads(A, S_WO, RAW[1])
    A(f"""    v_and_b32 v1, 15, v{V_LANE}
    v_mul_u32_u24 v1, 768, v1
    v_lshrrev_b32 v2, 4, v{V_LANE}
    v_lshlrev_b32 v2, 4, v2
    s_lshl_b32 s{S_TMP}, s{S_JOB}, 6
    v_add3_u32 v{V_Q+4}, v1, v2, s{S_TMP}
    global_load_dwordx4 v[{V_Q}:{V_Q+3}], v{V_Q+4}, s[{S_Q}:{S_Q+1}]
    s_branch {done}
{g1}:""")
    slab_addr(A, True)
    slab_loads(A, S_WV, RAW[1])
    A(f'{done}:')

def epilogue(A):
    T = V_T
    multi_xgroup(A, 'v_add_f32', [V_L, V_U], [T, T + 1])
    A(f"""    v_and_b32 v3, 15, v{V_LANE}           ; n
    v_lshlrev_b32 v5, 4, v3
    s_lshl_b32 s{S_TMP}, s{S_WAVE}, 2
    s_add_u32 s{S_TMP}, s{S_TMP}, {L_LBUF}
    v_add_u32 v6, s{S_TMP}, v5
    ds_write_b32 v6, v{V_L}
    ds_write_b32 v6, v{V_U} offset:256""")
    for r in range(4):
        for third in range(3):
            b0 = V_O + third * 8; b1 = b0 + 4
            A(f'    v_cvt_pk_bf16_f32 v{8+4*r+third}, v{b0+r}, v{b1+r}')
        A(f'    v_mov_b32 v{8+4*r+3}, s{S_TAG}')
    A(f"""    s_mul_i32 s{S_TMP}, s{S_WAVE}, 12288
    s_add_u32 s{S_TMP}, s{S_TMP}, {L_TR}
    v_mul_u32_u24 v1, 272, v3
    v_lshrrev_b32 v2, 4, v{V_LANE}        ; g'
    v_lshlrev_b32 v4, 6, v2               ; (g'>>1)*128 + (g'&1)*64 == g'*64
    v_add3_u32 v1, v1, v4, s{S_TMP}""")
    for r in range(4):
        A(f'    ds_write_b128 v1, v[{8+4*r}:{11+4*r}] offset:{r*16}')
    A(f"""    v_mul_u32_u24 v1, 272, v2
    v_add3_u32 v1, v1, v5, s{S_TMP}""")
    for x in range(4):
        A(f'    ds_read_b128 v[{24+4*x}:{27+4*x}], v1 offset:{x*1088}')
    A(f"""    v_lshlrev_b32 v1, 18, v2              ; (l>>4)*8*32768
    v_bfe_u32 v4, v{V_LANE}, 3, 1
    v_lshlrev_b32 v4, 15, v4
    v_and_b32 v7, 7, v{V_LANE}
    v_lshlrev_b32 v7, 4, v7
    v_add3_u32 v1, v1, v4, v7
    s_lshl_b32 s{S_TMP}, s{S_WAVE}, 16
    s_lshl_b32 s{S_TMP+1}, s{S_WG}, 7
    s_add_u32 s{S_TMP}, s{S_TMP}, s{S_TMP+1}
    s_add_u32 s{S_TMP}, s{S_TMP}, {WS_PART}
    v_add_u32 v1, s{S_TMP}, v1
    v_add_u32 v2, 0x100000, v1
    v_add_u32 v4, 0x200000, v1
    v_add_u32 v7, 0x300000, v1""")
    for x, a in enumerate((1, 2, 4, 7)):
        A(f'    s_waitcnt lgkmcnt({3-x})')
        A(f'    global_store_dwordx4 v{a}, v[{24+4*x}:{27+4*x}], s[{S_WS}:{S_WS+1}] sc1')
    A('    s_barrier')
    skip = A.label('EP')
    A(f"""    s_cmp_eq_u32 s{S_WAVE}, 0
    s_cbranch_scc0 {skip}
    v_add_u32 v5, {L_LBUF}, v5
    ds_read_b128 v[40:43], v5
    ds_read_b128 v[44:47], v5 offset:256
    v_lshlrev_b32 v3, 4, v3
    s_lshl_b32 s{S_TMP}, s{S_WG}, 8
    s_add_u32 s{S_TMP}, s{S_TMP}, {WS_ML}
    v_add_u32 v3, s{S_TMP}, v3
    v_mov_b32 v48, v{V_MREF}
    v_mov_b32 v51, s{S_TAG}
    s_waitcnt lgkmcnt(0)
    v_add_f32 v40, v40, v41
    v_add_f32 v42, v42, v43
    v_add_f32 v44, v44, v45
    v_add_f32 v46, v46, v47
    v_add_f32 v49, v40, v42
    v_add_f32 v50, v44, v46
    v_cmp_gt_u32 vcc, 16, v{V_LANE}
    s_and_saveexec_b64 s[{S_EX}:{S_EX+1}], vcc
    global_store_dwordx4 v3, v[48:51], s[{S_WS}:{S_WS+1}] sc1
    s_mov_b64 exec, s[{S_EX}:{S_EX+1}]
{skip}:""")
    A.stamp('pub')

def role_R(A):
    T = V_T
    lp = A.label('RL'); ok = A.label('RO'); lp2 = A.label('RD'); ok2 = A.label('RO2'); fin = A.label('RF')
    A(f"""    s_and_b32 s{S_TMP}, s{S_JOB}, 15          ; n
    s_lshr_b32 s{S_TMP+1}, s{S_JOB}, 4        ; chunk
    s_lshl_b32 s{S_TMP+2}, s{S_TMP}, 4
    s_lshl_b32 s{S_TMP+3}, s{S_WAVE}, 14
    s_add_u32 s{S_TMP+2}, s{S_TMP+2}, s{S_TMP+3}
    s_add_u32 s{S_TMP+2}, s{S_TMP+2}, {WS_ML}
    v_lshlrev_b32 v1, 8, v{V_LANE}
    v_add_u32 v1, s{S_TMP+2}, v1
    s_lshl_b32 s{S_TMP+2}, s{S_TMP}, 3
    s_add_u32 s{S_TMP+2}, s{S_TMP+2}, s{S_TMP+1}
    s_lshl_b32 s{S_TMP+2}, s{S_TMP+2}, 15
    s_lshl_b32 s{S_TMP+3}, s{S_WAVE}, 13
    s_add_u32 s{S_TMP+2}, s{S_TMP+2}, s{S_TMP+3}
    s_add_u32 s{S_TMP+2}, s{S_TMP+2}, {WS_PART + 4096}
    v_add_u32 v2, s{S_TMP+2}, v{V_L16}
{lp}:""")
    def data_loads():
        for k in range(8):
            A(f'    global_load_dwordx4 v[{16+4*k}:{19+4*k}], v2, s[{S_WS}:{S_WS+1}] offset:{k*1024-4096} sc1')
    if O.rthr:
        l2 = A.label('RL2')
        A(f'    global_load_dwordx4 v[8:11], v1, s[{S_WS}:{S_WS+1}] sc1')
        A('    s_waitcnt vmcnt(0)')
        A(f'    v_cmp_ne_u32 vcc, s{S_TAG}, v11')
        A(f'    s_bcnt1_i32_b64 s{S_TMP+3}, vcc')
        A(f'    s_cmp_le_u32 s{S_TMP+3}, {O.rthr}')
        A(f'    s_cbranch_scc1 {l2}')
        spin_guard(A, lp)
        A(f'    s_branch {lp}')
        A(f'{l2}:')
        A(f'    global_load_dwordx4 v[8:11], v1, s[{S_WS}:{S_WS+1}] sc1')
        data_loads()
        A('    s_waitcnt vmcnt(8)')
        A(f'    v_cmp_ne_u32 vcc, s{S_TAG}, v11')
        A(f'    s_cbranch_vccz {ok}')
        A('    s_waitcnt vmcnt(0)')
        spin_guard(A, l2)
        A(f'    s_branch {l2}')
        A(f'{ok}:')
    else:
        A(f'    global_load_dwordx4 v[8:11], v1, s[{S_WS}:{S_WS+1}] sc1')
        if O.rcomb:
            data_loads()
            A('    s_waitcnt vmcnt(8)')
        else:
            A('    s_waitcnt vmcnt(0)')
        A(f"""    v_cmp_ne_u32 vcc, s{S_TAG}, v11
    s_cbranch_vccz {ok}""")
        if O.rcomb: A('    s_waitcnt vmcnt(0)')
        spin_guard(A, lp)
        A(f'    s_branch {lp}')
        A(f'{ok}:')
    A.stamp('R_ml')
    if not O.rcomb and not O.rthr: data_loads()
    A(f'    v_mov_b32 v12, v8')
    multi_row(A, 'v_max_f32', [12])
    xgroup_reduce(A, 'v_max_f32', 12, 13)
    A(f"""    v_sub_f32 v8, v8, v12
    v_exp_f32 v8, v8
    v_lshrrev_b32 v3, 3, v{V_LANE}
    v_lshlrev_b32 v3, 2, v3               ; ii*4
    v_mul_f32 v9, v9, v8
    v_mul_f32 v10, v10, v8""")
    for k in range(8):
        A(f'    v_add_u32 v4, {32*k}, v3')
        A(f'    ds_bpermute_b32 v{48+k}, v4, v8')
    multi_row(A, 'v_add_f32', [9, 10])
    multi_xgroup(A, 'v_add_f32', [9, 10], [13, 14])
    for j in range(6): A(f'    v_mov_b32 v{56+j}, 0')
    A(f'{lp2}:')
    A('    s_waitcnt vmcnt(0)')
    for k in range(0, 8, 2):
        A(f'    v_xor_b32 v{64+k}, s{S_TAG}, v{19+4*k}')
        A(f'    v_xor_b32 v{65+k}, s{S_TAG}, v{23+4*k}')
    A(f"""    v_or3_b32 v64, v64, v65, v66
    v_or3_b32 v67, v67, v68, v69
    v_or3_b32 v64, v64, v70, v71
    v_or_b32 v64, v64, v67
    v_cmp_ne_u32 vcc, 0, v64
    s_cbranch_vccz {ok2}""")
    spin_guard(A, lp2)
    data_loads()
    A(f'    s_branch {lp2}')
    A(f'{ok2}:')
    A('    s_waitcnt lgkmcnt(0)')
    for k in range(8):
        for t in range(3):
            A(f'    v_lshlrev_b32 v64, 16, v{16+4*k+t}')
            A(f'    v_and_b32 v65, 0xffff0000, v{16+4*k+t}')
            A(f'    v_fmac_f32 v{56+2*t}, v64, v{48+k}')
            A(f'    v_fmac_f32 v{57+2*t}, v65, v{48+k}')
    acc = list(range(56, 62))
    multi_row(A, 'v_add_f32', acc, rots=(8,))
    multi_xgroup(A, 'v_add_f32', acc, list(range(64, 70)))
    A(f"""    s_lshl_b32 s{S_TMP+2}, s{S_WAVE}, 8
    s_add_u32 s{S_TMP+2}, s{S_TMP+2}, {L_RB}
    v_mul_u32_u24 v3, 24, v{V_LANE}
    v_add_u32 v3, s{S_TMP+2}, v3
    v_mov_b32 v4, s{S_TMP+2}
    v_mov_b32 v13, v9
    v_mov_b32 v14, v10
    v_mov_b32 v15, 0
    v_cmp_gt_u32 vcc, 8, v{V_LANE}
    s_and_saveexec_b64 s[{S_EX}:{S_EX+1}], vcc
    ds_write_b64 v3, v[56:57]
    ds_write_b64 v3, v[58:59] offset:8
    ds_write_b64 v3, v[60:61] offset:16
    ds_write_b128 v4, v[12:15] offset:192
    s_mov_b64 exec, s[{S_EX}:{S_EX+1}]
    s_waitcnt lgkmcnt(0)
    s_barrier
    s_cmp_eq_u32 s{S_WAVE}, 0
    s_cbranch_scc0 {fin}
    v_min_u32 v3, 7, v{V_LANE}
    v_mul_u32_u24 v3, 24, v3
    v_add_u32 v3, {L_RB}, v3
    v_mov_b32 v4, {L_RB}""")
    for w in range(4):
        A(f'    ds_read_b128 v[{16+4*w}:{19+4*w}], v4 offset:{w*256+192}')
    for w in range(4):
        for j in range(3):
            A(f'    ds_read_b64 v[{32+6*w+2*j}:{33+6*w+2*j}], v3 offset:{w*256+8*j}')
    A(f"""    s_waitcnt lgkmcnt(12)
    v_max_f32 v12, v16, v20
    v_max3_f32 v12, v12, v24, v28""")
    for w in range(4): A(f'    v_sub_f32 v{16+4*w}, v{16+4*w}, v12')
    for w in range(4): A(f'    v_exp_f32 v{16+4*w}, v{16+4*w}')
    A(f"""    s_nop 0
    v_mul_f32 v13, v16, v17
    v_mul_f32 v14, v16, v18""")
    for w in range(1, 4):
        A(f'    v_fmac_f32 v13, v{16+4*w}, v{17+4*w}')
        A(f'    v_fmac_f32 v14, v{16+4*w}, v{18+4*w}')
    A(f"""    v_rcp_f32 v13, v13
    s_waitcnt lgkmcnt(0)""")
    for j in range(6): A(f'    v_mul_f32 v{56+j}, v{32+j}, v16')
    for w in range(1, 4):
        for j in range(6): A(f'    v_fmac_f32 v{56+j}, v{32+6*w+j}, v{16+4*w}')
    for j in range(6): A(f'    v_sub_f32 v{56+j}, v{56+j}, v14')
    for j in range(6): A(f'    v_mul_f32 v{56+j}, v{56+j}, v13')
    A(f"""    v_cvt_pk_bf16_f32 v8, v56, v57
    v_cvt_pk_bf16_f32 v9, v58, v59
    v_cvt_pk_bf16_f32 v10, v60, v61
    v_mov_b32 v11, s{S_TAG}
    s_lshl_b32 s{S_TMP+2}, s{S_TMP+1}, 4
    s_add_u32 s{S_TMP+2}, s{S_TMP+2}, s{S_TMP}
    s_lshl_b32 s{S_TMP+2}, s{S_TMP+2}, 7
    s_add_u32 s{S_TMP+2}, s{S_TMP+2}, {WS_CTXN}
    v_add_u32 v3, s{S_TMP+2}, v{V_L16}
    v_cmp_gt_u32 vcc, 8, v{V_LANE}
    s_and_saveexec_b64 s[{S_EX}:{S_EX+1}], vcc
    global_store_dwordx4 v3, v[8:11], s[{S_WS}:{S_WS+1}] sc1
    s_mov_b64 exec, s[{S_EX}:{S_EX+1}]
{fin}:""")
    A.stamp('R_done')

def gather4_loop(A):
    l = A.label('G4L'); d = A.label('G4D'); T = V_T
    A(f"""    s_lshl_b32 s{S_TMP}, s{S_WAVE}, 12
    s_add_u32 s{S_TMP}, s{S_TMP}, {WS_CTXN}
    v_and_b32 v1, 15, v{V_LANE}
    v_lshlrev_b32 v1, 7, v1
    v_lshrrev_b32 v2, 4, v{V_LANE}
    v_lshlrev_b32 v2, 4, v2
    v_add3_u32 v{V_GA}, v1, v2, s{S_TMP}""")
    A(f'{l}:')
    for x in range(4):
        A(f'    global_load_dwordx4 v[{V_GB+4*x}:{V_GB+4*x+3}], v{V_GA}, s[{S_WS}:{S_WS+1}] offset:{(x>>1)*2048 + (x&1)*64} sc1')
    A('    s_waitcnt vmcnt(0)')
    for x in range(4): A(f'    v_xor_b32 v{T+x}, s{S_TAG}, v{V_GB+4*x+3}')
    A(f'    v_or3_b32 v{T}, v{T}, v{T+1}, v{T+2}')
    A(f'    v_or_b32 v{T}, v{T}, v{T+3}')
    A(f'    v_cmp_ne_u32 vcc, 0, v{T}')
    A(f'    s_cbranch_vccz {d}')
    spin_guard(A, l)
    A(f'    s_branch {l}')
    A(f'{d}:')
    for j in range(3): A(f'    v_mov_b32 v{V_GB+4*j+3}, v{V_GB+12+j}')

def role_G(A):
    g2 = A.label('G2'); lj = A.label('GJ')
    role_G_loads(A)
    A('    s_waitcnt vmcnt(0)')
    slab_to_operands(A, RAW[1], 0)
    A(f'    s_cmp_eq_u32 s{S_ROLE}, {R_G2}')
    A(f'    s_cbranch_scc1 {g2}')
    gather4_loop(A)
    A('    s_waitcnt lgkmcnt(0)')
    A.stamp('G1_in')
    gemm6(A, lambda kk: f'v[{V_GB+4*kk}:{V_GB+4*kk+3}]')
    A(f'    s_branch {lj}')
    A(f'{g2}:')
    gather_addr(A, WS_CTX)
    gather_loop(A)
    A('    s_waitcnt lgkmcnt(0)')
    A.stamp('G2_in')
    gemm6(A, lambda kk: f'v[{V_GB+8*kk+2}:{V_GB+8*kk+5}]')
    A(f'{lj}:')
    skip = cross_wave_sum(A, L_RED_T)
    out2 = A.label('GO')
    A(f'    s_cmp_eq_u32 s{S_ROLE}, {R_G2}')
    A(f'    s_cbranch_scc1 {out2}')
    pack_D(A, 8)
    A(f'    s_lshl_b32 s{S_TMP}, s{S_JOB}, 11')
    A(f'    s_add_u32 s{S_TMP}, s{S_TMP}, {WS_CTX}')
    publish8(A, 8, S_TMP)
    A(f'    s_branch {skip}')
    A(f'{out2}:')
    for k in range(4):
        d = V_S if k < 2 else V_R
        j = 2 * (k & 1)
        A(f'    v_lshlrev_b32 v8, 16, v{V_Q+k}')
        A(f'    v_and_b32 v9, 0xffff0000, v{V_Q+k}')
        A(f'    v_add_f32 v8, v8, v{d+j}')
        A(f'    v_add_f32 v9, v9, v{d+j+1}')
        A(f'    v_cvt_pk_bf16_f32 v{12+k}, v8, v9')
    A(f'    global_store_dwordx4 v{V_Q+4}, v[12:15], s[{S_OUT}:{S_OUT+1}]')
    e = A.label('GE')
    A(f"""    s_cmp_eq_u32 s{S_JOB}, 0
    s_cbranch_scc0 {skip}
    s_add_u32 s{S_TMP}, s{S_EPOCH}, 1
    v_mov_b32 v8, s{S_TMP}
    v_mov_b32 v9, {WS_EPOCH}
    v_cmp_eq_u32 vcc, 0, v{V_LANE}
    s_and_saveexec_b64 s[{S_EX}:{S_EX+1}], vcc
    global_store_dword v9, v8, s[{S_WS}:{S_WS+1}]
    s_mov_b64 exec, s[{S_EX}:{S_EX+1}]""")
    A(f'{skip}:')
    A.stamp('G_done')

def build_kernel():
    A = Gen(); T = V_T
    Stream.nxt = 0; Stream.done = 0; Stream.pend = []; PV.pending = []
    A('.text')
    A(f'.globl {NAME}')
    A('.p2align 8')
    A(f'.type {NAME},@function')
    A(f'{NAME}:')
    A(f"""    s_cmp_ge_u32 s2, 256
    s_cbranch_scc1 K_END
    s_load_dwordx4 s[{S_F0}:{S_F0+3}], s[0:1], 8
    s_load_dwordx2 s[{S_WS}:{S_WS+1}], s[0:1], 72
    s_load_dwordx2 s[{S_Q}:{S_Q+1}], s[0:1], 0
    s_load_dwordx8 s[{S_WQ}:{S_WQ+7}], s[0:1], 24
    s_load_dwordx2 s[{S_OUT}:{S_OUT+1}], s[0:1], 56
    s_mov_b32 s{S_WG}, s2
    s_mov_b32 s{S_SPIN}, 0
    v_and_b32 v{V_LANE}, 63, v0
    v_lshrrev_b32 v1, 6, v0
    v_lshlrev_b32 v{V_L16}, 4, v{V_LANE}
    v_readfirstlane_b32 s{S_WAVE}, v1
    v_lshrrev_b32 v2, 4, v{V_LANE}        ; g
    v_and_b32 v3, 15, v{V_LANE}           ; i
    v_lshlrev_b32 v4, 4, v3
    v_mul_u32_u24 v5, 1536, v2
    v_add_u32 v{V_F0OFF}, v5, v4
    v_mul_u32_u24 v5, 768, v2
    v_add_u32 v{V_F1OFF}, v5, v4
    s_mul_i32 s{S_T}, s{S_WG}, 36
    s_add_u32 s{S_T}, s{S_T}, s{S_WAVE}
    s_mov_b32 s{S_ROLE}, {R_NONE}
    s_mov_b32 s{S_JOB}, 0
    s_cmp_ge_u32 s2, 128
    s_cbranch_scc0 ROLE_LOW
    s_mov_b32 s{S_ROLE}, {R_R}
    s_sub_u32 s{S_JOB}, s2, 128
    s_branch ROLE_DONE
ROLE_LOW:
    s_lshr_b32 s{S_TMP}, s2, 3            ; hi
    s_and_b32 s{S_TMP+1}, s2, 3
    s_bitcmp1_b32 s2, 2
    s_cbranch_scc1 ROLE_G
    s_cmp_ge_u32 s{S_TMP}, 12
    s_cbranch_scc1 ROLE_DONE
    s_cmp_ge_u32 s{S_TMP}, 6
    s_cselect_b32 s{S_TMP+2}, 1, 0
    s_mul_i32 s{S_TMP+3}, s{S_TMP+2}, 6
    s_sub_u32 s{S_TMP}, s{S_TMP}, s{S_TMP+3}
    s_lshl_b32 s{S_TMP}, s{S_TMP}, 2
    s_add_u32 s{S_JOB}, s{S_TMP}, s{S_TMP+1}
    s_add_u32 s{S_ROLE}, s{S_TMP+2}, {R_S1}
    s_branch ROLE_DONE
ROLE_G:
    s_cmp_ge_u32 s{S_TMP}, 6
    s_cbranch_scc1 ROLE_DONE
    s_cmp_ge_u32 s{S_TMP}, 3
    s_cselect_b32 s{S_TMP+2}, 1, 0
    s_mul_i32 s{S_TMP+3}, s{S_TMP+2}, 3
    s_sub_u32 s{S_TMP}, s{S_TMP}, s{S_TMP+3}
    s_lshl_b32 s{S_TMP}, s{S_TMP}, 2
    s_add_u32 s{S_JOB}, s{S_TMP}, s{S_TMP+1}
    s_add_u32 s{S_ROLE}, s{S_TMP+2}, {R_G1}
ROLE_DONE:
    s_waitcnt lgkmcnt(0)
    s_load_dword s{S_EPOCH}, s[{S_WS}:{S_WS+1}], {WS_EPOCH}""")
    if O.stamp: A(f'    v_mov_b32 v{V_STAMP}, 0')
    A.stamp('entry')
    l2 = A.label('P2')
    A(f'    s_cmp_eq_u32 s{S_ROLE}, {R_S1}')
    A(f'    s_cbranch_scc0 {l2}')
    role_S1_loads(A)
    A(f'{l2}:')
    tile_bases(A, 0)
    hold = A.label('PH')
    A(f'    s_cmp_eq_u32 s{S_ROLE}, {R_S1}')
    A(f'    s_cbranch_scc1 {hold}')
    issue_next(A, O.l0)
    A(f'{hold}:')
    if O.cpf:
        lc = A.label('CPF')
        A(f'''    s_sub_u32 s{S_TMP}, s{S_WG}, 96
    s_cmp_lt_u32 s{S_TMP}, 32
    s_cbranch_scc0 {lc}
    s_cmp_ge_u32 s{S_WAVE}, 2
    s_cbranch_scc0 {lc}
    s_getpc_b64 s[72:73]
CPF_PC:
    s_lshr_b32 s{S_TMP}, s{S_TMP}, 3
    s_lshl_b32 s{S_TMP}, s{S_TMP}, 1
    s_and_b32 s{S_TMP+1}, s{S_WAVE}, 1
    s_add_u32 s{S_TMP}, s{S_TMP}, s{S_TMP+1}
    s_mul_i32 s{S_TMP}, s{S_TMP}, (((K_END - CPF_PC) / 128 + 8) / 8) * 128
    v_lshlrev_b32 v1, 7, v{V_LANE}
    v_add_u32 v1, s{S_TMP}, v1
    v_cmp_gt_u32 vcc, (((K_END - CPF_PC) / 128 + 8) / 8), v{V_LANE}
    v_min_u32 v1, (K_END - CPF_PC), v1
    s_and_saveexec_b64 s[{S_EX}:{S_EX+1}], vcc
    global_load_dword v248, v1, s[72:73]
    s_mov_b64 exec, s[{S_EX}:{S_EX+1}]
{lc}:''')
    if O.touch:
        lt = A.label('TCH')
        A(f'''    s_cmp_eq_u32 s{S_WAVE}, 2
    s_cbranch_scc0 {lt}
    v_mov_b32 v1, 0
    s_mov_b64 s[{S_EX}:{S_EX+1}], exec
    s_mov_b64 exec, 1
    global_load_dword v249, v1, s[{S_WS}:{S_WS+1}] offset:2048
    v_mov_b32 v2, {WS_PART}
    v_mov_b32 v3, {WS_PART + 0x200000}
    v_mov_b32 v4, {WS_PART + 0x3ff000}
    global_load_dword v249, v2, s[{S_WS}:{S_WS+1}]
    global_load_dword v249, v3, s[{S_WS}:{S_WS+1}]
    global_load_dword v249, v4, s[{S_WS}:{S_WS+1}]
    global_load_dword v249, v1, s[{S_WK}:{S_WK+1}]
    global_load_dword v249, v1, s[{S_WV}:{S_WV+1}]
    global_load_dword v249, v1, s[{S_WO}:{S_WO+1}]
    global_load_dword v249, v1, s[{S_OUT}:{S_OUT+1}]
    s_mov_b64 exec, s[{S_EX}:{S_EX+1}]
{lt}:''')
    A.stamp('issued')
    A(f"""    v_lshrrev_b32 v2, 4, v{V_LANE}
    v_and_b32 v3, 15, v{V_LANE}
    s_mul_i32 s{S_TMP}, s{S_WAVE}, 12288
    v_lshlrev_b32 v5, 2, v2
    v_add_u32 v5, v5, v3
    v_and_b32 v5, 15, v5
    v_lshlrev_b32 v5, 4, v5
    v_lshlrev_b32 v6, 8, v2
    v_add_u32 v5, v5, v6
    v_add_u32 v{V_LDSW}, s{S_TMP}, v5
    s_lshl_b32 s{S_TMP+1}, s{S_WAVE}, 10
    v_add_u32 v{V_LDSF}, s{S_TMP+1}, v5
    v_lshrrev_b32 v5, 2, v{V_LANE}
    v_and_b32 v5, 3, v5
    v_and_b32 v6, 3, v{V_LANE}
    v_lshrrev_b32 v7, 1, v2
    v_add_u32 v7, v7, v6
    v_lshlrev_b32 v7, 2, v7
    v_and_b32 v1, 1, v2
    v_lshlrev_b32 v1, 1, v1
    v_add_u32 v7, v7, v1
    v_lshrrev_b32 v1, 1, v5
    v_add_u32 v7, v7, v1
    v_and_b32 v1, 1, v5
    v_lshlrev_b32 v1, 3, v1
    v_lshlrev_b32 v6, 8, v6
    v_add3_u32 v6, v6, v1, s{S_TMP}
    v_and_b32 v1, 15, v7
    v_lshlrev_b32 v1, 4, v1
    v_add_u32 v{V_LDSR0}, v6, v1
    v_add_u32 v7, 8, v7
    v_and_b32 v1, 15, v7
    v_lshlrev_b32 v1, 4, v1
    v_add_u32 v{V_LDSR1}, v6, v1
    v_lshlrev_b32 v5, 3, v{V_LANE}
    v_add_u32 v{V_PR}, {L_PBUF}, v5
    s_lshl_b32 s{S_TMP}, s{S_WAVE}, 9
    v_add_u32 v{V_PW}, s{S_TMP}, v{V_PR}
    v_add_u32 v{V_FR}, {L_FLAG}, v{V_L16}
    s_lshl_b32 s{S_TMP}, s{S_WAVE}, 2
    v_add_u32 v{V_FW}, s{S_TMP}, v{V_FR}
    s_mov_b32 s{S_THR}, {lit(8.0)}
    v_lshlrev_b32 v5, 2, v3
    v_add_u32 v{V_MB}, {L_MBUF}, v5
    v_mov_b32 v{V_MREF}, 0xff800000
    ds_write_b32 v{V_MB}, v{V_MREF}
    v_lshlrev_b32 v5, 2, v2""")
    for r in range(4):
        A(f'    v_add_u32 v6, {r}, v5')
        A(f'    v_cmp_eq_u32 s[{S_MASK+2*r}:{S_MASK+2*r+1}], v6, v3')
    A(f"""    s_mov_b32 s{S_SELLO}, 0x{SEL_LO:08x}
    s_mov_b32 s{S_SELHI}, 0x{SEL_HI:08x}
    s_mov_b32 s{S_C384}, {lit(1/384)}
    v_mov_b32 v{V_EPS}, {lit(1e-5)}
    v_mov_b32 v{V_ONEF}, 1.0
    v_mov_b32 v{V_L}, 0
    v_mov_b32 v{V_U}, 0
    v_mov_b32 v{V_Q+4}, 0
    v_mov_b32 v1, 0x3f803f80""")
    for k in range(4):
        A(f'    v_accvgpr_write_b32 a{A_ONES+k}, v1')
    A(f"""    s_waitcnt lgkmcnt(0)
    s_mul_i32 s{S_TAG}, s{S_EPOCH}, 0x9E3779B1
    s_add_u32 s{S_TAG}, s{S_TAG}, 0x7F4A7C15""")
    def snapshot(): return (list(A.vm), set(A.done), Stream.nxt, Stream.done, list(Stream.pend))
    def restore(sn): A.vm, A.done, Stream.nxt, Stream.done, Stream.pend = list(sn[0]), set(sn[1]), sn[2], sn[3], list(sn[4])
    l1 = A.label('H1'); l2 = A.label('H2'); j0 = A.label('A0J')
    for x in range(3): A(f'    v_mov_b32 v{V_O+12+x}, 0')
    A(f'    s_cmp_eq_u32 s{S_ROLE}, {R_S1}')
    A(f'    s_cbranch_scc0 {l1}')
    sn = snapshot()
    role_S1_work(A)
    if O.s1mid:
        Stream.nxt = 3
        stage_A(A, 0, quota=2, stamp=False)
        assert Stream.nxt == O.l0 + 3
        A(f'    s_branch {j0}')
        restore(sn)
    else:
        A(f'    s_branch {l2}')
    A(f'{l1}:')
    A(f'    s_cmp_eq_u32 s{S_ROLE}, {R_S2}')
    A(f'    s_cbranch_scc0 {l2}')
    role_S2_addr(A)
    vm_save = list(A.vm); role_S2_loads(A); A.vm = vm_save
    A(f'{l2}:')
    stage_A(A, 0, quota=O.q0, stamp=False)
    A(f'{j0}:')
    A.stamp('A0')
    lw = A.label('S2W'); j1 = A.label('A1J')
    A(f'    s_cmp_eq_u32 s{S_ROLE}, {R_S2}')
    A(f'    s_cbranch_scc0 {lw}')
    if O.s2mode == 'spin0':
        A.done.add('wk'); A.done.add('q')
        role_S2_stage(A)
        gather_addr(A, WS_QG)
        if O.s2drain: A('    s_waitcnt vmcnt(0)')
        A.stamp('s2_poll')
        gather_loop(A)
        role_S2_work(A, True)
        A(f'{lw}:')
        stage_A(A, 1, stamp=False)
    elif O.s2mode == 'behind':
        sn = snapshot()
        A.done.add('wk')
        role_S2_stage(A)
        gather_addr(A, WS_QG)
        A.vmall(); A.done.update(f'item{j}' for j in range(Stream.nxt))
        n0 = Stream.nxt
        A.stamp('s2_poll')
        gather_issue(A, 'q')
        issue_next(A, O.s2n)
        role_S2_work(A)
        stage_A(A, 1, quota=3 - O.s2n, stamp=False)
        assert Stream.nxt == n0 + 3
        A(f'    s_branch {j1}')
        A(f'{lw}:')
        restore(sn)
        stage_A(A, 1, stamp=False)
        A(f'{j1}:')
    else:
        sn = snapshot()
        A.done.add('wk')
        role_S2_stage(A)
        gather_addr(A, WS_QG)
        n0 = Stream.nxt
        stage_A(A, 1, quota=1, stamp=False)
        A.stamp('s2_poll')
        gather_issue(A, 'q')
        issue_next(A, 2)
        role_S2_work(A)
        assert Stream.nxt == n0 + 3
        A(f'    s_branch {j1}')
        A(f'{lw}:')
        restore(sn)
        stage_A(A, 1, stamp=False)
        A(f'{j1}:')
    A.stamp('A1')
    gather_addr(A, WS_QKG)
    attempt = lambda: gather_issue(A, 'qk')
    raise_l = lambda: (enqueue(A), flush_pend())
    if O.raise_at == 'A1': raise_l()
    if O.attempt == 'A1': attempt()
    hooks = {}
    if O.attempt == 'A2a': hooks[0] = attempt
    if O.attempt == 'A2b': hooks[1] = attempt
    if O.hold:
        h = O.hold
        if h == 1:   hooks = {1: lambda: (attempt(), enqueue(A, 2))}
        elif h == 2: hooks = {0: lambda: (attempt(), enqueue(A, 1)), 1: lambda: enqueue(A, 1)}
        elif h == 3: hooks = {2: lambda: (attempt(), enqueue(A, 2))}
        stage_A(A, 2, hooks, quota=1)
    else:
        stage_A(A, 2, hooks)
    if O.attempt == 'A2' and not O.hold: attempt()
    if O.raise_at == 'A2': raise_l()
    enqueue(A, O.extra); flush_pend()
    A.nop(2)
    for k in range(24):
        A(f'    v_mov_b32 v{V_O+k}, 0')
    get_qk(A)
    sched = O.sched.split()
    for i, st in enumerate(sched):
        k = int(st[1])
        if st[0] == 'A':
            stage_A(A, k, quota=O.qa)
        else:
            nxtB = next((j for j in range(i + 1, len(sched)) if sched[j][0] == 'B'), len(sched))
            strict = any(x[0] == 'A' and int(x[1]) % 3 == k % 3 for x in sched[i + 1:nxtB]) or k == 8
            ia = next((j for j in range(i) if sched[j] == f'A{k}'), -1)
            fresh = ia >= 0 and not any(x[0] == 'B' for x in sched[ia + 1:i])
            stage_B(A, k, quota=O.qb, defer=(O.defer and k != 8), strict=strict, fresh=fresh)
    epilogue(A)
    lr = A.label('TR'); lg = A.label('TG')
    A(f'    s_cmp_eq_u32 s{S_ROLE}, {R_R}')
    A(f'    s_cbranch_scc0 {lr}')
    role_R(A)
    A('    s_branch K_FIN')
    A(f'{lr}:')
    A(f'    s_cmp_eq_u32 s{S_ROLE}, {R_G1}')
    A(f'    s_cbranch_scc1 {lg}')
    A(f'    s_cmp_eq_u32 s{S_ROLE}, {R_G2}')
    A(f'    s_cbranch_scc0 K_FIN')
    A(f'{lg}:')
    role_G(A)
    A('K_FIN:')
    if O.stamp and O.dbg:
        A('    s_waitcnt vmcnt(0)')
        A.stamp('end')
        A(f"""    s_cmp_eq_u32 s{S_WG}, {O.dbgwg}
    s_cbranch_scc0 K_END
    s_cmp_eq_u32 s{S_WAVE}, 0
    s_cbranch_scc0 K_END
    s_load_dwordx2 s[42:43], s[0:1], 64
    v_readlane_b32 s44, v{V_STAMP}, 0
    v_lshlrev_b32 v4, 2, v{V_LANE}
    s_waitcnt lgkmcnt(0)
    v_subrev_u32 v5, s44, v{V_STAMP}
    v_cmp_gt_u32 vcc, 16, v{V_LANE}
    s_and_saveexec_b64 s[{S_EX}:{S_EX+1}], vcc
    global_store_dword v4, v5, s[42:43]
    s_mov_b64 exec, s[{S_EX}:{S_EX+1}]""")
    elif O.stamp:
        A('    s_waitcnt vmcnt(0)')
        A.stamp('end')
        A(f"""    s_lshl_b32 s42, s{S_WG}, 2
    s_add_u32 s42, s42, s{S_WAVE}
    s_lshl_b32 s42, s42, 8
    s_add_u32 s42, s42, {WS_STAMP}
    v_lshlrev_b32 v4, 2, v{V_LANE}
    v_add_u32 v4, s42, v4
    global_store_dword v4, v{V_STAMP}, s[{S_WS}:{S_WS+1}]""")
    A('K_END:')
    A('    s_endpgm')
    assert Stream.nxt >= 27
    return A

def build():
    A = build_kernel()
    txt = A.text()
    for p in check_hazards(txt): print('HAZARD', p, file=sys.stderr)
    ref = open('standalone__detection_seg_dino__vision.s.ref').read().split('\n')
    top = [l for l in ref if l.startswith(';') and '@launch' not in l and 'Override launch' not in l and 'grid=ceil' not in l][:12]
    out = '\n'.join(top) + '\n'
    out += f'; @launch grid=(256,1,1) block=(256,1,1) lds={LDS_BYTES}\n'
    out += '.amdgcn_target "amdgcn-amd-amdhsa--gfx950"\n' + txt
    out += f""".section .rodata,"a"
.p2align 6
.amdhsa_kernel {NAME}
  .amdhsa_next_free_vgpr {256 + NACC}
  .amdhsa_next_free_sgpr 96
  .amdhsa_accum_offset 256
  .amdhsa_group_segment_fixed_size 0
  .amdhsa_kernarg_size 80
  .amdhsa_user_sgpr_count 2
  .amdhsa_user_sgpr_kernarg_segment_ptr 1
  .amdhsa_system_sgpr_workgroup_id_x 1
  .amdhsa_float_denorm_mode_32 3
.end_amdhsa_kernel
"""
    return out, A.labels

if __name__ == '__main__':
    path = sys.argv[1]
    for o in (sys.argv[2].split(',') if len(sys.argv) > 2 else []):
        if o == 'stamp': O.stamp = True
        elif o == 'plain': O.nt = ''
        elif o == 'nodefer': O.defer = False
        elif o == 'nocpf': O.cpf = False
        elif o == 'latef': O.earlyf = False
        elif o.startswith('rthr='): O.rthr = int(o[5:])
        elif o.startswith('s2n='): O.s2n = int(o[4:])
        elif o.startswith('dbg='): O.stamp = True; O.dbgwg = int(o[4:]); O.dbg = ['entry','issued','head','A0','A1','A2','Qk','B0','B4','B8','pub','R_ml','R_done','G2_in','G_done','end']
        elif o == 's1mid': O.s1mid = True
        elif o == 'eager': O.lazy = False
        elif o.startswith('q0='): O.q0 = int(o[3:])
        elif o == 'rcomb': O.rcomb = True
        elif o.startswith('hold='): O.hold = int(o[5:])
        elif o.startswith('s2mode='): O.s2mode = o[7:]
        elif o == 's2drain': O.s2drain = True
        elif o == 'touch': O.touch = True
        elif o.startswith('fine='): O.fine = int(o[5:])
        elif o.startswith('qa='): O.qa = int(o[3:])
        elif o.startswith('s2att='): O.s2att = int(o[6:])
        elif o.startswith('qb='): O.qb = int(o[3:])
        elif o.startswith('att='): O.attempt = o[4:]
        elif o.startswith('extra='): O.extra = int(o[6:])
        elif o.startswith('l0='): O.l0 = int(o[3:])
        elif o.startswith('raise='): O.raise_at = o[6:]
        elif o.startswith('sched='): O.sched = o[6:].replace('-', ' ')
    out, labels = build()
    open(path, 'w').write(out)
    if O.stamp: open(path + '.labels', 'w').write(','.join(labels))
    print('wrote', path, len(out), 'bytes;', out.count('\n'), 'lines')
```

```python
import re

class Asm:
    def __init__(self):
        self.lines = []
    def __call__(self, s=''):
        for l in s.split('\n'):
            self.lines.append(l)
    def nop(self, n):
        while n > 0:
            k = min(n, 16)
            self.lines.append(f'    s_nop {k-1}')
            n -= k
    def text(self):
        return '\n'.join(self.lines) + '\n'

def vr(base, n=1):
    return f'v{base}' if n == 1 else f'v[{base}:{base+n-1}]'
def ar(base, n=1):
    return f'a{base}' if n == 1 else f'a[{base}:{base+n-1}]'
def sr(base, n=1):
    return f's{base}' if n == 1 else f's[{base}:{base+n-1}]'

_REG = re.compile(r'^(-|abs\()?([vas])(?:(\d+)|\[(\d+):(\d+)\])\)?$')

def regs_of(tok):
    tok = tok.strip()
    if tok in ('vcc',): return {('s', 'vcc')}
    if tok == 'exec': return {('s', 'exec')}
    if tok == 'm0': return {('s', 'm0')}
    m = _REG.match(tok)
    if not m: return set()
    k = m.group(2)
    if m.group(3) is not None:
        return {(k, int(m.group(3)))}
    return {(k, x) for x in range(int(m.group(4)), int(m.group(5)) + 1)}

TRANS = ('v_exp_', 'v_log_', 'v_rcp_', 'v_rsq_', 'v_sqrt_', 'v_sin_', 'v_cos_')

class Ins:
    def __init__(self, line, idx):
        self.line = line; self.idx = idx
        s = line.split(';')[0].strip()
        self.op = s.split()[0]
        rest = s[len(self.op):].strip()
        ops = [o.strip() for o in rest.split(',')] if rest else []
        if ops:
            last = ops[-1].split()
            self.mods = ' '.join(last[1:])
            ops[-1] = last[0] if last else ''
        else:
            self.mods = ''
        self.ops = ops
        op = self.op
        self.is_mfma = op.startswith('v_mfma')
        self.is_valu = op.startswith('v_') and not self.is_mfma
        self.is_dot = op.startswith('v_dot')
        self.is_trans = op.startswith(TRANS)
        self.is_dpp = 'dpp' in op or 'row_' in self.mods or 'quad_perm' in self.mods
        self.is_perm = op.startswith('v_permlane')
        self.is_rl = op.startswith('v_readlane') or op.startswith('v_readfirstlane') or op.startswith('v_writelane')
        self.is_vmem = op.startswith(('global_', 'buffer_', 'flat_'))
        self.is_ds = op.startswith('ds_')
        self.is_salu = op.startswith('s_')
        self.dst = set(); self.src = set(); self.srcc = set(); self.srcab = set()
        R = [regs_of(o) for o in ops]
        if self.is_mfma:
            self.dst = R[0]; self.srcab = R[1] | R[2]; self.srcc = R[3]; self.src = self.srcab | self.srcc
            if '16x16x4_f32' in op: self.sgemm = True; self.passes = 8
            elif '32x32x2_f32' in op: self.sgemm = True; self.passes = 16
            elif '32x32' in op: self.sgemm = False; self.passes = 8
            else: self.sgemm = False; self.passes = 4
        elif self.is_valu:
            if op.startswith('v_cmp'):
                self.dst = R[0]; self.src = set().union(*R[1:]) if len(R) > 1 else set()
                if op.startswith('v_cmpx'): self.dst |= {('s', 'exec')}
            elif self.is_perm:
                self.dst = R[0] | R[1]; self.src = R[0] | R[1]
            elif op.startswith(('v_add_co', 'v_sub_co', 'v_addc_co', 'v_subb_co')):
                self.dst = R[0] | R[1]; self.src = set().union(*R[2:])
            else:
                self.dst = R[0]; self.src = set().union(*R[1:]) if len(R) > 1 else set()
                if op.startswith(('v_fmac', 'v_dot2c', 'v_writelane')) : self.src |= R[0]
                if op.startswith('v_cndmask') and len(ops) == 3: self.src |= {('s', 'vcc')}
                if self.is_dpp or 'sdwa' in op:
                    if 'row_mask' in self.mods and 'row_mask:0xf' not in self.mods: self.src |= R[0]
        elif self.is_ds:
            if op.startswith(('ds_read', 'ds_bpermute', 'ds_permute', 'ds_swizzle')):
                self.dst = R[0]; self.src = set().union(*R[1:])
            else:
                self.src = set().union(*R)
        elif self.is_vmem:
            if 'load' in op and 'lds' not in op and ' lds' not in (' ' + self.mods):
                self.dst = R[0]; self.src = set().union(*R[1:])
            elif 'atomic' in op and 'sc0' in self.mods:
                self.dst = R[0]; self.src = set().union(*R[1:])
            else:
                self.src = set().union(*R) if R else set()
            self.wide_store = ('store' in op) and ('x3' in op or 'x4' in op)
        elif self.is_salu:
            if op.startswith(('s_cmp', 's_cbranch', 's_branch', 's_waitcnt', 's_nop', 's_barrier', 's_endpgm', 's_sleep', 's_setprio', 's_bitcmp')):
                self.src = set().union(*R) if R else set()
            else:
                self.dst = R[0] if R else set(); self.src = set().union(*R[1:]) if len(R) > 1 else set()
                if 'saveexec' in op: self.dst |= {('s', 'exec')}
    def states(self):
        if self.op == 's_nop': return int(self.ops[0]) + 1
        return 1

def vg(rs):
    return {r for r in rs if r[0] in 'va'}
def sg(rs):
    return {r for r in rs if r[0] == 's'}

def required(p, c):
    need = 0
    pd = p.dst
    if p.is_mfma:
        D = pd
        tbl_xdl_valu = {2: 5, 4: 8, 8: 12, 16: 20}
        tbl_sg_valu = {2: 4, 4: 6, 8: 10, 16: 18}
        if c.is_mfma:
            if D & c.srcab:
                need = max(need, (tbl_sg_valu if p.sgemm else tbl_xdl_valu)[p.passes])
            if D & c.srcc:
                same = (D == c.srcc) and (p.passes == c.passes) and (p.sgemm == c.sgemm)
                if same:
                    need = max(need, 2 if p.passes == 2 else 0)
                else:
                    if p.sgemm:
                        need = max(need, {2: 2, 4: 4, 8: 8, 16: 16}[p.passes] if c.sgemm else 0)
                    else:
                        need = max(need, ({2: 3, 4: 6, 8: 10, 16: 18} if c.sgemm else {2: 4, 4: 6, 8: 10, 16: 18})[p.passes])
            if D & c.dst and not (D & c.srcc):
                need = max(need, (tbl_sg_valu if p.sgemm else tbl_xdl_valu)[p.passes])
        elif c.is_valu or c.is_vmem or c.is_ds:
            if D & (c.src | c.dst):
                need = max(need, (tbl_sg_valu if p.sgemm else tbl_xdl_valu)[p.passes])
        if c.is_valu and not p.sgemm and (p.srcc & c.dst):
            need = max(need, {2: 1, 4: 3, 8: 7, 16: 15}[p.passes])
    if p.is_valu:
        v = vg(pd); s = sg(pd)
        if c.is_mfma and (v & c.src): need = max(need, 2)
        if c.is_mfma and ('s', 'exec') in pd: need = max(need, 4)
        if c.is_valu:
            if c.is_dpp and (v & c.src): need = max(need, 2)
            if c.is_dpp and ('s', 'exec') in pd: need = max(need, 5)
            if c.is_perm and (v & c.src): need = max(need, 2)
            if c.is_rl and (v & c.src): need = max(need, 1)
            if p.is_trans and not c.is_trans and (v & c.src): need = max(need, 1)
            if s & c.src:
                need = max(need, 4 if c.is_rl else 2)
            if p.is_dot and (v & (c.src | c.dst)):
                if c.op == p.op:
                    srcC = regs_of(c.ops[3]) if len(c.ops) > 3 else c.dst
                    ab = set().union(*[regs_of(o) for o in c.ops[1:3]])
                    if v & ab: need = max(need, 3)
                else:
                    need = max(need, 3)
            if 'sdwa' in p.op and 'dst_sel:DWORD' not in p.mods and (v & c.src): need = max(need, 1)
        if p.is_dot and (c.is_vmem or c.is_ds) and (v & c.src): need = max(need, 3)
        if c.is_vmem and (s & c.src): need = max(need, 5)
    if p.is_vmem and getattr(p, 'wide_store', False):
        data = regs_of(p.ops[1]) if p.op.startswith('global') else regs_of(p.ops[0])
        if data & c.dst:
            need = max(need, 2 if c.is_valu else 1)
    if p.is_salu and ('s', 'm0') in pd and (c.is_vmem and 'lds' in (c.op + c.mods)):
        need = max(need, 1)
    return need

def check_hazards(text, maxlook=24):
    ins = []
    labels = []
    for n, l in enumerate(text.split('\n')):
        s = l.split(';')[0].strip()
        if not s or s.startswith('.') or s.endswith(':'):
            if s.endswith(':'): ins.append(None)
            continue
        ins.append(Ins(l, n + 1))
    ins2 = [x for x in ins if x is not None]
    probs = []
    for a, p in enumerate(ins2):
        if not (p.is_mfma or p.is_valu or p.is_vmem or p.is_salu): continue
        dist = 0
        for b in range(a + 1, min(a + 1 + maxlook, len(ins2))):
            c = ins2[b]
            if p.op in ('s_endpgm', 's_branch'): break
            r = required(p, c)
            if r > dist:
                probs.append(f'line {p.idx}: {p.line.strip()}  ->  line {c.idx}: {c.line.strip()}  needs {r} has {dist}')
            if c.op in ('s_endpgm', 's_branch'): break
            dist += c.states()
            if dist >= 20: break
    return probs

def check_hazards_branches(text, back=24, fwd=24):
    ins = []; labels = {}
    for n, l in enumerate(text.split('\n')):
        s = l.split(';')[0].strip()
        if not s or s.startswith('.'): continue
        if s.endswith(':'):
            labels[s[:-1]] = len(ins); continue
        ins.append(Ins(l, n + 1))
    probs = []
    for b, br in enumerate(ins):
        if not (br.op.startswith('s_cbranch') or br.op == 's_branch'): continue
        tgt = br.ops[0] if br.ops else None
        if tgt not in labels: continue
        t = labels[tgt]
        pre = []
        i = b
        while i >= 0 and len(pre) < back:
            if i != b and ins[i].op in ('s_branch', 's_endpgm'): break
            pre.append(ins[i]); i -= 1
        pre.reverse()
        post = []
        i = t
        while i < len(ins) and len(post) < fwd:
            post.append(ins[i])
            if ins[i].op in ('s_branch', 's_endpgm'): break
            i += 1
        seq = pre + post
        for a in range(len(pre)):
            p = seq[a]
            dist = 0
            for c_i in range(a + 1, len(seq)):
                c = seq[c_i]
                if c_i >= len(pre):
                    r = required(p, c)
                    if r > dist:
                        probs.append(f'[via {br.line.strip()} @ {br.idx}] line {p.idx}: {p.line.strip()} -> line {c.idx}: {c.line.strip()} needs {r} has {dist}')
                dist += c.states()
                if dist >= 20: break
    return probs
```

```python
import sys, struct, math
from asmlib import *

def f2u(x): return struct.unpack('<I', struct.pack('<f', x))[0]
def lit(x): return f'0x{f2u(x):08x}'
NAME = 'standalone__detection_seg_dino__vision_kernel'

class Opt:
    stamp = False
    nt = ' nt'
    extra = 0
    rolesched = 0
    sched_role = 'B0 B1 A2 B2 A3 B3 A4 B4 A5 B5 A6 B6 A7 B7 A8 B8'
    s1early = 2
    s2q = 1
    qtouch = False
    na = 16
    earlyf = True
    rthr = 0
    s2n = 2
    dbg = None
    dbgwg = 28
    s1mid = False
    lazy = True
    q0 = 3
    rcomb = False
    hold = 3
    s2mode = 'spin0'
    s2drain = True
    cpf = True
    touch = False
    wsoff = 0
    fine = -1
    defer = True
    s2att = 1
    qa = 2
    qb = 1
    spread = True
    l0 = 2
    raise_at = 'A2'
    attempt = 'A2b'
    sched = 'B0 A3 B1 B2 A4 B3 B4 A5 B5 A6 B6 A7 B7 A8 B8'
O = Opt()

WS_EPOCH = 0x0
WS_QG    = 0x1000
WS_QKG   = 0x8000
WS_CTXN  = 0x10000
WS_CTX   = 0x18000
WS_ML    = 0x20000
WS_QGA   = 0x40000
WS_QGB   = 0x50000
WS_CTXA  = 0x60000
WS_PART  = 0x100000
WS_STAMP = 0x800000
SEL_LO, SEL_HI = 0x00003F80, 0x3F800000

RAW = [8, 68]
V_T   = 128
V_STG = 152
V_O   = 160
V_S, V_R, V_G, V_D = 184, 188, 192, 196
V_P   = 200
V_MREF, V_L, V_SQ, V_ONEF, V_EPS = 202, 203, 204, 205, 206
V_F0OFF, V_F1OFF = 207, 208
V_LDSW, V_LDSR0, V_LDSR1, V_LDSF = 209, 210, 211, 212
V_PW, V_PR, V_MB, V_LANE = 213, 214, 215, 216
V_CW, V_CR0, V_CR1, V_CF = 217, 218, 219, 220
V_U = 221
V_FW, V_FR = 254, 255
V_GA = 222
V_L16 = 223
V_GB = 224
V_Q = 248
V_STAMP = 253
A_QK, A_X, A_F, A_P, A_ONES, A_W = 0, 48, 96, 144, 152, 156
NACC = 180
S_F0, S_F1, S_WS = 4, 6, 8
S_BSET = [10, 44]
S_WAVE, S_WG, S_T = 16, 17, 19
S_SELLO, S_SELHI, S_C384 = 20, 21, 23
S_MASK = 26
S_TMP = 34
S_TAG, S_EPOCH, S_ROLE, S_JOB = 50, 51, 52, 53
S_Q, S_OUT = 54, 58
S_SPIN = 60
S_COPY = 74
S_THR = 61
S_EX = 62
S_WQ, S_WK, S_WV, S_WO = 64, 66, 68, 70
R_NONE, R_S1, R_S2, R_G1, R_G2, R_R = 0, 1, 2, 3, 4, 5
SPIN_MAX = 1 << 18
SLOT = 49152
L_QKL  = 3 * SLOT
L_PBUF = L_QKL + 12288
L_MBUF = L_PBUF + 2048
L_LBUF = L_MBUF + 64
L_FLAG = L_LBUF + 512
LDS_BYTES = L_FLAG + 1024
assert LDS_BYTES <= 163840
L_HEAD = 2 * SLOT
L_STAT = L_HEAD + 6144
L_RED_H = L_HEAD
L_TR   = SLOT
L_RED_T = SLOT + 4608
L_RB   = 0

class Gen(Asm):
    def __init__(self):
        super().__init__()
        self.vm = []
        self.uid = 0
        self.nstamp = 0
        self.labels = []
        self.done = set()
    def vmop(self, line, tag):
        self(line); self.vm.append(tag)
    def vmwait(self, tag):
        hits = [i for i, t in enumerate(self.vm) if t == tag]
        if not hits:
            assert tag in self.done, tag
            return
        idx = hits[-1]
        self.done.update(self.vm[:idx + 1])
        n = len(self.vm) - 1 - idx
        assert n <= 63, n
        self(f'    s_waitcnt vmcnt({n})')
        self.vm = self.vm[idx + 1:]
    def vmall(self):
        self('    s_waitcnt vmcnt(0)'); self.vm = []
    def label(self, base):
        self.uid += 1
        return f'{base}_{self.uid}'
    def stamp(self, name):
        if not O.stamp: return
        if O.dbg and name not in O.dbg: return
        idx = len(self.labels)
        assert idx < 64
        self.labels.append(name)
        self('    s_memrealtime s[40:41]')
        self('    s_waitcnt lgkmcnt(0)')
        self(f'    v_writelane_b32 v{V_STAMP}, s40, {idx}')

def xgroup_reduce(A, op, v, t):
    A(f'    v_mov_b32 v{t}, v{v}')
    A.nop(2)
    A(f'    v_permlane32_swap_b32 v{t}, v{v}')
    A(f'    {op} v{v}, v{v}, v{t}')
    A(f'    v_mov_b32 v{t}, v{v}')
    A.nop(2)
    A(f'    v_permlane16_swap_b32 v{t}, v{v}')
    A(f'    {op} v{v}, v{v}, v{t}')

def multi_xgroup(A, op, vs, ts):
    for sw in ('32', '16'):
        for v, t in zip(vs, ts): A(f'    v_mov_b32 v{t}, v{v}')
        if len(vs) < 3: A.nop(3 - len(vs))
        for v, t in zip(vs, ts): A(f'    v_permlane{sw}_swap_b32 v{t}, v{v}')
        for v, t in zip(vs, ts): A(f'    {op} v{v}, v{v}, v{t}')

def multi_row(A, op, vs, rots=(8, 4, 2, 1)):
    for rot in rots:
        if len(vs) < 3: A.nop(3 - len(vs))
        for v in vs: A(f'    {op}_dpp v{v}, v{v}, v{v} row_ror:{rot} row_mask:0xf bank_mask:0xf')

def tile_bases(A, u):
    S_B0 = S_BSET[u]; S_B1 = S_B0 + 2; S_BF = S_B0 + 4
    A(f'''    s_mul_hi_u32 s{S_TMP}, s{S_T}, 89478486
    s_mul_i32 s{S_TMP+1}, s{S_TMP}, 48
    s_sub_u32 s{S_TMP+1}, s{S_T}, s{S_TMP+1}
    s_mul_i32 s{S_TMP}, s{S_TMP}, 589824
    s_mul_i32 s{S_TMP+1}, s{S_TMP+1}, 6144
    s_add_u32 s{S_TMP}, s{S_TMP}, s{S_TMP+1}
    s_add_u32 s{S_B0}, s{S_F0}, s{S_TMP}
    s_addc_u32 s{S_B0+1}, s{S_F0+1}, 0
    s_add_u32 s{S_B1}, s{S_B0}, 294912
    s_addc_u32 s{S_B1+1}, s{S_B0+1}, 0
    s_mul_i32 s{S_TMP}, s{S_T}, 3072
    s_add_u32 s{S_BF}, s{S_F1}, s{S_TMP}
    s_addc_u32 s{S_BF+1}, s{S_F1+1}, 0
    s_add_u32 s{S_T}, s{S_T}, 4''')

def issue_item(A, j):
    if j > 26: return
    tile, third = divmod(j, 3); u = tile & 1
    if third == 0 and j > 0: tile_bases(A, u)
    S_B0 = S_BSET[u]; S_B1 = S_B0 + 2; S_BF = S_B0 + 4
    b = RAW[u]
    r = b + 48 + 4 * third
    A.vmop(f'    global_load_dwordx4 v[{r}:{r+3}], v{V_F1OFF}, s[{S_BF}:{S_BF+1}] offset:{third*256}{O.nt}', f'item{j}')
    for jj in range(4):
        dy, dx = jj >> 1, jj & 1
        r = b + 16 * third + 4 * jj
        base = S_B1 if dy else S_B0
        A.vmop(f'    global_load_dwordx4 v[{r}:{r+3}], v{V_F0OFF}, s[{base}:{base+1}] offset:{dx*768+third*256}{O.nt}', f'item{j}')

class Stream:
    nxt = 0
    done = 0
    pend = []
def enqueue(A, n=1):
    for _ in range(n):
        if Stream.nxt <= 26 and Stream.nxt < Stream.done + 6:
            Stream.pend += item_steps(A)
def pop(n=1):
    for _ in range(n):
        if Stream.pend: Stream.pend.pop(0)()
def flush_pend():
    pop(len(Stream.pend))
def issue_next(A, n=1):
    for _ in range(n):
        issue_item(A, Stream.nxt); Stream.nxt += 1

def item_steps(A):
    j = Stream.nxt; Stream.nxt += 1
    if j > 26: return []
    tile, third = divmod(j, 3); u = tile & 1
    S_B0 = S_BSET[u]; S_B1 = S_B0 + 2; S_BF = S_B0 + 4
    b = RAW[u]
    steps = []
    def first():
        if third == 0: tile_bases(A, u)
        r = b + 48 + 4 * third
        A.vmop(f'    global_load_dwordx4 v[{r}:{r+3}], v{V_F1OFF}, s[{S_BF}:{S_BF+1}] offset:{third*256}{O.nt}', f'item{j}')
    steps.append(first)
    for jj in range(4):
        def f(jj=jj):
            dy, dx = jj >> 1, jj & 1
            r = b + 16 * third + 4 * jj
            base = S_B1 if dy else S_B0
            A.vmop(f'    global_load_dwordx4 v[{r}:{r+3}], v{V_F0OFF}, s[{base}:{base+1}] offset:{dx*768+third*256}{O.nt}', f'item{j}')
        steps.append(f)
    return steps

def stage_A(A, k, hooks=None, quota=3, stamp=True):
    hooks = hooks or {}
    u = k & 1; b = RAW[u]; T = V_T
    A(f'    v_add_u32 v{V_CW}, {(k % 3) * SLOT}, v{V_LDSW}')
    if PV.pending: A('    s_waitcnt lgkmcnt(0)')
    units = [(third, dd) for third in range(3) for dd in range(4)]
    def tset(i): return T + 10 * (i & 1)
    def U(i):
        third, dd = units[i]; t = tset(i); f1 = b + 48 + 4 * third + dd
        return [f'    v_lshlrev_b32 v{t+8}, 16, v{f1}', f'    v_and_b32 v{t+9}, 0xffff0000, v{f1}']
    def D(i):
        third, dd = units[i]; t = tset(i)
        return ([f'    v_dot2_f32_bf16 v{t+j}, v{b+16*third+4*j+dd}, s{S_SELLO}, v{t+8}' for j in range(4)] +
                [f'    v_dot2_f32_bf16 v{t+4+j}, v{b+16*third+4*j+dd}, s{S_SELHI}, v{t+9}' for j in range(4)])
    def C(i):
        t = tset(i); o = V_STG + 4 * (i & 1)
        return [f'    v_cvt_pk_bf16_f32 v{o+kk}, v{t+2*kk}, v{t+2*kk+1}' for kk in range(4)]
    def W(i):
        third, dd = units[i]; o = V_STG + 4 * (i & 1)
        return f'    ds_write_b128 v{V_CW}, v[{o}:{o+3}] offset:{(third*4+dd)*1024}'
    enq = {0: 1, 4: 1, 8: 1} if quota == 3 else ({0: 1, 6: 1} if quota == 2 else ({0: 1} if quota == 1 else {}))
    def ensure(j):
        while any(True for _ in Stream.pend) and f'item{j}' not in A.done and A.vm.count(f'item{j}') < 5: pop()
        while Stream.nxt <= j: Stream.pend += item_steps(A); flush_pend()
    ensure(3 * k); A.vmwait(f'item{3*k}')
    enqueue(A, enq.get(0, 0))
    u0 = U(0); d0 = D(0)
    for l in u0 + d0[:4]: A(l)
    pop()
    for l in d0[4:]: A(l)
    for i in range(1, 12):
        if i % 4 == 0:
            Stream.done = 3 * k + i // 4
            ensure(3 * k + i // 4); A.vmwait(f'item{3*k + i//4}')
        enqueue(A, enq.get(i, 0))
        for l in U(i): A(l)
        if quota == 3 and i % 4 in (0, 2): pop()
        d = D(i); c = C(i - 1)
        for kk in range(4):
            A(d[kk]); A(c[kk])
        pv_pop(A, 2)
        A(W(i - 1))
        pop()
        for kk in range(4, 8): A(d[kk])
        if i % 4 == 3 and (i // 4) in hooks: hooks[i // 4]()
    Stream.done = 3 * k + 3
    flush_pend()
    A.nop(1)
    for l in C(11): A(l)
    pv_flush(A)
    A(W(11))
    if stamp: A.stamp(f'A{k}')

class PV:
    pending = []
def pv_steps():
    out = []
    for wp in range(4):
        for third in range(3):
            for e1 in range(2):
                f = A_F + (wp * 3 + third) * 4 + 2 * e1
                o = V_O + (third * 2 + e1) * 4
                out.append(f'    v_mfma_f32_16x16x16_bf16 v[{o}:{o+3}], a[{f}:{f+1}], a[{A_P+2*wp}:{A_P+2*wp+1}], v[{o}:{o+3}]')
    return out
def pv_pop(A, n=1):
    for _ in range(n):
        if PV.pending: A(PV.pending.pop(0))
def pv_flush(A):
    pv_pop(A, len(PV.pending))

def f_reads(A):
    for wp in range(4):
        for third in range(3):
            r = A_F + (wp * 3 + third) * 4
            A(f'    ds_read_b128 a[{r}:{r+3}], v{V_CF} offset:{wp*12288 + third*4096}')
def p_off(k): return 0 if (k & 1) else L_PBUF - L_QKL
def flag_off(k): return 0 if (k & 1) else L_FLAG - (L_QKL + 4096)
def p_reads(A, k):
    for wp in range(4):
        A(f'    ds_read_b64 a[{A_P+2*wp}:{A_P+2*wp+1}], v{V_PR} offset:{wp*512 + p_off(k)}')

def eager_softmax(A, k, strict, fine):
    T = V_T
    for r in range(4):
        A(f'    v_fma_f32 v{V_S+r}, -v{V_R+r}, v{V_SQ}, v{V_S+r}')
    for r in range(4):
        A(f'    v_mul_f32 v{V_S+r}, v{V_S+r}, v{V_D+r}')
    A(f'    v_max3_f32 v{T}, v{V_S}, v{V_S+1}, v{V_S+2}')
    A(f'    v_max_f32 v{T}, v{T}, v{V_S+3}')
    if fine: A.stamp('b_z')
    A(f'    ds_max_f32 v{V_MB}, v{T}')
    A('    s_waitcnt lgkmcnt(0)')
    if fine: A.stamp('b_pre1')
    A('    s_barrier')
    if fine: A.stamp('b_post1')
    A(f'    ds_read_b32 v{T+1}, v{V_MB}')
    A('    s_waitcnt lgkmcnt(0)')
    if fine: A.stamp('b_m(+F)')
    A(f'    v_sub_f32 v{T+2}, v{V_MREF}, v{T+1}')
    for r in range(4):
        A(f'    v_sub_f32 v{V_S+r}, v{V_S+r}, v{T+1}')
    A(f'    v_exp_f32 v{T+2}, v{T+2}')
    for r in range(4):
        A(f'    v_exp_f32 v{V_S+r}, v{V_S+r}')
    A(f'    v_mov_b32 v{V_MREF}, v{T+1}')
    for r in range(4):
        A(f'    v_mul_f32 v{T+4+r}, v{V_S+r}, v{V_D+r}')
    A(f'    v_add_f32 v{V_S}, v{V_S}, v{V_S+1}')
    A(f'    v_cvt_pk_bf16_f32 v{V_P}, v{T+4}, v{T+5}')
    A(f'    v_cvt_pk_bf16_f32 v{V_P+1}, v{T+6}, v{T+7}')
    A(f'    v_add_f32 v{V_S+2}, v{V_S+2}, v{V_S+3}')
    A(f'    ds_write_b64 v{V_PW}, v[{V_P}:{V_P+1}] offset:{p_off(0)}')
    for wp in range(4):
        for third in range(3):
            r = A_F + (wp * 3 + third) * 4
            A(f'    ds_read_b128 a[{r}:{r+3}], v{V_CF} offset:{wp*12288 + third*4096}')
    A(f'    v_add_f32 v{V_S}, v{V_S}, v{V_S+2}')
    A(f'    v_fma_f32 v{V_L}, v{V_L}, v{T+2}, v{V_S}')
    A(f'    v_mul_f32 v{V_U}, v{V_U}, v{T+2}')
    A(f'    v_lshlrev_b32 v{T+4}, 16, v{V_P}')
    A(f'    v_and_b32 v{T+5}, 0xffff0000, v{V_P}')
    A(f'    v_lshlrev_b32 v{T+6}, 16, v{V_P+1}')
    A(f'    v_and_b32 v{T+7}, 0xffff0000, v{V_P+1}')
    for r in range(4):
        A(f'    v_fmac_f32 v{V_U}, v{T+4+r}, v{V_R+r}')
    for kk in range(0, 24, 2):
        A(f'    v_pk_mul_f32 v[{V_O+kk}:{V_O+kk+1}], v[{V_O+kk}:{V_O+kk+1}], v[{T+2}:{T+3}] op_sel_hi:[1,0]')
    if fine: A.stamp('b_P')
    A(f'    s_waitcnt lgkmcnt({0 if strict else 12})')
    A('    s_barrier')
    if fine: A.stamp('b_post2')
    for wp in range(4):
        A(f'    ds_read_b64 a[{A_P+2*wp}:{A_P+2*wp+1}], v{V_PR} offset:{wp*512 + p_off(0)}')

def lazy_softmax(A, k, strict, fine, early=False):
    T = V_T; AR = T + 8; PP = T + 4; DL = T + 12; DU = T + 13
    slow = A.label('BS'); join = A.label('BJ')
    def p_from_args():
        for r in range(4): A(f'    v_exp_f32 v{AR+r}, v{AR+r}')
        A('    s_nop 0')
        for r in range(0, 4, 2):
            A(f'    v_pk_mul_f32 v[{PP+r}:{PP+r+1}], v[{AR+r}:{AR+r+1}], v[{V_D+r}:{V_D+r+1}]')
        A(f'    v_cvt_pk_bf16_f32 v{V_P}, v{PP}, v{PP+1}')
        A(f'    v_cvt_pk_bf16_f32 v{V_P+1}, v{PP+2}, v{PP+3}')
        A(f'    ds_write_b64 v{V_PW}, v[{V_P}:{V_P+1}] offset:{p_off(k)}')
    def increments():
        A(f'    v_add_f32 v{AR}, v{AR}, v{AR+1}')
        A(f'    v_add_f32 v{AR+2}, v{AR+2}, v{AR+3}')
        A(f'    v_lshlrev_b32 v{PP}, 16, v{V_P}')
        A(f'    v_and_b32 v{PP+1}, 0xffff0000, v{V_P}')
        A(f'    v_lshlrev_b32 v{PP+2}, 16, v{V_P+1}')
        A(f'    v_and_b32 v{PP+3}, 0xffff0000, v{V_P+1}')
        A(f'    v_add_f32 v{DL}, v{AR}, v{AR+2}')
        A(f'    v_mul_f32 v{DU}, v{PP}, v{V_R}')
        A(f'    v_mul_f32 v{PP}, v{PP+1}, v{V_R+1}')
        A(f'    v_fmac_f32 v{DU}, v{PP+2}, v{V_R+2}')
        A(f'    v_fmac_f32 v{PP}, v{PP+3}, v{V_R+3}')
        A(f'    v_add_f32 v{DU}, v{DU}, v{PP}')
    for r in range(0, 4, 2):
        A(f'    v_pk_fma_f32 v[{V_S+r}:{V_S+r+1}], v[{V_R+r}:{V_R+r+1}], v[{V_SQ}:{V_SQ+1}], v[{V_S+r}:{V_S+r+1}] op_sel_hi:[1,0,1] neg_lo:[1,0,0] neg_hi:[1,0,0]')
    for r in range(0, 4, 2):
        A(f'    v_pk_fma_f32 v[{AR+r}:{AR+r+1}], v[{V_S+r}:{V_S+r+1}], v[{V_D+r}:{V_D+r+1}], v[{V_MREF}:{V_MREF+1}] op_sel_hi:[1,1,0] neg_lo:[0,0,1] neg_hi:[0,0,1]')
    A(f'    v_max3_f32 v{T}, v{AR}, v{AR+1}, v{AR+2}')
    A(f'    v_max_f32 v{T}, v{T}, v{AR+3}')
    A(f'    v_cmp_lt_f32 vcc, s{S_THR}, v{T}')
    if fine: A.stamp('b_z')
    p_from_args()
    A(f'    v_cndmask_b32 v{T}, 0, 1, vcc')
    A(f'    ds_write_b32 v{V_FW}, v{T} offset:{flag_off(k)}')
    increments()
    if fine: A.stamp('b_P')
    A('    s_waitcnt lgkmcnt(0)')
    A('    s_barrier')
    if fine: A.stamp('b_post')
    A(f'    ds_read_b128 v[{T}:{T+3}], v{V_FR} offset:{flag_off(k)}')
    p_reads(A, k)
    if early:
        A('    s_waitcnt lgkmcnt(4)')
    else:
        f_reads(A)
        A('    s_waitcnt lgkmcnt(15)')
    A(f'    v_or3_b32 v{T}, v{T}, v{T+1}, v{T+2}')
    A(f'    v_or_b32 v{T}, v{T}, v{T+3}')
    A(f'    v_cmp_ne_u32 vcc, 0, v{T}')
    A(f'    s_cbranch_vccz {join}')
    for r in range(4): A(f'    v_mul_f32 v{AR+r}, v{V_S+r}, v{V_D+r}')
    A(f'    v_max3_f32 v{T}, v{AR}, v{AR+1}, v{AR+2}')
    A(f'    v_max_f32 v{T}, v{T}, v{AR+3}')
    A(f'    ds_max_f32 v{V_MB}, v{T}')
    A('    s_waitcnt lgkmcnt(0)')
    A('    s_barrier')
    A(f'    ds_read_b32 v{T+1}, v{V_MB}')
    A('    s_waitcnt lgkmcnt(0)')
    A(f'    v_sub_f32 v{T+2}, v{V_MREF}, v{T+1}')
    for r in range(4): A(f'    v_sub_f32 v{AR+r}, v{AR+r}, v{T+1}')
    A(f'    v_exp_f32 v{T+2}, v{T+2}')
    A(f'    v_mov_b32 v{V_MREF}, v{T+1}')
    p_from_args()
    A(f'    v_mul_f32 v{V_L}, v{V_L}, v{T+2}')
    A(f'    v_mul_f32 v{V_U}, v{V_U}, v{T+2}')
    for kk in range(0, 24, 2):
        A(f'    v_pk_mul_f32 v[{V_O+kk}:{V_O+kk+1}], v[{V_O+kk}:{V_O+kk+1}], v[{T+2}:{T+3}] op_sel_hi:[1,0]')
    increments()
    A('    s_waitcnt lgkmcnt(0)')
    A('    s_barrier')
    p_reads(A, k)
    A(f'{join}:')
    A(f'    v_add_f32 v{V_L}, v{V_L}, v{DL}')
    A(f'    v_add_f32 v{V_U}, v{V_U}, v{DU}')
    if strict and k != 8:
        A('    s_waitcnt lgkmcnt(0)')
        A('    s_barrier')

def stage_B(A, k, quota=1, defer=True, strict=True, fresh=True, stamp=True):
    T = V_T; so = (k % 3) * SLOT
    early = O.earlyf and O.lazy
    enqueue(A, quota)
    A(f'    v_add_u32 v{V_CR0}, {so}, v{V_LDSR0}')
    A(f'    v_add_u32 v{V_CR1}, {so}, v{V_LDSR1}')
    A(f'    v_add_u32 v{V_CF}, {so}, v{V_LDSF}')
    if PV.pending or (early and fresh): A('    s_waitcnt lgkmcnt(0)')
    if early and fresh: A('    s_barrier')
    n = 0
    for bb in range(12):
        for a2 in range(2):
            r = A_X + 4 * bb + 2 * a2
            A(f'    ds_read_b64_tr_b16 a[{r}:{r+1}], v{V_CR0+a2} offset:{bb*1024}')
            n += 1
            pv_pop(A)
    pv_flush(A)
    fine = (O.fine == k)
    if fine: A.stamp('b_tr')
    def X(bb): return f'a[{A_X+4*bb}:{A_X+4*bb+3}]'
    def G(bb): A(f'    v_mfma_f32_16x16x32_bf16 v[{V_G}:{V_G+3}], {X(bb)}, {X(bb)}, ' + ('0' if bb == 0 else f'v[{V_G}:{V_G+3}]'))
    def R(bb): A(f'    v_mfma_f32_16x16x32_bf16 v[{V_R}:{V_R+3}], {X(bb)}, a[{A_ONES}:{A_ONES+3}], ' + ('0' if bb == 0 else f'v[{V_R}:{V_R+3}]'))
    def S(bb): A(f'    v_mfma_f32_16x16x32_bf16 v[{V_S}:{V_S+3}], {X(bb)}, a[{A_QK+4*bb}:{A_QK+4*bb+3}], ' + ('0' if bb == 0 else f'v[{V_S}:{V_S+3}]'))
    fl = []
    if early:
        for wp in range(4):
            for third in range(3):
                r = A_F + (wp * 3 + third) * 4
                fl.append(f'    ds_read_b128 a[{r}:{r+3}], v{V_CF} offset:{wp*12288 + third*4096}')
    nf = 0
    for bb in range(12):
        if bb % 3 == 0:
            A(f'    s_waitcnt lgkmcnt({min(15, 24 - 2*(bb+3) + nf)})')
        G(bb)
        if fl: A(fl.pop(0)); nf += 1
        if bb % 2 == 1 and bb < 11: pop()
    flush_pend()
    if fine: A.stamp('b_G')
    for bb in range(8): R(bb)
    for r in range(4):
        src0 = '0' if r == 0 else f'v{T}'
        A(f'    v_cndmask_b32 v{T}, {src0}, v{V_G+r}, s[{S_MASK+2*r}:{S_MASK+2*r+1}]')
        R(8 + r)
    S(0)
    A(f'    v_mfma_f32_16x16x4_f32 v[{V_D}:{V_D+3}], v{T}, v{V_ONEF}, 0')
    for bb in range(1, 7): S(bb)
    for r in range(4):
        A(f'    v_mul_f32 v{V_R+r}, s{S_C384}, v{V_R+r}')
        S(7 + r)
    for r in range(4):
        A(f'    v_fma_f32 v{T+r}, -v{V_R+r}, v{V_R+r}, v{V_EPS}')
        if r == 1: S(11)
    for r in range(4):
        A(f'    v_fma_f32 v{V_D+r}, v{V_D+r}, s{S_C384}, v{T+r}')
    for r in range(4):
        A(f'    v_rsq_f32 v{V_D+r}, v{V_D+r}')
    if O.lazy:
        lazy_softmax(A, k, strict and not early, fine, early)
    else:
        eager_softmax(A, k, strict, fine)
    PV.pending = pv_steps()
    if not defer:
        if k == 8: epilogue_pre(A)
        A('    s_waitcnt lgkmcnt(0)')
        pv_flush(A)
    if stamp: A.stamp(f'B{k}')

def gather_addr(A, ws_off):
    A(f'    s_mul_i32 s{S_TMP}, s{S_WAVE}, 6144')
    A(f'    s_add_u32 s{S_TMP}, s{S_TMP}, {ws_off + 2048}')
    A(f'    v_add_u32 v{V_GA}, s{S_TMP}, v{V_L16}')

def gather_issue(A, track=None):
    for kk in range(3):
        for h in range(2):
            r = V_GB + 8 * kk + 4 * h
            line = f'    global_load_dwordx4 v[{r}:{r+3}], v{V_GA}, s[{S_WS}:{S_WS+1}] offset:{kk*2048 + h*1024 - 2048} sc1'
            if track: A.vmop(line, track)
            else: A(line)

def gather_check(A):
    T = V_T
    for kk in range(3):
        A(f'    v_xor_b32 v{T+2*kk}, s{S_TAG}, v{V_GB+8*kk}')
        A(f'    v_xor_b32 v{T+2*kk+1}, s{S_TAG}, v{V_GB+8*kk+6}')
    A(f'    v_or3_b32 v{T}, v{T}, v{T+1}, v{T+2}')
    A(f'    v_or3_b32 v{T+3}, v{T+3}, v{T+4}, v{T+5}')
    A(f'    v_or_b32 v{T}, v{T}, v{T+3}')
    A(f'    v_cmp_ne_u32 vcc, 0, v{T}')

def spin_guard(A, lbl_retry):
    A(f'    s_add_u32 s{S_SPIN}, s{S_SPIN}, 1')
    A(f'    s_cmp_lt_u32 s{S_SPIN}, {SPIN_MAX}')
    A(f'    s_cbranch_scc0 K_END')
    A(f'    s_sleep 1')

def gather_loop(A):
    l = A.label('GL'); d = A.label('GD')
    A(f'{l}:')
    gather_issue(A)
    A('    s_waitcnt vmcnt(0)')
    gather_check(A)
    A(f'    s_cbranch_vccz {d}')
    spin_guard(A, l)
    A(f'    s_branch {l}')
    A(f'{d}:')

def publish8(A, dreg, ws_off_sgpr):
    A(f'    v_mov_b32 v{dreg}, s{S_TAG}')
    A(f'    v_mov_b32 v{dreg+1}, 0')
    A(f'    v_mov_b32 v{dreg+6}, s{S_TAG}')
    A(f'    v_mov_b32 v{dreg+7}, 0')
    A(f'    v_add_u32 v1, s{ws_off_sgpr}, v{V_L16}')
    A(f'    global_store_dwordx4 v1, v[{dreg}:{dreg+3}], s[{S_WS}:{S_WS+1}] sc1')
    A(f'    global_store_dwordx4 v1, v[{dreg+4}:{dreg+7}], s[{S_WS}:{S_WS+1}] offset:1024 sc1')

def publish8_dual(A, dreg, off_a_sgpr, delta_b):
    A(f'    v_mov_b32 v{dreg}, s{S_TAG}')
    A(f'    v_mov_b32 v{dreg+1}, 0')
    A(f'    v_mov_b32 v{dreg+6}, s{S_TAG}')
    A(f'    v_mov_b32 v{dreg+7}, 0')
    A(f'    v_add_u32 v1, s{off_a_sgpr}, v{V_L16}')
    A(f'    v_add_u32 v2, {delta_b & 0xffffffff}, v1')
    A(f'    global_store_dwordx4 v1, v[{dreg}:{dreg+3}], s[{S_WS}:{S_WS+1}]')
    A(f'    global_store_dwordx4 v1, v[{dreg+4}:{dreg+7}], s[{S_WS}:{S_WS+1}] offset:1024')
    A(f'    global_store_dwordx4 v2, v[{dreg}:{dreg+3}], s[{S_WS}:{S_WS+1}] sc1')
    A(f'    global_store_dwordx4 v2, v[{dreg+4}:{dreg+7}], s[{S_WS}:{S_WS+1}] offset:1024 sc1')

def gather_loop_dual(A, delta_b, na=3):
    l = A.label('GL'); li = A.label('GI'); d = A.label('GD')
    A(f'{l}:')
    A(f'    s_mov_b32 s{S_TMP+3}, 0')
    A(f'{li}:')
    gather_issue(A)
    A('    s_waitcnt vmcnt(0)')
    gather_check(A)
    A(f'    s_cbranch_vccz {d}')
    A(f'    s_add_u32 s{S_TMP+3}, s{S_TMP+3}, 1')
    A(f'    s_cmp_lt_u32 s{S_TMP+3}, {na}')
    A(f'    s_cbranch_scc1 {li}')
    A(f'    v_add_u32 v{V_GA}, {delta_b & 0xffffffff}, v{V_GA}')
    gather_issue(A)
    A(f'    v_subrev_u32 v{V_GA}, {delta_b & 0xffffffff}, v{V_GA}')
    A('    s_waitcnt vmcnt(0)')
    gather_check(A)
    A(f'    s_cbranch_vccz {d}')
    spin_guard(A, l)
    A(f'    s_branch {l}')
    A(f'{d}:')

def slab_addr(A, perm):
    A(f'''    v_lshrrev_b32 v1, 2, v{V_LANE}
    s_mul_i32 s{S_TMP}, s{S_WAVE}, 96
    v_add_u32 v1, s{S_TMP}, v1            ; p (x = 0)
    v_and_b32 v{V_T}, 3, v{V_LANE}
    v_lshlrev_b32 v{V_T}, 4, v{V_T}
    s_lshl_b32 s{S_TMP}, s{S_JOB}, 6
    v_add_u32 v{V_T}, s{S_TMP}, v{V_T}''')
    for x in range(6):
        d = 2 + x
        if not perm:
            A(f'    v_add_u32 v{d}, {16*x}, v1')
        else:
            t = V_T + 1; kk = x >> 1
            A(f"""    v_lshrrev_b32 v{t}, 2, v{V_LANE}
    v_add_u32 v{t}, {16*(x&1)}, v{t}          ; p & 31
    v_bfe_u32 v{t+1}, v{t}, 1, 2              ; dw
    v_cmp_eq_u32 vcc, 3, v{t+1}
    v_lshlrev_b32 v{t+1}, 7, v{t+1}
    v_add_u32 v{t+1}, {32*kk}, v{t+1}
    v_mov_b32 v{t+2}, {kk*128 + 96}
    v_cndmask_b32 v{t+1}, v{t+1}, v{t+2}, vcc
    v_lshrrev_b32 v{t+2}, 3, v{t}
    v_lshlrev_b32 v{t+2}, 3, v{t+2}           ; 8g
    v_and_b32 v{t}, 1, v{t}
    v_add3_u32 v{t+1}, v{t+1}, v{t+2}, v{t}
    s_lshl_b32 s{S_TMP+1}, s{S_WAVE}, 1
    v_add_u32 v{d}, s{S_TMP+1}, v{t+1}""")
        A(f'    v_mul_u32_u24 v{d}, 768, v{d}')
        A(f'    v_add_u32 v{d}, v{d}, v{V_T}')

def slab_loads(A, sptr, dst, track=None):
    for x in range(6):
        line = f'    global_load_dwordx4 v[{dst+4*x}:{dst+4*x+3}], v{2+x}, s[{sptr}:{sptr+1}]'
        if track: A.vmop(line, track)
        else: A(line)

def slab_to_operands(A, src, lds_base):
    A(f'''    s_mul_i32 s{S_TMP}, s{S_WAVE}, 12288
    s_add_u32 s{S_TMP}, s{S_TMP}, {lds_base}
    v_add_u32 v1, s{S_TMP}, v{V_L16}''')
    for x in range(6):
        A(f'    ds_write_b128 v1, v[{src+4*x}:{src+4*x+3}] offset:{x*1024}')
    A(f'''    v_lshrrev_b32 v2, 4, v{V_LANE}
    v_lshlrev_b32 v2, 9, v2               ; g*512
    v_bfe_u32 v3, v{V_LANE}, 2, 2
    v_lshlrev_b32 v3, 6, v3               ; r*64
    v_and_b32 v4, 3, v{V_LANE}
    v_lshlrev_b32 v4, 4, v4               ; c*16
    v_add3_u32 v2, v2, v3, v4
    v_add_u32 v2, s{S_TMP}, v2''')
    for kk in range(3):
        for tb in range(2):
            for hf in range(2):
                r = A_W + (kk * 2 + tb) * 4 + 2 * hf
                A(f'    ds_read_b64_tr_b16 a[{r}:{r+1}], v2 offset:{kk*2048 + hf*256 + tb*8}')

def gemm6(A, bregs):
    for kk in range(3):
        for tb in range(2):
            d = V_S if tb == 0 else V_R
            c = '0' if kk == 0 else f'v[{d}:{d+3}]'
            w = A_W + (kk * 2 + tb) * 4
            A(f'    v_mfma_f32_16x16x32_bf16 v[{d}:{d+3}], a[{w}:{w+3}], {bregs(kk)}, {c}')

def cross_wave_sum(A, red):
    skip = A.label('XW'); w0 = A.label('XW0')
    A.nop(8)
    A(f'''    s_cmp_eq_u32 s{S_WAVE}, 0
    s_cbranch_scc1 {w0}
    s_sub_u32 s{S_TMP}, s{S_WAVE}, 1
    s_lshl_b32 s{S_TMP}, s{S_TMP}, 11
    s_add_u32 s{S_TMP}, s{S_TMP}, {red}
    v_add_u32 v1, s{S_TMP}, v{V_L16}
    ds_write_b128 v1, v[{V_S}:{V_S+3}]
    ds_write_b128 v1, v[{V_R}:{V_R+3}] offset:1024
    s_waitcnt lgkmcnt(0)
{w0}:
    s_barrier
    s_cmp_eq_u32 s{S_WAVE}, 0
    s_cbranch_scc0 {skip}
    v_add_u32 v1, {red}, v{V_L16}''')
    T = V_T
    for w in range(3):
        A(f'    ds_read_b128 v[{T+8*w}:{T+8*w+3}], v1 offset:{w*2048}')
        A(f'    ds_read_b128 v[{T+8*w+4}:{T+8*w+7}], v1 offset:{w*2048+1024}')
    for w in range(3):
        A(f'    s_waitcnt lgkmcnt({4 - 2*w})')
        for r in range(4):
            A(f'    v_add_f32 v{V_S+r}, v{V_S+r}, v{T+8*w+r}')
        for r in range(4):
            A(f'    v_add_f32 v{V_R+r}, v{V_R+r}, v{T+8*w+4+r}')
    return skip

def cross_wave_sum4(A, red):
    skip = A.label('XV'); w0 = A.label('XV0')
    A.nop(8)
    A(f"""    s_cmp_eq_u32 s{S_WAVE}, 0
    s_cbranch_scc1 {w0}
    s_sub_u32 s{S_TMP}, s{S_WAVE}, 1
    s_lshl_b32 s{S_TMP}, s{S_TMP}, 10
    s_add_u32 s{S_TMP}, s{S_TMP}, {red}
    v_add_u32 v1, s{S_TMP}, v{V_L16}
    ds_write_b128 v1, v[{V_S}:{V_S+3}]
    s_waitcnt lgkmcnt(0)
{w0}:
    s_barrier
    s_cmp_eq_u32 s{S_WAVE}, 0
    s_cbranch_scc0 {skip}
    v_add_u32 v1, {red}, v{V_L16}""")
    T = V_T
    for w in range(3):
        A(f'    ds_read_b128 v[{T+4*w}:{T+4*w+3}], v1 offset:{w*1024}')
    for w in range(3):
        A(f'    s_waitcnt lgkmcnt({2 - w})')
        for r in range(4):
            A(f'    v_add_f32 v{V_S+r}, v{V_S+r}, v{T+4*w+r}')
    return skip

def publish4(A, ws_base):
    T = V_T; odd = A.label('PB_O'); go = A.label('PB_G')
    A(f"""    v_cvt_pk_bf16_f32 v{T+2}, v{V_S}, v{V_S+1}
    v_cvt_pk_bf16_f32 v{T+3}, v{V_S+2}, v{V_S+3}
    v_mov_b32 v{T}, s{S_TAG}
    v_mov_b32 v{T+1}, 0
    v_mov_b32 v{T+4}, s{S_TAG}
    v_mov_b32 v{T+5}, 0
    s_lshl_b32 s{S_TMP}, s{S_JOB}, 10
    s_add_u32 s{S_TMP}, s{S_TMP}, {ws_base}
    v_add_u32 v1, s{S_TMP}, v{V_L16}
    s_bitcmp1_b32 s{S_JOB}, 0
    s_cbranch_scc1 {odd}
    global_store_dwordx4 v1, v[{T}:{T+3}], s[{S_WS}:{S_WS+1}] sc1
    s_branch {go}
{odd}:
    global_store_dwordx4 v1, v[{T+2}:{T+5}], s[{S_WS}:{S_WS+1}] sc1
{go}:""")

def gemm3(A, areg, breg):
    for kk in range(3):
        A(f'    v_mfma_f32_16x16x32_bf16 v[{V_S}:{V_S+3}], {areg(kk)}, {breg(kk)}, ' + ('0' if kk == 0 else f'v[{V_S}:{V_S+3}]'))

def pack_D(A, dreg):
    A(f'    v_cvt_pk_bf16_f32 v{dreg+2}, v{V_S}, v{V_S+1}')
    A(f'    v_cvt_pk_bf16_f32 v{dreg+3}, v{V_S+2}, v{V_S+3}')
    A(f'    v_cvt_pk_bf16_f32 v{dreg+4}, v{V_R}, v{V_R+1}')
    A(f'    v_cvt_pk_bf16_f32 v{dreg+5}, v{V_R+2}, v{V_R+3}')

def lin12_addr(A, nload, rowfn, dst=2):
    for x in range(nload):
        d = dst + x; t = V_T
        A(f"""    v_add_u32 v{t}, {64*x}, v{V_LANE}
    v_mul_u32_u24 v{t+1}, 43691, v{t}
    v_lshrrev_b32 v{t+1}, 19, v{t+1}      ; row
    v_mul_u32_u24 v{t+2}, 12, v{t+1}
    v_sub_u32 v{t+2}, v{t}, v{t+2}
    v_lshlrev_b32 v{t+2}, 4, v{t+2}       ; piece*16""")
        rowfn(t + 1)
        A(f"""    v_mul_u32_u24 v{t+1}, 768, v{t+1}
    v_add3_u32 v{d}, v{t+1}, v{t+2}, s{S_TMP+2}""")

def lin12_to_operands(A, src, nload, lds_off, dsts):
    A(f"""    s_mul_i32 s{S_TMP}, s{S_WAVE}, 12288
    s_add_u32 s{S_TMP}, s{S_TMP}, {L_HEAD + lds_off}
    v_add_u32 v1, s{S_TMP}, v{V_L16}""")
    for x in range(nload):
        A(f'    ds_write_b128 v1, v[{src+4*x}:{src+4*x+3}] offset:{x*1024}')
    A(f"""    v_and_b32 v2, 15, v{V_LANE}
    v_mul_u32_u24 v2, 192, v2
    v_lshrrev_b32 v3, 4, v{V_LANE}
    v_lshlrev_b32 v3, 4, v3
    v_add3_u32 v2, v2, v3, s{S_TMP}""")
    for (reg, rowblk, kk) in dsts:
        A(f'    ds_read_b128 {reg}, v2 offset:{rowblk*16*192 + kk*64}')

def role_S1_loads(A):
    A(f'    s_mul_i32 s{S_TMP+2}, s{S_WAVE}, 192')
    lin12_addr(A, 3, lambda r: None)
    for x in range(3):
        A(f'    global_load_dwordx4 v[{V_GB+12+4*x}:{V_GB+15+4*x}], v{2+x}, s[{S_Q}:{S_Q+1}]')
    slab_addr(A, False)
    slab_loads(A, S_WQ, V_O)

def slab16_to_operands(A, src, lds_base):
    A(f"""    s_mul_i32 s{S_TMP}, s{S_WAVE}, 12288
    s_add_u32 s{S_TMP}, s{S_TMP}, {lds_base}
    v_add_u32 v1, s{S_TMP}, v{V_L16}""")
    for x in range(3):
        A(f'    ds_write_b128 v1, v[{src+4*x}:{src+4*x+3}] offset:{x*1024}')
    A(f"""    v_lshrrev_b32 v2, 4, v{V_LANE}
    v_lshlrev_b32 v2, 8, v2               ; g*256
    v_bfe_u32 v3, v{V_LANE}, 2, 2
    v_lshlrev_b32 v3, 5, v3               ; r*32
    v_and_b32 v4, 3, v{V_LANE}
    v_lshlrev_b32 v4, 3, v4               ; c*8
    v_add3_u32 v2, v2, v3, v4
    v_add_u32 v2, s{S_TMP}, v2""")
    for kk in range(3):
        for hf in range(2):
            r = A_W + kk * 4 + 2 * hf
            A(f'    ds_read_b64_tr_b16 a[{r}:{r+1}], v2 offset:{kk*1024 + hf*128}')

def slab_addr_regs(A, perm):
    slab_addr(A, perm)

def role_S1_work(A):
    T = V_T; Qr = V_GB
    A('    s_waitcnt vmcnt(0)')
    A.stamp('s1_data')
    def held_items(js):
        vm_save = list(A.vm)
        for j in js: issue_item(A, j)
        A.vm = vm_save
    early = list(range(O.l0))[:O.s1early]; late = list(range(O.l0))[O.s1early:]
    held_items(early)
    lin12_to_operands(A, V_GB + 12, 3, 6144 + 2048, [(f'v[{Qr+4*kk}:{Qr+4*kk+3}]', 0, kk) for kk in range(3)])
    slab_to_operands(A, V_O, L_HEAD)
    A('    s_waitcnt lgkmcnt(12)')
    for kk in range(3):
        q = f'v[{Qr+4*kk}:{Qr+4*kk+3}]'
        A(f'    v_mfma_f32_16x16x32_bf16 v[{V_G}:{V_G+3}], {q}, {q}, ' + ('0' if kk == 0 else f'v[{V_G}:{V_G+3}]'))
        A(f'    v_mfma_f32_16x16x32_bf16 v[{V_R}:{V_R+3}], a[{A_ONES}:{A_ONES+3}], {q}, ' + ('0' if kk == 0 else f'v[{V_R}:{V_R+3}]'))
    A.nop(7)
    A(f'    v_cndmask_b32 v{T}, 0, v{V_G}, s[{S_MASK}:{S_MASK+1}]')
    for r in range(1, 4):
        A(f'    v_cndmask_b32 v{T}, v{T}, v{V_G+r}, s[{S_MASK+2*r}:{S_MASK+2*r+1}]')
    A.nop(2)
    A(f'    v_mfma_f32_16x16x4_f32 v[{V_D}:{V_D+3}], v{V_ONEF}, v{T}, 0')
    A(f"""    s_lshl_b32 s{S_TMP}, s{S_WAVE}, 9
    s_add_u32 s{S_TMP}, s{S_TMP}, {L_STAT}
    v_lshlrev_b32 v1, 3, v{V_LANE}
    v_add_u32 v1, s{S_TMP}, v1
    v_and_b32 v2, 15, v{V_LANE}
    v_lshlrev_b32 v2, 3, v2
    v_add_u32 v2, {L_STAT}, v2
    v_mov_b32 v{T+2}, v{V_R}""")
    A.nop(3)
    A(f'    v_mov_b32 v{T+3}, v{V_D}')
    A(f'    ds_write_b64 v1, v[{T+2}:{T+3}]')
    A('    s_waitcnt lgkmcnt(0)')
    A.stamp('s1_stat')
    A('    s_barrier')
    pass
    for w in range(4):
        A(f'    ds_read_b64 v[{T+4+2*w}:{T+5+2*w}], v2 offset:{w*512}')
    A('    s_waitcnt lgkmcnt(0)')
    A(f"""    v_add_f32 v{T+4}, v{T+4}, v{T+6}
    v_add_f32 v{T+5}, v{T+5}, v{T+7}
    v_add_f32 v{T+8}, v{T+8}, v{T+10}
    v_add_f32 v{T+9}, v{T+9}, v{T+11}
    v_add_f32 v{T+4}, v{T+4}, v{T+8}
    v_add_f32 v{T+5}, v{T+5}, v{T+9}
    v_mul_f32 v{T+4}, s{S_C384}, v{T+4}          ; mean
    v_mul_f32 v{T+5}, s{S_C384}, v{T+5}          ; E[x^2]
    v_fma_f32 v{T+5}, -v{T+4}, v{T+4}, v{T+5}    ; var
    v_max_f32 v{T+5}, 0, v{T+5}
    v_cvt_pk_bf16_f32 v{T+6}, v{T+4}, v{T+5}
    v_lshlrev_b32 v{T+4}, 16, v{T+6}
    v_and_b32 v{T+5}, 0xffff0000, v{T+6}
    v_add_f32 v{T+5}, v{V_EPS}, v{T+5}
    v_cvt_pk_bf16_f32 v{T+5}, v{T+5}, v{T+5}
    v_lshlrev_b32 v{T+5}, 16, v{T+5}
    v_sqrt_f32 v{T+5}, v{T+5}
    s_nop 0
    v_cvt_pk_bf16_f32 v{T+5}, v{T+5}, v{T+5}
    v_lshlrev_b32 v{T+5}, 16, v{T+5}
    v_rcp_f32 v{T+5}, v{T+5}""")
    for k in range(0, 12, 2):
        a, b = T + 8, T + 12
        A(f'    v_lshlrev_b32 v{a}, 16, v{Qr+k}')
        A(f'    v_and_b32 v{a+1}, 0xffff0000, v{Qr+k}')
        A(f'    v_lshlrev_b32 v{b}, 16, v{Qr+k+1}')
        A(f'    v_and_b32 v{b+1}, 0xffff0000, v{Qr+k+1}')
        for x in (a, a + 1, b, b + 1): A(f'    v_sub_f32 v{x}, v{x}, v{T+4}')
        A(f'    v_cvt_pk_bf16_f32 v{a+2}, v{a}, v{a+1}')
        A(f'    v_cvt_pk_bf16_f32 v{b+2}, v{b}, v{b+1}')
        A(f'    v_lshlrev_b32 v{a}, 16, v{a+2}')
        A(f'    v_and_b32 v{a+1}, 0xffff0000, v{a+2}')
        A(f'    v_lshlrev_b32 v{b}, 16, v{b+2}')
        A(f'    v_and_b32 v{b+1}, 0xffff0000, v{b+2}')
        for x in (a, a + 1, b, b + 1): A(f'    v_mul_f32 v{x}, v{x}, v{T+5}')
        A(f'    v_cvt_pk_bf16_f32 v{Qr+k}, v{a}, v{a+1}')
        A(f'    v_cvt_pk_bf16_f32 v{Qr+k+1}, v{b}, v{b+1}')
    A.stamp('s1_norm')
    A.nop(2)
    gemm6(A, lambda kk: f'v[{Qr+4*kk}:{Qr+4*kk+3}]')
    skip = cross_wave_sum(A, L_RED_H)
    A.stamp('s1_red')
    pack_D(A, V_T)
    A(f'    s_lshl_b32 s{S_TMP}, s{S_JOB}, 11')
    A(f'    s_lshl_b32 s{S_TMP+1}, s{S_COPY}, 15')
    A(f'    s_add_u32 s{S_TMP}, s{S_TMP}, s{S_TMP+1}')
    A(f'    s_add_u32 s{S_TMP}, s{S_TMP}, {WS_QGA}')
    publish8_dual(A, V_T, S_TMP, WS_QGB - WS_QGA)
    A(f'{skip}:')
    held_items(late)

def role_S2_addr(A):
    A(f"""    s_lshr_b32 s{S_TMP}, s{S_JOB}, 3              ; third = b>>2
    s_lshl_b32 s{S_TMP}, s{S_TMP}, 7
    s_bfe_u32 s{S_TMP+1}, s{S_JOB}, 0x20001       ; ep = b&3
    s_lshl_b32 s{S_TMP+1}, s{S_TMP+1}, 1
    s_add_u32 s{S_TMP+3}, s{S_TMP}, s{S_TMP+1}
    s_and_b32 s{S_TMP+1}, s{S_JOB}, 1
    s_lshl_b32 s{S_TMP+1}, s{S_TMP+1}, 6          ; a2*64
    s_add_u32 s{S_TMP+3}, s{S_TMP+3}, s{S_TMP+1}
    s_mul_i32 s{S_TMP+2}, s{S_WAVE}, 192""")
    def rowfn(r):
        t = V_T + 3
        A(f"""    v_bfe_u32 v{t}, v{r}, 3, 1
    v_lshlrev_b32 v{t}, 2, v{t}
    v_bfe_u32 v{t+1}, v{r}, 2, 1
    v_lshlrev_b32 v{t+1}, 1, v{t+1}
    v_bfe_u32 v{t+2}, v{r}, 1, 1
    v_add3_u32 v{t}, v{t}, v{t+1}, v{t+2}
    v_lshlrev_b32 v{t}, 3, v{t}
    v_and_b32 v{r}, 1, v{r}
    v_add3_u32 v{r}, v{r}, v{t}, s{S_TMP+3}""")
    lin12_addr(A, 3, rowfn, V_O + 12)

def role_S2_loads(A):
    for x in range(3):
        A.vmop(f'    global_load_dwordx4 v[{V_O+4*x}:{V_O+4*x+3}], v{V_O+12+x}, s[{S_WK}:{S_WK+1}]', 'wk')

def role_S2_stage(A):
    A.vmwait('wk')
    lin12_to_operands(A, V_O, 3, 0, [(f'a[{A_W+4*kk}:{A_W+4*kk+3}]', 0, kk) for kk in range(3)])

def role_S2_work(A, have_q=False):
    scale = 384 ** -0.5 * math.log2(math.e)
    ok = A.label('S2OK')
    if not have_q:
        A.vmwait('q')
        gather_check(A)
        A(f'    s_cbranch_vccz {ok}')
        gather_loop(A)
        A(f'{ok}:')
    A('    s_waitcnt lgkmcnt(0)')
    A.stamp('s2_q')
    gemm3(A, lambda kk: f'a[{A_W+4*kk}:{A_W+4*kk+3}]', lambda kk: f'v[{V_GB+8*kk+2}:{V_GB+8*kk+5}]')
    skip = cross_wave_sum4(A, L_HEAD + 6144)
    A.stamp('s2_red')
    for r in range(4):
        A(f'    v_mul_f32 v{V_S+r}, {lit(scale)}, v{V_S+r}')
    publish4(A, WS_QKG)
    A(f'{skip}:')

def get_qk(A, stamp=True):
    ok = A.label('QK_OK'); lp = A.label('QK_LP')
    A.vmwait('qk')
    gather_check(A)
    A(f'    s_cbranch_vccz {ok}')
    gather_loop(A)
    A(f'{ok}:')
    A(f"""    s_mul_i32 s{S_TMP}, s{S_WAVE}, 3072
    s_add_u32 s{S_TMP}, s{S_TMP}, {L_QKL}
    v_add_u32 v1, s{S_TMP}, v{V_L16}""")
    for kk in range(3):
        A(f'    ds_write_b128 v1, v[{V_GB+8*kk+2}:{V_GB+8*kk+5}] offset:{kk*1024}')
    A(f'    v_add_u32 v1, {L_QKL}, v{V_L16}')
    A('    s_waitcnt lgkmcnt(0)')
    A('    s_barrier')
    for bb in range(12):
        A(f'    ds_read_b128 a[{A_QK+4*bb}:{A_QK+4*bb+3}], v1 offset:{bb*1024}')
    for bb in range(12):
        if bb % 4 == 0: A(f'    s_waitcnt lgkmcnt({8 - bb})')
        c = '0' if bb == 0 else f'v[{V_S}:{V_S+3}]'
        A(f'    v_mfma_f32_16x16x32_bf16 v[{V_S}:{V_S+3}], a[{A_ONES}:{A_ONES+3}], a[{A_QK+4*bb}:{A_QK+4*bb+3}], {c}')
    A.nop(8)
    A(f'    v_mov_b32 v{V_SQ}, v{V_S}')
    if stamp: A.stamp('Qk')

def role_G_loads(A):
    g1 = A.label('GL1'); done = A.label('GLD')
    A(f'    s_cmp_eq_u32 s{S_ROLE}, {R_G1}')
    A(f'    s_cbranch_scc1 {g1}')
    A(f'    s_cmp_eq_u32 s{S_ROLE}, {R_G2}')
    A(f'    s_cbranch_scc0 {done}')
    slab_addr(A, False)
    slab_loads(A, S_WO, RAW[1])
    A(f"""    v_and_b32 v1, 15, v{V_LANE}
    v_mul_u32_u24 v1, 768, v1
    v_lshrrev_b32 v2, 4, v{V_LANE}
    v_lshlrev_b32 v2, 4, v2
    s_lshl_b32 s{S_TMP}, s{S_JOB}, 6
    v_add3_u32 v{V_Q+4}, v1, v2, s{S_TMP}
    global_load_dwordx4 v[{V_Q}:{V_Q+3}], v{V_Q+4}, s[{S_Q}:{S_Q+1}]
    s_branch {done}
{g1}:""")
    slab_addr(A, True)
    slab_loads(A, S_WV, RAW[1])
    A(f'{done}:')

S_PB = 76
def epilogue_addresses(A):
    A(f"""    v_and_b32 v1, 15, v{V_LANE}           ; n
    v_lshlrev_b32 v7, 4, v1
    v_lshrrev_b32 v4, 4, v{V_LANE}        ; g'
    s_lshl_b32 s{S_TMP}, s{S_WG}, 8
    s_add_u32 s{S_TMP}, s{S_TMP}, {WS_ML}
    v_add_u32 v6, s{S_TMP}, v7            ; ML[wg][n]
    s_mul_i32 s{S_TMP}, s{S_WAVE}, 12288
    s_add_u32 s{S_TMP}, s{S_TMP}, {L_TR}
    v_mul_u32_u24 v3, 272, v1
    v_lshlrev_b32 v5, 6, v4
    v_add3_u32 v3, v3, v5, s{S_TMP}
    v_lshlrev_b32 v5, 18, v4              ; (l>>4)*8*32768
    v_mul_u32_u24 v4, 272, v4
    v_add3_u32 v4, v4, v7, s{S_TMP}
    v_bfe_u32 v1, v{V_LANE}, 3, 1
    v_lshlrev_b32 v1, 15, v1
    v_and_b32 v2, 7, v{V_LANE}
    v_lshlrev_b32 v2, 4, v2
    v_add3_u32 v5, v5, v1, v2
    s_lshl_b32 s{S_TMP}, s{S_WAVE}, 16
    s_lshl_b32 s{S_TMP+1}, s{S_WG}, 7
    s_add_u32 s{S_TMP}, s{S_TMP}, s{S_TMP+1}
    s_add_u32 s{S_TMP}, s{S_TMP}, {WS_PART}
    v_add_u32 v5, s{S_TMP}, v5
    v_add_u32 v7, {L_LBUF}, v7
    s_lshl_b32 s{S_TMP}, s{S_WAVE}, 2
    v_add_u32 v2, s{S_TMP}, v7""")
    for x in range(3):
        A(f'    s_add_u32 s{S_PB+2*x}, s{S_WS}, {0x100000*(x+1)}')
        A(f'    s_addc_u32 s{S_PB+2*x+1}, s{S_WS+1}, 0')

def epilogue_pre(A):
    T = V_T
    multi_xgroup(A, 'v_add_f32', [V_L, V_U], [T, T + 1])
    A(f'    ds_write_b32 v2, v{V_L}')
    A(f'    ds_write_b32 v2, v{V_U} offset:256')
    for r in range(4): A(f'    v_mov_b32 v{8+4*r+3}, s{S_TAG}')

def epilogue(A):
    skip = A.label('EP'); s0 = A.label('EP0')
    A('    s_barrier')
    A(f"""    s_cmp_eq_u32 s{S_WAVE}, 0
    s_cbranch_scc0 {s0}
    ds_read_b128 v[40:43], v7
    ds_read_b128 v[44:47], v7 offset:256
    v_mov_b32 v48, v{V_MREF}
    v_mov_b32 v51, s{S_TAG}
{s0}:""")
    A.nop(4)
    for r in range(4):
        for third in range(3):
            b0 = V_O + third * 8; b1 = b0 + 4
            A(f'    v_cvt_pk_bf16_f32 v{8+4*r+third}, v{b0+r}, v{b1+r}')
        A(f'    ds_write_b128 v3, v[{8+4*r}:{11+4*r}] offset:{r*16}')
    for x in range(4):
        A(f'    ds_read_b128 v[{24+4*x}:{27+4*x}], v4 offset:{x*1088}')
    for x in range(4):
        A(f'    s_waitcnt lgkmcnt({3-x})')
        base = S_WS if x == 0 else S_PB + 2 * (x - 1)
        A(f'    global_store_dwordx4 v5, v[{24+4*x}:{27+4*x}], s[{base}:{base+1}] sc1')
    A(f"""    s_cmp_eq_u32 s{S_WAVE}, 0
    s_cbranch_scc0 {skip}
    v_add_f32 v40, v40, v41
    v_add_f32 v42, v42, v43
    v_add_f32 v44, v44, v45
    v_add_f32 v46, v46, v47
    v_add_f32 v49, v40, v42
    v_add_f32 v50, v44, v46
    v_cmp_gt_u32 vcc, 16, v{V_LANE}
    s_and_saveexec_b64 s[{S_EX}:{S_EX+1}], vcc
    global_store_dwordx4 v6, v[48:51], s[{S_WS}:{S_WS+1}] sc1
    s_mov_b64 exec, s[{S_EX}:{S_EX+1}]
{skip}:""")
    A.stamp('pub')

def role_R(A):
    T = V_T
    lp = A.label('RL'); ok = A.label('RO'); lp2 = A.label('RD'); ok2 = A.label('RO2'); fin = A.label('RF')
    A(f"""    s_and_b32 s{S_TMP}, s{S_JOB}, 15          ; n
    s_lshr_b32 s{S_TMP+1}, s{S_JOB}, 4        ; chunk
    s_lshl_b32 s{S_TMP+2}, s{S_TMP}, 4
    s_lshl_b32 s{S_TMP+3}, s{S_WAVE}, 14
    s_add_u32 s{S_TMP+2}, s{S_TMP+2}, s{S_TMP+3}
    s_add_u32 s{S_TMP+2}, s{S_TMP+2}, {WS_ML}
    v_lshlrev_b32 v1, 8, v{V_LANE}
    v_add_u32 v1, s{S_TMP+2}, v1
    s_lshl_b32 s{S_TMP+2}, s{S_TMP}, 3
    s_add_u32 s{S_TMP+2}, s{S_TMP+2}, s{S_TMP+1}
    s_lshl_b32 s{S_TMP+2}, s{S_TMP+2}, 15
    s_lshl_b32 s{S_TMP+3}, s{S_WAVE}, 13
    s_add_u32 s{S_TMP+2}, s{S_TMP+2}, s{S_TMP+3}
    s_add_u32 s{S_TMP+2}, s{S_TMP+2}, {WS_PART + 4096}
    v_add_u32 v2, s{S_TMP+2}, v{V_L16}
{lp}:""")
    def data_loads():
        for k in range(8):
            A(f'    global_load_dwordx4 v[{16+4*k}:{19+4*k}], v2, s[{S_WS}:{S_WS+1}] offset:{k*1024-4096} sc1')
    if O.rthr:
        l2 = A.label('RL2')
        A(f'    global_load_dwordx4 v[8:11], v1, s[{S_WS}:{S_WS+1}] sc1')
        A('    s_waitcnt vmcnt(0)')
        A(f'    v_cmp_ne_u32 vcc, s{S_TAG}, v11')
        A(f'    s_bcnt1_i32_b64 s{S_TMP+3}, vcc')
        A(f'    s_cmp_le_u32 s{S_TMP+3}, {O.rthr}')
        A(f'    s_cbranch_scc1 {l2}')
        spin_guard(A, lp)
        A(f'    s_branch {lp}')
        A(f'{l2}:')
        A(f'    global_load_dwordx4 v[8:11], v1, s[{S_WS}:{S_WS+1}] sc1')
        data_loads()
        A('    s_waitcnt vmcnt(8)')
        A(f'    v_cmp_ne_u32 vcc, s{S_TAG}, v11')
        A(f'    s_cbranch_vccz {ok}')
        A('    s_waitcnt vmcnt(0)')
        spin_guard(A, l2)
        A(f'    s_branch {l2}')
        A(f'{ok}:')
    else:
        A(f'    global_load_dwordx4 v[8:11], v1, s[{S_WS}:{S_WS+1}] sc1')
        if O.rcomb:
            data_loads()
            A('    s_waitcnt vmcnt(8)')
        else:
            A('    s_waitcnt vmcnt(0)')
        A(f"""    v_cmp_ne_u32 vcc, s{S_TAG}, v11
    s_cbranch_vccz {ok}""")
        if O.rcomb: A('    s_waitcnt vmcnt(0)')
        spin_guard(A, lp)
        A(f'    s_branch {lp}')
        A(f'{ok}:')
    A.stamp('R_ml')
    if not O.rcomb and not O.rthr: data_loads()
    A(f'    v_mov_b32 v12, v8')
    multi_row(A, 'v_max_f32', [12])
    xgroup_reduce(A, 'v_max_f32', 12, 13)
    A(f"""    v_sub_f32 v8, v8, v12
    v_exp_f32 v8, v8
    v_lshrrev_b32 v3, 3, v{V_LANE}
    v_lshlrev_b32 v3, 2, v3               ; ii*4
    v_mul_f32 v9, v9, v8
    v_mul_f32 v10, v10, v8""")
    for k in range(8):
        A(f'    v_add_u32 v4, {32*k}, v3')
        A(f'    ds_bpermute_b32 v{48+k}, v4, v8')
    multi_row(A, 'v_add_f32', [9, 10])
    multi_xgroup(A, 'v_add_f32', [9, 10], [13, 14])
    for j in range(6): A(f'    v_mov_b32 v{56+j}, 0')
    A(f'{lp2}:')
    A('    s_waitcnt vmcnt(0)')
    for k in range(0, 8, 2):
        A(f'    v_xor_b32 v{64+k}, s{S_TAG}, v{19+4*k}')
        A(f'    v_xor_b32 v{65+k}, s{S_TAG}, v{23+4*k}')
    A(f"""    v_or3_b32 v64, v64, v65, v66
    v_or3_b32 v67, v67, v68, v69
    v_or3_b32 v64, v64, v70, v71
    v_or_b32 v64, v64, v67
    v_cmp_ne_u32 vcc, 0, v64
    s_cbranch_vccz {ok2}""")
    spin_guard(A, lp2)
    data_loads()
    A(f'    s_branch {lp2}')
    A(f'{ok2}:')
    A('    s_waitcnt lgkmcnt(0)')
    for k in range(8):
        for t in range(3):
            A(f'    v_lshlrev_b32 v64, 16, v{16+4*k+t}')
            A(f'    v_and_b32 v65, 0xffff0000, v{16+4*k+t}')
            A(f'    v_fmac_f32 v{56+2*t}, v64, v{48+k}')
            A(f'    v_fmac_f32 v{57+2*t}, v65, v{48+k}')
    acc = list(range(56, 62))
    multi_row(A, 'v_add_f32', acc, rots=(8,))
    multi_xgroup(A, 'v_add_f32', acc, list(range(64, 70)))
    A(f"""    s_lshl_b32 s{S_TMP+2}, s{S_WAVE}, 8
    s_add_u32 s{S_TMP+2}, s{S_TMP+2}, {L_RB}
    v_mul_u32_u24 v3, 24, v{V_LANE}
    v_add_u32 v3, s{S_TMP+2}, v3
    v_mov_b32 v4, s{S_TMP+2}
    v_mov_b32 v13, v9
    v_mov_b32 v14, v10
    v_mov_b32 v15, 0
    v_cmp_gt_u32 vcc, 8, v{V_LANE}
    s_and_saveexec_b64 s[{S_EX}:{S_EX+1}], vcc
    ds_write_b64 v3, v[56:57]
    ds_write_b64 v3, v[58:59] offset:8
    ds_write_b64 v3, v[60:61] offset:16
    ds_write_b128 v4, v[12:15] offset:192
    s_mov_b64 exec, s[{S_EX}:{S_EX+1}]
    s_waitcnt lgkmcnt(0)
    s_barrier
    s_cmp_eq_u32 s{S_WAVE}, 0
    s_cbranch_scc0 {fin}
    v_min_u32 v3, 7, v{V_LANE}
    v_mul_u32_u24 v3, 24, v3
    v_add_u32 v3, {L_RB}, v3
    v_mov_b32 v4, {L_RB}""")
    for w in range(4):
        A(f'    ds_read_b128 v[{16+4*w}:{19+4*w}], v4 offset:{w*256+192}')
    for w in range(4):
        for j in range(3):
            A(f'    ds_read_b64 v[{32+6*w+2*j}:{33+6*w+2*j}], v3 offset:{w*256+8*j}')
    A(f"""    s_waitcnt lgkmcnt(12)
    v_max_f32 v12, v16, v20
    v_max3_f32 v12, v12, v24, v28""")
    for w in range(4): A(f'    v_sub_f32 v{16+4*w}, v{16+4*w}, v12')
    for w in range(4): A(f'    v_exp_f32 v{16+4*w}, v{16+4*w}')
    A(f"""    s_nop 0
    v_mul_f32 v13, v16, v17
    v_mul_f32 v14, v16, v18""")
    for w in range(1, 4):
        A(f'    v_fmac_f32 v13, v{16+4*w}, v{17+4*w}')
        A(f'    v_fmac_f32 v14, v{16+4*w}, v{18+4*w}')
    A(f"""    v_rcp_f32 v13, v13
    s_waitcnt lgkmcnt(0)""")
    for j in range(6): A(f'    v_mul_f32 v{56+j}, v{32+j}, v16')
    for w in range(1, 4):
        for j in range(6): A(f'    v_fmac_f32 v{56+j}, v{32+6*w+j}, v{16+4*w}')
    for j in range(6): A(f'    v_sub_f32 v{56+j}, v{56+j}, v14')
    for j in range(6): A(f'    v_mul_f32 v{56+j}, v{56+j}, v13')
    A(f"""    v_cvt_pk_bf16_f32 v8, v56, v57
    v_cvt_pk_bf16_f32 v9, v58, v59
    v_cvt_pk_bf16_f32 v10, v60, v61
    v_mov_b32 v11, s{S_TAG}
    s_lshl_b32 s{S_TMP+2}, s{S_TMP+1}, 4
    s_add_u32 s{S_TMP+2}, s{S_TMP+2}, s{S_TMP}
    s_lshl_b32 s{S_TMP+2}, s{S_TMP+2}, 7
    s_add_u32 s{S_TMP+2}, s{S_TMP+2}, {WS_CTXN}
    v_add_u32 v3, s{S_TMP+2}, v{V_L16}
    v_cmp_gt_u32 vcc, 8, v{V_LANE}
    s_and_saveexec_b64 s[{S_EX}:{S_EX+1}], vcc
    global_store_dwordx4 v3, v[8:11], s[{S_WS}:{S_WS+1}] sc1
    s_mov_b64 exec, s[{S_EX}:{S_EX+1}]
{fin}:""")
    A.stamp('R_done')

def gather4_loop(A):
    l = A.label('G4L'); d = A.label('G4D'); T = V_T
    A(f"""    s_lshl_b32 s{S_TMP}, s{S_WAVE}, 12
    s_add_u32 s{S_TMP}, s{S_TMP}, {WS_CTXN}
    v_and_b32 v1, 15, v{V_LANE}
    v_lshlrev_b32 v1, 7, v1
    v_lshrrev_b32 v2, 4, v{V_LANE}
    v_lshlrev_b32 v2, 4, v2
    v_add3_u32 v{V_GA}, v1, v2, s{S_TMP}""")
    A(f'{l}:')
    for x in range(4):
        A(f'    global_load_dwordx4 v[{V_GB+4*x}:{V_GB+4*x+3}], v{V_GA}, s[{S_WS}:{S_WS+1}] offset:{(x>>1)*2048 + (x&1)*64} sc1')
    A('    s_waitcnt vmcnt(0)')
    for x in range(4): A(f'    v_xor_b32 v{T+x}, s{S_TAG}, v{V_GB+4*x+3}')
    A(f'    v_or3_b32 v{T}, v{T}, v{T+1}, v{T+2}')
    A(f'    v_or_b32 v{T}, v{T}, v{T+3}')
    A(f'    v_cmp_ne_u32 vcc, 0, v{T}')
    A(f'    s_cbranch_vccz {d}')
    spin_guard(A, l)
    A(f'    s_branch {l}')
    A(f'{d}:')
    for j in range(3): A(f'    v_mov_b32 v{V_GB+4*j+3}, v{V_GB+12+j}')

def role_G(A):
    g2 = A.label('G2'); lj = A.label('GJ')
    role_G_loads(A)
    A('    s_waitcnt vmcnt(0)')
    slab_to_operands(A, RAW[1], 0)
    A(f'    s_cmp_eq_u32 s{S_ROLE}, {R_G2}')
    A(f'    s_cbranch_scc1 {g2}')
    gather4_loop(A)
    A('    s_waitcnt lgkmcnt(0)')
    A.stamp('G1_in')
    gemm6(A, lambda kk: f'v[{V_GB+4*kk}:{V_GB+4*kk+3}]')
    A(f'    s_branch {lj}')
    A(f'{g2}:')
    gather_addr(A, WS_CTXA)
    gather_loop_dual(A, WS_CTX - WS_CTXA, O.na)
    A('    s_waitcnt lgkmcnt(0)')
    A.stamp('G2_in')
    gemm6(A, lambda kk: f'v[{V_GB+8*kk+2}:{V_GB+8*kk+5}]')
    A(f'{lj}:')
    skip = cross_wave_sum(A, L_RED_T)
    out2 = A.label('GO')
    A(f'    s_cmp_eq_u32 s{S_ROLE}, {R_G2}')
    A(f'    s_cbranch_scc1 {out2}')
    pack_D(A, 8)
    A(f'    s_lshl_b32 s{S_TMP}, s{S_JOB}, 11')
    A(f'    s_add_u32 s{S_TMP}, s{S_TMP}, {WS_CTXA}')
    publish8_dual(A, 8, S_TMP, WS_CTX - WS_CTXA)
    A(f'    s_branch {skip}')
    A(f'{out2}:')
    for k in range(4):
        d = V_S if k < 2 else V_R
        j = 2 * (k & 1)
        A(f'    v_lshlrev_b32 v8, 16, v{V_Q+k}')
        A(f'    v_and_b32 v9, 0xffff0000, v{V_Q+k}')
        A(f'    v_add_f32 v8, v8, v{d+j}')
        A(f'    v_add_f32 v9, v9, v{d+j+1}')
        A(f'    v_cvt_pk_bf16_f32 v{12+k}, v8, v9')
    A(f'    global_store_dwordx4 v{V_Q+4}, v[12:15], s[{S_OUT}:{S_OUT+1}]')
    e = A.label('GE')
    A(f"""    s_cmp_eq_u32 s{S_JOB}, 0
    s_cbranch_scc0 {skip}
    s_add_u32 s{S_TMP}, s{S_EPOCH}, 1
    v_mov_b32 v8, s{S_TMP}
    v_mov_b32 v9, {WS_EPOCH}
    v_cmp_eq_u32 vcc, 0, v{V_LANE}
    s_and_saveexec_b64 s[{S_EX}:{S_EX+1}], vcc
    global_store_dword v9, v8, s[{S_WS}:{S_WS+1}]
    s_mov_b64 exec, s[{S_EX}:{S_EX+1}]""")
    A(f'{skip}:')
    A.stamp('G_done')

def build_kernel():
    A = Gen(); T = V_T
    Stream.nxt = 0; Stream.done = 0; Stream.pend = []; PV.pending = []
    A('.text')
    A(f'.globl {NAME}')
    A('.p2align 8')
    A(f'.type {NAME},@function')
    A(f'{NAME}:')
    A(f"""    s_cmp_ge_u32 s2, 256
    s_cbranch_scc1 K_END
    s_load_dwordx4 s[{S_F0}:{S_F0+3}], s[0:1], 8
    s_load_dwordx2 s[{S_WS}:{S_WS+1}], s[0:1], 72
    s_load_dwordx2 s[{S_Q}:{S_Q+1}], s[0:1], 0
    s_load_dwordx8 s[{S_WQ}:{S_WQ+7}], s[0:1], 24
    s_load_dwordx2 s[{S_OUT}:{S_OUT+1}], s[0:1], 56
    s_mov_b32 s{S_WG}, s2
    s_mov_b32 s{S_SPIN}, 0
    v_and_b32 v{V_LANE}, 63, v0
    v_lshrrev_b32 v1, 6, v0
    v_lshlrev_b32 v{V_L16}, 4, v{V_LANE}
    v_readfirstlane_b32 s{S_WAVE}, v1
    v_lshrrev_b32 v2, 4, v{V_LANE}        ; g
    v_and_b32 v3, 15, v{V_LANE}           ; i
    v_lshlrev_b32 v4, 4, v3
    v_mul_u32_u24 v5, 1536, v2
    v_add_u32 v{V_F0OFF}, v5, v4
    v_mul_u32_u24 v5, 768, v2
    v_add_u32 v{V_F1OFF}, v5, v4
    s_mul_i32 s{S_T}, s{S_WG}, 36
    s_add_u32 s{S_T}, s{S_T}, s{S_WAVE}
    s_mov_b32 s{S_ROLE}, {R_NONE}
    s_mov_b32 s{S_JOB}, 0
    s_and_b32 s{S_COPY}, s2, 7
    s_lshr_b32 s{S_TMP}, s2, 3            ; j
    s_cmp_lt_u32 s{S_COPY}, 2
    s_cbranch_scc1 ROLE_S
    s_cmp_eq_u32 s{S_COPY}, 4
    s_cbranch_scc1 ROLE_G
    s_cmp_eq_u32 s{S_COPY}, 7
    s_cbranch_scc1 ROLE_DONE
    s_cmp_ge_u32 s{S_COPY}, 5
    s_cselect_b32 s{S_TMP+1}, 3, 2
    s_sub_u32 s{S_TMP+1}, s{S_COPY}, s{S_TMP+1}   ; 2,3,5,6 -> 0,1,2,3
    s_lshl_b32 s{S_TMP+1}, s{S_TMP+1}, 5
    s_add_u32 s{S_JOB}, s{S_TMP+1}, s{S_TMP}
    s_mov_b32 s{S_ROLE}, {R_R}
    s_branch ROLE_DONE
ROLE_S:
    s_cmp_ge_u32 s{S_TMP}, 24
    s_cbranch_scc1 ROLE_DONE
    s_mov_b32 s{S_JOB}, s{S_TMP}
    s_mov_b32 s{S_ROLE}, {R_S1}
    s_cmp_ge_u32 s{S_TMP}, 12
    s_cbranch_scc0 ROLE_DONE
    s_mul_i32 s{S_TMP+1}, s{S_COPY}, 12
    s_add_u32 s{S_JOB}, s{S_TMP}, s{S_TMP+1}
    s_sub_u32 s{S_JOB}, s{S_JOB}, 12
    s_mov_b32 s{S_ROLE}, {R_S2}
    s_branch ROLE_DONE
ROLE_G:
    s_cmp_ge_u32 s{S_TMP}, 24
    s_cbranch_scc1 ROLE_DONE
    s_mov_b32 s{S_JOB}, s{S_TMP}
    s_mov_b32 s{S_ROLE}, {R_G1}
    s_cmp_ge_u32 s{S_TMP}, 12
    s_cbranch_scc0 ROLE_DONE
    s_sub_u32 s{S_JOB}, s{S_TMP}, 12
    s_mov_b32 s{S_ROLE}, {R_G2}
ROLE_DONE:
    s_waitcnt lgkmcnt(0)
    s_load_dword s{S_EPOCH}, s[{S_WS}:{S_WS+1}], {WS_EPOCH}""")
    if O.stamp: A(f'    v_mov_b32 v{V_STAMP}, 0')
    A.stamp('entry')
    l2 = A.label('P2')
    A(f'    s_cmp_eq_u32 s{S_ROLE}, {R_S1}')
    A(f'    s_cbranch_scc0 {l2}')
    role_S1_loads(A)
    A(f'{l2}:')
    tile_bases(A, 0)
    hold = A.label('PH')
    A(f'    s_cmp_eq_u32 s{S_ROLE}, {R_S1}')
    A(f'    s_cbranch_scc1 {hold}')
    issue_next(A, O.l0)
    A(f'{hold}:')
    if O.cpf:
        lc = A.label('CPF')
        A(f'''    s_sub_u32 s{S_TMP}, s{S_WG}, 192
    s_cmp_lt_u32 s{S_TMP}, 64
    s_cbranch_scc0 {lc}
    s_cmp_ge_u32 s{S_WAVE}, 2
    s_cbranch_scc0 {lc}
    s_getpc_b64 s[72:73]
CPF_PC:
    s_lshr_b32 s{S_TMP}, s{S_TMP}, 3
    s_lshl_b32 s{S_TMP}, s{S_TMP}, 1
    s_and_b32 s{S_TMP+1}, s{S_WAVE}, 1
    s_add_u32 s{S_TMP}, s{S_TMP}, s{S_TMP+1}
    s_mul_i32 s{S_TMP}, s{S_TMP}, (((K_END - CPF_PC) / 128 + 16) / 16) * 128
    v_lshlrev_b32 v1, 7, v{V_LANE}
    v_add_u32 v1, s{S_TMP}, v1
    v_cmp_gt_u32 vcc, (((K_END - CPF_PC) / 128 + 16) / 16), v{V_LANE}
    v_min_u32 v1, (K_END - CPF_PC), v1
    s_and_saveexec_b64 s[{S_EX}:{S_EX+1}], vcc
    global_load_dword v248, v1, s[72:73]
    s_mov_b64 exec, s[{S_EX}:{S_EX+1}]
{lc}:''')
    if O.touch:
        lt = A.label('TCH')
        A(f'''    s_cmp_eq_u32 s{S_WAVE}, 2
    s_cbranch_scc0 {lt}
    v_mov_b32 v1, 0
    s_mov_b64 s[{S_EX}:{S_EX+1}], exec
    s_mov_b64 exec, 1
    global_load_dword v249, v1, s[{S_WS}:{S_WS+1}] offset:2048
    v_mov_b32 v2, {WS_PART}
    v_mov_b32 v3, {WS_PART + 0x200000}
    v_mov_b32 v4, {WS_PART + 0x3ff000}
    global_load_dword v249, v2, s[{S_WS}:{S_WS+1}]
    global_load_dword v249, v3, s[{S_WS}:{S_WS+1}]
    global_load_dword v249, v4, s[{S_WS}:{S_WS+1}]
    global_load_dword v249, v1, s[{S_WK}:{S_WK+1}]
    global_load_dword v249, v1, s[{S_WV}:{S_WV+1}]
    global_load_dword v249, v1, s[{S_WO}:{S_WO+1}]
    global_load_dword v249, v1, s[{S_OUT}:{S_OUT+1}]
    s_mov_b64 exec, s[{S_EX}:{S_EX+1}]
{lt}:''')
    A.stamp('issued')
    A(f"""    v_lshrrev_b32 v2, 4, v{V_LANE}
    v_and_b32 v3, 15, v{V_LANE}
    s_mul_i32 s{S_TMP}, s{S_WAVE}, 12288
    v_lshlrev_b32 v5, 2, v2
    v_add_u32 v5, v5, v3
    v_and_b32 v5, 15, v5
    v_lshlrev_b32 v5, 4, v5
    v_lshlrev_b32 v6, 8, v2
    v_add_u32 v5, v5, v6
    v_add_u32 v{V_LDSW}, s{S_TMP}, v5
    s_lshl_b32 s{S_TMP+1}, s{S_WAVE}, 10
    v_add_u32 v{V_LDSF}, s{S_TMP+1}, v5
    v_lshrrev_b32 v5, 2, v{V_LANE}
    v_and_b32 v5, 3, v5
    v_and_b32 v6, 3, v{V_LANE}
    v_lshrrev_b32 v7, 1, v2
    v_add_u32 v7, v7, v6
    v_lshlrev_b32 v7, 2, v7
    v_and_b32 v1, 1, v2
    v_lshlrev_b32 v1, 1, v1
    v_add_u32 v7, v7, v1
    v_lshrrev_b32 v1, 1, v5
    v_add_u32 v7, v7, v1
    v_and_b32 v1, 1, v5
    v_lshlrev_b32 v1, 3, v1
    v_lshlrev_b32 v6, 8, v6
    v_add3_u32 v6, v6, v1, s{S_TMP}
    v_and_b32 v1, 15, v7
    v_lshlrev_b32 v1, 4, v1
    v_add_u32 v{V_LDSR0}, v6, v1
    v_add_u32 v7, 8, v7
    v_and_b32 v1, 15, v7
    v_lshlrev_b32 v1, 4, v1
    v_add_u32 v{V_LDSR1}, v6, v1
    v_lshlrev_b32 v5, 3, v{V_LANE}
    v_add_u32 v{V_PR}, {L_QKL}, v5
    s_lshl_b32 s{S_TMP}, s{S_WAVE}, 9
    v_add_u32 v{V_PW}, s{S_TMP}, v{V_PR}
    v_add_u32 v{V_FR}, {L_QKL + 4096}, v{V_L16}
    s_lshl_b32 s{S_TMP}, s{S_WAVE}, 2
    v_add_u32 v{V_FW}, s{S_TMP}, v{V_FR}
    s_mov_b32 s{S_THR}, {lit(8.0)}
    v_lshlrev_b32 v5, 2, v3
    v_add_u32 v{V_MB}, {L_MBUF}, v5
    v_mov_b32 v{V_MREF}, 0xff800000
    ds_write_b32 v{V_MB}, v{V_MREF}
    v_lshlrev_b32 v5, 2, v2""")
    for r in range(4):
        A(f'    v_add_u32 v6, {r}, v5')
        A(f'    v_cmp_eq_u32 s[{S_MASK+2*r}:{S_MASK+2*r+1}], v6, v3')
    A(f"""    s_mov_b32 s{S_SELLO}, 0x{SEL_LO:08x}
    s_mov_b32 s{S_SELHI}, 0x{SEL_HI:08x}
    s_mov_b32 s{S_C384}, {lit(1/384)}
    v_mov_b32 v{V_EPS}, {lit(1e-5)}
    v_mov_b32 v{V_ONEF}, 1.0
    v_mov_b32 v{V_L}, 0
    v_mov_b32 v{V_U}, 0
    v_mov_b32 v{V_Q+4}, 0
    v_mov_b32 v1, 0x3f803f80""")
    for k in range(4):
        A(f'    v_accvgpr_write_b32 a{A_ONES+k}, v1')
    A(f"""    s_waitcnt lgkmcnt(0)
    s_mul_i32 s{S_TAG}, s{S_EPOCH}, 0x9E3779B1
    s_add_u32 s{S_TAG}, s{S_TAG}, 0x7F4A7C15""")
    def snapshot(): return (list(A.vm), set(A.done), Stream.nxt, Stream.done, list(Stream.pend))
    def restore(sn): A.vm, A.done, Stream.nxt, Stream.done, Stream.pend = list(sn[0]), set(sn[1]), sn[2], sn[3], list(sn[4])
    l1 = A.label('H1'); l2 = A.label('H2'); j0 = A.label('A0J')
    A(f'    s_cmp_eq_u32 s{S_ROLE}, {R_S1}')
    A(f'    s_cbranch_scc0 {l1}')
    sn = snapshot()
    role_S1_work(A)
    if O.s1mid:
        Stream.nxt = 3
        stage_A(A, 0, quota=2, stamp=False)
        assert Stream.nxt == O.l0 + 3
        A(f'    s_branch {j0}')
        restore(sn)
    else:
        A(f'    s_branch {l2}')
    A(f'{l1}:')
    A(f'    s_cmp_eq_u32 s{S_ROLE}, {R_S2}')
    A(f'    s_cbranch_scc0 {l2}')
    sn2 = snapshot()
    role_S2_addr(A)
    role_S2_loads(A)
    if O.qtouch:
        lt = A.label('QT')
        A(f"""    s_cmp_eq_u32 s{S_WAVE}, 0
    s_cbranch_scc0 {lt}
    s_mul_i32 s{S_TMP}, s{S_COPY}, 12
    s_sub_u32 s{S_TMP}, s{S_JOB}, s{S_TMP}        ; 0..11
    s_lshl_b32 s{S_TMP}, s{S_TMP}, 11
    s_lshl_b32 s{S_TMP+1}, s{S_COPY}, 15
    s_add_u32 s{S_TMP}, s{S_TMP}, s{S_TMP+1}
    s_add_u32 s{S_TMP}, s{S_TMP}, {WS_QGA}
    v_and_b32 v1, 15, v{V_LANE}
    v_lshlrev_b32 v1, 7, v1
    v_add_u32 v1, s{S_TMP}, v1
    global_load_dword v248, v1, s[{S_WS}:{S_WS+1}]
{lt}:""")
    stage_A(A, 0, quota=O.s2q, stamp=False)
    role_S2_stage(A)
    gather_addr(A, WS_QGA)
    A(f'    s_lshl_b32 s{S_TMP}, s{S_COPY}, 15')
    A(f'    v_add_u32 v{V_GA}, s{S_TMP}, v{V_GA}')
    A.vmall()
    A.stamp('s2_poll')
    gather_loop_dual(A, WS_QGB - WS_QGA, O.na)
    flush_pend()
    issue_next(A, O.l0 + O.q0 - Stream.nxt)
    role_S2_work(A, True)
    assert Stream.nxt == O.l0 + O.q0
    A(f'    s_branch {j0}')
    restore(sn2)
    A(f'{l2}:')
    stage_A(A, 0, quota=O.q0, stamp=False)
    A(f'{j0}:')
    A.stamp('A0')
    epilogue_addresses(A)
    def run_sched(sched, tag):
        for i, st in enumerate(sched):
            k = int(st[1])
            if st[0] == 'A':
                stage_A(A, k, quota=O.qa, stamp=tag)
            else:
                nxtB = next((j for j in range(i + 1, len(sched)) if sched[j][0] == 'B'), len(sched))
                strict = any(x[0] == 'A' and int(x[1]) % 3 == k % 3 for x in sched[i + 1:nxtB]) or k == 8
                ia = next((j for j in range(i) if sched[j] == f'A{k}'), -1)
                fresh = ia >= 0 and not any(x[0] == 'B' for x in sched[ia + 1:i])
                stage_B(A, k, quota=O.qb, defer=(O.defer and k != 8), strict=strict, fresh=fresh, stamp=tag)
    def zero_o():
        A.nop(2)
        for k in range(24): A(f'    v_mov_b32 v{V_O+k}, 0')
    attempt = lambda: gather_issue(A, 'qk')
    raise_l = lambda: (enqueue(A), flush_pend())
    jend = A.label('MEND')
    if O.rolesched:
        lc = A.label('MCOMMON')
        sn = snapshot()
        A(f'    s_sub_u32 s{S_TMP}, s{S_ROLE}, 1')
        A(f'    s_cmp_lt_u32 s{S_TMP}, 2')
        A(f'    s_cbranch_scc0 {lc}')
        gather_addr(A, WS_QKG)
        rh = {O.rolesched - 1: attempt} if O.rolesched <= 3 else {}
        stage_A(A, 1, rh, stamp=False)
        zero_o()
        get_qk(A, stamp=False)
        run_sched(O.sched_role.split(), False)
        assert Stream.nxt >= 27 and not PV.pending
        A(f'    s_branch {jend}')
        A(f'{lc}:')
        restore(sn); PV.pending = []
    stage_A(A, 1, stamp=False)
    A.stamp('A1')
    gather_addr(A, WS_QKG)
    if O.raise_at == 'A1': raise_l()
    if O.attempt == 'A1': attempt()
    hooks = {}
    if O.attempt == 'A2a': hooks[0] = attempt
    if O.attempt == 'A2b': hooks[1] = attempt
    if O.hold:
        h = O.hold
        if h == 1:   hooks = {1: lambda: (attempt(), enqueue(A, 2))}
        elif h == 2: hooks = {0: lambda: (attempt(), enqueue(A, 1)), 1: lambda: enqueue(A, 1)}
        elif h == 3: hooks = {2: lambda: (attempt(), enqueue(A, 2))}
        stage_A(A, 2, hooks, quota=1)
    else:
        stage_A(A, 2, hooks)
    if O.attempt == 'A2' and not O.hold: attempt()
    if O.raise_at == 'A2': raise_l()
    enqueue(A, O.extra); flush_pend()
    zero_o()
    get_qk(A)
    run_sched(O.sched.split(), True)
    A(f'{jend}:')
    epilogue(A)
    lr = A.label('TR'); lg = A.label('TG')
    A(f'    s_cmp_eq_u32 s{S_ROLE}, {R_R}')
    A(f'    s_cbranch_scc0 {lr}')
    role_R(A)
    A('    s_branch K_FIN')
    A(f'{lr}:')
    A(f'    s_cmp_eq_u32 s{S_ROLE}, {R_G1}')
    A(f'    s_cbranch_scc1 {lg}')
    A(f'    s_cmp_eq_u32 s{S_ROLE}, {R_G2}')
    A(f'    s_cbranch_scc0 K_FIN')
    A(f'{lg}:')
    role_G(A)
    A('K_FIN:')
    if O.stamp and O.dbg:
        A('    s_waitcnt vmcnt(0)')
        A.stamp('end')
        A(f"""    s_cmp_eq_u32 s{S_WG}, {O.dbgwg}
    s_cbranch_scc0 K_END
    s_cmp_eq_u32 s{S_WAVE}, 0
    s_cbranch_scc0 K_END
    s_load_dwordx2 s[42:43], s[0:1], 64
    v_readlane_b32 s44, v{V_STAMP}, 0
    v_lshlrev_b32 v4, 2, v{V_LANE}
    s_waitcnt lgkmcnt(0)
    v_subrev_u32 v5, s44, v{V_STAMP}
    v_cmp_gt_u32 vcc, 16, v{V_LANE}
    s_and_saveexec_b64 s[{S_EX}:{S_EX+1}], vcc
    global_store_dword v4, v5, s[42:43]
    s_mov_b64 exec, s[{S_EX}:{S_EX+1}]""")
    elif O.stamp:
        A('    s_waitcnt vmcnt(0)')
        A.stamp('end')
        A(f"""    s_lshl_b32 s42, s{S_WG}, 2
    s_add_u32 s42, s42, s{S_WAVE}
    s_lshl_b32 s42, s42, 8
    s_add_u32 s42, s42, {WS_STAMP}
    v_lshlrev_b32 v4, 2, v{V_LANE}
    v_add_u32 v4, s42, v4
    global_store_dword v4, v{V_STAMP}, s[{S_WS}:{S_WS+1}]""")
    A('K_END:')
    A('    s_endpgm')
    assert Stream.nxt >= 27
    return A

def build():
    A = build_kernel()
    txt = A.text()
    for p in check_hazards(txt): print('HAZARD', p, file=sys.stderr)
    ref = open('standalone__detection_seg_dino__vision.s.ref').read().split('\n')
    top = [l for l in ref if l.startswith(';') and '@launch' not in l and 'Override launch' not in l and 'grid=ceil' not in l][:12]
    out = '\n'.join(top) + '\n'
    out += f'; @launch grid=(256,1,1) block=(256,1,1) lds={LDS_BYTES}\n'
    out += '.amdgcn_target "amdgcn-amd-amdhsa--gfx950"\n' + txt
    out += f""".section .rodata,"a"
.p2align 6
.amdhsa_kernel {NAME}
  .amdhsa_next_free_vgpr {256 + NACC}
  .amdhsa_next_free_sgpr 96
  .amdhsa_accum_offset 256
  .amdhsa_group_segment_fixed_size 0
  .amdhsa_kernarg_size 80
  .amdhsa_user_sgpr_count 2
  .amdhsa_user_sgpr_kernarg_segment_ptr 1
  .amdhsa_system_sgpr_workgroup_id_x 1
  .amdhsa_float_denorm_mode_32 3
.end_amdhsa_kernel
"""
    return out, A.labels

if __name__ == '__main__':
    path = sys.argv[1]
    for o in (sys.argv[2].split(',') if len(sys.argv) > 2 else []):
        if o == 'stamp': O.stamp = True
        elif o == 'plain': O.nt = ''
        elif o == 'nodefer': O.defer = False
        elif o == 'nocpf': O.cpf = False
        elif o.startswith('rolesched='): O.rolesched = int(o[10:])
        elif o.startswith('sched_role='): O.sched_role = o[11:].replace('-', ' ')
        elif o.startswith('s1early='): O.s1early = int(o[8:])
        elif o.startswith('s2q='): O.s2q = int(o[4:])
        elif o == 'qtouch': O.qtouch = True
        elif o.startswith('na='): O.na = int(o[3:])
        elif o == 'latef': O.earlyf = False
        elif o.startswith('rthr='): O.rthr = int(o[5:])
        elif o.startswith('s2n='): O.s2n = int(o[4:])
        elif o.startswith('dbg='): O.stamp = True; O.dbgwg = int(o[4:]); O.dbg = ['entry','issued','head','A0','A1','A2','Qk','B0','B4','B8','pub','R_ml','R_done','G2_in','G_done','end']
        elif o == 's1mid': O.s1mid = True
        elif o == 'eager': O.lazy = False
        elif o.startswith('q0='): O.q0 = int(o[3:])
        elif o == 'rcomb': O.rcomb = True
        elif o.startswith('hold='): O.hold = int(o[5:])
        elif o.startswith('s2mode='): O.s2mode = o[7:]
        elif o == 's2drain': O.s2drain = True
        elif o == 'touch': O.touch = True
        elif o.startswith('fine='): O.fine = int(o[5:])
        elif o.startswith('qa='): O.qa = int(o[3:])
        elif o.startswith('s2att='): O.s2att = int(o[6:])
        elif o.startswith('qb='): O.qb = int(o[3:])
        elif o.startswith('att='): O.attempt = o[4:]
        elif o.startswith('extra='): O.extra = int(o[6:])
        elif o.startswith('l0='): O.l0 = int(o[3:])
        elif o.startswith('raise='): O.raise_at = o[6:]
        elif o.startswith('sched='): O.sched = o[6:].replace('-', ' ')
    out, labels = build()
    open(path, 'w').write(out)
    if O.stamp: open(path + '.labels', 'w').write(','.join(labels))
    print('wrote', path, len(out), 'bytes;', out.count('\n'), 'lines')
```

```python
import sys, struct, math
from asmlib import *

def f2u(x): return struct.unpack('<I', struct.pack('<f', x))[0]
def lit(x): return f'0x{f2u(x):08x}'
NAME = 'standalone__detection_seg_dino__vision_kernel'

class Opt:
    stamp = False
    nt = ' nt'
    extra = 0
    rolesched = 0
    sched_role = 'B0 B1 A2 B2 A3 B3 A4 B4 A5 B5 A6 B6 A7 B7 A8 B8'
    s1early = 2
    s2q = 1
    qtouch = False
    na = 16
    earlyf = True
    rthr = 0
    s2n = 2
    dbg = None
    dbgwg = 28
    s1mid = False
    lazy = True
    q0 = 3
    rcomb = False
    hold = 3
    s2mode = 'spin0'
    s2drain = True
    cpf = True
    touch = False
    wsoff = 0
    fine = -1
    defer = True
    s2att = 1
    qa = 2
    qb = 1
    spread = True
    l0 = 2
    raise_at = 'A2'
    attempt = 'A2b'
    sched = 'B0 A3 B1 B2 A4 B3 B4 A5 B5 A6 B6 A7 B7 A8 B8'
O = Opt()

WS_EPOCH = 0x0
WS_QG    = 0x1000
WS_QKG   = 0x8000
WS_CTXN  = 0x10000
WS_CTX   = 0x18000
WS_ML    = 0x20000
WS_QGA   = 0x40000
WS_QGB   = 0x50000
WS_CTXA  = 0x60000
WS_PART  = 0x100000
WS_STAMP = 0x800000
SEL_LO, SEL_HI = 0x00003F80, 0x3F800000

RAW = [8, 68]
V_T   = 128
V_STG = 152
V_O   = 160
V_S, V_R, V_G, V_D = 184, 188, 192, 196
V_P   = 200
V_MREF, V_L, V_SQ, V_ONEF, V_EPS = 202, 203, 204, 205, 206
V_F0OFF, V_F1OFF = 207, 208
V_LDSW, V_LDSR0, V_LDSR1, V_LDSF = 209, 210, 211, 212
V_PW, V_PR, V_MB, V_LANE = 213, 214, 215, 216
V_CW, V_CR0, V_CR1, V_CF = 217, 218, 219, 220
V_U = 221
V_FW, V_FR = 254, 255
V_GA = 222
V_L16 = 223
V_GB = 224
V_Q = 248
V_STAMP = 253
A_QK, A_X, A_F, A_P, A_ONES, A_W = 0, 48, 96, 144, 152, 156
NACC = 180
S_F0, S_F1, S_WS = 4, 6, 8
S_BSET = [10, 44]
S_WAVE, S_WG, S_T = 16, 17, 19
S_SELLO, S_SELHI, S_C384 = 20, 21, 23
S_MASK = 26
S_TMP = 34
S_TAG, S_EPOCH, S_ROLE, S_JOB = 50, 51, 52, 53
S_Q, S_OUT = 54, 58
S_SPIN = 60
S_COPY = 74
S_THR = 61
S_EX = 62
S_WQ, S_WK, S_WV, S_WO = 64, 66, 68, 70
R_NONE, R_S1, R_S2, R_G1, R_G2, R_R = 0, 1, 2, 3, 4, 5
SPIN_MAX = 1 << 18
SLOT = 49152
L_QKL  = 3 * SLOT
L_PBUF = L_QKL + 12288
L_MBUF = L_PBUF + 2048
L_LBUF = L_MBUF + 64
L_FLAG = L_LBUF + 512
LDS_BYTES = L_FLAG + 1024
assert LDS_BYTES <= 163840
L_HEAD = 2 * SLOT
L_STAT = L_HEAD + 6144
L_RED_H = L_HEAD
L_TR   = SLOT
L_RED_T = SLOT + 4608
L_RB   = 0

class Gen(Asm):
    def __init__(self):
        super().__init__()
        self.vm = []
        self.uid = 0
        self.nstamp = 0
        self.labels = []
        self.done = set()
    def vmop(self, line, tag):
        self(line); self.vm.append(tag)
    def vmwait(self, tag):
        hits = [i for i, t in enumerate(self.vm) if t == tag]
        if not hits:
            assert tag in self.done, tag
            return
        idx = hits[-1]
        self.done.update(self.vm[:idx + 1])
        n = len(self.vm) - 1 - idx
        assert n <= 63, n
        self(f'    s_waitcnt vmcnt({n})')
        self.vm = self.vm[idx + 1:]
    def vmall(self):
        self('    s_waitcnt vmcnt(0)'); self.vm = []
    def label(self, base):
        self.uid += 1
        return f'{base}_{self.uid}'
    def stamp(self, name):
        if not O.stamp: return
        if O.dbg and name not in O.dbg: return
        idx = len(self.labels)
        assert idx < 64
        self.labels.append(name)
        self('    s_memrealtime s[40:41]')
        self('    s_waitcnt lgkmcnt(0)')
        self(f'    v_writelane_b32 v{V_STAMP}, s40, {idx}')

def xgroup_reduce(A, op, v, t):
    A(f'    v_mov_b32 v{t}, v{v}')
    A.nop(2)
    A(f'    v_permlane32_swap_b32 v{t}, v{v}')
    A(f'    {op} v{v}, v{v}, v{t}')
    A(f'    v_mov_b32 v{t}, v{v}')
    A.nop(2)
    A(f'    v_permlane16_swap_b32 v{t}, v{v}')
    A(f'    {op} v{v}, v{v}, v{t}')

def multi_xgroup(A, op, vs, ts):
    for sw in ('32', '16'):
        for v, t in zip(vs, ts): A(f'    v_mov_b32 v{t}, v{v}')
        if len(vs) < 3: A.nop(3 - len(vs))
        for v, t in zip(vs, ts): A(f'    v_permlane{sw}_swap_b32 v{t}, v{v}')
        for v, t in zip(vs, ts): A(f'    {op} v{v}, v{v}, v{t}')

def multi_row(A, op, vs, rots=(8, 4, 2, 1)):
    for rot in rots:
        if len(vs) < 3: A.nop(3 - len(vs))
        for v in vs: A(f'    {op}_dpp v{v}, v{v}, v{v} row_ror:{rot} row_mask:0xf bank_mask:0xf')

def tile_bases(A, u):
    S_B0 = S_BSET[u]; S_B1 = S_B0 + 2; S_BF = S_B0 + 4
    A(f'''    s_mul_hi_u32 s{S_TMP}, s{S_T}, 89478486
    s_mul_i32 s{S_TMP+1}, s{S_TMP}, 48
    s_sub_u32 s{S_TMP+1}, s{S_T}, s{S_TMP+1}
    s_mul_i32 s{S_TMP}, s{S_TMP}, 589824
    s_mul_i32 s{S_TMP+1}, s{S_TMP+1}, 6144
    s_add_u32 s{S_TMP}, s{S_TMP}, s{S_TMP+1}
    s_add_u32 s{S_B0}, s{S_F0}, s{S_TMP}
    s_addc_u32 s{S_B0+1}, s{S_F0+1}, 0
    s_add_u32 s{S_B1}, s{S_B0}, 294912
    s_addc_u32 s{S_B1+1}, s{S_B0+1}, 0
    s_mul_i32 s{S_TMP}, s{S_T}, 3072
    s_add_u32 s{S_BF}, s{S_F1}, s{S_TMP}
    s_addc_u32 s{S_BF+1}, s{S_F1+1}, 0
    s_add_u32 s{S_T}, s{S_T}, 4''')

def issue_item(A, j):
    if j > 26: return
    tile, third = divmod(j, 3); u = tile & 1
    if third == 0 and j > 0: tile_bases(A, u)
    S_B0 = S_BSET[u]; S_B1 = S_B0 + 2; S_BF = S_B0 + 4
    b = RAW[u]
    r = b + 48 + 4 * third
    A.vmop(f'    global_load_dwordx4 v[{r}:{r+3}], v{V_F1OFF}, s[{S_BF}:{S_BF+1}] offset:{third*256}{O.nt}', f'item{j}')
    for jj in range(4):
        dy, dx = jj >> 1, jj & 1
        r = b + 16 * third + 4 * jj
        base = S_B1 if dy else S_B0
        A.vmop(f'    global_load_dwordx4 v[{r}:{r+3}], v{V_F0OFF}, s[{base}:{base+1}] offset:{dx*768+third*256}{O.nt}', f'item{j}')

class Stream:
    nxt = 0
    done = 0
    pend = []
def enqueue(A, n=1):
    for _ in range(n):
        if Stream.nxt <= 26 and Stream.nxt < Stream.done + 6:
            Stream.pend += item_steps(A)
def pop(n=1):
    for _ in range(n):
        if Stream.pend: Stream.pend.pop(0)()
def flush_pend():
    pop(len(Stream.pend))
def issue_next(A, n=1):
    for _ in range(n):
        issue_item(A, Stream.nxt); Stream.nxt += 1

def item_steps(A):
    j = Stream.nxt; Stream.nxt += 1
    if j > 26: return []
    tile, third = divmod(j, 3); u = tile & 1
    S_B0 = S_BSET[u]; S_B1 = S_B0 + 2; S_BF = S_B0 + 4
    b = RAW[u]
    steps = []
    def first():
        if third == 0: tile_bases(A, u)
        r = b + 48 + 4 * third
        A.vmop(f'    global_load_dwordx4 v[{r}:{r+3}], v{V_F1OFF}, s[{S_BF}:{S_BF+1}] offset:{third*256}{O.nt}', f'item{j}')
    steps.append(first)
    for jj in range(4):
        def f(jj=jj):
            dy, dx = jj >> 1, jj & 1
            r = b + 16 * third + 4 * jj
            base = S_B1 if dy else S_B0
            A.vmop(f'    global_load_dwordx4 v[{r}:{r+3}], v{V_F0OFF}, s[{base}:{base+1}] offset:{dx*768+third*256}{O.nt}', f'item{j}')
        steps.append(f)
    return steps

def stage_A(A, k, hooks=None, quota=3, stamp=True):
    hooks = hooks or {}
    u = k & 1; b = RAW[u]; T = V_T
    A(f'    v_add_u32 v{V_CW}, {(k % 3) * SLOT}, v{V_LDSW}')
    if PV.pending: A('    s_waitcnt lgkmcnt(0)')
    units = [(third, dd) for third in range(3) for dd in range(4)]
    def tset(i): return T + 10 * (i & 1)
    def U(i):
        third, dd = units[i]; t = tset(i); f1 = b + 48 + 4 * third + dd
        return [f'    v_lshlrev_b32 v{t+8}, 16, v{f1}', f'    v_and_b32 v{t+9}, 0xffff0000, v{f1}']
    def D(i):
        third, dd = units[i]; t = tset(i)
        return ([f'    v_dot2_f32_bf16 v{t+j}, v{b+16*third+4*j+dd}, s{S_SELLO}, v{t+8}' for j in range(4)] +
                [f'    v_dot2_f32_bf16 v{t+4+j}, v{b+16*third+4*j+dd}, s{S_SELHI}, v{t+9}' for j in range(4)])
    def C(i):
        t = tset(i); o = V_STG + 4 * (i & 1)
        return [f'    v_cvt_pk_bf16_f32 v{o+kk}, v{t+2*kk}, v{t+2*kk+1}' for kk in range(4)]
    def W(i):
        third, dd = units[i]; o = V_STG + 4 * (i & 1)
        return f'    ds_write_b128 v{V_CW}, v[{o}:{o+3}] offset:{(third*4+dd)*1024}'
    enq = {0: 1, 4: 1, 8: 1} if quota == 3 else ({0: 1, 6: 1} if quota == 2 else ({0: 1} if quota == 1 else {}))
    def ensure(j):
        while any(True for _ in Stream.pend) and f'item{j}' not in A.done and A.vm.count(f'item{j}') < 5: pop()
        while Stream.nxt <= j: Stream.pend += item_steps(A); flush_pend()
    ensure(3 * k); A.vmwait(f'item{3*k}')
    enqueue(A, enq.get(0, 0))
    u0 = U(0); d0 = D(0)
    for l in u0 + d0[:4]: A(l)
    pop()
    for l in d0[4:]: A(l)
    for i in range(1, 12):
        if i % 4 == 0:
            Stream.done = 3 * k + i // 4
            ensure(3 * k + i // 4); A.vmwait(f'item{3*k + i//4}')
        enqueue(A, enq.get(i, 0))
        for l in U(i): A(l)
        if quota == 3 and i % 4 in (0, 2): pop()
        d = D(i); c = C(i - 1)
        for kk in range(4):
            A(d[kk]); A(c[kk])
        pv_pop(A, 2)
        A(W(i - 1))
        pop()
        for kk in range(4, 8): A(d[kk])
        if i % 4 == 3 and (i // 4) in hooks: hooks[i // 4]()
    Stream.done = 3 * k + 3
    flush_pend()
    A.nop(1)
    for l in C(11): A(l)
    pv_flush(A)
    A(W(11))
    if stamp: A.stamp(f'A{k}')

class PV:
    pending = []
def pv_steps():
    out = []
    for wp in range(4):
        for third in range(3):
            for e1 in range(2):
                f = A_F + (wp * 3 + third) * 4 + 2 * e1
                o = V_O + (third * 2 + e1) * 4
                out.append(f'    v_mfma_f32_16x16x16_bf16 v[{o}:{o+3}], a[{f}:{f+1}], a[{A_P+2*wp}:{A_P+2*wp+1}], v[{o}:{o+3}]')
    return out
def pv_pop(A, n=1):
    for _ in range(n):
        if PV.pending: A(PV.pending.pop(0))
def pv_flush(A):
    pv_pop(A, len(PV.pending))

def f_reads(A):
    for wp in range(4):
        for third in range(3):
            r = A_F + (wp * 3 + third) * 4
            A(f'    ds_read_b128 a[{r}:{r+3}], v{V_CF} offset:{wp*12288 + third*4096}')
def p_off(k): return 0 if (k & 1) else L_PBUF - L_QKL
def flag_off(k): return 0 if (k & 1) else L_FLAG - (L_QKL + 4096)
def p_reads(A, k):
    for wp in range(4):
        A(f'    ds_read_b64 a[{A_P+2*wp}:{A_P+2*wp+1}], v{V_PR} offset:{wp*512 + p_off(k)}')

def eager_softmax(A, k, strict, fine):
    T = V_T
    for r in range(4):
        A(f'    v_fma_f32 v{V_S+r}, -v{V_R+r}, v{V_SQ}, v{V_S+r}')
    for r in range(4):
        A(f'    v_mul_f32 v{V_S+r}, v{V_S+r}, v{V_D+r}')
    A(f'    v_max3_f32 v{T}, v{V_S}, v{V_S+1}, v{V_S+2}')
    A(f'    v_max_f32 v{T}, v{T}, v{V_S+3}')
    if fine: A.stamp('b_z')
    A(f'    ds_max_f32 v{V_MB}, v{T}')
    A('    s_waitcnt lgkmcnt(0)')
    if fine: A.stamp('b_pre1')
    A('    s_barrier')
    if fine: A.stamp('b_post1')
    A(f'    ds_read_b32 v{T+1}, v{V_MB}')
    A('    s_waitcnt lgkmcnt(0)')
    if fine: A.stamp('b_m(+F)')
    A(f'    v_sub_f32 v{T+2}, v{V_MREF}, v{T+1}')
    for r in range(4):
        A(f'    v_sub_f32 v{V_S+r}, v{V_S+r}, v{T+1}')
    A(f'    v_exp_f32 v{T+2}, v{T+2}')
    for r in range(4):
        A(f'    v_exp_f32 v{V_S+r}, v{V_S+r}')
    A(f'    v_mov_b32 v{V_MREF}, v{T+1}')
    for r in range(4):
        A(f'    v_mul_f32 v{T+4+r}, v{V_S+r}, v{V_D+r}')
    A(f'    v_add_f32 v{V_S}, v{V_S}, v{V_S+1}')
    A(f'    v_cvt_pk_bf16_f32 v{V_P}, v{T+4}, v{T+5}')
    A(f'    v_cvt_pk_bf16_f32 v{V_P+1}, v{T+6}, v{T+7}')
    A(f'    v_add_f32 v{V_S+2}, v{V_S+2}, v{V_S+3}')
    A(f'    ds_write_b64 v{V_PW}, v[{V_P}:{V_P+1}] offset:{p_off(0)}')
    for wp in range(4):
        for third in range(3):
            r = A_F + (wp * 3 + third) * 4
            A(f'    ds_read_b128 a[{r}:{r+3}], v{V_CF} offset:{wp*12288 + third*4096}')
    A(f'    v_add_f32 v{V_S}, v{V_S}, v{V_S+2}')
    A(f'    v_fma_f32 v{V_L}, v{V_L}, v{T+2}, v{V_S}')
    A(f'    v_mul_f32 v{V_U}, v{V_U}, v{T+2}')
    A(f'    v_lshlrev_b32 v{T+4}, 16, v{V_P}')
    A(f'    v_and_b32 v{T+5}, 0xffff0000, v{V_P}')
    A(f'    v_lshlrev_b32 v{T+6}, 16, v{V_P+1}')
    A(f'    v_and_b32 v{T+7}, 0xffff0000, v{V_P+1}')
    for r in range(4):
        A(f'    v_fmac_f32 v{V_U}, v{T+4+r}, v{V_R+r}')
    for kk in range(0, 24, 2):
        A(f'    v_pk_mul_f32 v[{V_O+kk}:{V_O+kk+1}], v[{V_O+kk}:{V_O+kk+1}], v[{T+2}:{T+3}] op_sel_hi:[1,0]')
    if fine: A.stamp('b_P')
    A(f'    s_waitcnt lgkmcnt({0 if strict else 12})')
    A('    s_barrier')
    if fine: A.stamp('b_post2')
    for wp in range(4):
        A(f'    ds_read_b64 a[{A_P+2*wp}:{A_P+2*wp+1}], v{V_PR} offset:{wp*512 + p_off(0)}')

def lazy_softmax(A, k, strict, fine, early=False):
    T = V_T; AR = T + 8; PP = T + 4; DL = T + 12; DU = T + 13
    slow = A.label('BS'); join = A.label('BJ')
    def p_from_args():
        for r in range(4): A(f'    v_exp_f32 v{AR+r}, v{AR+r}')
        A('    s_nop 0')
        for r in range(0, 4, 2):
            A(f'    v_pk_mul_f32 v[{PP+r}:{PP+r+1}], v[{AR+r}:{AR+r+1}], v[{V_D+r}:{V_D+r+1}]')
        A(f'    v_cvt_pk_bf16_f32 v{V_P}, v{PP}, v{PP+1}')
        A(f'    v_cvt_pk_bf16_f32 v{V_P+1}, v{PP+2}, v{PP+3}')
        A(f'    ds_write_b64 v{V_PW}, v[{V_P}:{V_P+1}] offset:{p_off(k)}')
    def increments():
        A(f'    v_add_f32 v{AR}, v{AR}, v{AR+1}')
        A(f'    v_add_f32 v{AR+2}, v{AR+2}, v{AR+3}')
        A(f'    v_lshlrev_b32 v{PP}, 16, v{V_P}')
        A(f'    v_and_b32 v{PP+1}, 0xffff0000, v{V_P}')
        A(f'    v_lshlrev_b32 v{PP+2}, 16, v{V_P+1}')
        A(f'    v_and_b32 v{PP+3}, 0xffff0000, v{V_P+1}')
        A(f'    v_add_f32 v{DL}, v{AR}, v{AR+2}')
        A(f'    v_mul_f32 v{DU}, v{PP}, v{V_R}')
        A(f'    v_mul_f32 v{PP}, v{PP+1}, v{V_R+1}')
        A(f'    v_fmac_f32 v{DU}, v{PP+2}, v{V_R+2}')
        A(f'    v_fmac_f32 v{PP}, v{PP+3}, v{V_R+3}')
        A(f'    v_add_f32 v{DU}, v{DU}, v{PP}')
    for r in range(0, 4, 2):
        A(f'    v_pk_fma_f32 v[{V_S+r}:{V_S+r+1}], v[{V_R+r}:{V_R+r+1}], v[{V_SQ}:{V_SQ+1}], v[{V_S+r}:{V_S+r+1}] op_sel_hi:[1,0,1] neg_lo:[1,0,0] neg_hi:[1,0,0]')
    for r in range(0, 4, 2):
        A(f'    v_pk_fma_f32 v[{AR+r}:{AR+r+1}], v[{V_S+r}:{V_S+r+1}], v[{V_D+r}:{V_D+r+1}], v[{V_MREF}:{V_MREF+1}] op_sel_hi:[1,1,0] neg_lo:[0,0,1] neg_hi:[0,0,1]')
    A(f'    v_max3_f32 v{T}, v{AR}, v{AR+1}, v{AR+2}')
    A(f'    v_max_f32 v{T}, v{T}, v{AR+3}')
    A(f'    v_cmp_lt_f32 vcc, s{S_THR}, v{T}')
    if fine: A.stamp('b_z')
    p_from_args()
    A(f'    v_cndmask_b32 v{T}, 0, 1, vcc')
    A(f'    ds_write_b32 v{V_FW}, v{T} offset:{flag_off(k)}')
    increments()
    if fine: A.stamp('b_P')
    A('    s_waitcnt lgkmcnt(0)')
    A('    s_barrier')
    if fine: A.stamp('b_post')
    A(f'    ds_read_b128 v[{T}:{T+3}], v{V_FR} offset:{flag_off(k)}')
    p_reads(A, k)
    if early:
        A('    s_waitcnt lgkmcnt(4)')
    else:
        f_reads(A)
        A('    s_waitcnt lgkmcnt(15)')
    A(f'    v_or3_b32 v{T}, v{T}, v{T+1}, v{T+2}')
    A(f'    v_or_b32 v{T}, v{T}, v{T+3}')
    A(f'    v_cmp_ne_u32 vcc, 0, v{T}')
    A(f'    s_cbranch_vccz {join}')
    for r in range(4): A(f'    v_mul_f32 v{AR+r}, v{V_S+r}, v{V_D+r}')
    A(f'    v_max3_f32 v{T}, v{AR}, v{AR+1}, v{AR+2}')
    A(f'    v_max_f32 v{T}, v{T}, v{AR+3}')
    A(f'    ds_max_f32 v{V_MB}, v{T}')
    A('    s_waitcnt lgkmcnt(0)')
    A('    s_barrier')
    A(f'    ds_read_b32 v{T+1}, v{V_MB}')
    A('    s_waitcnt lgkmcnt(0)')
    A(f'    v_sub_f32 v{T+2}, v{V_MREF}, v{T+1}')
    for r in range(4): A(f'    v_sub_f32 v{AR+r}, v{AR+r}, v{T+1}')
    A(f'    v_exp_f32 v{T+2}, v{T+2}')
    A(f'    v_mov_b32 v{V_MREF}, v{T+1}')
    p_from_args()
    A(f'    v_mul_f32 v{V_L}, v{V_L}, v{T+2}')
    A(f'    v_mul_f32 v{V_U}, v{V_U}, v{T+2}')
    for kk in range(0, 24, 2):
        A(f'    v_pk_mul_f32 v[{V_O+kk}:{V_O+kk+1}], v[{V_O+kk}:{V_O+kk+1}], v[{T+2}:{T+3}] op_sel_hi:[1,0]')
    increments()
    A('    s_waitcnt lgkmcnt(0)')
    A('    s_barrier')
    p_reads(A, k)
    A(f'{join}:')
    A(f'    v_add_f32 v{V_L}, v{V_L}, v{DL}')
    A(f'    v_add_f32 v{V_U}, v{V_U}, v{DU}')
    if strict and k != 8:
        A('    s_waitcnt lgkmcnt(0)')
        A('    s_barrier')

def stage_B(A, k, quota=1, defer=True, strict=True, fresh=True, stamp=True):
    T = V_T; so = (k % 3) * SLOT
    early = O.earlyf and O.lazy
    enqueue(A, quota)
    A(f'    v_add_u32 v{V_CR0}, {so}, v{V_LDSR0}')
    A(f'    v_add_u32 v{V_CR1}, {so}, v{V_LDSR1}')
    A(f'    v_add_u32 v{V_CF}, {so}, v{V_LDSF}')
    if PV.pending or (early and fresh): A('    s_waitcnt lgkmcnt(0)')
    if early and fresh: A('    s_barrier')
    n = 0
    for bb in range(12):
        for a2 in range(2):
            r = A_X + 4 * bb + 2 * a2
            A(f'    ds_read_b64_tr_b16 a[{r}:{r+1}], v{V_CR0+a2} offset:{bb*1024}')
            n += 1
            pv_pop(A)
    pv_flush(A)
    fine = (O.fine == k)
    if fine: A.stamp('b_tr')
    def X(bb): return f'a[{A_X+4*bb}:{A_X+4*bb+3}]'
    def G(bb): A(f'    v_mfma_f32_16x16x32_bf16 v[{V_G}:{V_G+3}], {X(bb)}, {X(bb)}, ' + ('0' if bb == 0 else f'v[{V_G}:{V_G+3}]'))
    def R(bb): A(f'    v_mfma_f32_16x16x32_bf16 v[{V_R}:{V_R+3}], {X(bb)}, a[{A_ONES}:{A_ONES+3}], ' + ('0' if bb == 0 else f'v[{V_R}:{V_R+3}]'))
    def S(bb): A(f'    v_mfma_f32_16x16x32_bf16 v[{V_S}:{V_S+3}], {X(bb)}, a[{A_QK+4*bb}:{A_QK+4*bb+3}], ' + ('0' if bb == 0 else f'v[{V_S}:{V_S+3}]'))
    fl = []
    if early:
        for wp in range(4):
            for third in range(3):
                r = A_F + (wp * 3 + third) * 4
                fl.append(f'    ds_read_b128 a[{r}:{r+3}], v{V_CF} offset:{wp*12288 + third*4096}')
    nf = 0
    for bb in range(12):
        if bb % 3 == 0:
            A(f'    s_waitcnt lgkmcnt({min(15, 24 - 2*(bb+3) + nf)})')
        G(bb)
        if fl: A(fl.pop(0)); nf += 1
        if bb % 2 == 1 and bb < 11: pop()
    flush_pend()
    if fine: A.stamp('b_G')
    for bb in range(8): R(bb)
    for r in range(4):
        src0 = '0' if r == 0 else f'v{T}'
        A(f'    v_cndmask_b32 v{T}, {src0}, v{V_G+r}, s[{S_MASK+2*r}:{S_MASK+2*r+1}]')
        R(8 + r)
    S(0)
    A(f'    v_mfma_f32_16x16x4_f32 v[{V_D}:{V_D+3}], v{T}, v{V_ONEF}, 0')
    for bb in range(1, 7): S(bb)
    for r in range(4):
        A(f'    v_mul_f32 v{V_R+r}, s{S_C384}, v{V_R+r}')
        S(7 + r)
    for r in range(4):
        A(f'    v_fma_f32 v{T+r}, -v{V_R+r}, v{V_R+r}, v{V_EPS}')
        if r == 1: S(11)
    for r in range(4):
        A(f'    v_fma_f32 v{V_D+r}, v{V_D+r}, s{S_C384}, v{T+r}')
    for r in range(4):
        A(f'    v_rsq_f32 v{V_D+r}, v{V_D+r}')
    if O.lazy:
        lazy_softmax(A, k, strict and not early, fine, early)
    else:
        eager_softmax(A, k, strict, fine)
    PV.pending = pv_steps()
    if not defer:
        if k == 8: epilogue_pre(A)
        A('    s_waitcnt lgkmcnt(0)')
        pv_flush(A)
    if stamp: A.stamp(f'B{k}')

def gather_addr(A, ws_off):
    A(f'    s_mul_i32 s{S_TMP}, s{S_WAVE}, 6144')
    A(f'    s_add_u32 s{S_TMP}, s{S_TMP}, {ws_off + 2048}')
    A(f'    v_add_u32 v{V_GA}, s{S_TMP}, v{V_L16}')

def gather_issue(A, track=None):
    for kk in range(3):
        for h in range(2):
            r = V_GB + 8 * kk + 4 * h
            line = f'    global_load_dwordx4 v[{r}:{r+3}], v{V_GA}, s[{S_WS}:{S_WS+1}] offset:{kk*2048 + h*1024 - 2048} sc1'
            if track: A.vmop(line, track)
            else: A(line)

def gather_check(A):
    T = V_T
    for kk in range(3):
        A(f'    v_xor_b32 v{T+2*kk}, s{S_TAG}, v{V_GB+8*kk}')
        A(f'    v_xor_b32 v{T+2*kk+1}, s{S_TAG}, v{V_GB+8*kk+6}')
    A(f'    v_or3_b32 v{T}, v{T}, v{T+1}, v{T+2}')
    A(f'    v_or3_b32 v{T+3}, v{T+3}, v{T+4}, v{T+5}')
    A(f'    v_or_b32 v{T}, v{T}, v{T+3}')
    A(f'    v_cmp_ne_u32 vcc, 0, v{T}')

def spin_guard(A, lbl_retry):
    A(f'    s_add_u32 s{S_SPIN}, s{S_SPIN}, 1')
    A(f'    s_cmp_lt_u32 s{S_SPIN}, {SPIN_MAX}')
    A(f'    s_cbranch_scc0 K_END')

def gather_loop(A):
    l = A.label('GL'); d = A.label('GD')
    A(f'{l}:')
    gather_issue(A)
    A('    s_waitcnt vmcnt(0)')
    gather_check(A)
    A(f'    s_cbranch_vccz {d}')
    spin_guard(A, l)
    A(f'    s_branch {l}')
    A(f'{d}:')

def publish8(A, dreg, ws_off_sgpr):
    A(f'    v_mov_b32 v{dreg}, s{S_TAG}')
    A(f'    v_mov_b32 v{dreg+1}, 0')
    A(f'    v_mov_b32 v{dreg+6}, s{S_TAG}')
    A(f'    v_mov_b32 v{dreg+7}, 0')
    A(f'    v_add_u32 v1, s{ws_off_sgpr}, v{V_L16}')
    A(f'    global_store_dwordx4 v1, v[{dreg}:{dreg+3}], s[{S_WS}:{S_WS+1}] sc1')
    A(f'    global_store_dwordx4 v1, v[{dreg+4}:{dreg+7}], s[{S_WS}:{S_WS+1}] offset:1024 sc1')

def publish8_dual(A, dreg, off_a_sgpr, delta_b):
    A(f'    v_mov_b32 v{dreg}, s{S_TAG}')
    A(f'    v_mov_b32 v{dreg+1}, 0')
    A(f'    v_mov_b32 v{dreg+6}, s{S_TAG}')
    A(f'    v_mov_b32 v{dreg+7}, 0')
    A(f'    v_add_u32 v1, s{off_a_sgpr}, v{V_L16}')
    A(f'    v_add_u32 v2, {delta_b & 0xffffffff}, v1')
    A(f'    global_store_dwordx4 v1, v[{dreg}:{dreg+3}], s[{S_WS}:{S_WS+1}]')
    A(f'    global_store_dwordx4 v1, v[{dreg+4}:{dreg+7}], s[{S_WS}:{S_WS+1}] offset:1024')
    A(f'    global_store_dwordx4 v2, v[{dreg}:{dreg+3}], s[{S_WS}:{S_WS+1}] sc1')
    A(f'    global_store_dwordx4 v2, v[{dreg+4}:{dreg+7}], s[{S_WS}:{S_WS+1}] offset:1024 sc1')

def gather_loop_dual(A, delta_b, na=3):
    l = A.label('GL'); li = A.label('GI'); d = A.label('GD')
    A(f'{l}:')
    A(f'    s_mov_b32 s{S_TMP+3}, 0')
    A(f'{li}:')
    gather_issue(A)
    A('    s_waitcnt vmcnt(0)')
    gather_check(A)
    A(f'    s_cbranch_vccz {d}')
    A(f'    s_add_u32 s{S_TMP+3}, s{S_TMP+3}, 1')
    A(f'    s_cmp_lt_u32 s{S_TMP+3}, {na}')
    A(f'    s_cbranch_scc1 {li}')
    A(f'    v_add_u32 v{V_GA}, {delta_b & 0xffffffff}, v{V_GA}')
    gather_issue(A)
    A(f'    v_subrev_u32 v{V_GA}, {delta_b & 0xffffffff}, v{V_GA}')
    A('    s_waitcnt vmcnt(0)')
    gather_check(A)
    A(f'    s_cbranch_vccz {d}')
    spin_guard(A, l)
    A(f'    s_branch {l}')
    A(f'{d}:')

def slab_addr(A, perm):
    A(f'''    v_lshrrev_b32 v1, 2, v{V_LANE}
    s_mul_i32 s{S_TMP}, s{S_WAVE}, 96
    v_add_u32 v1, s{S_TMP}, v1            ; p (x = 0)
    v_and_b32 v{V_T}, 3, v{V_LANE}
    v_lshlrev_b32 v{V_T}, 4, v{V_T}
    s_lshl_b32 s{S_TMP}, s{S_JOB}, 6
    v_add_u32 v{V_T}, s{S_TMP}, v{V_T}''')
    for x in range(6):
        d = 2 + x
        if not perm:
            A(f'    v_add_u32 v{d}, {16*x}, v1')
        else:
            t = V_T + 1; kk = x >> 1
            A(f"""    v_lshrrev_b32 v{t}, 2, v{V_LANE}
    v_add_u32 v{t}, {16*(x&1)}, v{t}          ; p & 31
    v_bfe_u32 v{t+1}, v{t}, 1, 2              ; dw
    v_cmp_eq_u32 vcc, 3, v{t+1}
    v_lshlrev_b32 v{t+1}, 7, v{t+1}
    v_add_u32 v{t+1}, {32*kk}, v{t+1}
    v_mov_b32 v{t+2}, {kk*128 + 96}
    v_cndmask_b32 v{t+1}, v{t+1}, v{t+2}, vcc
    v_lshrrev_b32 v{t+2}, 3, v{t}
    v_lshlrev_b32 v{t+2}, 3, v{t+2}           ; 8g
    v_and_b32 v{t}, 1, v{t}
    v_add3_u32 v{t+1}, v{t+1}, v{t+2}, v{t}
    s_lshl_b32 s{S_TMP+1}, s{S_WAVE}, 1
    v_add_u32 v{d}, s{S_TMP+1}, v{t+1}""")
        A(f'    v_mul_u32_u24 v{d}, 768, v{d}')
        A(f'    v_add_u32 v{d}, v{d}, v{V_T}')

def slab_loads(A, sptr, dst, track=None):
    for x in range(6):
        line = f'    global_load_dwordx4 v[{dst+4*x}:{dst+4*x+3}], v{2+x}, s[{sptr}:{sptr+1}]'
        if track: A.vmop(line, track)
        else: A(line)

def slab_to_operands(A, src, lds_base):
    A(f'''    s_mul_i32 s{S_TMP}, s{S_WAVE}, 12288
    s_add_u32 s{S_TMP}, s{S_TMP}, {lds_base}
    v_add_u32 v1, s{S_TMP}, v{V_L16}''')
    for x in range(6):
        A(f'    ds_write_b128 v1, v[{src+4*x}:{src+4*x+3}] offset:{x*1024}')
    A(f'''    v_lshrrev_b32 v2, 4, v{V_LANE}
    v_lshlrev_b32 v2, 9, v2               ; g*512
    v_bfe_u32 v3, v{V_LANE}, 2, 2
    v_lshlrev_b32 v3, 6, v3               ; r*64
    v_and_b32 v4, 3, v{V_LANE}
    v_lshlrev_b32 v4, 4, v4               ; c*16
    v_add3_u32 v2, v2, v3, v4
    v_add_u32 v2, s{S_TMP}, v2''')
    for kk in range(3):
        for tb in range(2):
            for hf in range(2):
                r = A_W + (kk * 2 + tb) * 4 + 2 * hf
                A(f'    ds_read_b64_tr_b16 a[{r}:{r+1}], v2 offset:{kk*2048 + hf*256 + tb*8}')

def gemm6(A, bregs):
    for kk in range(3):
        for tb in range(2):
            d = V_S if tb == 0 else V_R
            c = '0' if kk == 0 else f'v[{d}:{d+3}]'
            w = A_W + (kk * 2 + tb) * 4
            A(f'    v_mfma_f32_16x16x32_bf16 v[{d}:{d+3}], a[{w}:{w+3}], {bregs(kk)}, {c}')

def cross_wave_sum(A, red):
    skip = A.label('XW'); w0 = A.label('XW0')
    A.nop(8)
    A(f'''    s_cmp_eq_u32 s{S_WAVE}, 0
    s_cbranch_scc1 {w0}
    s_sub_u32 s{S_TMP}, s{S_WAVE}, 1
    s_lshl_b32 s{S_TMP}, s{S_TMP}, 11
    s_add_u32 s{S_TMP}, s{S_TMP}, {red}
    v_add_u32 v1, s{S_TMP}, v{V_L16}
    ds_write_b128 v1, v[{V_S}:{V_S+3}]
    ds_write_b128 v1, v[{V_R}:{V_R+3}] offset:1024
    s_waitcnt lgkmcnt(0)
{w0}:
    s_barrier
    s_cmp_eq_u32 s{S_WAVE}, 0
    s_cbranch_scc0 {skip}
    v_add_u32 v1, {red}, v{V_L16}''')
    T = V_T
    for w in range(3):
        A(f'    ds_read_b128 v[{T+8*w}:{T+8*w+3}], v1 offset:{w*2048}')
        A(f'    ds_read_b128 v[{T+8*w+4}:{T+8*w+7}], v1 offset:{w*2048+1024}')
    for w in range(3):
        A(f'    s_waitcnt lgkmcnt({4 - 2*w})')
        for r in range(4):
            A(f'    v_add_f32 v{V_S+r}, v{V_S+r}, v{T+8*w+r}')
        for r in range(4):
            A(f'    v_add_f32 v{V_R+r}, v{V_R+r}, v{T+8*w+4+r}')
    return skip

def cross_wave_sum4(A, red):
    skip = A.label('XV'); w0 = A.label('XV0')
    A.nop(8)
    A(f"""    s_cmp_eq_u32 s{S_WAVE}, 0
    s_cbranch_scc1 {w0}
    s_sub_u32 s{S_TMP}, s{S_WAVE}, 1
    s_lshl_b32 s{S_TMP}, s{S_TMP}, 10
    s_add_u32 s{S_TMP}, s{S_TMP}, {red}
    v_add_u32 v1, s{S_TMP}, v{V_L16}
    ds_write_b128 v1, v[{V_S}:{V_S+3}]
    s_waitcnt lgkmcnt(0)
{w0}:
    s_barrier
    s_cmp_eq_u32 s{S_WAVE}, 0
    s_cbranch_scc0 {skip}
    v_add_u32 v1, {red}, v{V_L16}""")
    T = V_T
    for w in range(3):
        A(f'    ds_read_b128 v[{T+4*w}:{T+4*w+3}], v1 offset:{w*1024}')
    for w in range(3):
        A(f'    s_waitcnt lgkmcnt({2 - w})')
        for r in range(4):
            A(f'    v_add_f32 v{V_S+r}, v{V_S+r}, v{T+4*w+r}')
    return skip

def publish4(A, ws_base):
    T = V_T; odd = A.label('PB_O'); go = A.label('PB_G')
    A(f"""    v_cvt_pk_bf16_f32 v{T+2}, v{V_S}, v{V_S+1}
    v_cvt_pk_bf16_f32 v{T+3}, v{V_S+2}, v{V_S+3}
    v_mov_b32 v{T}, s{S_TAG}
    v_mov_b32 v{T+1}, 0
    v_mov_b32 v{T+4}, s{S_TAG}
    v_mov_b32 v{T+5}, 0
    s_lshl_b32 s{S_TMP}, s{S_JOB}, 10
    s_add_u32 s{S_TMP}, s{S_TMP}, {ws_base}
    v_add_u32 v1, s{S_TMP}, v{V_L16}
    s_bitcmp1_b32 s{S_JOB}, 0
    s_cbranch_scc1 {odd}
    global_store_dwordx4 v1, v[{T}:{T+3}], s[{S_WS}:{S_WS+1}] sc1
    s_branch {go}
{odd}:
    global_store_dwordx4 v1, v[{T+2}:{T+5}], s[{S_WS}:{S_WS+1}] sc1
{go}:""")

def gemm3(A, areg, breg):
    for kk in range(3):
        A(f'    v_mfma_f32_16x16x32_bf16 v[{V_S}:{V_S+3}], {areg(kk)}, {breg(kk)}, ' + ('0' if kk == 0 else f'v[{V_S}:{V_S+3}]'))

def pack_D(A, dreg):
    A(f'    v_cvt_pk_bf16_f32 v{dreg+2}, v{V_S}, v{V_S+1}')
    A(f'    v_cvt_pk_bf16_f32 v{dreg+3}, v{V_S+2}, v{V_S+3}')
    A(f'    v_cvt_pk_bf16_f32 v{dreg+4}, v{V_R}, v{V_R+1}')
    A(f'    v_cvt_pk_bf16_f32 v{dreg+5}, v{V_R+2}, v{V_R+3}')

def lin12_addr(A, nload, rowfn, dst=2):
    for x in range(nload):
        d = dst + x; t = V_T
        A(f"""    v_add_u32 v{t}, {64*x}, v{V_LANE}
    v_mul_u32_u24 v{t+1}, 43691, v{t}
    v_lshrrev_b32 v{t+1}, 19, v{t+1}      ; row
    v_mul_u32_u24 v{t+2}, 12, v{t+1}
    v_sub_u32 v{t+2}, v{t}, v{t+2}
    v_lshlrev_b32 v{t+2}, 4, v{t+2}       ; piece*16""")
        rowfn(t + 1)
        A(f"""    v_mul_u32_u24 v{t+1}, 768, v{t+1}
    v_add3_u32 v{d}, v{t+1}, v{t+2}, s{S_TMP+2}""")

def lin12_to_operands(A, src, nload, lds_off, dsts):
    A(f"""    s_mul_i32 s{S_TMP}, s{S_WAVE}, 12288
    s_add_u32 s{S_TMP}, s{S_TMP}, {L_HEAD + lds_off}
    v_add_u32 v1, s{S_TMP}, v{V_L16}""")
    for x in range(nload):
        A(f'    ds_write_b128 v1, v[{src+4*x}:{src+4*x+3}] offset:{x*1024}')
    A(f"""    v_and_b32 v2, 15, v{V_LANE}
    v_mul_u32_u24 v2, 192, v2
    v_lshrrev_b32 v3, 4, v{V_LANE}
    v_lshlrev_b32 v3, 4, v3
    v_add3_u32 v2, v2, v3, s{S_TMP}""")
    for (reg, rowblk, kk) in dsts:
        A(f'    ds_read_b128 {reg}, v2 offset:{rowblk*16*192 + kk*64}')

def role_S1_loads(A):
    A(f'    s_mul_i32 s{S_TMP+2}, s{S_WAVE}, 192')
    lin12_addr(A, 3, lambda r: None)
    for x in range(3):
        A(f'    global_load_dwordx4 v[{V_GB+12+4*x}:{V_GB+15+4*x}], v{2+x}, s[{S_Q}:{S_Q+1}]')
    slab_addr(A, False)
    slab_loads(A, S_WQ, V_O)

def slab16_to_operands(A, src, lds_base):
    A(f"""    s_mul_i32 s{S_TMP}, s{S_WAVE}, 12288
    s_add_u32 s{S_TMP}, s{S_TMP}, {lds_base}
    v_add_u32 v1, s{S_TMP}, v{V_L16}""")
    for x in range(3):
        A(f'    ds_write_b128 v1, v[{src+4*x}:{src+4*x+3}] offset:{x*1024}')
    A(f"""    v_lshrrev_b32 v2, 4, v{V_LANE}
    v_lshlrev_b32 v2, 8, v2               ; g*256
    v_bfe_u32 v3, v{V_LANE}, 2, 2
    v_lshlrev_b32 v3, 5, v3               ; r*32
    v_and_b32 v4, 3, v{V_LANE}
    v_lshlrev_b32 v4, 3, v4               ; c*8
    v_add3_u32 v2, v2, v3, v4
    v_add_u32 v2, s{S_TMP}, v2""")
    for kk in range(3):
        for hf in range(2):
            r = A_W + kk * 4 + 2 * hf
            A(f'    ds_read_b64_tr_b16 a[{r}:{r+1}], v2 offset:{kk*1024 + hf*128}')

def slab_addr_regs(A, perm):
    slab_addr(A, perm)

def role_S1_work(A):
    T = V_T; Qr = V_GB
    A('    s_waitcnt vmcnt(0)')
    A.stamp('s1_data')
    def held_items(js):
        vm_save = list(A.vm)
        for j in js: issue_item(A, j)
        A.vm = vm_save
    early = list(range(O.l0))[:O.s1early]; late = list(range(O.l0))[O.s1early:]
    held_items(early)
    lin12_to_operands(A, V_GB + 12, 3, 6144 + 2048, [(f'v[{Qr+4*kk}:{Qr+4*kk+3}]', 0, kk) for kk in range(3)])
    slab_to_operands(A, V_O, L_HEAD)
    A('    s_waitcnt lgkmcnt(12)')
    for kk in range(3):
        q = f'v[{Qr+4*kk}:{Qr+4*kk+3}]'
        A(f'    v_mfma_f32_16x16x32_bf16 v[{V_G}:{V_G+3}], {q}, {q}, ' + ('0' if kk == 0 else f'v[{V_G}:{V_G+3}]'))
        A(f'    v_mfma_f32_16x16x32_bf16 v[{V_R}:{V_R+3}], a[{A_ONES}:{A_ONES+3}], {q}, ' + ('0' if kk == 0 else f'v[{V_R}:{V_R+3}]'))
    A.nop(7)
    A(f'    v_cndmask_b32 v{T}, 0, v{V_G}, s[{S_MASK}:{S_MASK+1}]')
    for r in range(1, 4):
        A(f'    v_cndmask_b32 v{T}, v{T}, v{V_G+r}, s[{S_MASK+2*r}:{S_MASK+2*r+1}]')
    A.nop(2)
    A(f'    v_mfma_f32_16x16x4_f32 v[{V_D}:{V_D+3}], v{V_ONEF}, v{T}, 0')
    A(f"""    s_lshl_b32 s{S_TMP}, s{S_WAVE}, 9
    s_add_u32 s{S_TMP}, s{S_TMP}, {L_STAT}
    v_lshlrev_b32 v1, 3, v{V_LANE}
    v_add_u32 v1, s{S_TMP}, v1
    v_and_b32 v2, 15, v{V_LANE}
    v_lshlrev_b32 v2, 3, v2
    v_add_u32 v2, {L_STAT}, v2
    v_mov_b32 v{T+2}, v{V_R}""")
    A.nop(3)
    A(f'    v_mov_b32 v{T+3}, v{V_D}')
    A(f'    ds_write_b64 v1, v[{T+2}:{T+3}]')
    A('    s_waitcnt lgkmcnt(0)')
    A.stamp('s1_stat')
    A('    s_barrier')
    pass
    for w in range(4):
        A(f'    ds_read_b64 v[{T+4+2*w}:{T+5+2*w}], v2 offset:{w*512}')
    A('    s_waitcnt lgkmcnt(0)')
    A(f"""    v_add_f32 v{T+4}, v{T+4}, v{T+6}
    v_add_f32 v{T+5}, v{T+5}, v{T+7}
    v_add_f32 v{T+8}, v{T+8}, v{T+10}
    v_add_f32 v{T+9}, v{T+9}, v{T+11}
    v_add_f32 v{T+4}, v{T+4}, v{T+8}
    v_add_f32 v{T+5}, v{T+5}, v{T+9}
    v_mul_f32 v{T+4}, s{S_C384}, v{T+4}          ; mean
    v_mul_f32 v{T+5}, s{S_C384}, v{T+5}          ; E[x^2]
    v_fma_f32 v{T+5}, -v{T+4}, v{T+4}, v{T+5}    ; var
    v_max_f32 v{T+5}, 0, v{T+5}
    v_cvt_pk_bf16_f32 v{T+6}, v{T+4}, v{T+5}
    v_lshlrev_b32 v{T+4}, 16, v{T+6}
    v_and_b32 v{T+5}, 0xffff0000, v{T+6}
    v_add_f32 v{T+5}, v{V_EPS}, v{T+5}
    v_cvt_pk_bf16_f32 v{T+5}, v{T+5}, v{T+5}
    v_lshlrev_b32 v{T+5}, 16, v{T+5}
    v_sqrt_f32 v{T+5}, v{T+5}
    s_nop 0
    v_cvt_pk_bf16_f32 v{T+5}, v{T+5}, v{T+5}
    v_lshlrev_b32 v{T+5}, 16, v{T+5}
    v_rcp_f32 v{T+5}, v{T+5}""")
    for k in range(0, 12, 2):
        a, b = T + 8, T + 12
        A(f'    v_lshlrev_b32 v{a}, 16, v{Qr+k}')
        A(f'    v_and_b32 v{a+1}, 0xffff0000, v{Qr+k}')
        A(f'    v_lshlrev_b32 v{b}, 16, v{Qr+k+1}')
        A(f'    v_and_b32 v{b+1}, 0xffff0000, v{Qr+k+1}')
        for x in (a, a + 1, b, b + 1): A(f'    v_sub_f32 v{x}, v{x}, v{T+4}')
        A(f'    v_cvt_pk_bf16_f32 v{a+2}, v{a}, v{a+1}')
        A(f'    v_cvt_pk_bf16_f32 v{b+2}, v{b}, v{b+1}')
        A(f'    v_lshlrev_b32 v{a}, 16, v{a+2}')
        A(f'    v_and_b32 v{a+1}, 0xffff0000, v{a+2}')
        A(f'    v_lshlrev_b32 v{b}, 16, v{b+2}')
        A(f'    v_and_b32 v{b+1}, 0xffff0000, v{b+2}')
        for x in (a, a + 1, b, b + 1): A(f'    v_mul_f32 v{x}, v{x}, v{T+5}')
        A(f'    v_cvt_pk_bf16_f32 v{Qr+k}, v{a}, v{a+1}')
        A(f'    v_cvt_pk_bf16_f32 v{Qr+k+1}, v{b}, v{b+1}')
    A.stamp('s1_norm')
    A.nop(2)
    gemm6(A, lambda kk: f'v[{Qr+4*kk}:{Qr+4*kk+3}]')
    skip = cross_wave_sum(A, L_RED_H)
    A.stamp('s1_red')
    pack_D(A, V_T)
    A(f'    s_lshl_b32 s{S_TMP}, s{S_JOB}, 11')
    A(f'    s_lshl_b32 s{S_TMP+1}, s{S_COPY}, 15')
    A(f'    s_add_u32 s{S_TMP}, s{S_TMP}, s{S_TMP+1}')
    A(f'    s_add_u32 s{S_TMP}, s{S_TMP}, {WS_QGA}')
    publish8_dual(A, V_T, S_TMP, WS_QGB - WS_QGA)
    A(f'{skip}:')
    held_items(late)

def role_S2_addr(A):
    A(f"""    s_lshr_b32 s{S_TMP}, s{S_JOB}, 3              ; third = b>>2
    s_lshl_b32 s{S_TMP}, s{S_TMP}, 7
    s_bfe_u32 s{S_TMP+1}, s{S_JOB}, 0x20001       ; ep = b&3
    s_lshl_b32 s{S_TMP+1}, s{S_TMP+1}, 1
    s_add_u32 s{S_TMP+3}, s{S_TMP}, s{S_TMP+1}
    s_and_b32 s{S_TMP+1}, s{S_JOB}, 1
    s_lshl_b32 s{S_TMP+1}, s{S_TMP+1}, 6          ; a2*64
    s_add_u32 s{S_TMP+3}, s{S_TMP+3}, s{S_TMP+1}
    s_mul_i32 s{S_TMP+2}, s{S_WAVE}, 192""")
    def rowfn(r):
        t = V_T + 3
        A(f"""    v_bfe_u32 v{t}, v{r}, 3, 1
    v_lshlrev_b32 v{t}, 2, v{t}
    v_bfe_u32 v{t+1}, v{r}, 2, 1
    v_lshlrev_b32 v{t+1}, 1, v{t+1}
    v_bfe_u32 v{t+2}, v{r}, 1, 1
    v_add3_u32 v{t}, v{t}, v{t+1}, v{t+2}
    v_lshlrev_b32 v{t}, 3, v{t}
    v_and_b32 v{r}, 1, v{r}
    v_add3_u32 v{r}, v{r}, v{t}, s{S_TMP+3}""")
    lin12_addr(A, 3, rowfn, V_O + 12)

def role_S2_loads(A):
    for x in range(3):
        A.vmop(f'    global_load_dwordx4 v[{V_O+4*x}:{V_O+4*x+3}], v{V_O+12+x}, s[{S_WK}:{S_WK+1}]', 'wk')

def role_S2_stage(A):
    A.vmwait('wk')
    lin12_to_operands(A, V_O, 3, 0, [(f'a[{A_W+4*kk}:{A_W+4*kk+3}]', 0, kk) for kk in range(3)])

def role_S2_work(A, have_q=False):
    scale = 384 ** -0.5 * math.log2(math.e)
    ok = A.label('S2OK')
    if not have_q:
        A.vmwait('q')
        gather_check(A)
        A(f'    s_cbranch_vccz {ok}')
        gather_loop(A)
        A(f'{ok}:')
    A('    s_waitcnt lgkmcnt(0)')
    A.stamp('s2_q')
    gemm3(A, lambda kk: f'a[{A_W+4*kk}:{A_W+4*kk+3}]', lambda kk: f'v[{V_GB+8*kk+2}:{V_GB+8*kk+5}]')
    skip = cross_wave_sum4(A, L_HEAD + 6144)
    A.stamp('s2_red')
    for r in range(4):
        A(f'    v_mul_f32 v{V_S+r}, {lit(scale)}, v{V_S+r}')
    publish4(A, WS_QKG)
    A(f'{skip}:')

def get_qk(A, stamp=True):
    ok = A.label('QK_OK'); lp = A.label('QK_LP')
    A.vmwait('qk')
    gather_check(A)
    A(f'    s_cbranch_vccz {ok}')
    gather_loop(A)
    A(f'{ok}:')
    A(f"""    s_mul_i32 s{S_TMP}, s{S_WAVE}, 3072
    s_add_u32 s{S_TMP}, s{S_TMP}, {L_QKL}
    v_add_u32 v1, s{S_TMP}, v{V_L16}""")
    for kk in range(3):
        A(f'    ds_write_b128 v1, v[{V_GB+8*kk+2}:{V_GB+8*kk+5}] offset:{kk*1024}')
    A(f'    v_add_u32 v1, {L_QKL}, v{V_L16}')
    A('    s_waitcnt lgkmcnt(0)')
    A('    s_barrier')
    for bb in range(12):
        A(f'    ds_read_b128 a[{A_QK+4*bb}:{A_QK+4*bb+3}], v1 offset:{bb*1024}')
    for bb in range(12):
        if bb % 4 == 0: A(f'    s_waitcnt lgkmcnt({8 - bb})')
        c = '0' if bb == 0 else f'v[{V_S}:{V_S+3}]'
        A(f'    v_mfma_f32_16x16x32_bf16 v[{V_S}:{V_S+3}], a[{A_ONES}:{A_ONES+3}], a[{A_QK+4*bb}:{A_QK+4*bb+3}], {c}')
    A.nop(8)
    A(f'    v_mov_b32 v{V_SQ}, v{V_S}')
    if stamp: A.stamp('Qk')

def role_G_loads(A):
    g1 = A.label('GL1'); done = A.label('GLD')
    A(f'    s_cmp_eq_u32 s{S_ROLE}, {R_G1}')
    A(f'    s_cbranch_scc1 {g1}')
    A(f'    s_cmp_eq_u32 s{S_ROLE}, {R_G2}')
    A(f'    s_cbranch_scc0 {done}')
    slab_addr(A, False)
    slab_loads(A, S_WO, RAW[1])
    A(f"""    v_and_b32 v1, 15, v{V_LANE}
    v_mul_u32_u24 v1, 768, v1
    v_lshrrev_b32 v2, 4, v{V_LANE}
    v_lshlrev_b32 v2, 4, v2
    s_lshl_b32 s{S_TMP}, s{S_JOB}, 6
    v_add3_u32 v{V_Q+4}, v1, v2, s{S_TMP}
    global_load_dwordx4 v[{V_Q}:{V_Q+3}], v{V_Q+4}, s[{S_Q}:{S_Q+1}]
    s_branch {done}
{g1}:""")
    slab_addr(A, True)
    slab_loads(A, S_WV, RAW[1])
    A(f'{done}:')

S_PB = 76
def epilogue_addresses(A):
    A(f"""    v_and_b32 v1, 15, v{V_LANE}           ; n
    v_lshlrev_b32 v7, 4, v1
    v_lshrrev_b32 v4, 4, v{V_LANE}        ; g'
    s_lshl_b32 s{S_TMP}, s{S_WG}, 8
    s_add_u32 s{S_TMP}, s{S_TMP}, {WS_ML}
    v_add_u32 v6, s{S_TMP}, v7            ; ML[wg][n]
    s_mul_i32 s{S_TMP}, s{S_WAVE}, 12288
    s_add_u32 s{S_TMP}, s{S_TMP}, {L_TR}
    v_mul_u32_u24 v3, 272, v1
    v_lshlrev_b32 v5, 6, v4
    v_add3_u32 v3, v3, v5, s{S_TMP}
    v_lshlrev_b32 v5, 18, v4              ; (l>>4)*8*32768
    v_mul_u32_u24 v4, 272, v4
    v_add3_u32 v4, v4, v7, s{S_TMP}
    v_bfe_u32 v1, v{V_LANE}, 3, 1
    v_lshlrev_b32 v1, 15, v1
    v_and_b32 v2, 7, v{V_LANE}
    v_lshlrev_b32 v2, 4, v2
    v_add3_u32 v5, v5, v1, v2
    s_lshl_b32 s{S_TMP}, s{S_WAVE}, 16
    s_lshl_b32 s{S_TMP+1}, s{S_WG}, 7
    s_add_u32 s{S_TMP}, s{S_TMP}, s{S_TMP+1}
    s_add_u32 s{S_TMP}, s{S_TMP}, {WS_PART}
    v_add_u32 v5, s{S_TMP}, v5
    v_add_u32 v7, {L_LBUF}, v7
    s_lshl_b32 s{S_TMP}, s{S_WAVE}, 2
    v_add_u32 v2, s{S_TMP}, v7""")
    for x in range(3):
        A(f'    s_add_u32 s{S_PB+2*x}, s{S_WS}, {0x100000*(x+1)}')
        A(f'    s_addc_u32 s{S_PB+2*x+1}, s{S_WS+1}, 0')

def epilogue_pre(A):
    T = V_T
    multi_xgroup(A, 'v_add_f32', [V_L, V_U], [T, T + 1])
    A(f'    ds_write_b32 v2, v{V_L}')
    A(f'    ds_write_b32 v2, v{V_U} offset:256')
    for r in range(4): A(f'    v_mov_b32 v{8+4*r+3}, s{S_TAG}')

def epilogue(A):
    skip = A.label('EP'); s0 = A.label('EP0')
    A('    s_barrier')
    A(f"""    s_cmp_eq_u32 s{S_WAVE}, 0
    s_cbranch_scc0 {s0}
    ds_read_b128 v[40:43], v7
    ds_read_b128 v[44:47], v7 offset:256
    v_mov_b32 v48, v{V_MREF}
    v_mov_b32 v51, s{S_TAG}
{s0}:""")
    A.nop(4)
    for r in range(4):
        for third in range(3):
            b0 = V_O + third * 8; b1 = b0 + 4
            A(f'    v_cvt_pk_bf16_f32 v{8+4*r+third}, v{b0+r}, v{b1+r}')
        A(f'    ds_write_b128 v3, v[{8+4*r}:{11+4*r}] offset:{r*16}')
    for x in range(4):
        A(f'    ds_read_b128 v[{24+4*x}:{27+4*x}], v4 offset:{x*1088}')
    for x in range(4):
        A(f'    s_waitcnt lgkmcnt({3-x})')
        base = S_WS if x == 0 else S_PB + 2 * (x - 1)
        A(f'    global_store_dwordx4 v5, v[{24+4*x}:{27+4*x}], s[{base}:{base+1}] sc1')
    A(f"""    s_cmp_eq_u32 s{S_WAVE}, 0
    s_cbranch_scc0 {skip}
    v_add_f32 v40, v40, v41
    v_add_f32 v42, v42, v43
    v_add_f32 v44, v44, v45
    v_add_f32 v46, v46, v47
    v_add_f32 v49, v40, v42
    v_add_f32 v50, v44, v46
    v_cmp_gt_u32 vcc, 16, v{V_LANE}
    s_and_saveexec_b64 s[{S_EX}:{S_EX+1}], vcc
    global_store_dwordx4 v6, v[48:51], s[{S_WS}:{S_WS+1}] sc1
    s_mov_b64 exec, s[{S_EX}:{S_EX+1}]
{skip}:""")
    A.stamp('pub')

def role_R(A):
    T = V_T
    lp = A.label('RL'); ok = A.label('RO'); lp2 = A.label('RD'); ok2 = A.label('RO2'); fin = A.label('RF')
    A(f"""    s_and_b32 s{S_TMP}, s{S_JOB}, 15          ; n
    s_lshr_b32 s{S_TMP+1}, s{S_JOB}, 4        ; chunk
    s_lshl_b32 s{S_TMP+2}, s{S_TMP}, 4
    s_lshl_b32 s{S_TMP+3}, s{S_WAVE}, 14
    s_add_u32 s{S_TMP+2}, s{S_TMP+2}, s{S_TMP+3}
    s_add_u32 s{S_TMP+2}, s{S_TMP+2}, {WS_ML}
    v_lshlrev_b32 v1, 8, v{V_LANE}
    v_add_u32 v1, s{S_TMP+2}, v1
    s_lshl_b32 s{S_TMP+2}, s{S_TMP}, 3
    s_add_u32 s{S_TMP+2}, s{S_TMP+2}, s{S_TMP+1}
    s_lshl_b32 s{S_TMP+2}, s{S_TMP+2}, 15
    s_lshl_b32 s{S_TMP+3}, s{S_WAVE}, 13
    s_add_u32 s{S_TMP+2}, s{S_TMP+2}, s{S_TMP+3}
    s_add_u32 s{S_TMP+2}, s{S_TMP+2}, {WS_PART + 4096}
    v_add_u32 v2, s{S_TMP+2}, v{V_L16}
{lp}:""")
    def data_loads():
        for k in range(8):
            A(f'    global_load_dwordx4 v[{16+4*k}:{19+4*k}], v2, s[{S_WS}:{S_WS+1}] offset:{k*1024-4096} sc1')
    if O.rthr:
        l2 = A.label('RL2')
        A(f'    global_load_dwordx4 v[8:11], v1, s[{S_WS}:{S_WS+1}] sc1')
        A('    s_waitcnt vmcnt(0)')
        A(f'    v_cmp_ne_u32 vcc, s{S_TAG}, v11')
        A(f'    s_bcnt1_i32_b64 s{S_TMP+3}, vcc')
        A(f'    s_cmp_le_u32 s{S_TMP+3}, {O.rthr}')
        A(f'    s_cbranch_scc1 {l2}')
        spin_guard(A, lp)
        A(f'    s_branch {lp}')
        A(f'{l2}:')
        A(f'    global_load_dwordx4 v[8:11], v1, s[{S_WS}:{S_WS+1}] sc1')
        data_loads()
        A('    s_waitcnt vmcnt(8)')
        A(f'    v_cmp_ne_u32 vcc, s{S_TAG}, v11')
        A(f'    s_cbranch_vccz {ok}')
        A('    s_waitcnt vmcnt(0)')
        spin_guard(A, l2)
        A(f'    s_branch {l2}')
        A(f'{ok}:')
    else:
        A(f'    global_load_dwordx4 v[8:11], v1, s[{S_WS}:{S_WS+1}] sc1')
        if O.rcomb:
            data_loads()
            A('    s_waitcnt vmcnt(8)')
        else:
            A('    s_waitcnt vmcnt(0)')
        A(f"""    v_cmp_ne_u32 vcc, s{S_TAG}, v11
    s_cbranch_vccz {ok}""")
        if O.rcomb: A('    s_waitcnt vmcnt(0)')
        spin_guard(A, lp)
        A(f'    s_branch {lp}')
        A(f'{ok}:')
    A.stamp('R_ml')
    if not O.rcomb and not O.rthr: data_loads()
    A(f'    v_mov_b32 v12, v8')
    multi_row(A, 'v_max_f32', [12])
    xgroup_reduce(A, 'v_max_f32', 12, 13)
    A(f"""    v_sub_f32 v8, v8, v12
    v_exp_f32 v8, v8
    v_lshrrev_b32 v3, 3, v{V_LANE}
    v_lshlrev_b32 v3, 2, v3               ; ii*4
    v_mul_f32 v9, v9, v8
    v_mul_f32 v10, v10, v8""")
    for k in range(8):
        A(f'    v_add_u32 v4, {32*k}, v3')
        A(f'    ds_bpermute_b32 v{48+k}, v4, v8')
    multi_row(A, 'v_add_f32', [9, 10])
    multi_xgroup(A, 'v_add_f32', [9, 10], [13, 14])
    for j in range(6): A(f'    v_mov_b32 v{56+j}, 0')
    A(f'{lp2}:')
    A('    s_waitcnt vmcnt(0)')
    for k in range(0, 8, 2):
        A(f'    v_xor_b32 v{64+k}, s{S_TAG}, v{19+4*k}')
        A(f'    v_xor_b32 v{65+k}, s{S_TAG}, v{23+4*k}')
    A(f"""    v_or3_b32 v64, v64, v65, v66
    v_or3_b32 v67, v67, v68, v69
    v_or3_b32 v64, v64, v70, v71
    v_or_b32 v64, v64, v67
    v_cmp_ne_u32 vcc, 0, v64
    s_cbranch_vccz {ok2}""")
    spin_guard(A, lp2)
    data_loads()
    A(f'    s_branch {lp2}')
    A(f'{ok2}:')
    A('    s_waitcnt lgkmcnt(0)')
    for k in range(8):
        for t in range(3):
            A(f'    v_lshlrev_b32 v64, 16, v{16+4*k+t}')
            A(f'    v_and_b32 v65, 0xffff0000, v{16+4*k+t}')
            A(f'    v_fmac_f32 v{56+2*t}, v64, v{48+k}')
            A(f'    v_fmac_f32 v{57+2*t}, v65, v{48+k}')
    acc = list(range(56, 62))
    multi_row(A, 'v_add_f32', acc, rots=(8,))
    multi_xgroup(A, 'v_add_f32', acc, list(range(64, 70)))
    A(f"""    s_lshl_b32 s{S_TMP+2}, s{S_WAVE}, 8
    s_add_u32 s{S_TMP+2}, s{S_TMP+2}, {L_RB}
    v_mul_u32_u24 v3, 24, v{V_LANE}
    v_add_u32 v3, s{S_TMP+2}, v3
    v_mov_b32 v4, s{S_TMP+2}
    v_mov_b32 v13, v9
    v_mov_b32 v14, v10
    v_mov_b32 v15, 0
    v_cmp_gt_u32 vcc, 8, v{V_LANE}
    s_and_saveexec_b64 s[{S_EX}:{S_EX+1}], vcc
    ds_write_b64 v3, v[56:57]
    ds_write_b64 v3, v[58:59] offset:8
    ds_write_b64 v3, v[60:61] offset:16
    ds_write_b128 v4, v[12:15] offset:192
    s_mov_b64 exec, s[{S_EX}:{S_EX+1}]
    s_waitcnt lgkmcnt(0)
    s_barrier
    s_cmp_eq_u32 s{S_WAVE}, 0
    s_cbranch_scc0 {fin}
    v_min_u32 v3, 7, v{V_LANE}
    v_mul_u32_u24 v3, 24, v3
    v_add_u32 v3, {L_RB}, v3
    v_mov_b32 v4, {L_RB}""")
    for w in range(4):
        A(f'    ds_read_b128 v[{16+4*w}:{19+4*w}], v4 offset:{w*256+192}')
    for w in range(4):
        for j in range(3):
            A(f'    ds_read_b64 v[{32+6*w+2*j}:{33+6*w+2*j}], v3 offset:{w*256+8*j}')
    A(f"""    s_waitcnt lgkmcnt(12)
    v_max_f32 v12, v16, v20
    v_max3_f32 v12, v12, v24, v28""")
    for w in range(4): A(f'    v_sub_f32 v{16+4*w}, v{16+4*w}, v12')
    for w in range(4): A(f'    v_exp_f32 v{16+4*w}, v{16+4*w}')
    A(f"""    s_nop 0
    v_mul_f32 v13, v16, v17
    v_mul_f32 v14, v16, v18""")
    for w in range(1, 4):
        A(f'    v_fmac_f32 v13, v{16+4*w}, v{17+4*w}')
        A(f'    v_fmac_f32 v14, v{16+4*w}, v{18+4*w}')
    A(f"""    v_rcp_f32 v13, v13
    s_waitcnt lgkmcnt(0)""")
    for j in range(6): A(f'    v_mul_f32 v{56+j}, v{32+j}, v16')
    for w in range(1, 4):
        for j in range(6): A(f'    v_fmac_f32 v{56+j}, v{32+6*w+j}, v{16+4*w}')
    for j in range(6): A(f'    v_sub_f32 v{56+j}, v{56+j}, v14')
    for j in range(6): A(f'    v_mul_f32 v{56+j}, v{56+j}, v13')
    A(f"""    v_cvt_pk_bf16_f32 v8, v56, v57
    v_cvt_pk_bf16_f32 v9, v58, v59
    v_cvt_pk_bf16_f32 v10, v60, v61
    v_mov_b32 v11, s{S_TAG}
    s_lshl_b32 s{S_TMP+2}, s{S_TMP+1}, 4
    s_add_u32 s{S_TMP+2}, s{S_TMP+2}, s{S_TMP}
    s_lshl_b32 s{S_TMP+2}, s{S_TMP+2}, 7
    s_add_u32 s{S_TMP+2}, s{S_TMP+2}, {WS_CTXN}
    v_add_u32 v3, s{S_TMP+2}, v{V_L16}
    v_cmp_gt_u32 vcc, 8, v{V_LANE}
    s_and_saveexec_b64 s[{S_EX}:{S_EX+1}], vcc
    global_store_dwordx4 v3, v[8:11], s[{S_WS}:{S_WS+1}] sc1
    s_mov_b64 exec, s[{S_EX}:{S_EX+1}]
{fin}:""")
    A.stamp('R_done')

def gather4_loop(A):
    l = A.label('G4L'); d = A.label('G4D'); T = V_T
    A(f"""    s_lshl_b32 s{S_TMP}, s{S_WAVE}, 12
    s_add_u32 s{S_TMP}, s{S_TMP}, {WS_CTXN}
    v_and_b32 v1, 15, v{V_LANE}
    v_lshlrev_b32 v1, 7, v1
    v_lshrrev_b32 v2, 4, v{V_LANE}
    v_lshlrev_b32 v2, 4, v2
    v_add3_u32 v{V_GA}, v1, v2, s{S_TMP}""")
    A(f'{l}:')
    for x in range(4):
        A(f'    global_load_dwordx4 v[{V_GB+4*x}:{V_GB+4*x+3}], v{V_GA}, s[{S_WS}:{S_WS+1}] offset:{(x>>1)*2048 + (x&1)*64} sc1')
    A('    s_waitcnt vmcnt(0)')
    for x in range(4): A(f'    v_xor_b32 v{T+x}, s{S_TAG}, v{V_GB+4*x+3}')
    A(f'    v_or3_b32 v{T}, v{T}, v{T+1}, v{T+2}')
    A(f'    v_or_b32 v{T}, v{T}, v{T+3}')
    A(f'    v_cmp_ne_u32 vcc, 0, v{T}')
    A(f'    s_cbranch_vccz {d}')
    spin_guard(A, l)
    A(f'    s_branch {l}')
    A(f'{d}:')
    for j in range(3): A(f'    v_mov_b32 v{V_GB+4*j+3}, v{V_GB+12+j}')

def role_G(A):
    g2 = A.label('G2'); lj = A.label('GJ')
    role_G_loads(A)
    A('    s_waitcnt vmcnt(0)')
    slab_to_operands(A, RAW[1], 0)
    A(f'    s_cmp_eq_u32 s{S_ROLE}, {R_G2}')
    A(f'    s_cbranch_scc1 {g2}')
    gather4_loop(A)
    A('    s_waitcnt lgkmcnt(0)')
    A.stamp('G1_in')
    gemm6(A, lambda kk: f'v[{V_GB+4*kk}:{V_GB+4*kk+3}]')
    A(f'    s_branch {lj}')
    A(f'{g2}:')
    gather_addr(A, WS_CTXA)
    gather_loop_dual(A, WS_CTX - WS_CTXA, O.na)
    A('    s_waitcnt lgkmcnt(0)')
    A.stamp('G2_in')
    gemm6(A, lambda kk: f'v[{V_GB+8*kk+2}:{V_GB+8*kk+5}]')
    A(f'{lj}:')
    skip = cross_wave_sum(A, L_RED_T)
    out2 = A.label('GO')
    A(f'    s_cmp_eq_u32 s{S_ROLE}, {R_G2}')
    A(f'    s_cbranch_scc1 {out2}')
    pack_D(A, 8)
    A(f'    s_lshl_b32 s{S_TMP}, s{S_JOB}, 11')
    A(f'    s_add_u32 s{S_TMP}, s{S_TMP}, {WS_CTXA}')
    publish8_dual(A, 8, S_TMP, WS_CTX - WS_CTXA)
    A(f'    s_branch {skip}')
    A(f'{out2}:')
    for k in range(4):
        d = V_S if k < 2 else V_R
        j = 2 * (k & 1)
        A(f'    v_lshlrev_b32 v8, 16, v{V_Q+k}')
        A(f'    v_and_b32 v9, 0xffff0000, v{V_Q+k}')
        A(f'    v_add_f32 v8, v8, v{d+j}')
        A(f'    v_add_f32 v9, v9, v{d+j+1}')
        A(f'    v_cvt_pk_bf16_f32 v{12+k}, v8, v9')
    A(f'    global_store_dwordx4 v{V_Q+4}, v[12:15], s[{S_OUT}:{S_OUT+1}]')
    e = A.label('GE')
    A(f"""    s_cmp_eq_u32 s{S_JOB}, 0
    s_cbranch_scc0 {skip}
    s_add_u32 s{S_TMP}, s{S_EPOCH}, 1
    v_mov_b32 v8, s{S_TMP}
    v_mov_b32 v9, {WS_EPOCH}
    v_cmp_eq_u32 vcc, 0, v{V_LANE}
    s_and_saveexec_b64 s[{S_EX}:{S_EX+1}], vcc
    global_store_dword v9, v8, s[{S_WS}:{S_WS+1}]
    s_mov_b64 exec, s[{S_EX}:{S_EX+1}]""")
    A(f'{skip}:')
    A.stamp('G_done')

def build_kernel():
    A = Gen(); T = V_T
    Stream.nxt = 0; Stream.done = 0; Stream.pend = []; PV.pending = []
    A('.text')
    A(f'.globl {NAME}')
    A('.p2align 8')
    A(f'.type {NAME},@function')
    A(f'{NAME}:')
    A(f"""    s_cmp_ge_u32 s2, 256
    s_cbranch_scc1 K_END
    s_load_dwordx4 s[{S_F0}:{S_F0+3}], s[0:1], 8
    s_load_dwordx2 s[{S_WS}:{S_WS+1}], s[0:1], 72
    s_load_dwordx2 s[{S_Q}:{S_Q+1}], s[0:1], 0
    s_load_dwordx8 s[{S_WQ}:{S_WQ+7}], s[0:1], 24
    s_load_dwordx2 s[{S_OUT}:{S_OUT+1}], s[0:1], 56
    s_mov_b32 s{S_WG}, s2
    s_mov_b32 s{S_SPIN}, 0
    v_and_b32 v{V_LANE}, 63, v0
    v_lshrrev_b32 v1, 6, v0
    v_lshlrev_b32 v{V_L16}, 4, v{V_LANE}
    v_readfirstlane_b32 s{S_WAVE}, v1
    v_lshrrev_b32 v2, 4, v{V_LANE}        ; g
    v_and_b32 v3, 15, v{V_LANE}           ; i
    v_lshlrev_b32 v4, 4, v3
    v_mul_u32_u24 v5, 1536, v2
    v_add_u32 v{V_F0OFF}, v5, v4
    v_mul_u32_u24 v5, 768, v2
    v_add_u32 v{V_F1OFF}, v5, v4
    s_mul_i32 s{S_T}, s{S_WG}, 36
    s_add_u32 s{S_T}, s{S_T}, s{S_WAVE}
    s_mov_b32 s{S_ROLE}, {R_NONE}
    s_mov_b32 s{S_JOB}, 0
    s_and_b32 s{S_COPY}, s2, 7
    s_lshr_b32 s{S_TMP}, s2, 3            ; j
    s_cmp_lt_u32 s{S_COPY}, 2
    s_cbranch_scc1 ROLE_S
    s_cmp_eq_u32 s{S_COPY}, 4
    s_cbranch_scc1 ROLE_G
    s_cmp_eq_u32 s{S_COPY}, 7
    s_cbranch_scc1 ROLE_DONE
    s_cmp_ge_u32 s{S_COPY}, 5
    s_cselect_b32 s{S_TMP+1}, 3, 2
    s_sub_u32 s{S_TMP+1}, s{S_COPY}, s{S_TMP+1}   ; 2,3,5,6 -> 0,1,2,3
    s_lshl_b32 s{S_TMP+1}, s{S_TMP+1}, 5
    s_add_u32 s{S_JOB}, s{S_TMP+1}, s{S_TMP}
    s_mov_b32 s{S_ROLE}, {R_R}
    s_branch ROLE_DONE
ROLE_S:
    s_cmp_ge_u32 s{S_TMP}, 24
    s_cbranch_scc1 ROLE_DONE
    s_mov_b32 s{S_JOB}, s{S_TMP}
    s_mov_b32 s{S_ROLE}, {R_S1}
    s_cmp_ge_u32 s{S_TMP}, 12
    s_cbranch_scc0 ROLE_DONE
    s_mul_i32 s{S_TMP+1}, s{S_COPY}, 12
    s_add_u32 s{S_JOB}, s{S_TMP}, s{S_TMP+1}
    s_sub_u32 s{S_JOB}, s{S_JOB}, 12
    s_mov_b32 s{S_ROLE}, {R_S2}
    s_branch ROLE_DONE
ROLE_G:
    s_cmp_ge_u32 s{S_TMP}, 24
    s_cbranch_scc1 ROLE_DONE
    s_mov_b32 s{S_JOB}, s{S_TMP}
    s_mov_b32 s{S_ROLE}, {R_G1}
    s_cmp_ge_u32 s{S_TMP}, 12
    s_cbranch_scc0 ROLE_DONE
    s_sub_u32 s{S_JOB}, s{S_TMP}, 12
    s_mov_b32 s{S_ROLE}, {R_G2}
ROLE_DONE:
    s_waitcnt lgkmcnt(0)
    s_load_dword s{S_EPOCH}, s[{S_WS}:{S_WS+1}], {WS_EPOCH}""")
    if O.stamp: A(f'    v_mov_b32 v{V_STAMP}, 0')
    A.stamp('entry')
    l2 = A.label('P2')
    A(f'    s_cmp_eq_u32 s{S_ROLE}, {R_S1}')
    A(f'    s_cbranch_scc0 {l2}')
    role_S1_loads(A)
    A(f'{l2}:')
    tile_bases(A, 0)
    hold = A.label('PH')
    A(f'    s_cmp_eq_u32 s{S_ROLE}, {R_S1}')
    A(f'    s_cbranch_scc1 {hold}')
    issue_next(A, O.l0)
    A(f'{hold}:')
    if O.cpf:
        lc = A.label('CPF')
        A(f'''    s_sub_u32 s{S_TMP}, s{S_WG}, 192
    s_cmp_lt_u32 s{S_TMP}, 64
    s_cbranch_scc0 {lc}
    s_cmp_ge_u32 s{S_WAVE}, 2
    s_cbranch_scc0 {lc}
    s_getpc_b64 s[72:73]
CPF_PC:
    s_lshr_b32 s{S_TMP}, s{S_TMP}, 3
    s_lshl_b32 s{S_TMP}, s{S_TMP}, 1
    s_and_b32 s{S_TMP+1}, s{S_WAVE}, 1
    s_add_u32 s{S_TMP}, s{S_TMP}, s{S_TMP+1}
    s_mul_i32 s{S_TMP}, s{S_TMP}, (((K_END - CPF_PC) / 128 + 16) / 16) * 128
    v_lshlrev_b32 v1, 7, v{V_LANE}
    v_add_u32 v1, s{S_TMP}, v1
    v_cmp_gt_u32 vcc, (((K_END - CPF_PC) / 128 + 16) / 16), v{V_LANE}
    v_min_u32 v1, (K_END - CPF_PC), v1
    s_and_saveexec_b64 s[{S_EX}:{S_EX+1}], vcc
    global_load_dword v248, v1, s[72:73]
    s_mov_b64 exec, s[{S_EX}:{S_EX+1}]
{lc}:''')
    if O.touch:
        lt = A.label('TCH')
        A(f'''    s_cmp_eq_u32 s{S_WAVE}, 2
    s_cbranch_scc0 {lt}
    v_mov_b32 v1, 0
    s_mov_b64 s[{S_EX}:{S_EX+1}], exec
    s_mov_b64 exec, 1
    global_load_dword v249, v1, s[{S_WS}:{S_WS+1}] offset:2048
    v_mov_b32 v2, {WS_PART}
    v_mov_b32 v3, {WS_PART + 0x200000}
    v_mov_b32 v4, {WS_PART + 0x3ff000}
    global_load_dword v249, v2, s[{S_WS}:{S_WS+1}]
    global_load_dword v249, v3, s[{S_WS}:{S_WS+1}]
    global_load_dword v249, v4, s[{S_WS}:{S_WS+1}]
    global_load_dword v249, v1, s[{S_WK}:{S_WK+1}]
    global_load_dword v249, v1, s[{S_WV}:{S_WV+1}]
    global_load_dword v249, v1, s[{S_WO}:{S_WO+1}]
    global_load_dword v249, v1, s[{S_OUT}:{S_OUT+1}]
    s_mov_b64 exec, s[{S_EX}:{S_EX+1}]
{lt}:''')
    A.stamp('issued')
    A(f"""    v_lshrrev_b32 v2, 4, v{V_LANE}
    v_and_b32 v3, 15, v{V_LANE}
    s_mul_i32 s{S_TMP}, s{S_WAVE}, 12288
    v_lshlrev_b32 v5, 2, v2
    v_add_u32 v5, v5, v3
    v_and_b32 v5, 15, v5
    v_lshlrev_b32 v5, 4, v5
    v_lshlrev_b32 v6, 8, v2
    v_add_u32 v5, v5, v6
    v_add_u32 v{V_LDSW}, s{S_TMP}, v5
    s_lshl_b32 s{S_TMP+1}, s{S_WAVE}, 10
    v_add_u32 v{V_LDSF}, s{S_TMP+1}, v5
    v_lshrrev_b32 v5, 2, v{V_LANE}
    v_and_b32 v5, 3, v5
    v_and_b32 v6, 3, v{V_LANE}
    v_lshrrev_b32 v7, 1, v2
    v_add_u32 v7, v7, v6
    v_lshlrev_b32 v7, 2, v7
    v_and_b32 v1, 1, v2
    v_lshlrev_b32 v1, 1, v1
    v_add_u32 v7, v7, v1
    v_lshrrev_b32 v1, 1, v5
    v_add_u32 v7, v7, v1
    v_and_b32 v1, 1, v5
    v_lshlrev_b32 v1, 3, v1
    v_lshlrev_b32 v6, 8, v6
    v_add3_u32 v6, v6, v1, s{S_TMP}
    v_and_b32 v1, 15, v7
    v_lshlrev_b32 v1, 4, v1
    v_add_u32 v{V_LDSR0}, v6, v1
    v_add_u32 v7, 8, v7
    v_and_b32 v1, 15, v7
    v_lshlrev_b32 v1, 4, v1
    v_add_u32 v{V_LDSR1}, v6, v1
    v_lshlrev_b32 v5, 3, v{V_LANE}
    v_add_u32 v{V_PR}, {L_QKL}, v5
    s_lshl_b32 s{S_TMP}, s{S_WAVE}, 9
    v_add_u32 v{V_PW}, s{S_TMP}, v{V_PR}
    v_add_u32 v{V_FR}, {L_QKL + 4096}, v{V_L16}
    s_lshl_b32 s{S_TMP}, s{S_WAVE}, 2
    v_add_u32 v{V_FW}, s{S_TMP}, v{V_FR}
    s_mov_b32 s{S_THR}, {lit(8.0)}
    v_lshlrev_b32 v5, 2, v3
    v_add_u32 v{V_MB}, {L_MBUF}, v5
    v_mov_b32 v{V_MREF}, 0xff800000
    ds_write_b32 v{V_MB}, v{V_MREF}
    v_lshlrev_b32 v5, 2, v2""")
    for r in range(4):
        A(f'    v_add_u32 v6, {r}, v5')
        A(f'    v_cmp_eq_u32 s[{S_MASK+2*r}:{S_MASK+2*r+1}], v6, v3')
    A(f"""    s_mov_b32 s{S_SELLO}, 0x{SEL_LO:08x}
    s_mov_b32 s{S_SELHI}, 0x{SEL_HI:08x}
    s_mov_b32 s{S_C384}, {lit(1/384)}
    v_mov_b32 v{V_EPS}, {lit(1e-5)}
    v_mov_b32 v{V_ONEF}, 1.0
    v_mov_b32 v{V_L}, 0
    v_mov_b32 v{V_U}, 0
    v_mov_b32 v{V_Q+4}, 0
    v_mov_b32 v1, 0x3f803f80""")
    for k in range(4):
        A(f'    v_accvgpr_write_b32 a{A_ONES+k}, v1')
    A(f"""    s_waitcnt lgkmcnt(0)
    s_mul_i32 s{S_TAG}, s{S_EPOCH}, 0x9E3779B1
    s_add_u32 s{S_TAG}, s{S_TAG}, 0x7F4A7C15""")
    def snapshot(): return (list(A.vm), set(A.done), Stream.nxt, Stream.done, list(Stream.pend))
    def restore(sn): A.vm, A.done, Stream.nxt, Stream.done, Stream.pend = list(sn[0]), set(sn[1]), sn[2], sn[3], list(sn[4])
    l1 = A.label('H1'); l2 = A.label('H2'); j0 = A.label('A0J')
    A(f'    s_cmp_eq_u32 s{S_ROLE}, {R_S1}')
    A(f'    s_cbranch_scc0 {l1}')
    sn = snapshot()
    role_S1_work(A)
    if O.s1mid:
        Stream.nxt = 3
        stage_A(A, 0, quota=2, stamp=False)
        assert Stream.nxt == O.l0 + 3
        A(f'    s_branch {j0}')
        restore(sn)
    else:
        A(f'    s_branch {l2}')
    A(f'{l1}:')
    A(f'    s_cmp_eq_u32 s{S_ROLE}, {R_S2}')
    A(f'    s_cbranch_scc0 {l2}')
    sn2 = snapshot()
    role_S2_addr(A)
    role_S2_loads(A)
    if O.qtouch:
        lt = A.label('QT')
        A(f"""    s_cmp_eq_u32 s{S_WAVE}, 0
    s_cbranch_scc0 {lt}
    s_mul_i32 s{S_TMP}, s{S_COPY}, 12
    s_sub_u32 s{S_TMP}, s{S_JOB}, s{S_TMP}        ; 0..11
    s_lshl_b32 s{S_TMP}, s{S_TMP}, 11
    s_lshl_b32 s{S_TMP+1}, s{S_COPY}, 15
    s_add_u32 s{S_TMP}, s{S_TMP}, s{S_TMP+1}
    s_add_u32 s{S_TMP}, s{S_TMP}, {WS_QGA}
    v_and_b32 v1, 15, v{V_LANE}
    v_lshlrev_b32 v1, 7, v1
    v_add_u32 v1, s{S_TMP}, v1
    global_load_dword v248, v1, s[{S_WS}:{S_WS+1}]
{lt}:""")
    stage_A(A, 0, quota=O.s2q, stamp=False)
    role_S2_stage(A)
    gather_addr(A, WS_QGA)
    A(f'    s_lshl_b32 s{S_TMP}, s{S_COPY}, 15')
    A(f'    v_add_u32 v{V_GA}, s{S_TMP}, v{V_GA}')
    A.vmall()
    A.stamp('s2_poll')
    gather_loop_dual(A, WS_QGB - WS_QGA, O.na)
    flush_pend()
    issue_next(A, O.l0 + O.q0 - Stream.nxt)
    role_S2_work(A, True)
    assert Stream.nxt == O.l0 + O.q0
    A(f'    s_branch {j0}')
    restore(sn2)
    A(f'{l2}:')
    stage_A(A, 0, quota=O.q0, stamp=False)
    A(f'{j0}:')
    A.stamp('A0')
    epilogue_addresses(A)
    def run_sched(sched, tag):
        for i, st in enumerate(sched):
            k = int(st[1])
            if st[0] == 'A':
                stage_A(A, k, quota=O.qa, stamp=tag)
            else:
                nxtB = next((j for j in range(i + 1, len(sched)) if sched[j][0] == 'B'), len(sched))
                strict = any(x[0] == 'A' and int(x[1]) % 3 == k % 3 for x in sched[i + 1:nxtB]) or k == 8
                ia = next((j for j in range(i) if sched[j] == f'A{k}'), -1)
                fresh = ia >= 0 and not any(x[0] == 'B' for x in sched[ia + 1:i])
                stage_B(A, k, quota=O.qb, defer=(O.defer and k != 8), strict=strict, fresh=fresh, stamp=tag)
    def zero_o():
        A.nop(2)
        for k in range(24): A(f'    v_mov_b32 v{V_O+k}, 0')
    attempt = lambda: gather_issue(A, 'qk')
    raise_l = lambda: (enqueue(A), flush_pend())
    jend = A.label('MEND')
    if O.rolesched:
        lc = A.label('MCOMMON')
        sn = snapshot()
        A(f'    s_sub_u32 s{S_TMP}, s{S_ROLE}, 1')
        A(f'    s_cmp_lt_u32 s{S_TMP}, 2')
        A(f'    s_cbranch_scc0 {lc}')
        gather_addr(A, WS_QKG)
        rh = {O.rolesched - 1: attempt} if O.rolesched <= 3 else {}
        stage_A(A, 1, rh, stamp=False)
        zero_o()
        get_qk(A, stamp=False)
        run_sched(O.sched_role.split(), False)
        assert Stream.nxt >= 27 and not PV.pending
        A(f'    s_branch {jend}')
        A(f'{lc}:')
        restore(sn); PV.pending = []
    stage_A(A, 1, stamp=False)
    A.stamp('A1')
    gather_addr(A, WS_QKG)
    if O.raise_at == 'A1': raise_l()
    if O.attempt == 'A1': attempt()
    hooks = {}
    if O.attempt == 'A2a': hooks[0] = attempt
    if O.attempt == 'A2b': hooks[1] = attempt
    if O.hold:
        h = O.hold
        if h == 1:   hooks = {1: lambda: (attempt(), enqueue(A, 2))}
        elif h == 2: hooks = {0: lambda: (attempt(), enqueue(A, 1)), 1: lambda: enqueue(A, 1)}
        elif h == 3: hooks = {2: lambda: (attempt(), enqueue(A, 2))}
        stage_A(A, 2, hooks, quota=1)
    else:
        stage_A(A, 2, hooks)
    if O.attempt == 'A2' and not O.hold: attempt()
    if O.raise_at == 'A2': raise_l()
    enqueue(A, O.extra); flush_pend()
    zero_o()
    get_qk(A)
    run_sched(O.sched.split(), True)
    A(f'{jend}:')
    epilogue(A)
    lr = A.label('TR'); lg = A.label('TG')
    A(f'    s_cmp_eq_u32 s{S_ROLE}, {R_R}')
    A(f'    s_cbranch_scc0 {lr}')
    role_R(A)
    A('    s_branch K_FIN')
    A(f'{lr}:')
    A(f'    s_cmp_eq_u32 s{S_ROLE}, {R_G1}')
    A(f'    s_cbranch_scc1 {lg}')
    A(f'    s_cmp_eq_u32 s{S_ROLE}, {R_G2}')
    A(f'    s_cbranch_scc0 K_FIN')
    A(f'{lg}:')
    role_G(A)
    A('K_FIN:')
    if O.stamp and O.dbg:
        A('    s_waitcnt vmcnt(0)')
        A.stamp('end')
        A(f"""    s_cmp_eq_u32 s{S_WG}, {O.dbgwg}
    s_cbranch_scc0 K_END
    s_cmp_eq_u32 s{S_WAVE}, 0
    s_cbranch_scc0 K_END
    s_load_dwordx2 s[42:43], s[0:1], 64
    v_readlane_b32 s44, v{V_STAMP}, 0
    v_lshlrev_b32 v4, 2, v{V_LANE}
    s_waitcnt lgkmcnt(0)
    v_subrev_u32 v5, s44, v{V_STAMP}
    v_cmp_gt_u32 vcc, 16, v{V_LANE}
    s_and_saveexec_b64 s[{S_EX}:{S_EX+1}], vcc
    global_store_dword v4, v5, s[42:43]
    s_mov_b64 exec, s[{S_EX}:{S_EX+1}]""")
    elif O.stamp:
        A('    s_waitcnt vmcnt(0)')
        A.stamp('end')
        A(f"""    s_lshl_b32 s42, s{S_WG}, 2
    s_add_u32 s42, s42, s{S_WAVE}
    s_lshl_b32 s42, s42, 8
    s_add_u32 s42, s42, {WS_STAMP}
    v_lshlrev_b32 v4, 2, v{V_LANE}
    v_add_u32 v4, s42, v4
    global_store_dword v4, v{V_STAMP}, s[{S_WS}:{S_WS+1}]""")
    A('K_END:')
    A('    s_endpgm')
    assert Stream.nxt >= 27
    return A

DESIGN = """;
; Roles are placed by (workgroup id & 7) so that S1/S2 and G1/G2 usually share an XCD; both a plain and a
"""

def build():
    A = build_kernel()
    txt = A.text()
    for p in check_hazards(txt): print('HAZARD', p, file=sys.stderr)
    ref = open('standalone__detection_seg_dino__vision.s.ref').read().split('\n')
    top = [l for l in ref if l.startswith(';') and '@launch' not in l and 'Override launch' not in l and 'grid=ceil' not in l][:12]
    out = '\n'.join(top) + '\n'
    out += f'; @launch grid=(256,1,1) block=(256,1,1) lds={LDS_BYTES}\n'
    out += DESIGN
    out += '.amdgcn_target "amdgcn-amd-amdhsa--gfx950"\n' + txt
    out += f""".section .rodata,"a"
.p2align 6
.amdhsa_kernel {NAME}
  .amdhsa_next_free_vgpr {256 + NACC}
  .amdhsa_next_free_sgpr 96
  .amdhsa_accum_offset 256
  .amdhsa_group_segment_fixed_size 0
  .amdhsa_kernarg_size 80
  .amdhsa_user_sgpr_count 2
  .amdhsa_user_sgpr_kernarg_segment_ptr 1
  .amdhsa_system_sgpr_workgroup_id_x 1
  .amdhsa_float_denorm_mode_32 3
.end_amdhsa_kernel
"""
    return out, A.labels

if __name__ == '__main__':
    path = sys.argv[1]
    for o in (sys.argv[2].split(',') if len(sys.argv) > 2 else []):
        if o == 'stamp': O.stamp = True
        elif o == 'plain': O.nt = ''
        elif o == 'nodefer': O.defer = False
        elif o == 'nocpf': O.cpf = False
        elif o.startswith('rolesched='): O.rolesched = int(o[10:])
        elif o.startswith('sched_role='): O.sched_role = o[11:].replace('-', ' ')
        elif o.startswith('s1early='): O.s1early = int(o[8:])
        elif o.startswith('s2q='): O.s2q = int(o[4:])
        elif o == 'qtouch': O.qtouch = True
        elif o.startswith('na='): O.na = int(o[3:])
        elif o == 'latef': O.earlyf = False
        elif o.startswith('rthr='): O.rthr = int(o[5:])
        elif o.startswith('s2n='): O.s2n = int(o[4:])
        elif o.startswith('dbg='): O.stamp = True; O.dbgwg = int(o[4:]); O.dbg = ['entry','issued','head','A0','A1','A2','Qk','B0','B4','B8','pub','R_ml','R_done','G2_in','G_done','end']
        elif o == 's1mid': O.s1mid = True
        elif o == 'eager': O.lazy = False
        elif o.startswith('q0='): O.q0 = int(o[3:])
        elif o == 'rcomb': O.rcomb = True
        elif o.startswith('hold='): O.hold = int(o[5:])
        elif o.startswith('s2mode='): O.s2mode = o[7:]
        elif o == 's2drain': O.s2drain = True
        elif o == 'touch': O.touch = True
        elif o.startswith('fine='): O.fine = int(o[5:])
        elif o.startswith('qa='): O.qa = int(o[3:])
        elif o.startswith('s2att='): O.s2att = int(o[6:])
        elif o.startswith('qb='): O.qb = int(o[3:])
        elif o.startswith('att='): O.attempt = o[4:]
        elif o.startswith('extra='): O.extra = int(o[6:])
        elif o.startswith('l0='): O.l0 = int(o[3:])
        elif o.startswith('raise='): O.raise_at = o[6:]
        elif o.startswith('sched='): O.sched = o[6:].replace('-', ' ')
    out, labels = build()
    open(path, 'w').write(out)
    if O.stamp: open(path + '.labels', 'w').write(','.join(labels))
    print('wrote', path, len(out), 'bytes;', out.count('\n'), 'lines')
```

```python
import sys, struct, math
from asmlib import *

def f2u(x): return struct.unpack('<I', struct.pack('<f', x))[0]
def lit(x): return f'0x{f2u(x):08x}'
NAME = 'standalone__detection_seg_dino__vision_kernel'

class Opt:
    stamp = False
    nt = ' nt'
    extra = 0
    rqa = 2
    rqb = 1
    rextra = 0
    mlni = False
    rolesched = 0
    sched_role = 'B0 B1 A2 B2 A3 B3 A4 B4 A5 B5 A6 B6 A7 B7 A8 B8'
    s1early = 2
    s2q = 1
    qtouch = False
    na = 16
    earlyf = True
    rthr = 0
    s2n = 2
    dbg = None
    dbgwg = 28
    s1mid = False
    lazy = True
    q0 = 3
    rcomb = False
    hold = 3
    s2mode = 'spin0'
    s2drain = True
    cpf = True
    touch = False
    wsoff = 0
    fine = -1
    defer = True
    s2att = 1
    qa = 2
    qb = 1
    spread = True
    l0 = 2
    raise_at = 'A2'
    attempt = 'A2b'
    sched = 'B0 A3 B1 B2 A4 B3 B4 A5 B5 A6 B6 A7 B7 A8 B8'
O = Opt()

WS_EPOCH = 0x0
WS_QG    = 0x1000
WS_QKG   = 0x8000
WS_CTXN  = 0x10000
WS_CTX   = 0x18000
WS_ML    = 0x20000
WS_QGA   = 0x40000
WS_QGB   = 0x50000
WS_CTXA  = 0x60000
WS_PART  = 0x100000
WS_STAMP = 0x800000
SEL_LO, SEL_HI = 0x00003F80, 0x3F800000

RAW = [8, 68]
V_T   = 128
V_STG = 152
V_O   = 160
V_S, V_R, V_G, V_D = 184, 188, 192, 196
V_P   = 200
V_MREF, V_L, V_SQ, V_ONEF, V_EPS = 202, 203, 204, 205, 206
V_F0OFF, V_F1OFF = 207, 208
V_LDSW, V_LDSR0, V_LDSR1, V_LDSF = 209, 210, 211, 212
V_PW, V_PR, V_MB, V_LANE = 213, 214, 215, 216
V_CW, V_CR0, V_CR1, V_CF = 217, 218, 219, 220
V_U = 221
V_FW, V_FR = 254, 255
V_GA = 222
V_L16 = 223
V_GB = 224
V_Q = 248
V_STAMP = 253
A_QK, A_X, A_F, A_P, A_ONES, A_W = 0, 48, 96, 144, 152, 156
NACC = 180
S_F0, S_F1, S_WS = 4, 6, 8
S_BSET = [10, 44]
S_WAVE, S_WG, S_T = 16, 17, 19
S_SELLO, S_SELHI, S_C384 = 20, 21, 23
S_MASK = 26
S_TMP = 34
S_TAG, S_EPOCH, S_ROLE, S_JOB = 50, 51, 52, 53
S_Q, S_OUT = 54, 58
S_SPIN = 60
S_COPY = 74
S_THR = 61
S_EX = 62
S_WQ, S_WK, S_WV, S_WO = 64, 66, 68, 70
R_NONE, R_S1, R_S2, R_G1, R_G2, R_R = 0, 1, 2, 3, 4, 5
SPIN_MAX = 1 << 18
SLOT = 49152
L_QKL  = 3 * SLOT
L_PBUF = L_QKL + 12288
L_MBUF = L_PBUF + 2048
L_LBUF = L_MBUF + 64
L_FLAG = L_LBUF + 512
LDS_BYTES = L_FLAG + 1024
assert LDS_BYTES <= 163840
L_HEAD = 2 * SLOT
L_STAT = L_HEAD + 6144
L_RED_H = L_HEAD
L_TR   = SLOT
L_RED_T = SLOT + 4608
L_RB   = 0

class Gen(Asm):
    def __init__(self):
        super().__init__()
        self.vm = []
        self.uid = 0
        self.nstamp = 0
        self.labels = []
        self.done = set()
    def vmop(self, line, tag):
        self(line); self.vm.append(tag)
    def vmwait(self, tag):
        hits = [i for i, t in enumerate(self.vm) if t == tag]
        if not hits:
            assert tag in self.done, tag
            return
        idx = hits[-1]
        self.done.update(self.vm[:idx + 1])
        n = len(self.vm) - 1 - idx
        assert n <= 63, n
        self(f'    s_waitcnt vmcnt({n})')
        self.vm = self.vm[idx + 1:]
    def vmall(self):
        self('    s_waitcnt vmcnt(0)'); self.vm = []
    def label(self, base):
        self.uid += 1
        return f'{base}_{self.uid}'
    def stamp(self, name):
        if not O.stamp: return
        if O.dbg and name not in O.dbg: return
        idx = len(self.labels)
        assert idx < 64
        self.labels.append(name)
        self('    s_memrealtime s[40:41]')
        self('    s_waitcnt lgkmcnt(0)')
        self(f'    v_writelane_b32 v{V_STAMP}, s40, {idx}')

def xgroup_reduce(A, op, v, t):
    A(f'    v_mov_b32 v{t}, v{v}')
    A.nop(2)
    A(f'    v_permlane32_swap_b32 v{t}, v{v}')
    A(f'    {op} v{v}, v{v}, v{t}')
    A(f'    v_mov_b32 v{t}, v{v}')
    A.nop(2)
    A(f'    v_permlane16_swap_b32 v{t}, v{v}')
    A(f'    {op} v{v}, v{v}, v{t}')

def multi_xgroup(A, op, vs, ts):
    for sw in ('32', '16'):
        for v, t in zip(vs, ts): A(f'    v_mov_b32 v{t}, v{v}')
        if len(vs) < 3: A.nop(3 - len(vs))
        for v, t in zip(vs, ts): A(f'    v_permlane{sw}_swap_b32 v{t}, v{v}')
        for v, t in zip(vs, ts): A(f'    {op} v{v}, v{v}, v{t}')

def multi_row(A, op, vs, rots=(8, 4, 2, 1)):
    for rot in rots:
        if len(vs) < 3: A.nop(3 - len(vs))
        for v in vs: A(f'    {op}_dpp v{v}, v{v}, v{v} row_ror:{rot} row_mask:0xf bank_mask:0xf')

def tile_bases(A, u):
    S_B0 = S_BSET[u]; S_B1 = S_B0 + 2; S_BF = S_B0 + 4
    A(f'''    s_mul_hi_u32 s{S_TMP}, s{S_T}, 89478486
    s_mul_i32 s{S_TMP+1}, s{S_TMP}, 48
    s_sub_u32 s{S_TMP+1}, s{S_T}, s{S_TMP+1}
    s_mul_i32 s{S_TMP}, s{S_TMP}, 589824
    s_mul_i32 s{S_TMP+1}, s{S_TMP+1}, 6144
    s_add_u32 s{S_TMP}, s{S_TMP}, s{S_TMP+1}
    s_add_u32 s{S_B0}, s{S_F0}, s{S_TMP}
    s_addc_u32 s{S_B0+1}, s{S_F0+1}, 0
    s_add_u32 s{S_B1}, s{S_B0}, 294912
    s_addc_u32 s{S_B1+1}, s{S_B0+1}, 0
    s_mul_i32 s{S_TMP}, s{S_T}, 3072
    s_add_u32 s{S_BF}, s{S_F1}, s{S_TMP}
    s_addc_u32 s{S_BF+1}, s{S_F1+1}, 0
    s_add_u32 s{S_T}, s{S_T}, 4''')

def issue_item(A, j):
    if j > 26: return
    tile, third = divmod(j, 3); u = tile & 1
    if third == 0 and j > 0: tile_bases(A, u)
    S_B0 = S_BSET[u]; S_B1 = S_B0 + 2; S_BF = S_B0 + 4
    b = RAW[u]
    r = b + 48 + 4 * third
    A.vmop(f'    global_load_dwordx4 v[{r}:{r+3}], v{V_F1OFF}, s[{S_BF}:{S_BF+1}] offset:{third*256}{O.nt}', f'item{j}')
    for jj in range(4):
        dy, dx = jj >> 1, jj & 1
        r = b + 16 * third + 4 * jj
        base = S_B1 if dy else S_B0
        A.vmop(f'    global_load_dwordx4 v[{r}:{r+3}], v{V_F0OFF}, s[{base}:{base+1}] offset:{dx*768+third*256}{O.nt}', f'item{j}')

class Stream:
    nxt = 0
    done = 0
    pend = []
def enqueue(A, n=1):
    for _ in range(n):
        if Stream.nxt <= 26 and Stream.nxt < Stream.done + 6:
            Stream.pend += item_steps(A)
def pop(n=1):
    for _ in range(n):
        if Stream.pend: Stream.pend.pop(0)()
def flush_pend():
    pop(len(Stream.pend))
def issue_next(A, n=1):
    for _ in range(n):
        issue_item(A, Stream.nxt); Stream.nxt += 1

def item_steps(A):
    j = Stream.nxt; Stream.nxt += 1
    if j > 26: return []
    tile, third = divmod(j, 3); u = tile & 1
    S_B0 = S_BSET[u]; S_B1 = S_B0 + 2; S_BF = S_B0 + 4
    b = RAW[u]
    steps = []
    def first():
        if third == 0: tile_bases(A, u)
        r = b + 48 + 4 * third
        A.vmop(f'    global_load_dwordx4 v[{r}:{r+3}], v{V_F1OFF}, s[{S_BF}:{S_BF+1}] offset:{third*256}{O.nt}', f'item{j}')
    steps.append(first)
    for jj in range(4):
        def f(jj=jj):
            dy, dx = jj >> 1, jj & 1
            r = b + 16 * third + 4 * jj
            base = S_B1 if dy else S_B0
            A.vmop(f'    global_load_dwordx4 v[{r}:{r+3}], v{V_F0OFF}, s[{base}:{base+1}] offset:{dx*768+third*256}{O.nt}', f'item{j}')
        steps.append(f)
    return steps

def stage_A(A, k, hooks=None, quota=3, stamp=True):
    hooks = hooks or {}
    u = k & 1; b = RAW[u]; T = V_T
    A(f'    v_add_u32 v{V_CW}, {(k % 3) * SLOT}, v{V_LDSW}')
    if PV.pending: A('    s_waitcnt lgkmcnt(0)')
    units = [(third, dd) for third in range(3) for dd in range(4)]
    def tset(i): return T + 10 * (i & 1)
    def U(i):
        third, dd = units[i]; t = tset(i); f1 = b + 48 + 4 * third + dd
        return [f'    v_lshlrev_b32 v{t+8}, 16, v{f1}', f'    v_and_b32 v{t+9}, 0xffff0000, v{f1}']
    def D(i):
        third, dd = units[i]; t = tset(i)
        return ([f'    v_dot2_f32_bf16 v{t+j}, v{b+16*third+4*j+dd}, s{S_SELLO}, v{t+8}' for j in range(4)] +
                [f'    v_dot2_f32_bf16 v{t+4+j}, v{b+16*third+4*j+dd}, s{S_SELHI}, v{t+9}' for j in range(4)])
    def C(i):
        t = tset(i); o = V_STG + 4 * (i & 1)
        return [f'    v_cvt_pk_bf16_f32 v{o+kk}, v{t+2*kk}, v{t+2*kk+1}' for kk in range(4)]
    def W(i):
        third, dd = units[i]; o = V_STG + 4 * (i & 1)
        return f'    ds_write_b128 v{V_CW}, v[{o}:{o+3}] offset:{(third*4+dd)*1024}'
    enq = {0: 1, 4: 1, 8: 1} if quota == 3 else ({0: 1, 6: 1} if quota == 2 else ({0: 1} if quota == 1 else {}))
    def ensure(j):
        while any(True for _ in Stream.pend) and f'item{j}' not in A.done and A.vm.count(f'item{j}') < 5: pop()
        while Stream.nxt <= j: Stream.pend += item_steps(A); flush_pend()
    ensure(3 * k); A.vmwait(f'item{3*k}')
    enqueue(A, enq.get(0, 0))
    u0 = U(0); d0 = D(0)
    for l in u0 + d0[:4]: A(l)
    pop()
    for l in d0[4:]: A(l)
    for i in range(1, 12):
        if i % 4 == 0:
            Stream.done = 3 * k + i // 4
            ensure(3 * k + i // 4); A.vmwait(f'item{3*k + i//4}')
        enqueue(A, enq.get(i, 0))
        for l in U(i): A(l)
        if quota == 3 and i % 4 in (0, 2): pop()
        d = D(i); c = C(i - 1)
        for kk in range(4):
            A(d[kk]); A(c[kk])
        pv_pop(A, 2)
        A(W(i - 1))
        pop()
        for kk in range(4, 8): A(d[kk])
        if i % 4 == 3 and (i // 4) in hooks: hooks[i // 4]()
    Stream.done = 3 * k + 3
    flush_pend()
    A.nop(1)
    for l in C(11): A(l)
    pv_flush(A)
    A(W(11))
    if stamp: A.stamp(f'A{k}')

class PV:
    pending = []
def pv_steps():
    out = []
    for wp in range(4):
        for third in range(3):
            for e1 in range(2):
                f = A_F + (wp * 3 + third) * 4 + 2 * e1
                o = V_O + (third * 2 + e1) * 4
                out.append(f'    v_mfma_f32_16x16x16_bf16 v[{o}:{o+3}], a[{f}:{f+1}], a[{A_P+2*wp}:{A_P+2*wp+1}], v[{o}:{o+3}]')
    return out
def pv_pop(A, n=1):
    for _ in range(n):
        if PV.pending: A(PV.pending.pop(0))
def pv_flush(A):
    pv_pop(A, len(PV.pending))

def f_reads(A):
    for wp in range(4):
        for third in range(3):
            r = A_F + (wp * 3 + third) * 4
            A(f'    ds_read_b128 a[{r}:{r+3}], v{V_CF} offset:{wp*12288 + third*4096}')
def p_off(k): return 0 if (k & 1) else L_PBUF - L_QKL
def flag_off(k): return 0 if (k & 1) else L_FLAG - (L_QKL + 4096)
def p_reads(A, k):
    for wp in range(4):
        A(f'    ds_read_b64 a[{A_P+2*wp}:{A_P+2*wp+1}], v{V_PR} offset:{wp*512 + p_off(k)}')

def eager_softmax(A, k, strict, fine):
    T = V_T
    for r in range(4):
        A(f'    v_fma_f32 v{V_S+r}, -v{V_R+r}, v{V_SQ}, v{V_S+r}')
    for r in range(4):
        A(f'    v_mul_f32 v{V_S+r}, v{V_S+r}, v{V_D+r}')
    A(f'    v_max3_f32 v{T}, v{V_S}, v{V_S+1}, v{V_S+2}')
    A(f'    v_max_f32 v{T}, v{T}, v{V_S+3}')
    if fine: A.stamp('b_z')
    A(f'    ds_max_f32 v{V_MB}, v{T}')
    A('    s_waitcnt lgkmcnt(0)')
    if fine: A.stamp('b_pre1')
    A('    s_barrier')
    if fine: A.stamp('b_post1')
    A(f'    ds_read_b32 v{T+1}, v{V_MB}')
    A('    s_waitcnt lgkmcnt(0)')
    if fine: A.stamp('b_m(+F)')
    A(f'    v_sub_f32 v{T+2}, v{V_MREF}, v{T+1}')
    for r in range(4):
        A(f'    v_sub_f32 v{V_S+r}, v{V_S+r}, v{T+1}')
    A(f'    v_exp_f32 v{T+2}, v{T+2}')
    for r in range(4):
        A(f'    v_exp_f32 v{V_S+r}, v{V_S+r}')
    A(f'    v_mov_b32 v{V_MREF}, v{T+1}')
    for r in range(4):
        A(f'    v_mul_f32 v{T+4+r}, v{V_S+r}, v{V_D+r}')
    A(f'    v_add_f32 v{V_S}, v{V_S}, v{V_S+1}')
    A(f'    v_cvt_pk_bf16_f32 v{V_P}, v{T+4}, v{T+5}')
    A(f'    v_cvt_pk_bf16_f32 v{V_P+1}, v{T+6}, v{T+7}')
    A(f'    v_add_f32 v{V_S+2}, v{V_S+2}, v{V_S+3}')
    A(f'    ds_write_b64 v{V_PW}, v[{V_P}:{V_P+1}] offset:{p_off(0)}')
    for wp in range(4):
        for third in range(3):
            r = A_F + (wp * 3 + third) * 4
            A(f'    ds_read_b128 a[{r}:{r+3}], v{V_CF} offset:{wp*12288 + third*4096}')
    A(f'    v_add_f32 v{V_S}, v{V_S}, v{V_S+2}')
    A(f'    v_fma_f32 v{V_L}, v{V_L}, v{T+2}, v{V_S}')
    A(f'    v_mul_f32 v{V_U}, v{V_U}, v{T+2}')
    A(f'    v_lshlrev_b32 v{T+4}, 16, v{V_P}')
    A(f'    v_and_b32 v{T+5}, 0xffff0000, v{V_P}')
    A(f'    v_lshlrev_b32 v{T+6}, 16, v{V_P+1}')
    A(f'    v_and_b32 v{T+7}, 0xffff0000, v{V_P+1}')
    for r in range(4):
        A(f'    v_fmac_f32 v{V_U}, v{T+4+r}, v{V_R+r}')
    for kk in range(0, 24, 2):
        A(f'    v_pk_mul_f32 v[{V_O+kk}:{V_O+kk+1}], v[{V_O+kk}:{V_O+kk+1}], v[{T+2}:{T+3}] op_sel_hi:[1,0]')
    if fine: A.stamp('b_P')
    A(f'    s_waitcnt lgkmcnt({0 if strict else 12})')
    A('    s_barrier')
    if fine: A.stamp('b_post2')
    for wp in range(4):
        A(f'    ds_read_b64 a[{A_P+2*wp}:{A_P+2*wp+1}], v{V_PR} offset:{wp*512 + p_off(0)}')

def lazy_softmax(A, k, strict, fine, early=False):
    T = V_T; AR = T + 8; PP = T + 4; DL = T + 12; DU = T + 13
    slow = A.label('BS'); join = A.label('BJ')
    def p_from_args():
        for r in range(4): A(f'    v_exp_f32 v{AR+r}, v{AR+r}')
        A('    s_nop 0')
        for r in range(0, 4, 2):
            A(f'    v_pk_mul_f32 v[{PP+r}:{PP+r+1}], v[{AR+r}:{AR+r+1}], v[{V_D+r}:{V_D+r+1}]')
        A(f'    v_cvt_pk_bf16_f32 v{V_P}, v{PP}, v{PP+1}')
        A(f'    v_cvt_pk_bf16_f32 v{V_P+1}, v{PP+2}, v{PP+3}')
        A(f'    ds_write_b64 v{V_PW}, v[{V_P}:{V_P+1}] offset:{p_off(k)}')
    def increments():
        A(f'    v_add_f32 v{AR}, v{AR}, v{AR+1}')
        A(f'    v_add_f32 v{AR+2}, v{AR+2}, v{AR+3}')
        A(f'    v_lshlrev_b32 v{PP}, 16, v{V_P}')
        A(f'    v_and_b32 v{PP+1}, 0xffff0000, v{V_P}')
        A(f'    v_lshlrev_b32 v{PP+2}, 16, v{V_P+1}')
        A(f'    v_and_b32 v{PP+3}, 0xffff0000, v{V_P+1}')
        A(f'    v_add_f32 v{DL}, v{AR}, v{AR+2}')
        A(f'    v_mul_f32 v{DU}, v{PP}, v{V_R}')
        A(f'    v_mul_f32 v{PP}, v{PP+1}, v{V_R+1}')
        A(f'    v_fmac_f32 v{DU}, v{PP+2}, v{V_R+2}')
        A(f'    v_fmac_f32 v{PP}, v{PP+3}, v{V_R+3}')
        A(f'    v_add_f32 v{DU}, v{DU}, v{PP}')
    for r in range(0, 4, 2):
        A(f'    v_pk_fma_f32 v[{V_S+r}:{V_S+r+1}], v[{V_R+r}:{V_R+r+1}], v[{V_SQ}:{V_SQ+1}], v[{V_S+r}:{V_S+r+1}] op_sel_hi:[1,0,1] neg_lo:[1,0,0] neg_hi:[1,0,0]')
    for r in range(0, 4, 2):
        A(f'    v_pk_fma_f32 v[{AR+r}:{AR+r+1}], v[{V_S+r}:{V_S+r+1}], v[{V_D+r}:{V_D+r+1}], v[{V_MREF}:{V_MREF+1}] op_sel_hi:[1,1,0] neg_lo:[0,0,1] neg_hi:[0,0,1]')
    A(f'    v_max3_f32 v{T}, v{AR}, v{AR+1}, v{AR+2}')
    A(f'    v_max_f32 v{T}, v{T}, v{AR+3}')
    A(f'    v_cmp_lt_f32 vcc, s{S_THR}, v{T}')
    if fine: A.stamp('b_z')
    p_from_args()
    A(f'    v_cndmask_b32 v{T}, 0, 1, vcc')
    A(f'    ds_write_b32 v{V_FW}, v{T} offset:{flag_off(k)}')
    increments()
    if fine: A.stamp('b_P')
    A('    s_waitcnt lgkmcnt(0)')
    A('    s_barrier')
    if fine: A.stamp('b_post')
    A(f'    ds_read_b128 v[{T}:{T+3}], v{V_FR} offset:{flag_off(k)}')
    p_reads(A, k)
    if early:
        A('    s_waitcnt lgkmcnt(4)')
    else:
        f_reads(A)
        A('    s_waitcnt lgkmcnt(15)')
    A(f'    v_or3_b32 v{T}, v{T}, v{T+1}, v{T+2}')
    A(f'    v_or_b32 v{T}, v{T}, v{T+3}')
    A(f'    v_cmp_ne_u32 vcc, 0, v{T}')
    A(f'    s_cbranch_vccz {join}')
    for r in range(4): A(f'    v_mul_f32 v{AR+r}, v{V_S+r}, v{V_D+r}')
    A(f'    v_max3_f32 v{T}, v{AR}, v{AR+1}, v{AR+2}')
    A(f'    v_max_f32 v{T}, v{T}, v{AR+3}')
    A(f'    ds_max_f32 v{V_MB}, v{T}')
    A('    s_waitcnt lgkmcnt(0)')
    A('    s_barrier')
    A(f'    ds_read_b32 v{T+1}, v{V_MB}')
    A('    s_waitcnt lgkmcnt(0)')
    A(f'    v_sub_f32 v{T+2}, v{V_MREF}, v{T+1}')
    for r in range(4): A(f'    v_sub_f32 v{AR+r}, v{AR+r}, v{T+1}')
    A(f'    v_exp_f32 v{T+2}, v{T+2}')
    A(f'    v_mov_b32 v{V_MREF}, v{T+1}')
    p_from_args()
    A(f'    v_mul_f32 v{V_L}, v{V_L}, v{T+2}')
    A(f'    v_mul_f32 v{V_U}, v{V_U}, v{T+2}')
    for kk in range(0, 24, 2):
        A(f'    v_pk_mul_f32 v[{V_O+kk}:{V_O+kk+1}], v[{V_O+kk}:{V_O+kk+1}], v[{T+2}:{T+3}] op_sel_hi:[1,0]')
    increments()
    A('    s_waitcnt lgkmcnt(0)')
    A('    s_barrier')
    p_reads(A, k)
    A(f'{join}:')
    A(f'    v_add_f32 v{V_L}, v{V_L}, v{DL}')
    A(f'    v_add_f32 v{V_U}, v{V_U}, v{DU}')
    if strict and k != 8:
        A('    s_waitcnt lgkmcnt(0)')
        A('    s_barrier')

def stage_B(A, k, quota=1, defer=True, strict=True, fresh=True, stamp=True):
    T = V_T; so = (k % 3) * SLOT
    early = O.earlyf and O.lazy
    enqueue(A, quota)
    A(f'    v_add_u32 v{V_CR0}, {so}, v{V_LDSR0}')
    A(f'    v_add_u32 v{V_CR1}, {so}, v{V_LDSR1}')
    A(f'    v_add_u32 v{V_CF}, {so}, v{V_LDSF}')
    if PV.pending or (early and fresh): A('    s_waitcnt lgkmcnt(0)')
    if early and fresh: A('    s_barrier')
    n = 0
    for bb in range(12):
        for a2 in range(2):
            r = A_X + 4 * bb + 2 * a2
            A(f'    ds_read_b64_tr_b16 a[{r}:{r+1}], v{V_CR0+a2} offset:{bb*1024}')
            n += 1
            pv_pop(A)
    pv_flush(A)
    fine = (O.fine == k)
    if fine: A.stamp('b_tr')
    def X(bb): return f'a[{A_X+4*bb}:{A_X+4*bb+3}]'
    def G(bb): A(f'    v_mfma_f32_16x16x32_bf16 v[{V_G}:{V_G+3}], {X(bb)}, {X(bb)}, ' + ('0' if bb == 0 else f'v[{V_G}:{V_G+3}]'))
    def R(bb): A(f'    v_mfma_f32_16x16x32_bf16 v[{V_R}:{V_R+3}], {X(bb)}, a[{A_ONES}:{A_ONES+3}], ' + ('0' if bb == 0 else f'v[{V_R}:{V_R+3}]'))
    def S(bb): A(f'    v_mfma_f32_16x16x32_bf16 v[{V_S}:{V_S+3}], {X(bb)}, a[{A_QK+4*bb}:{A_QK+4*bb+3}], ' + ('0' if bb == 0 else f'v[{V_S}:{V_S+3}]'))
    fl = []
    if early:
        for wp in range(4):
            for third in range(3):
                r = A_F + (wp * 3 + third) * 4
                fl.append(f'    ds_read_b128 a[{r}:{r+3}], v{V_CF} offset:{wp*12288 + third*4096}')
    nf = 0
    for bb in range(12):
        if bb % 3 == 0:
            A(f'    s_waitcnt lgkmcnt({min(15, 24 - 2*(bb+3) + nf)})')
        G(bb)
        if fl: A(fl.pop(0)); nf += 1
        if bb % 2 == 1 and bb < 11: pop()
    flush_pend()
    if fine: A.stamp('b_G')
    for bb in range(8): R(bb)
    for r in range(4):
        src0 = '0' if r == 0 else f'v{T}'
        A(f'    v_cndmask_b32 v{T}, {src0}, v{V_G+r}, s[{S_MASK+2*r}:{S_MASK+2*r+1}]')
        R(8 + r)
    S(0)
    A(f'    v_mfma_f32_16x16x4_f32 v[{V_D}:{V_D+3}], v{T}, v{V_ONEF}, 0')
    for bb in range(1, 7): S(bb)
    for r in range(4):
        A(f'    v_mul_f32 v{V_R+r}, s{S_C384}, v{V_R+r}')
        S(7 + r)
    for r in range(4):
        A(f'    v_fma_f32 v{T+r}, -v{V_R+r}, v{V_R+r}, v{V_EPS}')
        if r == 1: S(11)
    for r in range(4):
        A(f'    v_fma_f32 v{V_D+r}, v{V_D+r}, s{S_C384}, v{T+r}')
    for r in range(4):
        A(f'    v_rsq_f32 v{V_D+r}, v{V_D+r}')
    if O.lazy:
        lazy_softmax(A, k, strict and not early, fine, early)
    else:
        eager_softmax(A, k, strict, fine)
    PV.pending = pv_steps()
    if not defer:
        if k == 8: epilogue_pre(A)
        A('    s_waitcnt lgkmcnt(0)')
        pv_flush(A)
    if stamp: A.stamp(f'B{k}')

def gather_addr(A, ws_off):
    A(f'    s_mul_i32 s{S_TMP}, s{S_WAVE}, 6144')
    A(f'    s_add_u32 s{S_TMP}, s{S_TMP}, {ws_off + 2048}')
    A(f'    v_add_u32 v{V_GA}, s{S_TMP}, v{V_L16}')

def gather_issue(A, track=None):
    for kk in range(3):
        for h in range(2):
            r = V_GB + 8 * kk + 4 * h
            line = f'    global_load_dwordx4 v[{r}:{r+3}], v{V_GA}, s[{S_WS}:{S_WS+1}] offset:{kk*2048 + h*1024 - 2048} sc1'
            if track: A.vmop(line, track)
            else: A(line)

def gather_check(A):
    T = V_T
    for kk in range(3):
        A(f'    v_xor_b32 v{T+2*kk}, s{S_TAG}, v{V_GB+8*kk}')
        A(f'    v_xor_b32 v{T+2*kk+1}, s{S_TAG}, v{V_GB+8*kk+6}')
    A(f'    v_or3_b32 v{T}, v{T}, v{T+1}, v{T+2}')
    A(f'    v_or3_b32 v{T+3}, v{T+3}, v{T+4}, v{T+5}')
    A(f'    v_or_b32 v{T}, v{T}, v{T+3}')
    A(f'    v_cmp_ne_u32 vcc, 0, v{T}')

def spin_guard(A, lbl_retry):
    A(f'    s_add_u32 s{S_SPIN}, s{S_SPIN}, 1')
    A(f'    s_cmp_lt_u32 s{S_SPIN}, {SPIN_MAX}')
    A(f'    s_cbranch_scc0 K_END')

def gather_loop(A):
    l = A.label('GL'); d = A.label('GD')
    A(f'{l}:')
    gather_issue(A)
    A('    s_waitcnt vmcnt(0)')
    gather_check(A)
    A(f'    s_cbranch_vccz {d}')
    spin_guard(A, l)
    A(f'    s_branch {l}')
    A(f'{d}:')

def publish8(A, dreg, ws_off_sgpr):
    A(f'    v_mov_b32 v{dreg}, s{S_TAG}')
    A(f'    v_mov_b32 v{dreg+1}, 0')
    A(f'    v_mov_b32 v{dreg+6}, s{S_TAG}')
    A(f'    v_mov_b32 v{dreg+7}, 0')
    A(f'    v_add_u32 v1, s{ws_off_sgpr}, v{V_L16}')
    A(f'    global_store_dwordx4 v1, v[{dreg}:{dreg+3}], s[{S_WS}:{S_WS+1}] sc1')
    A(f'    global_store_dwordx4 v1, v[{dreg+4}:{dreg+7}], s[{S_WS}:{S_WS+1}] offset:1024 sc1')

def publish8_dual(A, dreg, off_a_sgpr, delta_b):
    A(f'    v_mov_b32 v{dreg}, s{S_TAG}')
    A(f'    v_mov_b32 v{dreg+1}, 0')
    A(f'    v_mov_b32 v{dreg+6}, s{S_TAG}')
    A(f'    v_mov_b32 v{dreg+7}, 0')
    A(f'    v_add_u32 v1, s{off_a_sgpr}, v{V_L16}')
    A(f'    v_add_u32 v2, {delta_b & 0xffffffff}, v1')
    A(f'    global_store_dwordx4 v1, v[{dreg}:{dreg+3}], s[{S_WS}:{S_WS+1}]')
    A(f'    global_store_dwordx4 v1, v[{dreg+4}:{dreg+7}], s[{S_WS}:{S_WS+1}] offset:1024')
    A(f'    global_store_dwordx4 v2, v[{dreg}:{dreg+3}], s[{S_WS}:{S_WS+1}] sc1')
    A(f'    global_store_dwordx4 v2, v[{dreg+4}:{dreg+7}], s[{S_WS}:{S_WS+1}] offset:1024 sc1')

def gather_loop_dual(A, delta_b, na=3):
    l = A.label('GL'); li = A.label('GI'); d = A.label('GD')
    A(f'{l}:')
    A(f'    s_mov_b32 s{S_TMP+3}, 0')
    A(f'{li}:')
    gather_issue(A)
    A('    s_waitcnt vmcnt(0)')
    gather_check(A)
    A(f'    s_cbranch_vccz {d}')
    A(f'    s_add_u32 s{S_TMP+3}, s{S_TMP+3}, 1')
    A(f'    s_cmp_lt_u32 s{S_TMP+3}, {na}')
    A(f'    s_cbranch_scc1 {li}')
    A(f'    v_add_u32 v{V_GA}, {delta_b & 0xffffffff}, v{V_GA}')
    gather_issue(A)
    A(f'    v_subrev_u32 v{V_GA}, {delta_b & 0xffffffff}, v{V_GA}')
    A('    s_waitcnt vmcnt(0)')
    gather_check(A)
    A(f'    s_cbranch_vccz {d}')
    spin_guard(A, l)
    A(f'    s_branch {l}')
    A(f'{d}:')

def slab_addr(A, perm):
    A(f'''    v_lshrrev_b32 v1, 2, v{V_LANE}
    s_mul_i32 s{S_TMP}, s{S_WAVE}, 96
    v_add_u32 v1, s{S_TMP}, v1            ; p (x = 0)
    v_and_b32 v{V_T}, 3, v{V_LANE}
    v_lshlrev_b32 v{V_T}, 4, v{V_T}
    s_lshl_b32 s{S_TMP}, s{S_JOB}, 6
    v_add_u32 v{V_T}, s{S_TMP}, v{V_T}''')
    for x in range(6):
        d = 2 + x
        if not perm:
            A(f'    v_add_u32 v{d}, {16*x}, v1')
        else:
            t = V_T + 1; kk = x >> 1
            A(f"""    v_lshrrev_b32 v{t}, 2, v{V_LANE}
    v_add_u32 v{t}, {16*(x&1)}, v{t}          ; p & 31
    v_bfe_u32 v{t+1}, v{t}, 1, 2              ; dw
    v_cmp_eq_u32 vcc, 3, v{t+1}
    v_lshlrev_b32 v{t+1}, 7, v{t+1}
    v_add_u32 v{t+1}, {32*kk}, v{t+1}
    v_mov_b32 v{t+2}, {kk*128 + 96}
    v_cndmask_b32 v{t+1}, v{t+1}, v{t+2}, vcc
    v_lshrrev_b32 v{t+2}, 3, v{t}
    v_lshlrev_b32 v{t+2}, 3, v{t+2}           ; 8g
    v_and_b32 v{t}, 1, v{t}
    v_add3_u32 v{t+1}, v{t+1}, v{t+2}, v{t}
    s_lshl_b32 s{S_TMP+1}, s{S_WAVE}, 1
    v_add_u32 v{d}, s{S_TMP+1}, v{t+1}""")
        A(f'    v_mul_u32_u24 v{d}, 768, v{d}')
        A(f'    v_add_u32 v{d}, v{d}, v{V_T}')

def slab_loads(A, sptr, dst, track=None):
    for x in range(6):
        line = f'    global_load_dwordx4 v[{dst+4*x}:{dst+4*x+3}], v{2+x}, s[{sptr}:{sptr+1}]'
        if track: A.vmop(line, track)
        else: A(line)

def slab_to_operands(A, src, lds_base):
    A(f'''    s_mul_i32 s{S_TMP}, s{S_WAVE}, 12288
    s_add_u32 s{S_TMP}, s{S_TMP}, {lds_base}
    v_add_u32 v1, s{S_TMP}, v{V_L16}''')
    for x in range(6):
        A(f'    ds_write_b128 v1, v[{src+4*x}:{src+4*x+3}] offset:{x*1024}')
    A(f'''    v_lshrrev_b32 v2, 4, v{V_LANE}
    v_lshlrev_b32 v2, 9, v2               ; g*512
    v_bfe_u32 v3, v{V_LANE}, 2, 2
    v_lshlrev_b32 v3, 6, v3               ; r*64
    v_and_b32 v4, 3, v{V_LANE}
    v_lshlrev_b32 v4, 4, v4               ; c*16
    v_add3_u32 v2, v2, v3, v4
    v_add_u32 v2, s{S_TMP}, v2''')
    for kk in range(3):
        for tb in range(2):
            for hf in range(2):
                r = A_W + (kk * 2 + tb) * 4 + 2 * hf
                A(f'    ds_read_b64_tr_b16 a[{r}:{r+1}], v2 offset:{kk*2048 + hf*256 + tb*8}')

def gemm6(A, bregs):
    for kk in range(3):
        for tb in range(2):
            d = V_S if tb == 0 else V_R
            c = '0' if kk == 0 else f'v[{d}:{d+3}]'
            w = A_W + (kk * 2 + tb) * 4
            A(f'    v_mfma_f32_16x16x32_bf16 v[{d}:{d+3}], a[{w}:{w+3}], {bregs(kk)}, {c}')

def cross_wave_sum(A, red):
    skip = A.label('XW'); w0 = A.label('XW0')
    A.nop(8)
    A(f'''    s_cmp_eq_u32 s{S_WAVE}, 0
    s_cbranch_scc1 {w0}
    s_sub_u32 s{S_TMP}, s{S_WAVE}, 1
    s_lshl_b32 s{S_TMP}, s{S_TMP}, 11
    s_add_u32 s{S_TMP}, s{S_TMP}, {red}
    v_add_u32 v1, s{S_TMP}, v{V_L16}
    ds_write_b128 v1, v[{V_S}:{V_S+3}]
    ds_write_b128 v1, v[{V_R}:{V_R+3}] offset:1024
    s_waitcnt lgkmcnt(0)
{w0}:
    s_barrier
    s_cmp_eq_u32 s{S_WAVE}, 0
    s_cbranch_scc0 {skip}
    v_add_u32 v1, {red}, v{V_L16}''')
    T = V_T
    for w in range(3):
        A(f'    ds_read_b128 v[{T+8*w}:{T+8*w+3}], v1 offset:{w*2048}')
        A(f'    ds_read_b128 v[{T+8*w+4}:{T+8*w+7}], v1 offset:{w*2048+1024}')
    for w in range(3):
        A(f'    s_waitcnt lgkmcnt({4 - 2*w})')
        for r in range(4):
            A(f'    v_add_f32 v{V_S+r}, v{V_S+r}, v{T+8*w+r}')
        for r in range(4):
            A(f'    v_add_f32 v{V_R+r}, v{V_R+r}, v{T+8*w+4+r}')
    return skip

def cross_wave_sum4(A, red):
    skip = A.label('XV'); w0 = A.label('XV0')
    A.nop(8)
    A(f"""    s_cmp_eq_u32 s{S_WAVE}, 0
    s_cbranch_scc1 {w0}
    s_sub_u32 s{S_TMP}, s{S_WAVE}, 1
    s_lshl_b32 s{S_TMP}, s{S_TMP}, 10
    s_add_u32 s{S_TMP}, s{S_TMP}, {red}
    v_add_u32 v1, s{S_TMP}, v{V_L16}
    ds_write_b128 v1, v[{V_S}:{V_S+3}]
    s_waitcnt lgkmcnt(0)
{w0}:
    s_barrier
    s_cmp_eq_u32 s{S_WAVE}, 0
    s_cbranch_scc0 {skip}
    v_add_u32 v1, {red}, v{V_L16}""")
    T = V_T
    for w in range(3):
        A(f'    ds_read_b128 v[{T+4*w}:{T+4*w+3}], v1 offset:{w*1024}')
    for w in range(3):
        A(f'    s_waitcnt lgkmcnt({2 - w})')
        for r in range(4):
            A(f'    v_add_f32 v{V_S+r}, v{V_S+r}, v{T+4*w+r}')
    return skip

def publish4(A, ws_base):
    T = V_T; odd = A.label('PB_O'); go = A.label('PB_G')
    A(f"""    v_cvt_pk_bf16_f32 v{T+2}, v{V_S}, v{V_S+1}
    v_cvt_pk_bf16_f32 v{T+3}, v{V_S+2}, v{V_S+3}
    v_mov_b32 v{T}, s{S_TAG}
    v_mov_b32 v{T+1}, 0
    v_mov_b32 v{T+4}, s{S_TAG}
    v_mov_b32 v{T+5}, 0
    s_lshl_b32 s{S_TMP}, s{S_JOB}, 10
    s_add_u32 s{S_TMP}, s{S_TMP}, {ws_base}
    v_add_u32 v1, s{S_TMP}, v{V_L16}
    s_bitcmp1_b32 s{S_JOB}, 0
    s_cbranch_scc1 {odd}
    global_store_dwordx4 v1, v[{T}:{T+3}], s[{S_WS}:{S_WS+1}] sc1
    s_branch {go}
{odd}:
    global_store_dwordx4 v1, v[{T+2}:{T+5}], s[{S_WS}:{S_WS+1}] sc1
{go}:""")

def gemm3(A, areg, breg):
    for kk in range(3):
        A(f'    v_mfma_f32_16x16x32_bf16 v[{V_S}:{V_S+3}], {areg(kk)}, {breg(kk)}, ' + ('0' if kk == 0 else f'v[{V_S}:{V_S+3}]'))

def pack_D(A, dreg):
    A(f'    v_cvt_pk_bf16_f32 v{dreg+2}, v{V_S}, v{V_S+1}')
    A(f'    v_cvt_pk_bf16_f32 v{dreg+3}, v{V_S+2}, v{V_S+3}')
    A(f'    v_cvt_pk_bf16_f32 v{dreg+4}, v{V_R}, v{V_R+1}')
    A(f'    v_cvt_pk_bf16_f32 v{dreg+5}, v{V_R+2}, v{V_R+3}')

def lin12_addr(A, nload, rowfn, dst=2):
    for x in range(nload):
        d = dst + x; t = V_T
        A(f"""    v_add_u32 v{t}, {64*x}, v{V_LANE}
    v_mul_u32_u24 v{t+1}, 43691, v{t}
    v_lshrrev_b32 v{t+1}, 19, v{t+1}      ; row
    v_mul_u32_u24 v{t+2}, 12, v{t+1}
    v_sub_u32 v{t+2}, v{t}, v{t+2}
    v_lshlrev_b32 v{t+2}, 4, v{t+2}       ; piece*16""")
        rowfn(t + 1)
        A(f"""    v_mul_u32_u24 v{t+1}, 768, v{t+1}
    v_add3_u32 v{d}, v{t+1}, v{t+2}, s{S_TMP+2}""")

def lin12_to_operands(A, src, nload, lds_off, dsts):
    A(f"""    s_mul_i32 s{S_TMP}, s{S_WAVE}, 12288
    s_add_u32 s{S_TMP}, s{S_TMP}, {L_HEAD + lds_off}
    v_add_u32 v1, s{S_TMP}, v{V_L16}""")
    for x in range(nload):
        A(f'    ds_write_b128 v1, v[{src+4*x}:{src+4*x+3}] offset:{x*1024}')
    A(f"""    v_and_b32 v2, 15, v{V_LANE}
    v_mul_u32_u24 v2, 192, v2
    v_lshrrev_b32 v3, 4, v{V_LANE}
    v_lshlrev_b32 v3, 4, v3
    v_add3_u32 v2, v2, v3, s{S_TMP}""")
    for (reg, rowblk, kk) in dsts:
        A(f'    ds_read_b128 {reg}, v2 offset:{rowblk*16*192 + kk*64}')

def role_S1_loads(A):
    A(f'    s_mul_i32 s{S_TMP+2}, s{S_WAVE}, 192')
    lin12_addr(A, 3, lambda r: None)
    for x in range(3):
        A(f'    global_load_dwordx4 v[{V_GB+12+4*x}:{V_GB+15+4*x}], v{2+x}, s[{S_Q}:{S_Q+1}]')
    slab_addr(A, False)
    slab_loads(A, S_WQ, V_O)

def slab16_to_operands(A, src, lds_base):
    A(f"""    s_mul_i32 s{S_TMP}, s{S_WAVE}, 12288
    s_add_u32 s{S_TMP}, s{S_TMP}, {lds_base}
    v_add_u32 v1, s{S_TMP}, v{V_L16}""")
    for x in range(3):
        A(f'    ds_write_b128 v1, v[{src+4*x}:{src+4*x+3}] offset:{x*1024}')
    A(f"""    v_lshrrev_b32 v2, 4, v{V_LANE}
    v_lshlrev_b32 v2, 8, v2               ; g*256
    v_bfe_u32 v3, v{V_LANE}, 2, 2
    v_lshlrev_b32 v3, 5, v3               ; r*32
    v_and_b32 v4, 3, v{V_LANE}
    v_lshlrev_b32 v4, 3, v4               ; c*8
    v_add3_u32 v2, v2, v3, v4
    v_add_u32 v2, s{S_TMP}, v2""")
    for kk in range(3):
        for hf in range(2):
            r = A_W + kk * 4 + 2 * hf
            A(f'    ds_read_b64_tr_b16 a[{r}:{r+1}], v2 offset:{kk*1024 + hf*128}')

def slab_addr_regs(A, perm):
    slab_addr(A, perm)

def role_S1_work(A):
    T = V_T; Qr = V_GB
    A('    s_waitcnt vmcnt(0)')
    A.stamp('s1_data')
    def held_items(js):
        vm_save = list(A.vm)
        for j in js: issue_item(A, j)
        A.vm = vm_save
    early = list(range(O.l0))[:O.s1early]; late = list(range(O.l0))[O.s1early:]
    held_items(early)
    lin12_to_operands(A, V_GB + 12, 3, 6144 + 2048, [(f'v[{Qr+4*kk}:{Qr+4*kk+3}]', 0, kk) for kk in range(3)])
    slab_to_operands(A, V_O, L_HEAD)
    A('    s_waitcnt lgkmcnt(12)')
    for kk in range(3):
        q = f'v[{Qr+4*kk}:{Qr+4*kk+3}]'
        A(f'    v_mfma_f32_16x16x32_bf16 v[{V_G}:{V_G+3}], {q}, {q}, ' + ('0' if kk == 0 else f'v[{V_G}:{V_G+3}]'))
        A(f'    v_mfma_f32_16x16x32_bf16 v[{V_R}:{V_R+3}], a[{A_ONES}:{A_ONES+3}], {q}, ' + ('0' if kk == 0 else f'v[{V_R}:{V_R+3}]'))
    A.nop(7)
    A(f'    v_cndmask_b32 v{T}, 0, v{V_G}, s[{S_MASK}:{S_MASK+1}]')
    for r in range(1, 4):
        A(f'    v_cndmask_b32 v{T}, v{T}, v{V_G+r}, s[{S_MASK+2*r}:{S_MASK+2*r+1}]')
    A.nop(2)
    A(f'    v_mfma_f32_16x16x4_f32 v[{V_D}:{V_D+3}], v{V_ONEF}, v{T}, 0')
    A(f"""    s_lshl_b32 s{S_TMP}, s{S_WAVE}, 9
    s_add_u32 s{S_TMP}, s{S_TMP}, {L_STAT}
    v_lshlrev_b32 v1, 3, v{V_LANE}
    v_add_u32 v1, s{S_TMP}, v1
    v_and_b32 v2, 15, v{V_LANE}
    v_lshlrev_b32 v2, 3, v2
    v_add_u32 v2, {L_STAT}, v2
    v_mov_b32 v{T+2}, v{V_R}""")
    A.nop(3)
    A(f'    v_mov_b32 v{T+3}, v{V_D}')
    A(f'    ds_write_b64 v1, v[{T+2}:{T+3}]')
    A('    s_waitcnt lgkmcnt(0)')
    A.stamp('s1_stat')
    A('    s_barrier')
    pass
    for w in range(4):
        A(f'    ds_read_b64 v[{T+4+2*w}:{T+5+2*w}], v2 offset:{w*512}')
    A('    s_waitcnt lgkmcnt(0)')
    A(f"""    v_add_f32 v{T+4}, v{T+4}, v{T+6}
    v_add_f32 v{T+5}, v{T+5}, v{T+7}
    v_add_f32 v{T+8}, v{T+8}, v{T+10}
    v_add_f32 v{T+9}, v{T+9}, v{T+11}
    v_add_f32 v{T+4}, v{T+4}, v{T+8}
    v_add_f32 v{T+5}, v{T+5}, v{T+9}
    v_mul_f32 v{T+4}, s{S_C384}, v{T+4}          ; mean
    v_mul_f32 v{T+5}, s{S_C384}, v{T+5}          ; E[x^2]
    v_fma_f32 v{T+5}, -v{T+4}, v{T+4}, v{T+5}    ; var
    v_max_f32 v{T+5}, 0, v{T+5}
    v_cvt_pk_bf16_f32 v{T+6}, v{T+4}, v{T+5}
    v_lshlrev_b32 v{T+4}, 16, v{T+6}
    v_and_b32 v{T+5}, 0xffff0000, v{T+6}
    v_add_f32 v{T+5}, v{V_EPS}, v{T+5}
    v_cvt_pk_bf16_f32 v{T+5}, v{T+5}, v{T+5}
    v_lshlrev_b32 v{T+5}, 16, v{T+5}
    v_sqrt_f32 v{T+5}, v{T+5}
    s_nop 0
    v_cvt_pk_bf16_f32 v{T+5}, v{T+5}, v{T+5}
    v_lshlrev_b32 v{T+5}, 16, v{T+5}
    v_rcp_f32 v{T+5}, v{T+5}""")
    for k in range(0, 12, 2):
        a, b = T + 8, T + 12
        A(f'    v_lshlrev_b32 v{a}, 16, v{Qr+k}')
        A(f'    v_and_b32 v{a+1}, 0xffff0000, v{Qr+k}')
        A(f'    v_lshlrev_b32 v{b}, 16, v{Qr+k+1}')
        A(f'    v_and_b32 v{b+1}, 0xffff0000, v{Qr+k+1}')
        for x in (a, a + 1, b, b + 1): A(f'    v_sub_f32 v{x}, v{x}, v{T+4}')
        A(f'    v_cvt_pk_bf16_f32 v{a+2}, v{a}, v{a+1}')
        A(f'    v_cvt_pk_bf16_f32 v{b+2}, v{b}, v{b+1}')
        A(f'    v_lshlrev_b32 v{a}, 16, v{a+2}')
        A(f'    v_and_b32 v{a+1}, 0xffff0000, v{a+2}')
        A(f'    v_lshlrev_b32 v{b}, 16, v{b+2}')
        A(f'    v_and_b32 v{b+1}, 0xffff0000, v{b+2}')
        for x in (a, a + 1, b, b + 1): A(f'    v_mul_f32 v{x}, v{x}, v{T+5}')
        A(f'    v_cvt_pk_bf16_f32 v{Qr+k}, v{a}, v{a+1}')
        A(f'    v_cvt_pk_bf16_f32 v{Qr+k+1}, v{b}, v{b+1}')
    A.stamp('s1_norm')
    A.nop(2)
    gemm6(A, lambda kk: f'v[{Qr+4*kk}:{Qr+4*kk+3}]')
    skip = cross_wave_sum(A, L_RED_H)
    A.stamp('s1_red')
    pack_D(A, V_T)
    A(f'    s_lshl_b32 s{S_TMP}, s{S_JOB}, 11')
    A(f'    s_lshl_b32 s{S_TMP+1}, s{S_COPY}, 15')
    A(f'    s_add_u32 s{S_TMP}, s{S_TMP}, s{S_TMP+1}')
    A(f'    s_add_u32 s{S_TMP}, s{S_TMP}, {WS_QGA}')
    publish8_dual(A, V_T, S_TMP, WS_QGB - WS_QGA)
    A(f'{skip}:')
    held_items(late)

def role_S2_addr(A):
    A(f"""    s_lshr_b32 s{S_TMP}, s{S_JOB}, 3              ; third = b>>2
    s_lshl_b32 s{S_TMP}, s{S_TMP}, 7
    s_bfe_u32 s{S_TMP+1}, s{S_JOB}, 0x20001       ; ep = b&3
    s_lshl_b32 s{S_TMP+1}, s{S_TMP+1}, 1
    s_add_u32 s{S_TMP+3}, s{S_TMP}, s{S_TMP+1}
    s_and_b32 s{S_TMP+1}, s{S_JOB}, 1
    s_lshl_b32 s{S_TMP+1}, s{S_TMP+1}, 6          ; a2*64
    s_add_u32 s{S_TMP+3}, s{S_TMP+3}, s{S_TMP+1}
    s_mul_i32 s{S_TMP+2}, s{S_WAVE}, 192""")
    def rowfn(r):
        t = V_T + 3
        A(f"""    v_bfe_u32 v{t}, v{r}, 3, 1
    v_lshlrev_b32 v{t}, 2, v{t}
    v_bfe_u32 v{t+1}, v{r}, 2, 1
    v_lshlrev_b32 v{t+1}, 1, v{t+1}
    v_bfe_u32 v{t+2}, v{r}, 1, 1
    v_add3_u32 v{t}, v{t}, v{t+1}, v{t+2}
    v_lshlrev_b32 v{t}, 3, v{t}
    v_and_b32 v{r}, 1, v{r}
    v_add3_u32 v{r}, v{r}, v{t}, s{S_TMP+3}""")
    lin12_addr(A, 3, rowfn, V_O + 12)

def role_S2_loads(A):
    for x in range(3):
        A.vmop(f'    global_load_dwordx4 v[{V_O+4*x}:{V_O+4*x+3}], v{V_O+12+x}, s[{S_WK}:{S_WK+1}]', 'wk')

def role_S2_stage(A):
    A.vmwait('wk')
    lin12_to_operands(A, V_O, 3, 0, [(f'a[{A_W+4*kk}:{A_W+4*kk+3}]', 0, kk) for kk in range(3)])

def role_S2_work(A, have_q=False):
    scale = 384 ** -0.5 * math.log2(math.e)
    ok = A.label('S2OK')
    if not have_q:
        A.vmwait('q')
        gather_check(A)
        A(f'    s_cbranch_vccz {ok}')
        gather_loop(A)
        A(f'{ok}:')
    A('    s_waitcnt lgkmcnt(0)')
    A.stamp('s2_q')
    gemm3(A, lambda kk: f'a[{A_W+4*kk}:{A_W+4*kk+3}]', lambda kk: f'v[{V_GB+8*kk+2}:{V_GB+8*kk+5}]')
    skip = cross_wave_sum4(A, L_HEAD + 6144)
    A.stamp('s2_red')
    for r in range(4):
        A(f'    v_mul_f32 v{V_S+r}, {lit(scale)}, v{V_S+r}')
    publish4(A, WS_QKG)
    A(f'{skip}:')

def get_qk(A, stamp=True):
    ok = A.label('QK_OK'); lp = A.label('QK_LP')
    A.vmwait('qk')
    gather_check(A)
    A(f'    s_cbranch_vccz {ok}')
    gather_loop(A)
    A(f'{ok}:')
    A(f"""    s_mul_i32 s{S_TMP}, s{S_WAVE}, 3072
    s_add_u32 s{S_TMP}, s{S_TMP}, {L_QKL}
    v_add_u32 v1, s{S_TMP}, v{V_L16}""")
    for kk in range(3):
        A(f'    ds_write_b128 v1, v[{V_GB+8*kk+2}:{V_GB+8*kk+5}] offset:{kk*1024}')
    A(f'    v_add_u32 v1, {L_QKL}, v{V_L16}')
    A('    s_waitcnt lgkmcnt(0)')
    A('    s_barrier')
    for bb in range(12):
        A(f'    ds_read_b128 a[{A_QK+4*bb}:{A_QK+4*bb+3}], v1 offset:{bb*1024}')
    for bb in range(12):
        if bb % 4 == 0: A(f'    s_waitcnt lgkmcnt({8 - bb})')
        c = '0' if bb == 0 else f'v[{V_S}:{V_S+3}]'
        A(f'    v_mfma_f32_16x16x32_bf16 v[{V_S}:{V_S+3}], a[{A_ONES}:{A_ONES+3}], a[{A_QK+4*bb}:{A_QK+4*bb+3}], {c}')
    A.nop(8)
    A(f'    v_mov_b32 v{V_SQ}, v{V_S}')
    if stamp: A.stamp('Qk')

def role_G_loads(A):
    g1 = A.label('GL1'); done = A.label('GLD')
    A(f'    s_cmp_eq_u32 s{S_ROLE}, {R_G1}')
    A(f'    s_cbranch_scc1 {g1}')
    A(f'    s_cmp_eq_u32 s{S_ROLE}, {R_G2}')
    A(f'    s_cbranch_scc0 {done}')
    slab_addr(A, False)
    slab_loads(A, S_WO, RAW[1])
    A(f"""    v_and_b32 v1, 15, v{V_LANE}
    v_mul_u32_u24 v1, 768, v1
    v_lshrrev_b32 v2, 4, v{V_LANE}
    v_lshlrev_b32 v2, 4, v2
    s_lshl_b32 s{S_TMP}, s{S_JOB}, 6
    v_add3_u32 v{V_Q+4}, v1, v2, s{S_TMP}
    global_load_dwordx4 v[{V_Q}:{V_Q+3}], v{V_Q+4}, s[{S_Q}:{S_Q+1}]
    s_branch {done}
{g1}:""")
    slab_addr(A, True)
    slab_loads(A, S_WV, RAW[1])
    A(f'{done}:')

S_PB = 76
def epilogue_addresses(A):
    A(f"""    v_and_b32 v1, 15, v{V_LANE}           ; n
    v_lshlrev_b32 v7, 4, v1
    v_lshrrev_b32 v4, 4, v{V_LANE}        ; g'
    s_lshl_b32 s{S_TMP}, s{S_WG}, {4 if O.mlni else 8}
    s_add_u32 s{S_TMP}, s{S_TMP}, {WS_ML}
    v_lshlrev_b32 v6, {12 if O.mlni else 4}, v1
    v_add_u32 v6, s{S_TMP}, v6
    s_mul_i32 s{S_TMP}, s{S_WAVE}, 12288
    s_add_u32 s{S_TMP}, s{S_TMP}, {L_TR}
    v_mul_u32_u24 v3, 272, v1
    v_lshlrev_b32 v5, 6, v4
    v_add3_u32 v3, v3, v5, s{S_TMP}
    v_lshlrev_b32 v5, 18, v4              ; (l>>4)*8*32768
    v_mul_u32_u24 v4, 272, v4
    v_add3_u32 v4, v4, v7, s{S_TMP}
    v_bfe_u32 v1, v{V_LANE}, 3, 1
    v_lshlrev_b32 v1, 15, v1
    v_and_b32 v2, 7, v{V_LANE}
    v_lshlrev_b32 v2, 4, v2
    v_add3_u32 v5, v5, v1, v2
    s_lshl_b32 s{S_TMP}, s{S_WAVE}, 16
    s_lshl_b32 s{S_TMP+1}, s{S_WG}, 7
    s_add_u32 s{S_TMP}, s{S_TMP}, s{S_TMP+1}
    s_add_u32 s{S_TMP}, s{S_TMP}, {WS_PART}
    v_add_u32 v5, s{S_TMP}, v5
    v_add_u32 v7, {L_LBUF}, v7
    s_lshl_b32 s{S_TMP}, s{S_WAVE}, 2
    v_add_u32 v2, s{S_TMP}, v7""")
    for x in range(3):
        A(f'    s_add_u32 s{S_PB+2*x}, s{S_WS}, {0x100000*(x+1)}')
        A(f'    s_addc_u32 s{S_PB+2*x+1}, s{S_WS+1}, 0')

def epilogue_pre(A):
    T = V_T
    multi_xgroup(A, 'v_add_f32', [V_L, V_U], [T, T + 1])
    A(f'    ds_write_b32 v2, v{V_L}')
    A(f'    ds_write_b32 v2, v{V_U} offset:256')
    for r in range(4): A(f'    v_mov_b32 v{8+4*r+3}, s{S_TAG}')

def epilogue(A):
    skip = A.label('EP'); s0 = A.label('EP0')
    A('    s_barrier')
    A(f"""    s_cmp_eq_u32 s{S_WAVE}, 0
    s_cbranch_scc0 {s0}
    ds_read_b128 v[40:43], v7
    ds_read_b128 v[44:47], v7 offset:256
    v_mov_b32 v48, v{V_MREF}
    v_mov_b32 v51, s{S_TAG}
{s0}:""")
    A.nop(4)
    for r in range(4):
        for third in range(3):
            b0 = V_O + third * 8; b1 = b0 + 4
            A(f'    v_cvt_pk_bf16_f32 v{8+4*r+third}, v{b0+r}, v{b1+r}')
        A(f'    ds_write_b128 v3, v[{8+4*r}:{11+4*r}] offset:{r*16}')
    for x in range(4):
        A(f'    ds_read_b128 v[{24+4*x}:{27+4*x}], v4 offset:{x*1088}')
    for x in range(4):
        A(f'    s_waitcnt lgkmcnt({3-x})')
        base = S_WS if x == 0 else S_PB + 2 * (x - 1)
        A(f'    global_store_dwordx4 v5, v[{24+4*x}:{27+4*x}], s[{base}:{base+1}] sc1')
    A(f"""    s_cmp_eq_u32 s{S_WAVE}, 0
    s_cbranch_scc0 {skip}
    v_add_f32 v40, v40, v41
    v_add_f32 v42, v42, v43
    v_add_f32 v44, v44, v45
    v_add_f32 v46, v46, v47
    v_add_f32 v49, v40, v42
    v_add_f32 v50, v44, v46
    v_cmp_gt_u32 vcc, 16, v{V_LANE}
    s_and_saveexec_b64 s[{S_EX}:{S_EX+1}], vcc
    global_store_dwordx4 v6, v[48:51], s[{S_WS}:{S_WS+1}] sc1
    s_mov_b64 exec, s[{S_EX}:{S_EX+1}]
{skip}:""")
    A.stamp('pub')

def role_R(A):
    T = V_T
    lp = A.label('RL'); ok = A.label('RO'); lp2 = A.label('RD'); ok2 = A.label('RO2'); fin = A.label('RF')
    A(f"""    s_and_b32 s{S_TMP}, s{S_JOB}, 15          ; n
    s_lshr_b32 s{S_TMP+1}, s{S_JOB}, 4        ; chunk
    s_lshl_b32 s{S_TMP+2}, s{S_TMP}, {12 if O.mlni else 4}
    s_lshl_b32 s{S_TMP+3}, s{S_WAVE}, {10 if O.mlni else 14}
    s_add_u32 s{S_TMP+2}, s{S_TMP+2}, s{S_TMP+3}
    s_add_u32 s{S_TMP+2}, s{S_TMP+2}, {WS_ML}
    v_lshlrev_b32 v1, {4 if O.mlni else 8}, v{V_LANE}
    v_add_u32 v1, s{S_TMP+2}, v1
    s_lshl_b32 s{S_TMP+2}, s{S_TMP}, 3
    s_add_u32 s{S_TMP+2}, s{S_TMP+2}, s{S_TMP+1}
    s_lshl_b32 s{S_TMP+2}, s{S_TMP+2}, 15
    s_lshl_b32 s{S_TMP+3}, s{S_WAVE}, 13
    s_add_u32 s{S_TMP+2}, s{S_TMP+2}, s{S_TMP+3}
    s_add_u32 s{S_TMP+2}, s{S_TMP+2}, {WS_PART + 4096}
    v_add_u32 v2, s{S_TMP+2}, v{V_L16}
{lp}:""")
    def data_loads():
        for k in range(8):
            A(f'    global_load_dwordx4 v[{16+4*k}:{19+4*k}], v2, s[{S_WS}:{S_WS+1}] offset:{k*1024-4096} sc1')
    if O.rthr:
        l2 = A.label('RL2')
        A(f'    global_load_dwordx4 v[8:11], v1, s[{S_WS}:{S_WS+1}] sc1')
        A('    s_waitcnt vmcnt(0)')
        A(f'    v_cmp_ne_u32 vcc, s{S_TAG}, v11')
        A(f'    s_bcnt1_i32_b64 s{S_TMP+3}, vcc')
        A(f'    s_cmp_le_u32 s{S_TMP+3}, {O.rthr}')
        A(f'    s_cbranch_scc1 {l2}')
        spin_guard(A, lp)
        A(f'    s_branch {lp}')
        A(f'{l2}:')
        A(f'    global_load_dwordx4 v[8:11], v1, s[{S_WS}:{S_WS+1}] sc1')
        data_loads()
        A('    s_waitcnt vmcnt(8)')
        A(f'    v_cmp_ne_u32 vcc, s{S_TAG}, v11')
        A(f'    s_cbranch_vccz {ok}')
        A('    s_waitcnt vmcnt(0)')
        spin_guard(A, l2)
        A(f'    s_branch {l2}')
        A(f'{ok}:')
    else:
        A(f'    global_load_dwordx4 v[8:11], v1, s[{S_WS}:{S_WS+1}] sc1')
        if O.rcomb:
            data_loads()
            A('    s_waitcnt vmcnt(8)')
        else:
            A('    s_waitcnt vmcnt(0)')
        A(f"""    v_cmp_ne_u32 vcc, s{S_TAG}, v11
    s_cbranch_vccz {ok}""")
        if O.rcomb: A('    s_waitcnt vmcnt(0)')
        spin_guard(A, lp)
        A(f'    s_branch {lp}')
        A(f'{ok}:')
    A.stamp('R_ml')
    if not O.rcomb and not O.rthr: data_loads()
    A(f'    v_mov_b32 v12, v8')
    multi_row(A, 'v_max_f32', [12])
    xgroup_reduce(A, 'v_max_f32', 12, 13)
    A(f"""    v_sub_f32 v8, v8, v12
    v_exp_f32 v8, v8
    v_lshrrev_b32 v3, 3, v{V_LANE}
    v_lshlrev_b32 v3, 2, v3               ; ii*4
    v_mul_f32 v9, v9, v8
    v_mul_f32 v10, v10, v8""")
    for k in range(8):
        A(f'    v_add_u32 v4, {32*k}, v3')
        A(f'    ds_bpermute_b32 v{48+k}, v4, v8')
    multi_row(A, 'v_add_f32', [9, 10])
    multi_xgroup(A, 'v_add_f32', [9, 10], [13, 14])
    for j in range(6): A(f'    v_mov_b32 v{56+j}, 0')
    A(f'{lp2}:')
    A('    s_waitcnt vmcnt(0)')
    for k in range(0, 8, 2):
        A(f'    v_xor_b32 v{64+k}, s{S_TAG}, v{19+4*k}')
        A(f'    v_xor_b32 v{65+k}, s{S_TAG}, v{23+4*k}')
    A(f"""    v_or3_b32 v64, v64, v65, v66
    v_or3_b32 v67, v67, v68, v69
    v_or3_b32 v64, v64, v70, v71
    v_or_b32 v64, v64, v67
    v_cmp_ne_u32 vcc, 0, v64
    s_cbranch_vccz {ok2}""")
    spin_guard(A, lp2)
    data_loads()
    A(f'    s_branch {lp2}')
    A(f'{ok2}:')
    A('    s_waitcnt lgkmcnt(0)')
    for k in range(8):
        for t in range(3):
            A(f'    v_lshlrev_b32 v64, 16, v{16+4*k+t}')
            A(f'    v_and_b32 v65, 0xffff0000, v{16+4*k+t}')
            A(f'    v_fmac_f32 v{56+2*t}, v64, v{48+k}')
            A(f'    v_fmac_f32 v{57+2*t}, v65, v{48+k}')
    acc = list(range(56, 62))
    multi_row(A, 'v_add_f32', acc, rots=(8,))
    multi_xgroup(A, 'v_add_f32', acc, list(range(64, 70)))
    A(f"""    s_lshl_b32 s{S_TMP+2}, s{S_WAVE}, 8
    s_add_u32 s{S_TMP+2}, s{S_TMP+2}, {L_RB}
    v_mul_u32_u24 v3, 24, v{V_LANE}
    v_add_u32 v3, s{S_TMP+2}, v3
    v_mov_b32 v4, s{S_TMP+2}
    v_mov_b32 v13, v9
    v_mov_b32 v14, v10
    v_mov_b32 v15, 0
    v_cmp_gt_u32 vcc, 8, v{V_LANE}
    s_and_saveexec_b64 s[{S_EX}:{S_EX+1}], vcc
    ds_write_b64 v3, v[56:57]
    ds_write_b64 v3, v[58:59] offset:8
    ds_write_b64 v3, v[60:61] offset:16
    ds_write_b128 v4, v[12:15] offset:192
    s_mov_b64 exec, s[{S_EX}:{S_EX+1}]
    s_waitcnt lgkmcnt(0)
    s_barrier
    s_cmp_eq_u32 s{S_WAVE}, 0
    s_cbranch_scc0 {fin}
    v_min_u32 v3, 7, v{V_LANE}
    v_mul_u32_u24 v3, 24, v3
    v_add_u32 v3, {L_RB}, v3
    v_mov_b32 v4, {L_RB}""")
    for w in range(4):
        A(f'    ds_read_b128 v[{16+4*w}:{19+4*w}], v4 offset:{w*256+192}')
    for w in range(4):
        for j in range(3):
            A(f'    ds_read_b64 v[{32+6*w+2*j}:{33+6*w+2*j}], v3 offset:{w*256+8*j}')
    A(f"""    s_waitcnt lgkmcnt(12)
    v_max_f32 v12, v16, v20
    v_max3_f32 v12, v12, v24, v28""")
    for w in range(4): A(f'    v_sub_f32 v{16+4*w}, v{16+4*w}, v12')
    for w in range(4): A(f'    v_exp_f32 v{16+4*w}, v{16+4*w}')
    A(f"""    s_nop 0
    v_mul_f32 v13, v16, v17
    v_mul_f32 v14, v16, v18""")
    for w in range(1, 4):
        A(f'    v_fmac_f32 v13, v{16+4*w}, v{17+4*w}')
        A(f'    v_fmac_f32 v14, v{16+4*w}, v{18+4*w}')
    A(f"""    v_rcp_f32 v13, v13
    s_waitcnt lgkmcnt(0)""")
    for j in range(6): A(f'    v_mul_f32 v{56+j}, v{32+j}, v16')
    for w in range(1, 4):
        for j in range(6): A(f'    v_fmac_f32 v{56+j}, v{32+6*w+j}, v{16+4*w}')
    for j in range(6): A(f'    v_sub_f32 v{56+j}, v{56+j}, v14')
    for j in range(6): A(f'    v_mul_f32 v{56+j}, v{56+j}, v13')
    A(f"""    v_cvt_pk_bf16_f32 v8, v56, v57
    v_cvt_pk_bf16_f32 v9, v58, v59
    v_cvt_pk_bf16_f32 v10, v60, v61
    v_mov_b32 v11, s{S_TAG}
    s_lshl_b32 s{S_TMP+2}, s{S_TMP+1}, 4
    s_add_u32 s{S_TMP+2}, s{S_TMP+2}, s{S_TMP}
    s_lshl_b32 s{S_TMP+2}, s{S_TMP+2}, 7
    s_add_u32 s{S_TMP+2}, s{S_TMP+2}, {WS_CTXN}
    v_add_u32 v3, s{S_TMP+2}, v{V_L16}
    v_cmp_gt_u32 vcc, 8, v{V_LANE}
    s_and_saveexec_b64 s[{S_EX}:{S_EX+1}], vcc
    global_store_dwordx4 v3, v[8:11], s[{S_WS}:{S_WS+1}] sc1
    s_mov_b64 exec, s[{S_EX}:{S_EX+1}]
{fin}:""")
    A.stamp('R_done')

def gather4_loop(A):
    l = A.label('G4L'); d = A.label('G4D'); T = V_T
    A(f"""    s_lshl_b32 s{S_TMP}, s{S_WAVE}, 12
    s_add_u32 s{S_TMP}, s{S_TMP}, {WS_CTXN}
    v_and_b32 v1, 15, v{V_LANE}
    v_lshlrev_b32 v1, 7, v1
    v_lshrrev_b32 v2, 4, v{V_LANE}
    v_lshlrev_b32 v2, 4, v2
    v_add3_u32 v{V_GA}, v1, v2, s{S_TMP}""")
    A(f'{l}:')
    for x in range(4):
        A(f'    global_load_dwordx4 v[{V_GB+4*x}:{V_GB+4*x+3}], v{V_GA}, s[{S_WS}:{S_WS+1}] offset:{(x>>1)*2048 + (x&1)*64} sc1')
    A('    s_waitcnt vmcnt(0)')
    for x in range(4): A(f'    v_xor_b32 v{T+x}, s{S_TAG}, v{V_GB+4*x+3}')
    A(f'    v_or3_b32 v{T}, v{T}, v{T+1}, v{T+2}')
    A(f'    v_or_b32 v{T}, v{T}, v{T+3}')
    A(f'    v_cmp_ne_u32 vcc, 0, v{T}')
    A(f'    s_cbranch_vccz {d}')
    spin_guard(A, l)
    A(f'    s_branch {l}')
    A(f'{d}:')
    for j in range(3): A(f'    v_mov_b32 v{V_GB+4*j+3}, v{V_GB+12+j}')

def role_G(A):
    g2 = A.label('G2'); lj = A.label('GJ')
    role_G_loads(A)
    A('    s_waitcnt vmcnt(0)')
    slab_to_operands(A, RAW[1], 0)
    A(f'    s_cmp_eq_u32 s{S_ROLE}, {R_G2}')
    A(f'    s_cbranch_scc1 {g2}')
    gather4_loop(A)
    A('    s_waitcnt lgkmcnt(0)')
    A.stamp('G1_in')
    gemm6(A, lambda kk: f'v[{V_GB+4*kk}:{V_GB+4*kk+3}]')
    A(f'    s_branch {lj}')
    A(f'{g2}:')
    gather_addr(A, WS_CTXA)
    gather_loop_dual(A, WS_CTX - WS_CTXA, O.na)
    A('    s_waitcnt lgkmcnt(0)')
    A.stamp('G2_in')
    gemm6(A, lambda kk: f'v[{V_GB+8*kk+2}:{V_GB+8*kk+5}]')
    A(f'{lj}:')
    skip = cross_wave_sum(A, L_RED_T)
    out2 = A.label('GO')
    A(f'    s_cmp_eq_u32 s{S_ROLE}, {R_G2}')
    A(f'    s_cbranch_scc1 {out2}')
    pack_D(A, 8)
    A(f'    s_lshl_b32 s{S_TMP}, s{S_JOB}, 11')
    A(f'    s_add_u32 s{S_TMP}, s{S_TMP}, {WS_CTXA}')
    publish8_dual(A, 8, S_TMP, WS_CTX - WS_CTXA)
    A(f'    s_branch {skip}')
    A(f'{out2}:')
    for k in range(4):
        d = V_S if k < 2 else V_R
        j = 2 * (k & 1)
        A(f'    v_lshlrev_b32 v8, 16, v{V_Q+k}')
        A(f'    v_and_b32 v9, 0xffff0000, v{V_Q+k}')
        A(f'    v_add_f32 v8, v8, v{d+j}')
        A(f'    v_add_f32 v9, v9, v{d+j+1}')
        A(f'    v_cvt_pk_bf16_f32 v{12+k}, v8, v9')
    A(f'    global_store_dwordx4 v{V_Q+4}, v[12:15], s[{S_OUT}:{S_OUT+1}]')
    e = A.label('GE')
    A(f"""    s_cmp_eq_u32 s{S_JOB}, 0
    s_cbranch_scc0 {skip}
    s_add_u32 s{S_TMP}, s{S_EPOCH}, 1
    v_mov_b32 v8, s{S_TMP}
    v_mov_b32 v9, {WS_EPOCH}
    v_cmp_eq_u32 vcc, 0, v{V_LANE}
    s_and_saveexec_b64 s[{S_EX}:{S_EX+1}], vcc
    global_store_dword v9, v8, s[{S_WS}:{S_WS+1}]
    s_mov_b64 exec, s[{S_EX}:{S_EX+1}]""")
    A(f'{skip}:')
    A.stamp('G_done')

def build_kernel():
    A = Gen(); T = V_T
    Stream.nxt = 0; Stream.done = 0; Stream.pend = []; PV.pending = []
    A('.text')
    A(f'.globl {NAME}')
    A('.p2align 8')
    A(f'.type {NAME},@function')
    A(f'{NAME}:')
    A(f"""    s_cmp_ge_u32 s2, 256
    s_cbranch_scc1 K_END
    s_load_dwordx4 s[{S_F0}:{S_F0+3}], s[0:1], 8
    s_load_dwordx2 s[{S_WS}:{S_WS+1}], s[0:1], 72
    s_load_dwordx2 s[{S_Q}:{S_Q+1}], s[0:1], 0
    s_load_dwordx8 s[{S_WQ}:{S_WQ+7}], s[0:1], 24
    s_load_dwordx2 s[{S_OUT}:{S_OUT+1}], s[0:1], 56
    s_mov_b32 s{S_WG}, s2
    s_mov_b32 s{S_SPIN}, 0
    v_and_b32 v{V_LANE}, 63, v0
    v_lshrrev_b32 v1, 6, v0
    v_lshlrev_b32 v{V_L16}, 4, v{V_LANE}
    v_readfirstlane_b32 s{S_WAVE}, v1
    v_lshrrev_b32 v2, 4, v{V_LANE}        ; g
    v_and_b32 v3, 15, v{V_LANE}           ; i
    v_lshlrev_b32 v4, 4, v3
    v_mul_u32_u24 v5, 1536, v2
    v_add_u32 v{V_F0OFF}, v5, v4
    v_mul_u32_u24 v5, 768, v2
    v_add_u32 v{V_F1OFF}, v5, v4
    s_mul_i32 s{S_T}, s{S_WG}, 36
    s_add_u32 s{S_T}, s{S_T}, s{S_WAVE}
    s_mov_b32 s{S_ROLE}, {R_NONE}
    s_mov_b32 s{S_JOB}, 0
    s_and_b32 s{S_COPY}, s2, 7
    s_lshr_b32 s{S_TMP}, s2, 3            ; j
    s_cmp_lt_u32 s{S_COPY}, 2
    s_cbranch_scc1 ROLE_S
    s_cmp_eq_u32 s{S_COPY}, 4
    s_cbranch_scc1 ROLE_G
    s_cmp_eq_u32 s{S_COPY}, 7
    s_cbranch_scc1 ROLE_DONE
    s_cmp_ge_u32 s{S_COPY}, 5
    s_cselect_b32 s{S_TMP+1}, 3, 2
    s_sub_u32 s{S_TMP+1}, s{S_COPY}, s{S_TMP+1}   ; 2,3,5,6 -> 0,1,2,3
    s_lshl_b32 s{S_TMP+1}, s{S_TMP+1}, 5
    s_add_u32 s{S_JOB}, s{S_TMP+1}, s{S_TMP}
    s_mov_b32 s{S_ROLE}, {R_R}
    s_branch ROLE_DONE
ROLE_S:
    s_cmp_ge_u32 s{S_TMP}, 24
    s_cbranch_scc1 ROLE_DONE
    s_mov_b32 s{S_JOB}, s{S_TMP}
    s_mov_b32 s{S_ROLE}, {R_S1}
    s_cmp_ge_u32 s{S_TMP}, 12
    s_cbranch_scc0 ROLE_DONE
    s_mul_i32 s{S_TMP+1}, s{S_COPY}, 12
    s_add_u32 s{S_JOB}, s{S_TMP}, s{S_TMP+1}
    s_sub_u32 s{S_JOB}, s{S_JOB}, 12
    s_mov_b32 s{S_ROLE}, {R_S2}
    s_branch ROLE_DONE
ROLE_G:
    s_cmp_ge_u32 s{S_TMP}, 24
    s_cbranch_scc1 ROLE_DONE
    s_mov_b32 s{S_JOB}, s{S_TMP}
    s_mov_b32 s{S_ROLE}, {R_G1}
    s_cmp_ge_u32 s{S_TMP}, 12
    s_cbranch_scc0 ROLE_DONE
    s_sub_u32 s{S_JOB}, s{S_TMP}, 12
    s_mov_b32 s{S_ROLE}, {R_G2}
ROLE_DONE:
    s_waitcnt lgkmcnt(0)
    s_load_dword s{S_EPOCH}, s[{S_WS}:{S_WS+1}], {WS_EPOCH}""")
    if O.stamp: A(f'    v_mov_b32 v{V_STAMP}, 0')
    A.stamp('entry')
    l2 = A.label('P2')
    A(f'    s_cmp_eq_u32 s{S_ROLE}, {R_S1}')
    A(f'    s_cbranch_scc0 {l2}')
    role_S1_loads(A)
    A(f'{l2}:')
    tile_bases(A, 0)
    hold = A.label('PH')
    A(f'    s_cmp_eq_u32 s{S_ROLE}, {R_S1}')
    A(f'    s_cbranch_scc1 {hold}')
    issue_next(A, O.l0)
    A(f'{hold}:')
    if O.cpf:
        lc = A.label('CPF')
        A(f'''    s_sub_u32 s{S_TMP}, s{S_WG}, 192
    s_cmp_lt_u32 s{S_TMP}, 64
    s_cbranch_scc0 {lc}
    s_cmp_ge_u32 s{S_WAVE}, 2
    s_cbranch_scc0 {lc}
    s_getpc_b64 s[72:73]
CPF_PC:
    s_lshr_b32 s{S_TMP}, s{S_TMP}, 3
    s_lshl_b32 s{S_TMP}, s{S_TMP}, 1
    s_and_b32 s{S_TMP+1}, s{S_WAVE}, 1
    s_add_u32 s{S_TMP}, s{S_TMP}, s{S_TMP+1}
    s_mul_i32 s{S_TMP}, s{S_TMP}, (((K_END - CPF_PC) / 128 + 16) / 16) * 128
    v_lshlrev_b32 v1, 7, v{V_LANE}
    v_add_u32 v1, s{S_TMP}, v1
    v_cmp_gt_u32 vcc, (((K_END - CPF_PC) / 128 + 16) / 16), v{V_LANE}
    v_min_u32 v1, (K_END - CPF_PC), v1
    s_and_saveexec_b64 s[{S_EX}:{S_EX+1}], vcc
    global_load_dword v248, v1, s[72:73]
    s_mov_b64 exec, s[{S_EX}:{S_EX+1}]
{lc}:''')
    if O.touch:
        lt = A.label('TCH')
        A(f'''    s_cmp_eq_u32 s{S_WAVE}, 2
    s_cbranch_scc0 {lt}
    v_mov_b32 v1, 0
    s_mov_b64 s[{S_EX}:{S_EX+1}], exec
    s_mov_b64 exec, 1
    global_load_dword v249, v1, s[{S_WS}:{S_WS+1}] offset:2048
    v_mov_b32 v2, {WS_PART}
    v_mov_b32 v3, {WS_PART + 0x200000}
    v_mov_b32 v4, {WS_PART + 0x3ff000}
    global_load_dword v249, v2, s[{S_WS}:{S_WS+1}]
    global_load_dword v249, v3, s[{S_WS}:{S_WS+1}]
    global_load_dword v249, v4, s[{S_WS}:{S_WS+1}]
    global_load_dword v249, v1, s[{S_WK}:{S_WK+1}]
    global_load_dword v249, v1, s[{S_WV}:{S_WV+1}]
    global_load_dword v249, v1, s[{S_WO}:{S_WO+1}]
    global_load_dword v249, v1, s[{S_OUT}:{S_OUT+1}]
    s_mov_b64 exec, s[{S_EX}:{S_EX+1}]
{lt}:''')
    A.stamp('issued')
    A(f"""    v_lshrrev_b32 v2, 4, v{V_LANE}
    v_and_b32 v3, 15, v{V_LANE}
    s_mul_i32 s{S_TMP}, s{S_WAVE}, 12288
    v_lshlrev_b32 v5, 2, v2
    v_add_u32 v5, v5, v3
    v_and_b32 v5, 15, v5
    v_lshlrev_b32 v5, 4, v5
    v_lshlrev_b32 v6, 8, v2
    v_add_u32 v5, v5, v6
    v_add_u32 v{V_LDSW}, s{S_TMP}, v5
    s_lshl_b32 s{S_TMP+1}, s{S_WAVE}, 10
    v_add_u32 v{V_LDSF}, s{S_TMP+1}, v5
    v_lshrrev_b32 v5, 2, v{V_LANE}
    v_and_b32 v5, 3, v5
    v_and_b32 v6, 3, v{V_LANE}
    v_lshrrev_b32 v7, 1, v2
    v_add_u32 v7, v7, v6
    v_lshlrev_b32 v7, 2, v7
    v_and_b32 v1, 1, v2
    v_lshlrev_b32 v1, 1, v1
    v_add_u32 v7, v7, v1
    v_lshrrev_b32 v1, 1, v5
    v_add_u32 v7, v7, v1
    v_and_b32 v1, 1, v5
    v_lshlrev_b32 v1, 3, v1
    v_lshlrev_b32 v6, 8, v6
    v_add3_u32 v6, v6, v1, s{S_TMP}
    v_and_b32 v1, 15, v7
    v_lshlrev_b32 v1, 4, v1
    v_add_u32 v{V_LDSR0}, v6, v1
    v_add_u32 v7, 8, v7
    v_and_b32 v1, 15, v7
    v_lshlrev_b32 v1, 4, v1
    v_add_u32 v{V_LDSR1}, v6, v1
    v_lshlrev_b32 v5, 3, v{V_LANE}
    v_add_u32 v{V_PR}, {L_QKL}, v5
    s_lshl_b32 s{S_TMP}, s{S_WAVE}, 9
    v_add_u32 v{V_PW}, s{S_TMP}, v{V_PR}
    v_add_u32 v{V_FR}, {L_QKL + 4096}, v{V_L16}
    s_lshl_b32 s{S_TMP}, s{S_WAVE}, 2
    v_add_u32 v{V_FW}, s{S_TMP}, v{V_FR}
    s_mov_b32 s{S_THR}, {lit(8.0)}
    v_lshlrev_b32 v5, 2, v3
    v_add_u32 v{V_MB}, {L_MBUF}, v5
    v_mov_b32 v{V_MREF}, 0xff800000
    ds_write_b32 v{V_MB}, v{V_MREF}
    v_lshlrev_b32 v5, 2, v2""")
    for r in range(4):
        A(f'    v_add_u32 v6, {r}, v5')
        A(f'    v_cmp_eq_u32 s[{S_MASK+2*r}:{S_MASK+2*r+1}], v6, v3')
    A(f"""    s_mov_b32 s{S_SELLO}, 0x{SEL_LO:08x}
    s_mov_b32 s{S_SELHI}, 0x{SEL_HI:08x}
    s_mov_b32 s{S_C384}, {lit(1/384)}
    v_mov_b32 v{V_EPS}, {lit(1e-5)}
    v_mov_b32 v{V_ONEF}, 1.0
    v_mov_b32 v{V_L}, 0
    v_mov_b32 v{V_U}, 0
    v_mov_b32 v{V_Q+4}, 0
    v_mov_b32 v1, 0x3f803f80""")
    for k in range(4):
        A(f'    v_accvgpr_write_b32 a{A_ONES+k}, v1')
    A(f"""    s_waitcnt lgkmcnt(0)
    s_mul_i32 s{S_TAG}, s{S_EPOCH}, 0x9E3779B1
    s_add_u32 s{S_TAG}, s{S_TAG}, 0x7F4A7C15""")
    def snapshot(): return (list(A.vm), set(A.done), Stream.nxt, Stream.done, list(Stream.pend))
    def restore(sn): A.vm, A.done, Stream.nxt, Stream.done, Stream.pend = list(sn[0]), set(sn[1]), sn[2], sn[3], list(sn[4])
    l1 = A.label('H1'); l2 = A.label('H2'); j0 = A.label('A0J')
    A(f'    s_cmp_eq_u32 s{S_ROLE}, {R_S1}')
    A(f'    s_cbranch_scc0 {l1}')
    sn = snapshot()
    role_S1_work(A)
    if O.s1mid:
        Stream.nxt = 3
        stage_A(A, 0, quota=2, stamp=False)
        assert Stream.nxt == O.l0 + 3
        A(f'    s_branch {j0}')
        restore(sn)
    else:
        A(f'    s_branch {l2}')
    A(f'{l1}:')
    A(f'    s_cmp_eq_u32 s{S_ROLE}, {R_S2}')
    A(f'    s_cbranch_scc0 {l2}')
    sn2 = snapshot()
    role_S2_addr(A)
    role_S2_loads(A)
    if O.qtouch:
        lt = A.label('QT')
        A(f"""    s_cmp_eq_u32 s{S_WAVE}, 0
    s_cbranch_scc0 {lt}
    s_mul_i32 s{S_TMP}, s{S_COPY}, 12
    s_sub_u32 s{S_TMP}, s{S_JOB}, s{S_TMP}        ; 0..11
    s_lshl_b32 s{S_TMP}, s{S_TMP}, 11
    s_lshl_b32 s{S_TMP+1}, s{S_COPY}, 15
    s_add_u32 s{S_TMP}, s{S_TMP}, s{S_TMP+1}
    s_add_u32 s{S_TMP}, s{S_TMP}, {WS_QGA}
    v_and_b32 v1, 15, v{V_LANE}
    v_lshlrev_b32 v1, 7, v1
    v_add_u32 v1, s{S_TMP}, v1
    global_load_dword v248, v1, s[{S_WS}:{S_WS+1}]
{lt}:""")
    stage_A(A, 0, quota=O.s2q, stamp=False)
    role_S2_stage(A)
    gather_addr(A, WS_QGA)
    A(f'    s_lshl_b32 s{S_TMP}, s{S_COPY}, 15')
    A(f'    v_add_u32 v{V_GA}, s{S_TMP}, v{V_GA}')
    A.vmall()
    A.stamp('s2_poll')
    gather_loop_dual(A, WS_QGB - WS_QGA, O.na)
    flush_pend()
    issue_next(A, O.l0 + O.q0 - Stream.nxt)
    role_S2_work(A, True)
    assert Stream.nxt == O.l0 + O.q0
    A(f'    s_branch {j0}')
    restore(sn2)
    A(f'{l2}:')
    stage_A(A, 0, quota=O.q0, stamp=False)
    A(f'{j0}:')
    A.stamp('A0')
    epilogue_addresses(A)
    def run_sched(sched, tag, qa=None, qb=None):
        qa = O.qa if qa is None else qa; qb = O.qb if qb is None else qb
        for i, st in enumerate(sched):
            k = int(st[1])
            if st[0] == 'A':
                stage_A(A, k, quota=qa, stamp=tag)
            else:
                nxtB = next((j for j in range(i + 1, len(sched)) if sched[j][0] == 'B'), len(sched))
                strict = any(x[0] == 'A' and int(x[1]) % 3 == k % 3 for x in sched[i + 1:nxtB]) or k == 8
                ia = next((j for j in range(i) if sched[j] == f'A{k}'), -1)
                fresh = ia >= 0 and not any(x[0] == 'B' for x in sched[ia + 1:i])
                stage_B(A, k, quota=qb, defer=(O.defer and k != 8), strict=strict, fresh=fresh, stamp=tag)
    def zero_o():
        A.nop(2)
        for k in range(24): A(f'    v_mov_b32 v{V_O+k}, 0')
    attempt = lambda: gather_issue(A, 'qk')
    raise_l = lambda: (enqueue(A), flush_pend())
    jend = A.label('MEND')
    if O.rolesched:
        lc = A.label('MCOMMON')
        sn = snapshot()
        A(f'    s_sub_u32 s{S_TMP}, s{S_ROLE}, 1')
        A(f'    s_cmp_lt_u32 s{S_TMP}, 2')
        A(f'    s_cbranch_scc0 {lc}')
        gather_addr(A, WS_QKG)
        rh = {O.rolesched - 1: attempt} if O.rolesched <= 3 else {}
        stage_A(A, 1, rh, stamp=False)
        enqueue(A, O.rextra); flush_pend()
        zero_o()
        get_qk(A, stamp=False)
        run_sched(O.sched_role.split(), False, O.rqa, O.rqb)
        assert Stream.nxt >= 27 and not PV.pending
        A(f'    s_branch {jend}')
        A(f'{lc}:')
        restore(sn); PV.pending = []
    stage_A(A, 1, stamp=False)
    A.stamp('A1')
    gather_addr(A, WS_QKG)
    if O.raise_at == 'A1': raise_l()
    if O.attempt == 'A1': attempt()
    hooks = {}
    if O.attempt == 'A2a': hooks[0] = attempt
    if O.attempt == 'A2b': hooks[1] = attempt
    if O.hold:
        h = O.hold
        if h == 1:   hooks = {1: lambda: (attempt(), enqueue(A, 2))}
        elif h == 2: hooks = {0: lambda: (attempt(), enqueue(A, 1)), 1: lambda: enqueue(A, 1)}
        elif h == 3: hooks = {2: lambda: (attempt(), enqueue(A, 2))}
        stage_A(A, 2, hooks, quota=1)
    else:
        stage_A(A, 2, hooks)
    if O.attempt == 'A2' and not O.hold: attempt()
    if O.raise_at == 'A2': raise_l()
    enqueue(A, O.extra); flush_pend()
    zero_o()
    get_qk(A)
    run_sched(O.sched.split(), True)
    A(f'{jend}:')
    epilogue(A)
    lr = A.label('TR'); lg = A.label('TG')
    A(f'    s_cmp_eq_u32 s{S_ROLE}, {R_R}')
    A(f'    s_cbranch_scc0 {lr}')
    role_R(A)
    A('    s_branch K_FIN')
    A(f'{lr}:')
    A(f'    s_cmp_eq_u32 s{S_ROLE}, {R_G1}')
    A(f'    s_cbranch_scc1 {lg}')
    A(f'    s_cmp_eq_u32 s{S_ROLE}, {R_G2}')
    A(f'    s_cbranch_scc0 K_FIN')
    A(f'{lg}:')
    role_G(A)
    A('K_FIN:')
    if O.stamp and O.dbg:
        A('    s_waitcnt vmcnt(0)')
        A.stamp('end')
        A(f"""    s_cmp_eq_u32 s{S_WG}, {O.dbgwg}
    s_cbranch_scc0 K_END
    s_cmp_eq_u32 s{S_WAVE}, 0
    s_cbranch_scc0 K_END
    s_load_dwordx2 s[42:43], s[0:1], 64
    v_readlane_b32 s44, v{V_STAMP}, 0
    v_lshlrev_b32 v4, 2, v{V_LANE}
    s_waitcnt lgkmcnt(0)
    v_subrev_u32 v5, s44, v{V_STAMP}
    v_cmp_gt_u32 vcc, 16, v{V_LANE}
    s_and_saveexec_b64 s[{S_EX}:{S_EX+1}], vcc
    global_store_dword v4, v5, s[42:43]
    s_mov_b64 exec, s[{S_EX}:{S_EX+1}]""")
    elif O.stamp:
        A('    s_waitcnt vmcnt(0)')
        A.stamp('end')
        A(f"""    s_lshl_b32 s42, s{S_WG}, 2
    s_add_u32 s42, s42, s{S_WAVE}
    s_lshl_b32 s42, s42, 8
    s_add_u32 s42, s42, {WS_STAMP}
    v_lshlrev_b32 v4, 2, v{V_LANE}
    v_add_u32 v4, s42, v4
    global_store_dword v4, v{V_STAMP}, s[{S_WS}:{S_WS+1}]""")
    A('K_END:')
    A('    s_endpgm')
    assert Stream.nxt >= 27
    return A

DESIGN = """;
; Roles are placed by (workgroup id & 7) so that S1/S2 and G1/G2 usually share an XCD; both a plain and a
"""

def build():
    A = build_kernel()
    txt = A.text()
    for p in check_hazards(txt): print('HAZARD', p, file=sys.stderr)
    ref = open('standalone__detection_seg_dino__vision.s.ref').read().split('\n')
    top = [l for l in ref if l.startswith(';') and '@launch' not in l and 'Override launch' not in l and 'grid=ceil' not in l][:12]
    out = '\n'.join(top) + '\n'
    out += f'; @launch grid=(256,1,1) block=(256,1,1) lds={LDS_BYTES}\n'
    out += DESIGN
    out += '.amdgcn_target "amdgcn-amd-amdhsa--gfx950"\n' + txt
    out += f""".section .rodata,"a"
.p2align 6
.amdhsa_kernel {NAME}
  .amdhsa_next_free_vgpr {256 + NACC}
  .amdhsa_next_free_sgpr 96
  .amdhsa_accum_offset 256
  .amdhsa_group_segment_fixed_size 0
  .amdhsa_kernarg_size 80
  .amdhsa_user_sgpr_count 2
  .amdhsa_user_sgpr_kernarg_segment_ptr 1
  .amdhsa_system_sgpr_workgroup_id_x 1
  .amdhsa_float_denorm_mode_32 3
.end_amdhsa_kernel
"""
    return out, A.labels

if __name__ == '__main__':
    path = sys.argv[1]
    for o in (sys.argv[2].split(',') if len(sys.argv) > 2 else []):
        if o == 'stamp': O.stamp = True
        elif o == 'plain': O.nt = ''
        elif o == 'nodefer': O.defer = False
        elif o == 'nocpf': O.cpf = False
        elif o.startswith('rqa='): O.rqa = int(o[4:])
        elif o.startswith('rqb='): O.rqb = int(o[4:])
        elif o.startswith('rextra='): O.rextra = int(o[7:])
        elif o == 'mlni': O.mlni = True
        elif o.startswith('rolesched='): O.rolesched = int(o[10:])
        elif o.startswith('sched_role='): O.sched_role = o[11:].replace('-', ' ')
        elif o.startswith('s1early='): O.s1early = int(o[8:])
        elif o.startswith('s2q='): O.s2q = int(o[4:])
        elif o == 'qtouch': O.qtouch = True
        elif o.startswith('na='): O.na = int(o[3:])
        elif o == 'latef': O.earlyf = False
        elif o.startswith('rthr='): O.rthr = int(o[5:])
        elif o.startswith('s2n='): O.s2n = int(o[4:])
        elif o.startswith('dbg='): O.stamp = True; O.dbgwg = int(o[4:]); O.dbg = ['entry','issued','head','A0','A1','A2','Qk','B0','B4','B8','pub','R_ml','R_done','G2_in','G_done','end']
        elif o == 's1mid': O.s1mid = True
        elif o == 'eager': O.lazy = False
        elif o.startswith('q0='): O.q0 = int(o[3:])
        elif o == 'rcomb': O.rcomb = True
        elif o.startswith('hold='): O.hold = int(o[5:])
        elif o.startswith('s2mode='): O.s2mode = o[7:]
        elif o == 's2drain': O.s2drain = True
        elif o == 'touch': O.touch = True
        elif o.startswith('fine='): O.fine = int(o[5:])
        elif o.startswith('qa='): O.qa = int(o[3:])
        elif o.startswith('s2att='): O.s2att = int(o[6:])
        elif o.startswith('qb='): O.qb = int(o[3:])
        elif o.startswith('att='): O.attempt = o[4:]
        elif o.startswith('extra='): O.extra = int(o[6:])
        elif o.startswith('l0='): O.l0 = int(o[3:])
        elif o.startswith('raise='): O.raise_at = o[6:]
        elif o.startswith('sched='): O.sched = o[6:].replace('-', ' ')
    out, labels = build()
    open(path, 'w').write(out)
    if O.stamp: open(path + '.labels', 'w').write(','.join(labels))
    print('wrote', path, len(out), 'bytes;', out.count('\n'), 'lines')
```
